```python
import torch

def _softmax(x, axis=-1):
    return torch.softmax(x, dim=axis)
def _gelu(x):
    return torch.nn.functional.gelu(x, approximate="tanh")
def _silu(x):
    return torch.nn.functional.silu(x)
def _sigmoid(x):
    return torch.sigmoid(x)
def _layernorm(x, axis=-1, eps=1e-5):
    m = x.mean(dim=axis, keepdim=True)
    v = x.var(dim=axis, keepdim=True, unbiased=False)
    return (x - m) / torch.sqrt(v + eps)
def _scatter_add(tgt, idx, src, axis=0):
    return tgt.clone().index_add_(axis, idx, src)
def _segment_sum(src, seg, n):
    out = torch.zeros((n,) + src.shape[1:], dtype=src.dtype)
    return out.index_add_(0, seg, src)
def _pad(x, pw):
    flat = tuple(v for pair in reversed(pw) for v in pair)
    return torch.nn.functional.pad(x, flat)

kernel_name = 'recurrent_scan__ssm_conv_h3__dense_activation_gelu__prompt'

def setup_inputs():

    _w = (lambda a: (lambda t: t.to(torch.bfloat16) if t.is_floating_point() else t)(torch.as_tensor(a)))
    def _A_setup():
        B, S, D = 1, 2048, 512
        ks = 4
        return {
            "q": _w((lambda *s: torch.randn(*s, dtype=torch.bfloat16) * 0.05)(B, S, D)),
            "k": _w((lambda *s: torch.randn(*s, dtype=torch.bfloat16) * 0.8)(B, S, D)),
            "v": _w((lambda *s: torch.randn(*s, dtype=torch.bfloat16) * 0.8)(B, S, D)),
            "shift_k": _w((lambda *s: torch.randn(*s, dtype=torch.bfloat16) * 0.8)(D, ks) * 0.5),
            "ssm_k": _w((lambda *s: torch.randn(*s, dtype=torch.bfloat16) * 0.8)(D, S) * (1.0 / S ** 0.5)),
            "ssm_D": _w((lambda *s: torch.randn(*s, dtype=torch.bfloat16) * 0.8)(D)),
        }
    _A_in = _A_setup()

    def _B_setup():
        B, S, D, F = 1, 2048, 512, 1792
        return {
            "x": _w((lambda *s: torch.randn(*s, dtype=torch.bfloat16) * 0.05)(B, S, D)),
            "w1": _w((lambda *s: torch.randn(*s, dtype=torch.bfloat16) * 0.2)(D, F) * (D ** -0.5)),
            "b1": _w((lambda *s: torch.randn(*s, dtype=torch.bfloat16) * 0.2)(F) * 0.01),
            "w2": _w((lambda *s: torch.randn(*s, dtype=torch.bfloat16) * 0.2)(F, D) * (F ** -0.5)),
            "b2": _w((lambda *s: torch.randn(*s, dtype=torch.bfloat16) * 0.2)(D) * 0.01),
        }
    _B_in = _B_setup()

    return {
        "A_q": _A_in["q"],
        "A_k": _A_in["k"],
        "A_v": _A_in["v"],
        "A_shift_k": _A_in["shift_k"],
        "A_ssm_k": _A_in["ssm_k"],
        "A_ssm_D": _A_in["ssm_D"],
        "B_x": _B_in["x"],
        "B_w1": _B_in["w1"],
        "B_b1": _B_in["b1"],
        "B_w2": _B_in["w2"],
        "B_b2": _B_in["b2"],
    }

def reference(A_q, A_k, A_v, A_shift_k, A_ssm_k, A_ssm_D, B_x, B_w1, B_b1, B_w2, B_b2):
    def _A_ref(q, k, v, shift_k, ssm_k, ssm_D):
        B, S, D = q.shape
        ks = shift_k.shape[-1]
        k_pad = _pad(k, ((0, 0), (ks - 1, 0), (0, 0)))
        k_shift = torch.zeros_like(k)
        for t in range(ks):
            k_shift = k_shift + k_pad[:, t:t + S, :] * shift_k[:, ks - 1 - t][None, None, :]
        kv = k_shift * v
        L = 2 * S
        kv_pad = _pad(kv, ((0, 0), (0, S), (0, 0)))
        kf_pad = _pad(ssm_k, ((0, 0), (0, S)))
        kv_f = (lambda x, axes=(-2,-1): torch.fft.rfft2(x.float(), dim=axes))(kv_pad[:, None, :, :], axes=(1, 2))
        kf_f = (lambda x, axes=(-2,-1): torch.fft.rfft2(x.float(), dim=axes))(kf_pad[:, None, :], axes=(1, 2))
        kf_f = (lambda x, *d: x.permute(*d))(kf_f, 1, 2, 0)
        y_f = kv_f * kf_f[None, :, :, :]
        y = (lambda x, s, axes=(-2,-1): torch.fft.irfft2(x, s=s, dim=axes).to(torch.bfloat16))(y_f, (1, L), axes=(1, 2))[:, 0, :S, :]
        y = y + kv * ssm_D[None, None, :]
        return q * y

    def _B_ref(x, w1, b1, w2, b2):
        h = torch.einsum("bsd,df->bsf", x, w1) + b1
        h = _gelu(h)
        return torch.einsum("bsf,fd->bsd", h, w2) + b2

    x = A_q
    xn = _layernorm(x, axis=-1)
    s = _A_ref(xn, A_k, A_v, A_shift_k, A_ssm_k, A_ssm_D)
    g = _silu(_B_ref(xn, B_w1, B_b1, B_w2, B_b2))
    return x + s * g
```

```python
import re

class Asm:
    def __init__(self):
        self.lines = []
        self.vm = []
        self.lg = []
        self.nlabel = 0
    def __call__(self, s):
        for l in s.split("\n"):
            l = l.strip()
            if l: self.lines.append(l)
    def label(self, name): self.lines.append(name + ":")
    def newlabel(self, p="L"):
        self.nlabel += 1
        return f"{p}_{self.nlabel}"
    def vmem(self, s, tag=None):
        self(s); self.vm.append(tag)
        assert len(self.vm) <= 63, "vmcnt overflow"
    def lds(self, s, tag=None):
        if len(self.lg) >= 15:
            self(f"s_waitcnt lgkmcnt(14)"); self.lg = self.lg[-14:]
        self(s); self.lg.append(tag)
    def _need(self, q, tags):
        last = -1
        for i, t in enumerate(q):
            if t in tags: last = i
        return last
    def wait(self, vm=None, lg=None):
        parts = []
        if vm is not None:
            if vm == "all":
                parts.append("vmcnt(0)"); self.vm = []
            else:
                tags = vm if isinstance(vm, (list, tuple, set)) else [vm]
                last = self._need(self.vm, tags)
                if last >= 0:
                    parts.append(f"vmcnt({len(self.vm)-1-last})"); self.vm = self.vm[last+1:]
        if lg is not None:
            if lg == "all":
                parts.append("lgkmcnt(0)"); self.lg = []
            else:
                tags = lg if isinstance(lg, (list, tuple, set)) else [lg]
                last = self._need(self.lg, tags)
                if last >= 0:
                    parts.append(f"lgkmcnt({len(self.lg)-1-last})"); self.lg = self.lg[last+1:]
        if parts: self("s_waitcnt " + " ".join(parts))
    def text(self): return "\n".join(self.lines) + "\n"

def v(i, n=1): return f"v{i}" if n == 1 else f"v[{i}:{i+n-1}]"
def s(i, n=1): return f"s{i}" if n == 1 else f"s[{i}:{i+n-1}]"

_reg = re.compile(r"\b([vs])(\d+)\b|\b([vs])\[(\d+):(\d+)\]|\b(vcc|exec|m0)\b")
def regs(op):
    out = set()
    for m in _reg.finditer(op):
        if m.group(1): out.add((m.group(1), int(m.group(2))))
        elif m.group(3): out.update((m.group(3), i) for i in range(int(m.group(4)), int(m.group(5))+1))
        else: out.add((m.group(6), 0))
    return out
TRANS = ("v_exp_f32", "v_log_f32", "v_rcp_f32", "v_rsq_f32", "v_sqrt_f32", "v_sin_f32", "v_cos_f32")
def split_ops(rest):
    ops, depth, cur = [], 0, ""
    for ch in rest:
        if ch == "[": depth += 1
        if ch == "]": depth -= 1
        if ch == "," and depth == 0: ops.append(cur.strip()); cur = ""
        else: cur += ch
    if cur.strip(): ops.append(cur.strip())
    return ops
def parse(line):
    line = line.split(";")[0].strip()
    if not line or line.endswith(":") or line.startswith("."): return None
    p = line.split(None, 1)
    mn = p[0]; ops = split_ops(p[1]) if len(p) > 1 else []
    d = dict(mn=mn, line=line, w=set(), r=set(), cls="other", states=1, srcC=set(), srcAB=set(), data=set())
    if mn == "s_nop": d["states"] = int(ops[0], 0) + 1; return d
    if mn.startswith("v_mfma"):
        d["cls"] = "mfma"; d["w"] = regs(ops[0]); d["srcAB"] = regs(ops[1]) | regs(ops[2]); d["srcC"] = regs(ops[3])
        d["r"] = d["srcAB"] | d["srcC"]; d["passes"] = 8 if "32x32" in mn else 4
    elif mn.startswith("v_"):
        d["cls"] = "valu"
        d["w"] = regs(ops[0]); rs = ops[1:]
        if mn.startswith(("v_add_co", "v_addc_co", "v_sub_co")): d["w"] |= regs(ops[1]); rs = ops[2:]
        for o in rs: d["r"] |= regs(o)
        if mn.startswith(("v_fmac", "v_dot2c", "v_writelane")) or "_dpp" in mn: d["r"] |= regs(ops[0])
        if mn.startswith("v_permlane"): d["r"] |= regs(ops[0]); d["w"] |= regs(ops[1])
        if mn.startswith("v_cmpx"): d["w"].add(("exec", 0))
        d["trans"] = mn.startswith(TRANS)
    elif mn.startswith("ds_"):
        d["cls"] = "ds"
        if mn.startswith("ds_read") or "_rtn" in mn:
            d["w"] = regs(ops[0]); [d["r"].update(regs(o)) for o in ops[1:]]
        else: [d["r"].update(regs(o)) for o in ops]
        if "addtid" in mn: d["r"].add(("m0", 0))
    elif mn.startswith(("buffer_", "global_")):
        d["cls"] = "vmem"
        islds = line.rstrip().endswith(" lds")
        if "load" in mn and not islds:
            d["w"] = regs(ops[0]); [d["r"].update(regs(o)) for o in ops[1:]]
        else:
            [d["r"].update(regs(o)) for o in ops]
            if "store" in mn and ("x4" in mn or "x3" in mn):
                d["data"] = regs(ops[0]) if mn.startswith("buffer_") else regs(ops[1])
        if islds: d["r"].add(("m0", 0))
    elif mn.startswith("s_"):
        d["cls"] = "salu"
        if ops and not mn.startswith(("s_cmp", "s_waitcnt", "s_cbranch", "s_branch", "s_barrier", "s_sleep", "s_setprio", "s_endpgm")):
            d["w"] = regs(ops[0]); [d["r"].update(regs(o)) for o in ops[1:]]
            if "saveexec" in mn: d["w"].add(("exec", 0))
    return d
def check(lines):
    ins = [x for x in (parse(l) for l in lines) if x]
    errs = []
    for i, c in enumerate(ins):
        dist = 0
        for jn in range(i-1, max(-1, i-24), -1):
            p = ins[jn]
            if p["mn"] in ("s_branch", "s_endpgm"): break
            need = 0
            vw = {x for x in p["w"] if x[0] == "v"}; sw = {x for x in p["w"] if x[0] in ("s", "vcc")}
            if p["cls"] == "valu":
                if c["cls"] == "mfma" and vw & c["r"]: need = max(need, 2)
                if c["cls"] == "valu":
                    if p.get("trans") and not c.get("trans") and vw & c["r"]: need = max(need, 1)
                    if p.get("trans") and c.get("trans") and vw & c["r"]: need = max(need, 1)
                    if c["mn"].startswith("v_permlane") and vw & c["r"]: need = max(need, 2)
                    if "_dpp" in c["mn"] and vw & c["r"]: need = max(need, 2)
                    if c["mn"].startswith(("v_readlane", "v_readfirstlane")) and vw & c["r"]: need = max(need, 1)
                    if sw & c["r"]: need = max(need, 2)
                if c["cls"] in ("ds", "vmem") and p.get("trans") and vw & c["r"]: need = max(need, 1)
                if c["cls"] == "vmem" and sw & c["r"]: need = max(need, 5)
                if ("exec", 0) in p["w"] and (c["cls"] == "mfma" or c["mn"].startswith(("v_readlane", "v_readfirstlane", "v_permlane"))): need = max(need, 4)
            if p["cls"] == "salu" and ("m0", 0) in p["w"] and ("m0", 0) in c["r"] and c["cls"] in ("ds", "vmem"): need = max(need, 1)
            if p["cls"] == "vmem" and p["data"] & {x for x in c["w"]} and c["cls"] != "salu": need = max(need, 2)
            if p["cls"] == "mfma":
                P = p["passes"]
                if c["cls"] == "mfma":
                    if p["w"] & c["srcAB"]: need = max(need, {4: 8, 8: 12}[P])
                    if p["w"] & c["srcC"] and not (p["w"] == c["srcC"] and P == c["passes"]): need = max(need, {4: 6, 8: 10}[P])
                    if p["w"] & c["w"] and not (p["w"] == c["w"] and P == c["passes"]): need = max(need, {4: 8, 8: 12}[P])
                elif c["cls"] in ("valu", "ds", "vmem"):
                    if p["w"] & (c["r"] | c["w"]): need = max(need, {4: 8, 8: 12}[P])
                    if c["cls"] == "valu" and p["srcC"] & c["w"]: need = max(need, {4: 3, 8: 7}[P])
            if need > dist: errs.append(f"hazard: need {need} have {dist}:\n    {p['line']}\n    {c['line']}")
            dist += p["states"]
    return errs
```

```python
import sys, struct
from asmlib import Asm, v, s, check

NAME = "recurrent_scan__ssm_conv_h3__dense_activation_gelu__prompt_kernel"
def f32(x): return "0x%08x" % struct.unpack("<I", struct.pack("<f", x))[0]

WS_CNT, WS_STATS, WS_STAMP, WS_UR, WS_Y, WS_H = 0, 0x20000, 0x40000, 0x100000, 0x300000, 0x500000
WS_SIZE = 0x500000 + 64*112*1024
CNT_UR, CNT_H, CNT_Y = 0, 128, 256
L_Q, L_W, L_KST = 0, 49152, 98304
L_VST = L_KST + 9*1024
L_CT = 115712; CH_STRIDE = 17600; H_STRIDE = 4224; U_OFF = 8448; U_STRIDE = 4576
L_MISC = L_CT + 2*CH_STRIDE
L_YST = L_MISC
L_CS = L_YST + 8192
L_SYNC = L_CS + 1024
LDS_BYTES = L_SYNC + 64
SPIN_MAX = 1 << 17

P_Q, P_K, P_V, P_SH, P_SSM, P_D, P_BX, P_W1, P_B1, P_W2, P_B2, P_OUT, P_DBG, P_WS = range(4, 32, 2)
S_WV, S_XCD, S_J, S_R, S_C, S_KC0, S_R2, S_C2, S_OFF, S_WAVE = range(32, 42)
S_A, S_B, S_T0, S_T1, S_T2, S_T3 = range(42, 48)
R_Q, R_K, R_V, R_W1, R_WS, R_DBG, R_W2, R_SSM, R_UR, R_OUT = range(48, 88, 4)
S_U0, S_U1, S_U2, S_U3, S_U4, S_U5, S_SPIN, S_PUB = range(88, 96)
S_EX = 96
S_ST = 100

class Cfg:
    stamps = False
    flip = 1
    code_pf = True

def srd(a, R, P, size, add=None):
    if add is None:
        a(f"s_mov_b32 s{R}, s{P}\ns_and_b32 s{R+1}, s{P+1}, 0xffff")
    else:
        a(f"s_add_u32 s{R}, s{P}, {add}\ns_addc_u32 s{R+1}, s{P+1}, 0\ns_and_b32 s{R+1}, s{R+1}, 0xffff")
    a(f"s_mov_b32 s{R+2}, {size}\ns_mov_b32 s{R+3}, 0x20000")

def gen(cfg):
    a = Asm()
    def stamp(i):
        if cfg.stamps:
            a(f"s_memrealtime s[{S_ST}:{S_ST+1}]\ns_waitcnt lgkmcnt(0)\nv_writelane_b32 v255, s{S_ST}, {i}")
            a.lg = []
    def flush_stamps():
        if cfg.stamps:
            a(f"s_lshl_b32 s{S_T0}, s2, 3\ns_add_u32 s{S_T0}, s{S_T0}, s{S_WAVE}\ns_lshl_b32 s{S_T0}, s{S_T0}, 8\ns_add_u32 s{S_T0}, s{S_T0}, {WS_STAMP}")
            a(f"v_mbcnt_lo_u32_b32 v254, -1, 0\nv_mbcnt_hi_u32_b32 v254, -1, v254\nv_lshlrev_b32 v254, 2, v254")
            a(f"buffer_store_dword v255, v254, s[{R_WS}:{R_WS+3}], s{S_T0} offen")
    def poll(vaddr, vdata, R, soff, expect, issued=False):
        L = a.newlabel("Lpoll"); D = a.newlabel("Lpolld"); C = a.newlabel("Lpollc")
        a(f"s_mov_b32 s{S_SPIN}, 0")
        if issued: a(f"s_branch {C}")
        a.label(L)
        a(f"buffer_load_dword v{vdata}, v{vaddr}, s[{R}:{R+3}], {soff} offen sc1")
        a(f"s_waitcnt vmcnt(0)")
        a.label(C)
        a(f"v_cmp_ne_u32 vcc, {expect}, v{vdata}")
        a(f"s_add_u32 s{S_SPIN}, s{S_SPIN}, 1\ns_cmp_gt_u32 s{S_SPIN}, {SPIN_MAX}\ns_cbranch_scc1 {D}")
        a(f"s_cbranch_vccnz {L}")
        a.label(D)
        if not issued: a.vm = []
    def lds_sync(word, vtmp, vone):
        L = a.newlabel("Lsy"); D = a.newlabel("Lsyd")
        a.wait(lg="all")
        a(f"v_mov_b32 v{vtmp}, {L_SYNC + 4*word}\nv_mov_b32 v{vone}, 1")
        a(f"s_mov_b64 exec, 1\nds_add_u32 v{vtmp}, v{vone}\ns_mov_b64 exec, -1")
        a(f"s_mov_b32 s{S_SPIN}, 0")
        a.label(L)
        a(f"ds_read_b32 v{vone}, v{vtmp}\ns_waitcnt lgkmcnt(0)")
        a(f"v_cmp_ne_u32 vcc, 4, v{vone}")
        a(f"s_add_u32 s{S_SPIN}, s{S_SPIN}, 1\ns_cmp_gt_u32 s{S_SPIN}, {SPIN_MAX*8}\ns_cbranch_scc1 {D}")
        a(f"s_cbranch_vccnz {L}")
        a.label(D)
    def signal(cnt_sgpr, vone):
        a(f"v_mov_b32 v{vone}, 1\ns_mov_b64 exec, 1")
        a.vmem(f"buffer_atomic_add v{vone}, off, s[{R_WS}:{R_WS+3}], s{cnt_sgpr} sc1")
        a("s_mov_b64 exec, -1")

    a.label(NAME)
    a("s_cmp_ge_u32 s2, 256\ns_cbranch_scc1 L_end")
    a("s_load_dwordx16 s[4:19], s[0:1], 0\ns_load_dwordx8 s[20:27], s[0:1], 64\ns_load_dwordx4 s[28:31], s[0:1], 96")
    if cfg.stamps: a("v_mov_b32 v255, 0")
    a("v_lshrrev_b32 v1, 6, v0\nv_and_b32 v0, 63, v0")
    a(f"v_readfirstlane_b32 s{S_WAVE}, v1")
    a(f"s_and_b32 s{S_XCD}, s2, 7\ns_lshr_b32 s{S_J}, s2, 3")
    a(f"s_and_b32 s{S_T0}, s{S_XCD}, 3\ns_lshr_b32 s{S_T1}, s{S_XCD}, 2")
    a(f"s_and_b32 s{S_T2}, s{S_J}, 3\ns_lshr_b32 s{S_C2}, s{S_J}, 2")
    a(f"s_lshl2_add_u32 s{S_R}, s{S_T0}, s{S_T2}")
    a(f"s_lshl3_add_u32 s{S_C}, s{S_T1}, s{S_C2}")
    a(f"s_lshl1_add_u32 s{S_R2}, s{S_R}, s{S_T1}")
    a(f"s_lshl1_add_u32 s{S_KC0}, s{S_T2}, s{S_C2}\ns_and_b32 s{S_T0}, s{S_T0}, 1")
    a(f"s_add_u32 s{S_KC0}, s{S_KC0}, s{S_T0}\ns_and_b32 s{S_KC0}, s{S_KC0}, 7")
    a(f"s_mul_i32 s{S_OFF}, s{S_KC0}, 7\ns_lshr_b32 s{S_OFF}, s{S_OFF}, 1")
    a(f"s_and_b32 s{S_WV}, s{S_WAVE}, 3")
    a(f"s_cmp_ge_u32 s{S_WAVE}, 4")
    a("s_cbranch_scc1 L_M" if cfg.flip else "s_cbranch_scc0 L_M")

    gen_x(a, cfg, stamp, flush_stamps, poll, lds_sync, signal)
    a.vm = []; a.lg = []
    a(".p2align 6")
    a.label("L_M")
    gen_m(a, cfg, stamp, flush_stamps, poll, lds_sync, signal)
    a.label("L_end")
    a("s_endpgm")
    a.label("L_code_end")
    return a

def w2_dma(a, i, vA, vB, tag):
    ii = i % 14
    a(f"s_add_u32 s{S_T0}, s{S_A}, {i*16384}\ns_sub_u32 s{S_T1}, s{S_T0}, {28*16384}\ns_min_u32 s{S_T0}, s{S_T0}, s{S_T1}")
    a(f"s_add_u32 m0, s{S_B}, {ii*8192}\ns_nop 0")
    a.vmem(f"buffer_load_dwordx4 v{vA}, s[{R_W2}:{R_W2+3}], s{S_T0} offen lds", tag)
    a.vmem(f"buffer_load_dwordx4 v{vB}, s[{R_W2}:{R_W2+3}], s{S_T0} offen offset:1024 lds", tag)
def w2_addr(a, vA, vB, t0, t1):
    a(f"v_lshrrev_b32 v{t0}, 2, v0\nv_and_b32 v{t0}, 4, v{t0}\nv_and_b32 v{t1}, 7, v0\nv_xor_b32 v{t0}, v{t0}, v{t1}\nv_lshlrev_b32 v{t0}, 4, v{t0}")
    a(f"v_lshrrev_b32 v{t1}, 3, v0\nv_lshl_add_u32 v{vA}, v{t1}, 10, v{t0}")
    a(f"s_mul_i32 s{S_T0}, s{S_WV}, {448*1024}\ns_lshl_b32 s{S_T1}, s{S_C2}, 7\ns_add_u32 s{S_T0}, s{S_T0}, s{S_T1}")
    a(f"v_add_u32 v{vA}, s{S_T0}, v{vA}\nv_add_u32 v{vB}, {8192-1024}, v{vA}")
    a(f"s_lshl_b32 s{S_A}, s{S_OFF}, 14\ns_lshl_b32 s{S_B}, s{S_WV}, 11")

def gen_x(a, cfg, stamp, flush_stamps, poll, lds_sync, signal):
    VQ, VW, VKA, VKB, VHALO, TAPS = 1, 5, 9, 10, 11, 12
    T0, T1, T2, T3 = 16, 17, 18, 19
    x = S_WV
    a(f"v_lshrrev_b32 v{T0}, 3, v0\nv_and_b32 v{T1}, 7, v0\nv_lshrrev_b32 v{T2}, 4, v0")
    a(f"s_lshl_b32 s{S_T0}, s{x}, 1\ns_lshl_b32 s{S_T1}, s{x}, 14")
    a(f"v_xor_b32 v{T3}, s{S_T0}, v{T1}\nv_lshlrev_b32 v{T3}, 4, v{T3}\nv_lshl_add_u32 v{VKA}, v{T0}, 10, v{T3}\nv_add_u32 v{VKA}, s{S_T1}, v{VKA}")
    a(f"v_xor_b32 v{VKB}, 16, v{VKA}\nv_add_u32 v{VKB}, {8192-1024}, v{VKB}")
    a(f"v_xor_b32 v{T3}, 7, v{T1}\nv_lshlrev_b32 v{T3}, 4, v{T3}\nv_lshl_add_u32 v{VHALO}, v{T0}, 10, v{T3}")
    a(f"v_xor_b32 v{T3}, v{T2}, v{T1}\nv_lshlrev_b32 v{T3}, 4, v{T3}\nv_lshl_add_u32 v{VQ}, v{T0}, 10, v{T3}")
    a(f"s_lshl_b32 s{S_T0}, s{x}, 15\ns_lshl_b32 s{S_T1}, s{S_R}, 17\ns_add_u32 s{S_T0}, s{S_T0}, s{S_T1}")
    a(f"v_add_u32 v{VQ}, s{S_T0}, v{VQ}")
    a(f"v_xor_b32 v{VQ+1}, 64, v{VQ}\nv_add_u32 v{VQ+2}, {2*(8192-1024)}, v{VQ}\nv_add_u32 v{VQ+1}, {8192-1024}, v{VQ+1}\nv_add_u32 v{VQ+3}, {2*(8192-1024)}, v{VQ+1}")
    a(f"v_bfe_u32 v{T3}, v0, 1, 3\nv_xor_b32 v{T3}, v{T3}, v{T2}\nv_lshlrev_b32 v{T3}, 1, v{T3}\nv_and_b32 v{VW}, 1, v0\nv_or_b32 v{T3}, v{T3}, v{VW}\nv_lshlrev_b32 v{T3}, 4, v{T3}")
    a(f"v_xor_b32 v{VW+2}, 128, v{T3}")
    a(f"s_mul_i32 s{S_T0}, s{S_C}, 224\ns_and_b32 s{S_T0}, s{S_T0}, 0xffffffc0\ns_mul_i32 s{S_T1}, s{x}, {16*3584}\ns_add_u32 s{S_T0}, s{S_T0}, s{S_T1}")
    a(f"v_mul_u32_u24 v{T2}, 3584, v{T2}\nv_add_u32 v{T2}, s{S_T0}, v{T2}")
    d = 4*3584 - 1024
    a(f"v_add_u32 v{VW}, v{T2}, v{T3}\nv_add_u32 v{VW+2}, v{T2}, v{VW+2}\nv_add_u32 v{VW+1}, {d}, v{VW}\nv_add_u32 v{VW+2}, {2*d}, v{VW+2}\nv_add_u32 v{VW+3}, {d}, v{VW+2}")
    a(f"s_lshl_b32 s{S_T0}, s{S_XCD}, 9\ns_lshl_b32 s{S_T1}, s{x}, 7\ns_add_u32 s{S_T0}, s{S_T0}, s{S_T1}")
    a(f"v_lshl_add_u32 v{T0}, v{T0}, 4, s{S_T0}")
    a(f"s_lshl_b32 s{S_U0}, s{S_J}, 16\ns_lshl_b32 s{S_T1}, s{S_XCD}, 7\ns_add_u32 s{S_U0}, s{S_U0}, s{S_T1}")
    a(f"s_lshl_b32 s{S_U1}, s{x}, 12")
    a(f"s_lshl_b32 s{S_U2}, s{x}, 11")
    a("s_waitcnt lgkmcnt(0)")
    stamp(0)
    srd(a, R_K, P_K, 2 << 20); srd(a, R_V, P_V, 2 << 20); srd(a, R_Q, P_Q, 2 << 20); srd(a, R_W1, P_W1, 512*3584)
    def kv_loads():
        L = a.newlabel("Lnohalo")
        a(f"s_cmp_lg_u32 s{x}, 0\ns_cbranch_scc1 {L}")
        a(f"s_sub_u32 s{S_T0}, s{S_U0}, 8192\ns_cmp_eq_u32 s{S_J}, 0\ns_cselect_b32 s{S_T0}, 0, s{S_T0}\ns_cselect_b32 s{S_T1}, 0x80000000, 0")
        a(f"v_or_b32 v{VHALO}, s{S_T1}, v{VHALO}\ns_mov_b32 m0, {L_KST}\ns_nop 0")
        a(f"buffer_load_dwordx4 v{VHALO}, s[{R_K}:{R_K+3}], s{S_T0} offen lds")
        a.label(L)
        a(f"s_add_u32 m0, s{S_U2}, {L_KST+1024}\ns_nop 0")
        a.vmem(f"buffer_load_dwordx4 v{VKA}, s[{R_K}:{R_K+3}], s{S_U0} offen lds", "kv")
        a.vmem(f"buffer_load_dwordx4 v{VKB}, s[{R_K}:{R_K+3}], s{S_U0} offen offset:1024 lds", "kv")
        a(f"s_add_u32 m0, s{S_U2}, {L_VST}\ns_nop 0")
        a.vmem(f"buffer_load_dwordx4 v{VKA}, s[{R_V}:{R_V+3}], s{S_U0} offen lds", "kv")
        a.vmem(f"buffer_load_dwordx4 v{VKB}, s[{R_V}:{R_V+3}], s{S_U0} offen offset:1024 lds", "kv")
        a.vmem(f"global_load_dwordx4 v[{TAPS}:{TAPS+3}], v{T0}, s[{P_SH}:{P_SH+1}]", "kv")
    def chunk_ops(i):
        slot = i % 3
        ops = []
        def mk(kind, n):
            def f():
                if n == 0:
                    if kind == "q":
                        a(f"s_add_u32 s{S_T0}, s{S_KC0}, {i}\ns_and_b32 s{S_T0}, s{S_T0}, 7\ns_lshl_b32 s{S_U3}, s{S_T0}, 7\ns_mul_i32 s{S_U4}, s{S_T0}, {64*3584}")
                    a(f"s_add_u32 m0, s{S_U1}, {(L_Q if kind=='q' else L_W) + slot*16384}\ns_nop 0")
                off = f" offset:{1024*n}" if n else ""
                if kind == "q": a.vmem(f"buffer_load_dwordx4 v{VQ+n}, s[{R_Q}:{R_Q+3}], s{S_U3} offen{off} lds", f"c{i}")
                else: a.vmem(f"buffer_load_dwordx4 v{VW+n}, s[{R_W1}:{R_W1+3}], s{S_U4} offen{off} lds", f"c{i}")
            return f
        return [mk("q", n) for n in range(4)] + [mk("w", n) for n in range(4)]
    def chunk(i):
        for f in chunk_ops(i): f()
    kv_loads()
    chunk(0); chunk(1); chunk(2)
    stamp(1)
    srd(a, R_WS, P_WS, WS_SIZE); srd(a, R_DBG, P_DBG, 256); srd(a, R_W2, P_W2, 1792*1024); srd(a, R_OUT, P_OUT, 2 << 20)
    a(f"s_lshl_b32 s{S_T0}, s{S_XCD}, 6\ns_lshl1_add_u32 s{S_T0}, s{S_J}, s{S_T0}\ns_lshr_b32 s{S_T1}, s{x}, 1\ns_add_u32 s{S_U5}, s{S_T0}, s{S_T1}")
    a(f"s_lshl_b32 s{S_T0}, s{S_U5}, 12")
    srd(a, R_SSM, P_SSM, 4096, add=f"s{S_T0}")
    a(f"s_add_u32 s{S_T0}, s{S_T0}, {WS_UR}")
    srd(a, R_UR, P_WS, 4096, add=f"s{S_T0}")
    S_HB, S_UB = 98, 99
    a(f"s_mul_i32 s{S_T1}, s{S_T1}, {CH_STRIDE}\ns_and_b32 s{S_T2}, s{x}, 1")
    a(f"s_mul_i32 s{S_HB}, s{S_T2}, {H_STRIDE}\ns_add_u32 s{S_HB}, s{S_HB}, s{S_T1}\ns_add_u32 s{S_HB}, s{S_HB}, {L_CT+128}")
    a(f"s_mul_i32 s{S_UB}, s{S_T2}, {U_STRIDE}\ns_add_u32 s{S_UB}, s{S_UB}, s{S_T1}\ns_add_u32 s{S_UB}, s{S_UB}, {L_CT+U_OFF}")
    a(f"s_add_u32 s{S_T0}, s{S_UB}, 4096\ns_sub_u32 s{S_T1}, s{S_HB}, 512")
    a(f"v_mov_b32 v{T0}, s{S_T0}\nv_mov_b32 v{T1}, s{S_T1}\nv_cmp_gt_u32 vcc, 56, v0\nv_mov_b32 v20, 0\nv_mov_b32 v21, 0")
    a(f"v_cndmask_b32 v{T0}, v{T1}, v{T0}, vcc\nv_lshl_add_u32 v{T0}, v0, 3, v{T0}")
    a.lds(f"ds_write_b64 v{T0}, v[20:21]")
    a(f"v_mov_b32 v{T1}, {L_SYNC}")
    a.lds(f"ds_write_b64 v{T1}, v[20:21]")
    PK, PH, PV, PST = 20, 21, 22, 23
    a(f"v_and_b32 v{T0}, 7, v0\nv_lshrrev_b32 v{T1}, 5, v0\ns_lshl_b32 s{S_T0}, s{x}, 1")
    a.wait(lg="all")
    a(f"v_add_u32 v{T1}, s{S_T0}, v{T1}\nv_bfe_u32 v{T2}, v0, 3, 2\nv_lshlrev_b32 v{T2}, 2, v{T2}")
    a(f"v_lshl_add_u32 v{T2}, v{T0}, 10, v{T2}")
    a(f"v_xor_b32 v{T3}, v{T1}, v{T0}\nv_lshl_add_u32 v{PK}, v{T3}, 4, v{T2}")
    a(f"v_add_u32 v{PV}, {L_VST}, v{PK}\nv_add_u32 v{PK}, {L_KST+1024}, v{PK}")
    a(f"v_add_u32 v{T3}, 7, v{T0}\nv_and_b32 v{T3}, 7, v{T3}\nv_xor_b32 v{T3}, v{T1}, v{T3}\nv_lshl_add_u32 v{PH}, v{T3}, 4, v{T2}\nv_add_u32 v{PH}, {L_KST}, v{PH}")
    a(f"v_xor_b32 v{T3}, 7, v{T0}\nv_lshlrev_b32 v{T3}, 4, v{T3}\nv_lshrrev_b32 v{T1}, 3, v0\nv_lshl_add_u32 v{PST}, v{T1}, 13, v{T3}")
    VMK, VMD = 24, 25
    a(f"v_and_b32 v{VMK}, 7, v0\nv_lshlrev_b32 v{VMK}, 2, v{VMK}")
    W2A, W2B = 26, 27
    w2_addr(a, W2A, W2B, T0, T1)

    KR, VR = 32, 44
    KF, TF, VF, OUT = 56, 80, 88, 92
    ACC = 100
    prep = []
    P = prep.append
    P(("lds", f"ds_read_b32 v{KR+1}, v{PH} offset:{5*128}"))
    P(("lds", f"ds_read2_b32 v[{KR+2}:{KR+3}], v{PH} offset0:{6*32} offset1:{7*32}"))
    for i in range(4): P(("lds", f"ds_read2_b32 v[{KR+4+2*i}:{KR+5+2*i}], v{PK} offset0:{64*i} offset1:{64*i+32}"))
    for i in range(4): P(("lds", f"ds_read2_b32 v[{VR+2*i}:{VR+1+2*i}], v{PV} offset0:{64*i} offset1:{64*i+32}"))
    for m in range(4):
        P(("v", f"v_lshlrev_b32 v{TF+2*m}, 16, v{TAPS+m}")); P(("v", f"v_and_b32 v{TF+2*m+1}, 0xffff0000, v{TAPS+m}"))
    P(("waitlg",))
    for i in range(1, 12):
        P(("v", f"v_lshlrev_b32 v{KF+i}, 16, v{KR+i}")); P(("v", f"v_and_b32 v{KF+12+i}, 0xffff0000, v{KR+i}"))
    for e in range(2):
        for t in range(8):
            k0 = KF + 12*e + 4 + t
            P(("v", f"v_mul_f32 v{ACC+t}, v{k0-3}, v{TF+4*e+3}"))
        for tau in (2, 1, 0):
            for t in range(8):
                P(("v", f"v_fmac_f32 v{ACC+t}, v{KF+12*e+4+t-tau}, v{TF+4*e+tau}"))
        for t in range(8):
            P(("v", f"v_lshlrev_b32 v{VF+(t&1)}, 16, v{VR+t}" if e == 0 else f"v_and_b32 v{VF+(t&1)}, 0xffff0000, v{VR+t}"))
            P(("v", f"v_mul_f32 v{ACC+t}, v{ACC+t}, v{VF+(t&1)}"))
        for m in range(4):
            P(("v", f"v_cvt_pk_bf16_f32 v{OUT+4*e+m}, v{ACC+7-2*m}, v{ACC+6-2*m}"))
        P(("st", e))
    def emit(op):
        if op[0] == "lds": a.lds(op[1])
        elif op[0] == "v": a(op[1])
        elif op[0] == "waitlg": a.wait(lg="all")
        elif op[0] == "st":
            e = op[1]
            if e == 0:
                a(f"s_lshl_b32 s{S_T2}, s{S_XCD}, 18\ns_lshl_b32 s{S_T3}, s{x}, 16\ns_add_u32 s{S_T2}, s{S_T2}, s{S_T3}")
                a(f"s_lshl_b32 s{S_T3}, s{S_J}, 7\ns_sub_u32 s{S_T2}, s{S_T2}, s{S_T3}\ns_add_u32 s{S_T2}, s{S_T2}, {WS_UR + 2*1984}")
            else:
                a(f"s_add_u32 s{S_T2}, s{S_T2}, 4096")
            a.vmem(f"buffer_store_dwordx4 v[{OUT+4*e}:{OUT+4*e+3}], v{PST}, s[{R_WS}:{R_WS+3}], s{S_T2} offen sc1", "ur")

    a.wait(vm="c0"); a("s_barrier")
    stamp(2)
    a.vmem(f"buffer_load_dword v{VMD}, v{VMK}, s[{R_DBG}:{R_DBG+3}], 0 offen sc1", "mark")
    for op in prep: emit(op)
    stamp(3)
    a.wait(vm="c1"); a("s_barrier")
    chunk(3)
    a.wait(vm="c2"); a("s_barrier")
    chunk(4)
    a.wait(vm="ur")
    poll(VMK, VMD, R_DBG, 0, 1, issued=True)
    a(f"s_lshl2_add_u32 s{S_T0}, s{S_XCD}, s{x}\ns_and_b32 s{S_T1}, s{S_J}, 3\ns_lshl2_add_u32 s{S_T0}, s{S_T0}, s{S_T1}\ns_lshl_b32 s{S_PUB}, s{S_T0}, 8")
    signal(S_PUB, T0)
    stamp(4)
    for i in (3, 4, 5):
        a.wait(vm=f"c{i}"); a("s_barrier")
        chunk(i+2)
    HV0, HV1, H0, DV = 28, 29, 32, 36
    a(f"s_and_b32 s{S_T2}, s{x}, 1\ns_lshl_b32 s{S_T3}, s{S_T2}, 1\ns_sub_u32 s{S_T3}, s{S_T3}, 2")
    a(f"v_lshlrev_b32 v{HV0}, 4, v0\nv_add_u32 v{HV0}, s{S_T3}, v{HV0}\nv_add_u32 v{HV1}, 1024, v{HV0}")
    a(f"s_mov_b32 m0, s{S_HB}\ns_lshl_b32 s{S_T0}, s{S_U5}, 1\nv_mov_b32 v{T0}, s{S_T0}")
    a.vmem(f"buffer_load_dwordx4 v{HV0}, s[{R_SSM}:{R_SSM+3}], 0 offen lds", "h")
    a(f"s_add_u32 m0, s{S_HB}, 1024\ns_nop 0")
    for i in range(3):
        off = f" offset:{1024*i}" if i else ""
        a.vmem(f"buffer_load_dwordx4 v{HV1}, s[{R_SSM}:{R_SSM+3}], 0 offen{off} lds", "h")
    a.vmem(f"buffer_load_dwordx4 v[{H0}:{H0+3}], off, s[{R_SSM}:{R_SSM+3}], 0", "h")
    a.vmem(f"global_load_ushort v{DV}, v{T0}, s[{P_D}:{P_D+1}]", "h")
    for i in (12, 13): w2_dma(a, i, W2A, W2B, "w2")
    a.wait(vm="c6"); a("s_barrier")
    for i in (4, 5, 10, 11): w2_dma(a, i, W2A, W2B, "w2")
    a.wait(vm="c7"); a("s_barrier")
    stamp(5)
    for i in (0, 1, 6, 7): w2_dma(a, i, W2A, W2B, "w2")
    a.wait(vm="h")
    L = a.newlabel("Lnofix")
    a(f"s_bitcmp1_b32 s{x}, 0\ns_cbranch_scc1 {L}")
    a(f"v_alignbit_b32 v{H0+3}, v{H0+3}, v{H0+2}, 16\nv_alignbit_b32 v{H0+2}, v{H0+2}, v{H0+1}, 16\nv_alignbit_b32 v{H0+1}, v{H0+1}, v{H0}, 16\nv_lshlrev_b32 v{H0}, 16, v{H0}")
    a(f"v_mov_b32 v{T0}, s{S_HB}\ns_mov_b64 exec, 1\nds_write_b128 v{T0}, v[{H0}:{H0+3}]\ns_mov_b64 exec, -1")
    a.label(L)
    a("s_barrier")
    for i in (2, 3, 8, 9): w2_dma(a, i, W2A, W2B, "w2")
    a(f"s_lshr_b32 s{S_T0}, s{S_J}, 3\ns_lshl2_add_u32 s{S_T0}, s{S_XCD}, s{S_T0}\ns_lshl_b32 s{S_T0}, s{S_T0}, 10")
    a(f"v_and_b32 v{VMK}, 3, v0\nv_lshlrev_b32 v{VMK}, 8, v{VMK}")
    poll(VMK, VMD, R_WS, f"s{S_T0}", 8)
    stamp(6)
    a(f"s_and_b32 s{S_T2}, s{x}, 1\ns_lshl_b32 s{S_T3}, s{S_T2}, 2\nv_lshlrev_b32 v{HV0}, 4, v0\nv_add_u32 v{HV0}, s{S_T3}, v{HV0}\ns_mov_b32 m0, s{S_UB}\ns_nop 0")
    for i in range(4):
        off = f" offset:{1024*i}" if i else ""
        a.vmem(f"buffer_load_dwordx4 v{HV0}, s[{R_UR}:{R_UR+3}], 0 offen{off} sc1 lds", "u")
    CA, CB, AD = 28, 29, 32
    a(f"s_lshr_b32 s{S_T0}, s{x}, 1\ns_mul_i32 s{S_T0}, s{S_T0}, {CH_STRIDE}\ns_lshl_b32 s{S_T1}, s{S_T2}, 8\ns_add_u32 s{S_T0}, s{S_T0}, s{S_T1}")
    a(f"s_add_u32 s{S_T1}, s{S_T0}, {L_CT+U_OFF+448}\ns_add_u32 s{S_T0}, s{S_T0}, {L_CT+128-56}")
    a(f"v_and_b32 v{T0}, 1, v0\nv_bfe_u32 v{T1}, v0, 1, 3\nv_lshrrev_b32 v{T2}, 4, v0")
    a(f"v_mul_u32_u24 v{CA}, {H_STRIDE}, v{T0}\nv_lshl_add_u32 v{CA}, v{T1}, 3, v{CA}\nv_lshl_add_u32 v{CA}, v{T2}, 4, v{CA}\nv_add_u32 v{CA}, s{S_T0}, v{CA}")
    a(f"v_mul_u32_u24 v{CB}, {U_STRIDE}, v{T0}\nv_lshl_add_u32 v{CB}, v{T2}, 4, v{CB}\nv_add_u32 v{CB}, s{S_T1}, v{CB}\nv_lshlrev_b32 v{T3}, 6, v{T1}\nv_sub_u32 v{CB}, v{CB}, v{T3}")
    a(f"v_xor_b32 v{T0}, 1, v{T0}\nv_lshlrev_b32 v{T0}, 4, v{T0}\nv_lshlrev_b32 v{DV}, v{T0}, v{DV}")
    a(f"s_sub_u32 s{S_T2}, s{S_T2}, 1\nv_and_b32 v{DV}, s{S_T2}, v{DV}")
    a(f"v_lshlrev_b32 v{T1}, 1, v{T1}\nv_lshl_add_u32 v{T1}, v{T2}, 2, v{T1}")
    a(f"v_mov_b32 v{AD+1}, 0\nv_mov_b32 v{AD+3}, 0")
    a(f"v_cmp_eq_u32 vcc, 14, v{T1}\ns_nop 1\nv_cndmask_b32 v{AD}, 0, v{DV}, vcc")
    a(f"v_cmp_eq_u32 vcc, 12, v{T1}\ns_nop 1\nv_cndmask_b32 v{AD+2}, 0, v{DV}, vcc")
    a.wait(vm="all", lg="all")
    stamp(7)
    a("s_barrier")
    stamp(8)
    CACC, FA, FB = 40, 72, 104
    def reads(cc):
        buf = 64*(cc & 1); r = []
        for n in range(8):
            r.append((f"ds_read_b128 v[{FB+buf+4*n}:{FB+buf+4*n+3}], v{CB} offset:{3584-512*n+64*cc}", f"B{cc}_{n}"))
        for n in range(8):
            for hf in range(2):
                r.append((f"ds_read_b64 v[{FA+buf+4*n+2*hf}:{FA+buf+4*n+2*hf+1}], v{CA} offset:{512*n+64*cc+8*hf}", f"A{cc}_{n}"))
        return r
    r0 = reads(0)
    for ins, tag in r0[:12]: a.lds(ins, tag)
    pend = r0[12:]
    for T in range(8):
        a.wait(lg=f"B0_{T}")
        a(f"v_mfma_f32_16x16x32_bf16 v[{CACC+4*T}:{CACC+4*T+3}], v[{AD}:{AD+3}], v[{FB+4*T}:{FB+4*T+3}], 0")
        if pend: a.lds(*pend.pop(0))
    for cc in range(4):
        buf = 64*(cc & 1)
        nxt = reads(cc+1) if cc < 3 else []
        for an in range(8):
            for e in range(8-an):
                T = an + e
                a.wait(lg=[f"A{cc}_{an}", f"B{cc}_{e}"])
                a(f"v_mfma_f32_16x16x32_bf16 v[{CACC+4*T}:{CACC+4*T+3}], v[{FA+buf+4*an}:{FA+buf+4*an+3}], v[{FB+buf+4*e}:{FB+buf+4*e+3}], v[{CACC+4*T}:{CACC+4*T+3}]")
                if pend: a.lds(*pend.pop(0))
                elif nxt: a.lds(*nxt.pop(0))
        assert not pend and not nxt
    stamp(9)
    lds_sync(0, T0, T1)
    a(f"s_lshl_b32 s{S_T0}, s{x}, 13\ns_add_u32 s{S_T0}, s{S_T0}, {L_CT}\nv_lshl_add_u32 v{T2}, v0, 4, s{S_T0}")
    for T in range(8): a.lds(f"ds_write_b128 v{T2}, v[{CACC+4*T}:{CACC+4*T+3}] offset:{1024*T}")
    lds_sync(1, T0, T1)
    a(f"s_lshl_b32 s{S_T0}, s{x}, 11\ns_add_u32 s{S_T0}, s{S_T0}, {L_CT}\nv_lshl_add_u32 v{T2}, v0, 4, s{S_T0}")
    for tt in range(2):
        for src in range(4):
            a.lds(f"ds_read_b128 v[{FA+16*tt+4*src}:{FA+16*tt+4*src+3}], v{T2} offset:{8192*src+1024*tt}", f"e{tt}")
    a(f"v_bfe_u32 v{T0}, v0, 2, 2\nv_lshrrev_b32 v{T1}, 4, v0\nv_and_b32 v{T3}, 3, v0")
    a(f"v_lshlrev_b32 v{T0}, 8, v{T0}\nv_lshl_add_u32 v{T0}, v{T1}, 6, v{T0}\nv_lshl_add_u32 v{T0}, v{T3}, 4, v{T0}")
    a(f"s_lshl_b32 s{S_T0}, s{S_XCD}, 5\ns_add_u32 s{S_T0}, s{S_T0}, s{S_J}\ns_lshl_b32 s{S_T0}, s{S_T0}, 13\ns_add_u32 s{S_T0}, s{S_T0}, s{S_U2}\ns_add_u32 s{S_T0}, s{S_T0}, {WS_Y}")
    for tt in range(2):
        a.wait(lg=f"e{tt}")
        b = FA + 16*tt
        for r in range(4):
            a(f"v_add_f32 v{b+r}, v{b+r}, v{b+4+r}\nv_add_f32 v{b+8+r}, v{b+8+r}, v{b+12+r}")
        for r in range(4): a(f"v_cvt_pk_bf16_f32 v{b+4+r}, v{b+r}, v{b+8+r}")
        off = f" offset:1024" if tt else ""
        a.vmem(f"buffer_store_dwordx4 v[{b+4}:{b+7}], v{T0}, s[{R_WS}:{R_WS+3}], s{S_T0} offen{off} sc1", "y")
    XR, STT, B2R, VXO = 40, 48, 52, 30
    RHO, OCT, TOFF = 56, 57, 58
    a(f"v_lshrrev_b32 v{RHO}, 3, v0\nv_and_b32 v{OCT}, 7, v0")
    a(f"v_and_b32 v{TOFF}, 1, v{RHO}\nv_bfe_u32 v{T1}, v{RHO}, 1, 1\nv_lshl_add_u32 v{TOFF}, v{T1}, 2, v{TOFF}\nv_lshrrev_b32 v{T2}, 2, v{RHO}\nv_lshl_add_u32 v{TOFF}, v{T2}, 1, v{TOFF}")
    a(f"s_lshl_b32 s{S_T1}, s{S_R2}, 6\ns_lshl3_add_u32 s{S_T1}, s{x}, s{S_T1}")
    a(f"v_add_u32 v{T3}, s{S_T1}, v{TOFF}")
    a(f"s_lshl_b32 s{S_T2}, s{S_C2}, 7\nv_lshl_add_u32 v{T1}, v{OCT}, 4, s{S_T2}")
    a(f"v_lshl_add_u32 v{VXO}, v{T3}, 10, v{T1}\nv_lshlrev_b32 v{T3}, 3, v{T3}\ns_mov_b32 s{S_U0}, 32768\ns_mov_b32 s{S_T3}, {WS_STATS}")
    a.vmem(f"buffer_load_dwordx4 v[{XR}:{XR+3}], v{VXO}, s[{R_Q}:{R_Q+3}], 0 offen", "x")
    a.vmem(f"buffer_load_dwordx4 v[{XR+4}:{XR+7}], v{VXO}, s[{R_Q}:{R_Q+3}], s{S_U0} offen", "x")
    a.vmem(f"buffer_load_dwordx2 v[{STT}:{STT+1}], v{T3}, s[{R_WS}:{R_WS+3}], s{S_T3} offen sc1", "x")
    a.vmem(f"buffer_load_dwordx2 v[{STT+2}:{STT+3}], v{T3}, s[{R_WS}:{R_WS+3}], s{S_T3} offen offset:256 sc1", "x")
    a.vmem(f"global_load_dwordx4 v[{B2R}:{B2R+3}], v{T1}, s[{P_B2}:{P_B2+1}]", "x")
    a.wait(vm="y")
    a(f"s_add_u32 s{S_PUB}, s{S_PUB}, {CNT_Y*256}")
    signal(S_PUB, T0)
    stamp(10)
    a(f"s_lshr_b32 s{S_T0}, s{S_R2}, 3\ns_lshl2_add_u32 s{S_T0}, s{S_C2}, s{S_T0}\ns_lshl_b32 s{S_T0}, s{S_T0}, 10\ns_add_u32 s{S_T0}, s{S_T0}, {CNT_Y*256}")
    YS = 59
    a(f"v_bfe_u32 v{T1}, v0, 2, 3\nv_lshrrev_b32 v{T2}, 5, v0\nv_lshl_add_u32 v{T2}, v{T1}, 2, v{T2}\nv_lshlrev_b32 v{YS}, 13, v{T2}")
    a(f"v_lshrrev_b32 v{T1}, 1, v{T1}\nv_and_b32 v{T2}, 3, v0\nv_xor_b32 v{T1}, v{T1}, v{T2}\nv_lshl_add_u32 v{YS}, v{T1}, 4, v{YS}")
    a(f"s_lshl_b32 s{S_T1}, s{S_C2}, 18\ns_lshl_b32 s{S_T2}, s{S_R2}, 8\ns_add_u32 s{S_T1}, s{S_T1}, s{S_T2}\ns_lshl_b32 s{S_T2}, s{x}, 6\ns_add_u32 s{S_T1}, s{S_T1}, s{S_T2}\ns_add_u32 s{S_T1}, s{S_T1}, {WS_Y}")
    a(f"s_add_u32 s{S_T2}, s{S_T1}, {2*8192-1024}\ns_add_u32 m0, s{S_U2}, {L_YST}")
    poll(VMK, VMD, R_WS, f"s{S_T0}", 8)
    stamp(11)
    a.vmem(f"buffer_load_dwordx4 v{YS}, s[{R_WS}:{R_WS+3}], s{S_T1} offen sc1 lds", "ys")
    a.vmem(f"buffer_load_dwordx4 v{YS}, s[{R_WS}:{R_WS+3}], s{S_T2} offen offset:1024 sc1 lds", "ys")
    XF, PP, B2F, YR = 64, 80, 96, 104
    for n in range(2):
        for m in range(4):
            a(f"v_lshlrev_b32 v{XF+8*n+2*m}, 16, v{XR+4*n+m}\nv_and_b32 v{XF+8*n+2*m+1}, 0xffff0000, v{XR+4*n+m}")
        for m in range(8):
            a(f"v_sub_f32 v{PP+8*n+m}, v{XF+8*n+m}, v{STT+2*n}")
        for m in range(8):
            a(f"v_mul_f32 v{PP+8*n+m}, v{PP+8*n+m}, v{STT+2*n+1}")
    for m in range(4):
        a(f"v_lshlrev_b32 v{B2F+2*m}, 16, v{B2R+m}\nv_and_b32 v{B2F+2*m+1}, 0xffff0000, v{B2R+m}")
    YA0, YA1, PA0, PA1 = 60, 61, 62, 63
    a(f"v_lshrrev_b32 v{T0}, 2, v{RHO}\nv_xor_b32 v{T0}, 1, v{T0}\nv_lshrrev_b32 v{T1}, 1, v{OCT}\nv_xor_b32 v{T0}, v{T0}, v{T1}\nv_lshlrev_b32 v{T0}, 4, v{T0}")
    a(f"v_lshl_add_u32 v{T0}, v{OCT}, 6, v{T0}\nv_and_b32 v{T1}, 3, v{RHO}\nv_lshl_add_u32 v{T0}, v{T1}, 2, v{T0}")
    a(f"s_add_u32 s{S_T0}, s{S_U2}, {L_YST}\nv_xor_b32 v{YA1}, 32, v{T0}\nv_add_u32 v{YA0}, s{S_T0}, v{T0}\nv_add_u32 v{YA1}, s{S_T0}, v{YA1}")
    a(f"v_and_b32 v{T0}, 3, v{TOFF}\nv_lshlrev_b32 v{T0}, 8, v{T0}\nv_lshrrev_b32 v{T1}, 2, v{TOFF}\nv_lshl_add_u32 v{T0}, v{T1}, 7, v{T0}\nv_and_b32 v{T1}, 3, v{OCT}\nv_lshl_add_u32 v{T0}, v{T1}, 5, v{T0}")
    a(f"s_lshr_b32 s{S_T0}, s{x}, 1\ns_lshl_b32 s{S_T0}, s{S_T0}, 13\ns_and_b32 s{S_T1}, s{x}, 1\ns_lshl_b32 s{S_T1}, s{S_T1}, 10\ns_add_u32 s{S_T0}, s{S_T0}, s{S_T1}")
    a(f"s_lshl_b32 s{S_T1}, s{x}, 13\ns_add_u32 s{S_T1}, s{S_T1}, {4*8192+16}")
    a(f"v_mov_b32 v{T1}, s{S_T0}\nv_mov_b32 v{T2}, s{S_T1}\nv_cmp_lt_u32 vcc, 3, v{OCT}\nv_mov_b32 v{T3}, 16384\nv_mov_b32 v{PA1}, 32768")
    a(f"v_cndmask_b32 v{T1}, v{T1}, v{T2}, vcc\nv_cndmask_b32 v{T3}, v{T3}, v{PA1}, vcc\nv_add_u32 v{PA0}, v{T0}, v{T1}\nv_add_u32 v{PA1}, v{PA0}, v{T3}")
    a.wait(vm="all")
    for n, ya in enumerate((YA0, YA1)):
        a.lds(f"ds_read2st64_b32 v[{YR+4*n}:{YR+4*n+1}], v{ya} offset0:0 offset1:2")
        a.lds(f"ds_read2st64_b32 v[{YR+4*n+2}:{YR+4*n+3}], v{ya} offset0:4 offset1:6")
    a.wait(lg="all")
    for n in range(2):
        for m in range(4):
            a(f"v_lshlrev_b32 v{T0}, 16, v{YR+4*n+m}\nv_and_b32 v{T1}, 0xffff0000, v{YR+4*n+m}")
            a(f"v_mul_f32 v{PP+8*n+2*m}, v{PP+8*n+2*m}, v{T0}\nv_mul_f32 v{PP+8*n+2*m+1}, v{PP+8*n+2*m+1}, v{T1}")
    a(f"v_mov_b32 v{T2}, {f32(-1.4426950408889634)}")
    stamp(12)
    a("s_barrier")
    stamp(13)
    RD = 112
    for n, pa in enumerate((PA0, PA1)):
        for kq in range(4):
            for e in range(2):
                a.lds(f"ds_read_b128 v[{RD+32*n+8*kq+4*e}:{RD+32*n+8*kq+4*e+3}], v{pa} offset:{2048*kq+16*e}", f"p{n}_{kq}")
    EE = 176
    a(".p2align 3")
    for n in range(2):
        b = RD + 32*n
        def pk(op, d, x0, x1, x2=None, mod=""):
            a(f"{op} v[{d}:{d+1}], {x0}, {x1}" + (f", {x2}" if x2 else "") + mod)
        a.wait(lg=f"p{n}_1"); a("s_nop 0")
        for m in range(0, 8, 2): pk("v_pk_add_f32", b+m, v(b+m, 2), v(B2F+m, 2))
        for m in range(0, 8, 2): pk("v_pk_add_f32", b+m, v(b+m, 2), v(b+8+m, 2))
        a.wait(lg=f"p{n}_3"); a("s_nop 0")
        for m in range(0, 8, 2): pk("v_pk_add_f32", b+16+m, v(b+16+m, 2), v(b+24+m, 2))
        for m in range(0, 8, 2): pk("v_pk_add_f32", b+m, v(b+m, 2), v(b+16+m, 2))
        for m in range(0, 8, 2): pk("v_pk_mul_f32", EE+m, v(b+m, 2), v(T2, 2), mod=" op_sel_hi:[1,0]")
        for m in range(8): a(f"v_exp_f32 v{EE+m}, v{EE+m}")
        for m in range(0, 8, 2): pk("v_pk_mul_f32", b+m, v(b+m, 2), v(PP+8*n+m, 2))
        for m in range(0, 8, 2): pk("v_pk_add_f32", EE+m, v(EE+m, 2), "1.0", mod=" op_sel_hi:[1,0]")
        for m in range(8): a(f"v_rcp_f32 v{EE+m}, v{EE+m}")
        for m in range(0, 8, 2): pk("v_pk_fma_f32", b+m, v(b+m, 2), v(EE+m, 2), v(XF+8*n+m, 2))
        for m in range(4): a(f"v_cvt_pk_bf16_f32 v{b+8+m}, v{b+2*m}, v{b+2*m+1}")
        a.vmem(f"buffer_store_dwordx4 v[{b+8}:{b+11}], v{VXO}, s[{R_OUT}:{R_OUT+3}], {'s%d' % S_U0 if n else '0'} offen")
    stamp(14)
    flush_stamps()
    a("s_endpgm")

def gen_m(a, cfg, stamp, flush_stamps, poll, lds_sync, signal):
    w = S_WV
    S_TH, S_FH = 98, 99
    T0, T1, T2, T3 = 10, 11, 12, 13
    QA, WA = 2, 6
    V16 = 1
    ACC, CS, QF, WF, ONES = 16, 72, 88, 120, 152
    B1R, B1F, STT, CSP, TMP = 156, 164, 180, 188, 204
    VMK, VMD = 14, 15
    a(f"s_and_b32 s{S_TH}, s{w}, 1\ns_lshr_b32 s{S_FH}, s{w}, 1")
    a(f"v_lshlrev_b32 v{V16}, 4, v0")
    a(f"s_lshl_b32 s{S_U0}, s{S_R}, 7\ns_lshl3_add_u32 s{S_U0}, s{S_C}, s{S_U0}\ns_lshl1_add_u32 s{S_U0}, s{w}, s{S_U0}")
    a(f"s_lshl_b32 s{S_U1}, s{S_U0}, 10")
    a(f"v_and_b32 v{VMK}, 7, v0\nv_lshlrev_b32 v{VMK}, 2, v{VMK}")
    a("s_waitcnt lgkmcnt(0)")
    stamp(0)
    srd(a, R_WS, P_WS, WS_SIZE); srd(a, R_Q, P_Q, 2 << 20); srd(a, R_DBG, P_DBG, 256)
    LN = a.newlabel("Lnolead")
    a(f"s_lshr_b32 s{S_T0}, s2, 3\ns_or_b32 s{S_U2}, s{S_T0}, s{w}\ns_cmp_lg_u32 s{S_U2}, 0\ns_cbranch_scc1 {LN}")
    for i in range(4): a(f"v_mov_b32 v{TMP+i}, 0")
    a(f"v_min_u32 v{T0}, 47, v0\nv_lshlrev_b32 v{T0}, 8, v{T0}\ns_mul_i32 s{S_T0}, s2, {48*256}\ns_lshl_b32 s{S_T1}, s2, 11\ns_add_u32 s{S_T1}, s{S_T1}, {WS_STATS}")
    a(f"buffer_store_dwordx4 v[{TMP}:{TMP+3}], v{V16}, s[{R_WS}:{R_WS+3}], s{S_T1} offen sc1")
    a(f"buffer_store_dwordx4 v[{TMP}:{TMP+3}], v{V16}, s[{R_WS}:{R_WS+3}], s{S_T1} offen offset:1024 sc1")
    a(f"buffer_store_dword v{TMP}, v{T0}, s[{R_WS}:{R_WS+3}], s{S_T0} offen sc1")
    a.label(LN)
    XR = TMP + 4
    a.vmem(f"buffer_load_dwordx4 v[{XR}:{XR+3}], v{V16}, s[{R_Q}:{R_Q+3}], s{S_U1} offen", "x")
    a.vmem(f"buffer_load_dwordx4 v[{XR+4}:{XR+7}], v{V16}, s[{R_Q}:{R_Q+3}], s{S_U1} offen offset:1024", "x")
    LN = a.newlabel("Lnolead")
    a(f"s_cmp_lg_u32 s{S_U2}, 0\ns_cbranch_scc1 {LN}")
    a(f"s_waitcnt vmcnt(2)\nv_mov_b32 v{T0}, 1\ns_lshl_b32 s{S_T0}, s2, 2\ns_mov_b64 exec, 1")
    a(f"buffer_store_dword v{T0}, off, s[{R_DBG}:{R_DBG+3}], s{S_T0} sc1\ns_mov_b64 exec, -1\ns_waitcnt vmcnt(1)")
    a.label(LN)
    if cfg.code_pf:
        a(f"s_getpc_b64 s[{S_T0}:{S_T1}]")
        a.label("L_pc")
        a(f"s_sub_u32 s{S_T0}, s{S_T0}, L_pc-{NAME}\ns_subb_u32 s{S_T1}, s{S_T1}, 0")
        a(f"s_lshl_b32 s{S_T2}, s{w}, 13\nv_lshl_add_u32 v{T0}, v0, 7, s{S_T2}\nv_min_u32 v{T0}, L_code_end-{NAME}-4, v{T0}")
        a(f"v_mov_b32 v{T3}, s{S_T1}\nv_add_co_u32 v{T2}, vcc, s{S_T0}, v{T0}\ns_nop 1\nv_addc_co_u32 v{T3}, vcc, 0, v{T3}, vcc")
        a.vmem(f"global_load_dword v{T0}, v[{T2}:{T3}], off", "pf")
    a(f"v_lshrrev_b32 v{T1}, 4, v0\ns_mul_i32 s{S_T0}, s{S_C}, 224\nv_lshl_add_u32 v{T2}, v{T1}, 3, s{S_T0}")
    a(f"s_lshl_b32 s{S_T1}, s{S_FH}, 7\nv_add_u32 v{T3}, s{S_T1}, v{T2}")
    for i in range(3): a.vmem(f"global_load_dwordx2 v[{B1R+2*i}:{B1R+2*i+1}], v{T3}, s[{P_B1}:{P_B1+1}] offset:{32*i}", "b1")
    a.vmem(f"global_load_dwordx2 v[{B1R+6}:{B1R+7}], v{T2}, s[{P_B1}:{P_B1+1}] offset:96", "b1")
    srd(a, R_W2, P_W2, 1792*1024)
    a(f"v_and_b32 v{T2}, 15, v0\nv_lshrrev_b32 v{T3}, 1, v{T2}\nv_xor_b32 v{T3}, v{T3}, v{T1}\nv_lshlrev_b32 v{T3}, 4, v{T3}\nv_lshl_add_u32 v{T3}, v{T2}, 7, v{T3}")
    a(f"s_lshl_b32 s{S_T0}, s{S_TH}, 6\nv_xor_b32 v{T3}, s{S_T0}, v{T3}")
    a(f"s_lshl_b32 s{S_T0}, s{S_TH}, 13\ns_lshl_b32 s{S_T1}, s{S_FH}, 12\ns_add_u32 s{S_T0}, s{S_T0}, s{S_T1}")
    a(f"v_add_u32 v{QA}, s{S_T0}, v{T3}\nv_xor_b32 v{QA+1}, 4096, v{QA}\nv_xor_b32 v{QA+2}, 64, v{QA}\nv_xor_b32 v{QA+3}, 64, v{QA+1}")
    a(f"v_bfe_u32 v{T2}, v0, 2, 3")
    a(f"v_bfe_u32 v{T3}, v0, 2, 2\nv_lshl_add_u32 v{T3}, v{T1}, 3, v{T3}\nv_lshlrev_b32 v{T3}, 8, v{T3}\nv_and_b32 v{T1}, 3, v0\nv_lshl_add_u32 v{T3}, v{T1}, 3, v{T3}")
    a(f"v_add_u32 v{T3}, {L_W}, v{T3}")
    a(f"s_and_b32 s{S_T0}, s{S_C}, 1\ns_lshl2_add_u32 s{S_T1}, s{S_FH}, s{S_T0}\ns_add_u32 s{S_T0}, s{S_T0}, 3")
    for i in range(4):
        if i == 3: a(f"v_xor_b32 v{T1}, s{S_T0}, v{T2}")
        else:
            a(f"v_xor_b32 v{T1}, s{S_T1}, v{T2}\ns_add_u32 s{S_T1}, s{S_T1}, 1")
        a(f"v_lshl_add_u32 v{WA+i}, v{T1}, 5, v{T3}")
    WA2 = TMP + 40
    a(f"s_lshl_b32 s{S_T0}, s{S_TH}, 13\ns_xor_b32 s{S_T1}, s{S_T0}, 8192")
    for i in range(4): a(f"v_add_u32 v{WA2+i}, s{S_T1}, v{WA+i}\nv_add_u32 v{WA+i}, s{S_T0}, v{WA+i}")
    for i in range(4): a(f"v_mov_b32 v{ONES+i}, 0x3f803f80")
    XF = XR + 8
    a.wait(vm="x")
    a.vmem(f"buffer_load_dword v{VMD}, v{VMK}, s[{R_DBG}:{R_DBG+3}], 0 offen sc1", "mark")
    for n in range(2):
        for m in range(4):
            a(f"v_lshlrev_b32 v{XF+8*n+2*m}, 16, v{XR+4*n+m}\nv_and_b32 v{XF+8*n+2*m+1}, 0xffff0000, v{XR+4*n+m}")
    SM = XR
    def reduce2():
        for dpp in ("row_shr:1 row_mask:0xf bank_mask:0xf bound_ctrl:0", "row_shr:2 row_mask:0xf bank_mask:0xf bound_ctrl:0", "row_shr:4 row_mask:0xf bank_mask:0xf bound_ctrl:0",
                    "row_shr:8 row_mask:0xf bank_mask:0xf bound_ctrl:0", "row_bcast:15 row_mask:0xa bank_mask:0xf", "row_bcast:31 row_mask:0xc bank_mask:0xf"):
            a("s_nop 0")
            for n in range(2): a(f"v_add_f32_dpp v{SM+n}, v{SM+n}, v{SM+n} {dpp}")
    for n in range(2): a(f"v_add_f32 v{SM+n}, v{XF+8*n}, v{XF+8*n+1}")
    for m in range(2, 8):
        for n in range(2): a(f"v_add_f32 v{SM+n}, v{SM+n}, v{XF+8*n+m}")
    reduce2()
    for n in range(2): a(f"v_mul_f32 v{SM+2+n}, {f32(1/512)}, v{SM+n}")
    a(f"v_readlane_b32 s{S_T0}, v{SM+2}, 63\nv_readlane_b32 s{S_T1}, v{SM+3}, 63\ns_nop 0")
    for n in range(2):
        for m in range(8): a(f"v_subrev_f32 v{XF+8*n+m}, s{S_T0+n}, v{XF+8*n+m}")
    for n in range(2): a(f"v_mul_f32 v{SM+n}, v{XF+8*n}, v{XF+8*n}")
    for m in range(1, 8):
        for n in range(2): a(f"v_fmac_f32 v{SM+n}, v{XF+8*n+m}, v{XF+8*n+m}")
    reduce2()
    GR = TMP
    a(f"v_mov_b32 v{T1}, {f32(1e-5)}")
    for n in range(2): a(f"v_fmamk_f32 v{SM+n}, v{SM+n}, {f32(1/512)}, v{T1}")
    for n in range(2): a(f"v_rsq_f32 v{SM+n}, v{SM+n}")
    for n in range(2): a(f"v_or_b32 v{GR+2*n}, 1, v{SM+2+n}")
    for n in range(2): a(f"v_or_b32 v{GR+2*n+1}, 1, v{SM+n}")
    a(f"s_lshl_b32 s{S_U0}, s{S_U0}, 3\ns_add_u32 s{S_U0}, s{S_U0}, {WS_STATS}\ns_mov_b32 s{S_PUB}, 0")
    a.wait(vm="b1")
    for i in range(8): a(f"v_lshlrev_b32 v{B1F+2*i}, 16, v{B1R+i}\nv_and_b32 v{B1F+2*i+1}, 0xffff0000, v{B1R+i}")
    def try_publish(final=False):
        D = a.newlabel("Lpubd"); N = a.newlabel("Lpubn")
        a(f"s_cmp_lg_u32 s{S_PUB}, 0\ns_cbranch_scc1 {D}")
        a("s_waitcnt vmcnt(0)")
        if final:
            poll(VMK, VMD, R_DBG, 0, 1, issued=True)
        else:
            a(f"v_cmp_ne_u32 vcc, 1, v{VMD}\ns_nop 0\ns_cbranch_vccz {N}")
            a(f"buffer_load_dword v{VMD}, v{VMK}, s[{R_DBG}:{R_DBG+3}], 0 offen sc1\ns_branch {D}")
            a.label(N)
        a(f"s_mov_b32 exec_lo, 0\ns_mov_b32 exec_hi, 0x80000000")
        a(f"buffer_store_dwordx4 v[{GR}:{GR+3}], off, s[{R_WS}:{R_WS+3}], s{S_U0} sc1")
        a(f"s_mov_b64 exec, -1\ns_mov_b32 s{S_PUB}, 1")
        a.label(D)
        a.vm = []
    stamp(1)
    try_publish()
    VST = TMP + 44
    a(f"v_and_b32 v{VST}, 15, v0\nv_lshlrev_b32 v{VST}, 3, v{VST}\ns_lshl_b32 s{S_T0}, s{S_FH}, 8\nv_add_u32 v{VST}, s{S_T0}, v{VST}\nv_xor_b32 v{VST+1}, 256, v{VST}")
    a(f"s_lshl_b32 s{S_U3}, s{S_R}, 10\ns_lshl_b32 s{S_T0}, s{S_TH}, 9\ns_add_u32 s{S_U3}, s{S_U3}, s{S_T0}\ns_add_u32 s{S_U3}, s{S_U3}, {WS_STATS}")
    def stats_loads():
        for tau in range(4):
            off = " offset:128" if tau & 1 else ""
            a(f"buffer_load_dwordx2 v[{STT+2*tau}:{STT+2*tau+1}], v{VST+(tau>>1)}, s[{R_WS}:{R_WS+3}], s{S_U3} offen{off} sc1")
    def rd(i, ks):
        slot = (i % 3) * 16384; b = 16*ks; wa = (WA, WA2)[ks]
        def W(n): return [(f"ds_read_b64_tr_b16 v[{WF+b+4*n+2*h}:{WF+b+4*n+2*h+1}], v{wa+n} offset:{slot+1024*h}", f"W{i}{ks}{n}") for h in range(2)]
        def Q(t): return [(f"ds_read_b128 v[{QF+b+4*t}:{QF+b+4*t+3}], v{QA+2*ks+(t>>1)} offset:{slot+2048*(t&1)}", f"Q{i}{ks}{t}")]
        return W(0) + Q(0) + Q(1) + Q(2) + Q(3) + W(1) + W(2) + W(3)
    def mm(i, ks, n, t):
        b = 16*ks
        if t == "cs":
            d = CS + 4*n; B = ONES; first = (i == 0); tags = [f"W{i}{ks}{n}"]
        else:
            d = ACC + 4*(4*n+t); B = QF+b+4*t; first = (i == 0 and ks == 0); tags = [f"W{i}{ks}{n}", f"Q{i}{ks}{t}"]
        a.wait(lg=tags)
        a(f"v_mfma_f32_16x16x32_bf16 v[{d}:{d+3}], v[{WF+b+4*n}:{WF+b+4*n+3}], v[{B}:{B+3}], {'0' if first else v(d,4)}")
    base = [(n, t) for n in range(3) for t in range(4)] + [(3, 0), (3, 1)]
    a("s_barrier")
    stamp(2)
    for ins, tag in rd(0, 0): a.lds(ins, tag)
    for i in range(8):
        pend = rd(i, 1)
        for n, t in base:
            mm(i, 0, n, t)
            if pend: a.lds(*pend.pop(0))
        if i < 7:
            order = base[:4] + [(0, "cs")] + base[4:8] + [(1, "cs")] + base[8:12] + [(2, "cs")] + base[12:] + [(3, "cs")]
            pend = rd(i+1, 0)
            for q, (n, t) in enumerate(order):
                mm(i, 1, n, t)
                if q == 4:
                    a.wait(lg="all")
                    if i < 5: try_publish(final=(i == 4))
                    if i == 5: stats_loads()
                    a("s_barrier")
                if q >= 5 and pend: a.lds(*pend.pop(0))
            assert not pend
        else:
            order = base[:4] + [(n, "cs") for n in range(4)] + base[4:]
            for q, (n, t) in enumerate(order):
                mm(i, 1, n, t)
                if q == 13:
                    a(f"s_lshl_b32 s{S_T0}, s{w}, 8\ns_add_u32 s{S_T0}, s{S_T0}, {L_CS}\nv_add_u32 v{T0}, s{S_T0}, v0\nv_and_b32 v{T1}, 48, v0")
                    a(f"s_mov_b32 exec_lo, 0x00010001\ns_mov_b32 exec_hi, 0x00010001")
                    for n2 in range(4): a.lds(f"ds_write_b128 v{T0}, v[{CS+4*n2}:{CS+4*n2+3}] offset:{64*n2}")
                    a(f"s_mov_b64 exec, -1\ns_xor_b32 s{S_T0}, s{w}, 1\ns_lshl_b32 s{S_T0}, s{S_T0}, 8\ns_add_u32 s{S_T0}, s{S_T0}, {L_CS}\nv_add_u32 v{T1}, s{S_T0}, v{T1}")
                    a.wait(lg="all")
                    a("s_barrier")
                    for n2 in range(4): a.lds(f"ds_read_b128 v[{CSP+4*n2}:{CSP+4*n2+3}], v{T1} offset:{64*n2}")
    stamp(3)
    L = a.newlabel("Lst"); D = a.newlabel("Lstd")
    a(f"s_mov_b32 s{S_SPIN}, 0")
    a.label(L)
    a("s_waitcnt vmcnt(0)")
    a(f"v_min3_u32 v{T0}, v{STT}, v{STT+1}, v{STT+2}\nv_min3_u32 v{T1}, v{STT+3}, v{STT+4}, v{STT+5}\nv_min3_u32 v{T0}, v{T0}, v{STT+6}, v{STT+7}\nv_min_u32 v{T0}, v{T0}, v{T1}")
    a(f"v_cmp_eq_u32 vcc, 0, v{T0}\ns_add_u32 s{S_SPIN}, s{S_SPIN}, 1\ns_cbranch_vccz {D}")
    a(f"s_cmp_gt_u32 s{S_SPIN}, {SPIN_MAX}\ns_cbranch_scc1 {D}")
    stats_loads()
    a(f"s_branch {L}")
    a.label(D)
    stamp(4)
    a.wait(lg="all")
    for tau in range(4): a(f"v_mul_f32 v{STT+2*tau}, v{STT+2*tau}, v{STT+2*tau+1}")
    KC = T2
    c1 = -2*1.4426950408889634*0.7978845608028654
    a(f"v_mov_b32 v{KC}, {f32(c1*0.044715)}\nv_mov_b32 v{KC+1}, {f32(c1)}")
    a(f"s_lshl_b32 s{S_T0}, s{S_R}, 2\ns_lshl1_add_u32 s{S_T0}, s{S_TH}, s{S_T0}\ns_add_u32 s{S_T0}, s{S_T0}, s{S_FH}\ns_xor_b32 s{S_T1}, s{S_T0}, 1")
    a(f"s_mul_i32 s{S_T0}, s{S_T0}, {112*1024}\ns_mul_i32 s{S_T1}, s{S_T1}, {112*1024}\ns_mul_i32 s{S_T2}, s{S_C}, {7*1024}\ns_add_u32 s{S_T2}, s{S_T2}, {WS_H}")
    a(f"s_add_u32 s{S_U2}, s{S_T0}, s{S_T2}\ns_lshl_b32 s{S_T3}, s{S_FH}, 12\ns_add_u32 s{S_U0}, s{S_U2}, s{S_T3}\ns_add_u32 s{S_U1}, s{S_T1}, s{S_T2}\ns_add_u32 s{S_U1}, s{S_U1}, s{S_T3}")
    a(".p2align 3")
    for m in range(0, 16, 2): a(f"v_pk_add_f32 v[{CS+m}:{CS+m+1}], v[{CS+m}:{CS+m+1}], v[{CSP+m}:{CSP+m+1}]")
    units = [(n, p) for n in range(3) for p in range(2)] + [(3, 0)]
    for u, (n, p) in enumerate(units):
        E = QF + 8*(u & 1); O = QF + 16 + 4*(u & 1)
        prs = [(ACC + 4*(4*n+2*p+tl) + 2*hh, 2*p+tl, 2*hh, E + 4*tl + 2*hh) for tl in range(2) for hh in range(2)]
        for z, tau, hh, e in prs: a(f"v_pk_fma_f32 v[{e}:{e+1}], v[{CS+4*n+hh}:{CS+4*n+hh+1}], v[{STT+2*tau}:{STT+2*tau+1}], v[{B1F+4*n+hh}:{B1F+4*n+hh+1}] op_sel_hi:[1,0,1] neg_lo:[0,1,0] neg_hi:[0,1,0]")
        for z, tau, hh, e in prs: a(f"v_pk_fma_f32 v[{z}:{z+1}], v[{z}:{z+1}], v[{STT+2*tau}:{STT+2*tau+1}], v[{e}:{e+1}] op_sel:[0,1,0]")
        for z, tau, hh, e in prs: a(f"v_pk_mul_f32 v[{e}:{e+1}], v[{z}:{z+1}], v[{z}:{z+1}]")
        for z, tau, hh, e in prs: a(f"v_pk_fma_f32 v[{e}:{e+1}], v[{e}:{e+1}], v[{KC}:{KC+1}], v[{KC}:{KC+1}] op_sel:[0,0,1] op_sel_hi:[1,0,1]")
        for z, tau, hh, e in prs: a(f"v_pk_mul_f32 v[{e}:{e+1}], v[{e}:{e+1}], v[{z}:{z+1}]")
        for m in range(8): a(f"v_exp_f32 v{E+m}, v{E+m}")
        for z, tau, hh, e in prs: a(f"v_pk_add_f32 v[{e}:{e+1}], v[{e}:{e+1}], 1.0 op_sel_hi:[1,0]")
        for m in range(8): a(f"v_rcp_f32 v{E+m}, v{E+m}")
        for z, tau, hh, e in prs: a(f"v_pk_mul_f32 v[{z}:{z+1}], v[{z}:{z+1}], v[{e}:{e+1}]")
        for q in (0, 2, 1, 3): a(f"v_cvt_pk_bf16_f32 v{O+q}, v{prs[q][0]}, v{prs[q][0]+1}")
        a(f"v_permlane16_swap_b32 v{O}, v{O+2}\ns_nop 0\nv_permlane16_swap_b32 v{O+1}, v{O+3}\ns_nop 0")
        so = S_U2 if n == 3 else (S_U0, S_U1)[p]
        a.vmem(f"buffer_store_dwordx4 v[{O}:{O+3}], v{V16}, s[{R_WS}:{R_WS+3}], s{so} offen offset:{1024*n} sc1", "h")
    stamp(5)
    ACC2, AR, WB = 14, 78, 142
    W2A, W2B, TR, HA, HB = 2, 3, 4, 8, 9
    w2_addr(a, W2A, W2B, T0, T1)
    a(f"v_bfe_u32 v{T0}, v0, 2, 2\nv_lshrrev_b32 v{T1}, 5, v0\nv_lshl_add_u32 v{T1}, v{T1}, 3, v{T0}\nv_lshlrev_b32 v{T1}, 7, v{T1}")
    a(f"v_lshrrev_b32 v{T0}, 1, v{T0}\nv_lshl_add_u32 v{T1}, v{T0}, 6, v{T1}\nv_bfe_u32 v{T0}, v0, 4, 1\nv_lshl_add_u32 v{T1}, v{T0}, 5, v{T1}\nv_and_b32 v{T0}, 3, v0\nv_lshl_add_u32 v{T1}, v{T0}, 3, v{T1}")
    a(f"v_add_u32 v{TR}, s{S_B}, v{T1}\nv_xor_b32 v{TR+1}, 64, v{TR}\nv_add_u32 v{TR+2}, 65536, v{TR}\nv_add_u32 v{TR+3}, 65536, v{TR+1}")
    a(f"s_mul_i32 s{S_T0}, s{S_R2}, {224*1024}\ns_mul_i32 s{S_T1}, s{w}, {28*1024}\ns_add_u32 s{S_T0}, s{S_T0}, s{S_T1}\ns_add_u32 s{S_T0}, s{S_T0}, {WS_H}")
    a(f"v_add_u32 v{HA}, s{S_T0}, v{V16}\nv_add_u32 v{HB}, {112*1024}, v{HA}")
    a("s_barrier")
    stamp(6)
    def trs(ii, tag):
        r = []
        for dt in range(2):
            for h in range(2):
                d = WB + 8*ii + 4*dt + 2*h
                r.append((f"ds_read_b64_tr_b16 v[{d}:{d+1}], v{TR+2*(ii>>3)+dt} offset:{(ii&7)*8192+512*h}", tag))
        return r
    for ii in range(14):
        for ins, tag in trs(ii, "f"): a.lds(ins, tag)
    a.wait(vm="h")
    a(f"s_lshl1_add_u32 s{S_T0}, s{S_R}, s{S_TH}\ns_lshr_b32 s{S_T1}, s{S_C}, 2\ns_lshl2_add_u32 s{S_T0}, s{S_T0}, s{S_T1}\ns_add_u32 s{S_T0}, s{S_T0}, {CNT_H}\ns_lshl_b32 s{S_PUB}, s{S_T0}, 8")
    signal(S_PUB, T0)
    a.wait(lg="all")
    stamp(7)
    for i in range(14, 28): w2_dma(a, i, W2A, W2B, "w2")
    a(f"s_lshl2_add_u32 s{S_T0}, s{S_R2}, s{w}\ns_add_u32 s{S_T0}, s{S_T0}, {CNT_H}\ns_lshl_b32 s{S_T0}, s{S_T0}, 8\nv_mov_b32 v{T0}, 0")
    poll(T0, T1, R_WS, f"s{S_T0}", 8)
    stamp(8)
    a(f"s_lshl_b32 s{S_A}, s{S_OFF}, 10")
    def hload(i):
        a(f"s_add_u32 s{S_T0}, s{S_A}, {i*1024}\ns_sub_u32 s{S_T1}, s{S_T0}, {28*1024}\ns_min_u32 s{S_T0}, s{S_T0}, s{S_T1}")
        d = AR + 8*(i & 7)
        a.vmem(f"buffer_load_dwordx4 v[{d}:{d+3}], v{HA}, s[{R_WS}:{R_WS+3}], s{S_T0} offen sc1", f"a{i}_0")
        a.vmem(f"buffer_load_dwordx4 v[{d+4}:{d+7}], v{HB}, s[{R_WS}:{R_WS+3}], s{S_T0} offen sc1", f"a{i}_1")
    for i in range(8): hload(i)
    pend = []
    for i in range(28):
        ii = i % 14
        for tt in range(2):
            for dt in range(2):
                a.wait(vm=f"a{i}_{tt}", lg=f"g{i}")
                d = ACC2 + 16*(2*tt+dt)
                a(f"v_mfma_f32_32x32x16_bf16 v[{d}:{d+15}], v[{AR+8*(i&7)+4*tt}:{AR+8*(i&7)+4*tt+3}], v[{WB+8*ii+4*dt}:{WB+8*ii+4*dt+3}], {'0' if i == 0 else v(d,16)}")
                if pend: a.lds(*pend.pop(0))
        if i + 8 < 28: hload(i+8)
        if i < 14: pend = trs(ii, f"g{i+14}")
    stamp(9)
    a(f"s_mov_b32 m0, s{S_B}\ns_nop 7")
    for tt in range(2):
        for r in range(16): a.lds(f"ds_write_addtid_b32 v{ACC2+32*tt+r} offset:{(2*tt+(r>>3))*8192+(r&7)*256}")
    a(f"s_add_u32 m0, s{S_B}, 32768\ns_nop 0")
    for tt in range(2):
        for r in range(16): a.lds(f"ds_write_addtid_b32 v{ACC2+32*tt+16+r} offset:{(4*tt+(r>>2))*8192+(r&3)*256+16}")
    a.wait(lg="all")
    stamp(10)
    a("s_barrier")
    flush_stamps()

HEADER = open("recurrent_scan__ssm_conv_h3__dense_activation_gelu__prompt.s.ref").read().split("; @launch")[0]
def full(cfg):
    a = gen(cfg)
    errs = check(a.lines)
    for e in errs: print(e, file=sys.stderr)
    assert not errs
    t = HEADER + f"; @launch grid=(256,1,1) block=(512,1,1) lds={LDS_BYTES}\n"
    t += f'.amdgcn_target "amdgcn-amd-amdhsa--gfx950"\n.text\n.globl {NAME}\n.p2align 8\n.type {NAME},@function\n'
    t += a.text()
    t += f'''.section .rodata,"a"
.p2align 6
.amdhsa_kernel {NAME}
  .amdhsa_next_free_vgpr 256
  .amdhsa_next_free_sgpr 102
  .amdhsa_accum_offset 256
  .amdhsa_group_segment_fixed_size 0
  .amdhsa_kernarg_size 112
  .amdhsa_user_sgpr_count 2
  .amdhsa_user_sgpr_kernarg_segment_ptr 1
  .amdhsa_system_sgpr_workgroup_id_x 1
  .amdhsa_float_denorm_mode_32 3
.end_amdhsa_kernel
'''
    return t
if __name__ == "__main__":
    cfg = Cfg()
    out = sys.argv[1]
    for kv in sys.argv[2:]:
        k, val = kv.split("="); setattr(cfg, k, eval(val))
    open(out, "w").write(full(cfg))
```

```python
import sys, struct
from asmlib import Asm, v, s, check

NAME = "recurrent_scan__ssm_conv_h3__dense_activation_gelu__prompt_kernel"
def f32(x): return "0x%08x" % struct.unpack("<I", struct.pack("<f", x))[0]

WS_CNT, WS_STATS, WS_STAMP, WS_UR, WS_Y, WS_H = 0, 0x20000, 0x40000, 0x100000, 0x300000, 0x500000
WS_SIZE = 0x500000 + 64*112*1024
CNT_UR, CNT_H, CNT_Y = 0, 128, 256
L_Q, L_W, L_KST = 0, 49152, 98304
L_VST = L_KST + 9*1024
L_CT = 115712; CH_STRIDE = 17600; H_STRIDE = 4224; U_OFF = 8448; U_STRIDE = 4576
L_MISC = L_CT + 2*CH_STRIDE
L_YST = L_MISC
L_CS = L_YST + 8192
L_SYNC = L_CS + 1024
LDS_BYTES = L_SYNC + 64
SPIN_MAX = 1 << 17

P_Q, P_K, P_V, P_SH, P_SSM, P_D, P_BX, P_W1, P_B1, P_W2, P_B2, P_OUT, P_DBG, P_WS = range(4, 32, 2)
S_WV, S_XCD, S_J, S_R, S_C, S_KC0, S_R2, S_C2, S_OFF, S_WAVE = range(32, 42)
S_A, S_B, S_T0, S_T1, S_T2, S_T3 = range(42, 48)
R_Q, R_K, R_V, R_W1, R_WS, R_DBG, R_W2, R_SSM, R_UR, R_OUT = range(48, 88, 4)
S_U0, S_U1, S_U2, S_U3, S_U4, S_U5, S_SPIN, S_PUB = range(88, 96)
S_EX = 96
S_ST = 100

class Cfg:
    stamps = False
    flip = 1
    code_pf = True
    diag_pad = 0
    diag_amp = None

def srd(a, R, P, size, add=None):
    if add is None:
        a(f"s_mov_b32 s{R}, s{P}\ns_and_b32 s{R+1}, s{P+1}, 0xffff")
    else:
        a(f"s_add_u32 s{R}, s{P}, {add}\ns_addc_u32 s{R+1}, s{P+1}, 0\ns_and_b32 s{R+1}, s{R+1}, 0xffff")
    a(f"s_mov_b32 s{R+2}, {size}\ns_mov_b32 s{R+3}, 0x20000")

def gen(cfg):
    a = Asm()
    def stamp(i):
        if cfg.diag_amp and cfg.diag_amp[0] == i:
            a(f"s_memrealtime s[{S_ST}:{S_ST+1}]\ns_waitcnt lgkmcnt(0)")
            a.lg = []
        if cfg.stamps:
            a(f"s_memrealtime s[{S_ST}:{S_ST+1}]\ns_waitcnt lgkmcnt(0)\nv_writelane_b32 v255, s{S_ST}, {i}")
            a.lg = []
    def flush_stamps():
        if cfg.stamps:
            a(f"s_lshl_b32 s{S_T0}, s2, 3\ns_add_u32 s{S_T0}, s{S_T0}, s{S_WAVE}\ns_lshl_b32 s{S_T0}, s{S_T0}, 8\ns_add_u32 s{S_T0}, s{S_T0}, {WS_STAMP}")
            a(f"v_mbcnt_lo_u32_b32 v254, -1, 0\nv_mbcnt_hi_u32_b32 v254, -1, v254\nv_lshlrev_b32 v254, 2, v254")
            a(f"buffer_store_dword v255, v254, s[{R_WS}:{R_WS+3}], s{S_T0} offen")
    def poll(vaddr, vdata, R, soff, expect, issued=False):
        L = a.newlabel("Lpoll"); D = a.newlabel("Lpolld"); C = a.newlabel("Lpollc")
        a(f"s_mov_b32 s{S_SPIN}, 0")
        if issued: a(f"s_branch {C}")
        a.label(L)
        a(f"buffer_load_dword v{vdata}, v{vaddr}, s[{R}:{R+3}], {soff} offen sc1")
        a(f"s_waitcnt vmcnt(0)")
        a.label(C)
        a(f"v_cmp_ne_u32 vcc, {expect}, v{vdata}")
        a(f"s_add_u32 s{S_SPIN}, s{S_SPIN}, 1\ns_cmp_gt_u32 s{S_SPIN}, {SPIN_MAX}\ns_cbranch_scc1 {D}")
        a(f"s_cbranch_vccnz {L}")
        a.label(D)
        if not issued: a.vm = []
    def lds_sync(word, vtmp, vone):
        L = a.newlabel("Lsy"); D = a.newlabel("Lsyd")
        a.wait(lg="all")
        a(f"v_mov_b32 v{vtmp}, {L_SYNC + 4*word}\nv_mov_b32 v{vone}, 1")
        a(f"s_mov_b64 exec, 1\nds_add_u32 v{vtmp}, v{vone}\ns_mov_b64 exec, -1")
        a(f"s_mov_b32 s{S_SPIN}, 0")
        a.label(L)
        a(f"ds_read_b32 v{vone}, v{vtmp}\ns_waitcnt lgkmcnt(0)")
        a(f"v_cmp_ne_u32 vcc, 4, v{vone}")
        a(f"s_add_u32 s{S_SPIN}, s{S_SPIN}, 1\ns_cmp_gt_u32 s{S_SPIN}, {SPIN_MAX*8}\ns_cbranch_scc1 {D}")
        a(f"s_cbranch_vccnz {L}")
        a.label(D)
    def signal(cnt_sgpr, vone):
        a(f"v_mov_b32 v{vone}, 1\ns_mov_b64 exec, 1")
        a.vmem(f"buffer_atomic_add v{vone}, off, s[{R_WS}:{R_WS+3}], s{cnt_sgpr} sc1")
        a("s_mov_b64 exec, -1")

    a.label(NAME)
    a("s_cmp_ge_u32 s2, 256\ns_cbranch_scc1 L_end")
    a("s_load_dwordx16 s[4:19], s[0:1], 0\ns_load_dwordx8 s[20:27], s[0:1], 64\ns_load_dwordx4 s[28:31], s[0:1], 96")
    if cfg.stamps: a("v_mov_b32 v255, 0")
    if cfg.diag_pad or cfg.diag_amp: a(f"s_memrealtime s[{S_EX}:{S_EX+1}]")
    a("v_lshrrev_b32 v1, 6, v0\nv_and_b32 v0, 63, v0")
    a(f"v_readfirstlane_b32 s{S_WAVE}, v1")
    a(f"s_and_b32 s{S_XCD}, s2, 7\ns_lshr_b32 s{S_J}, s2, 3")
    a(f"s_and_b32 s{S_T0}, s{S_XCD}, 3\ns_lshr_b32 s{S_T1}, s{S_XCD}, 2")
    a(f"s_and_b32 s{S_T2}, s{S_J}, 3\ns_lshr_b32 s{S_C2}, s{S_J}, 2")
    a(f"s_lshl2_add_u32 s{S_R}, s{S_T0}, s{S_T2}")
    a(f"s_lshl3_add_u32 s{S_C}, s{S_T1}, s{S_C2}")
    a(f"s_lshl1_add_u32 s{S_R2}, s{S_R}, s{S_T1}")
    a(f"s_lshl1_add_u32 s{S_KC0}, s{S_T2}, s{S_C2}\ns_and_b32 s{S_T0}, s{S_T0}, 1")
    a(f"s_add_u32 s{S_KC0}, s{S_KC0}, s{S_T0}\ns_and_b32 s{S_KC0}, s{S_KC0}, 7")
    a(f"s_mul_i32 s{S_OFF}, s{S_KC0}, 7\ns_lshr_b32 s{S_OFF}, s{S_OFF}, 1")
    a(f"s_and_b32 s{S_WV}, s{S_WAVE}, 3")
    a(f"s_cmp_ge_u32 s{S_WAVE}, 4")
    a("s_cbranch_scc1 L_M" if cfg.flip else "s_cbranch_scc0 L_M")

    gen_x(a, cfg, stamp, flush_stamps, poll, lds_sync, signal)
    a.vm = []; a.lg = []
    a(".p2align 6")
    a.label("L_M")
    gen_m(a, cfg, stamp, flush_stamps, poll, lds_sync, signal)
    a.label("L_end")
    a("s_endpgm")
    a.label("L_code_end")
    return a

def w2_dma(a, i, vA, vB, tag):
    ii = i % 14
    a(f"s_add_u32 s{S_T0}, s{S_A}, {i*16384}\ns_sub_u32 s{S_T1}, s{S_T0}, {28*16384}\ns_min_u32 s{S_T0}, s{S_T0}, s{S_T1}")
    a(f"s_add_u32 m0, s{S_B}, {ii*8192}\ns_nop 0")
    a.vmem(f"buffer_load_dwordx4 v{vA}, s[{R_W2}:{R_W2+3}], s{S_T0} offen lds", tag)
    a.vmem(f"buffer_load_dwordx4 v{vB}, s[{R_W2}:{R_W2+3}], s{S_T0} offen offset:1024 lds", tag)
def w2_addr(a, vA, vB, t0, t1):
    a(f"v_lshrrev_b32 v{t0}, 2, v0\nv_and_b32 v{t0}, 4, v{t0}\nv_and_b32 v{t1}, 7, v0\nv_xor_b32 v{t0}, v{t0}, v{t1}\nv_lshlrev_b32 v{t0}, 4, v{t0}")
    a(f"v_lshrrev_b32 v{t1}, 3, v0\nv_lshl_add_u32 v{vA}, v{t1}, 10, v{t0}")
    a(f"s_mul_i32 s{S_T0}, s{S_WV}, {448*1024}\ns_lshl_b32 s{S_T1}, s{S_C2}, 7\ns_add_u32 s{S_T0}, s{S_T0}, s{S_T1}")
    a(f"v_add_u32 v{vA}, s{S_T0}, v{vA}\nv_add_u32 v{vB}, {8192-1024}, v{vA}")
    a(f"s_lshl_b32 s{S_A}, s{S_OFF}, 14\ns_lshl_b32 s{S_B}, s{S_WV}, 11")

def gen_x(a, cfg, stamp, flush_stamps, poll, lds_sync, signal):
    VQ, VW, VKA, VKB, VHALO, TAPS = 1, 5, 9, 10, 11, 12
    T0, T1, T2, T3 = 16, 17, 18, 19
    x = S_WV
    a(f"v_lshrrev_b32 v{T0}, 3, v0\nv_and_b32 v{T1}, 7, v0\nv_lshrrev_b32 v{T2}, 4, v0")
    a(f"s_lshl_b32 s{S_T0}, s{x}, 1\ns_lshl_b32 s{S_T1}, s{x}, 14")
    a(f"v_xor_b32 v{T3}, s{S_T0}, v{T1}\nv_lshlrev_b32 v{T3}, 4, v{T3}\nv_lshl_add_u32 v{VKA}, v{T0}, 10, v{T3}\nv_add_u32 v{VKA}, s{S_T1}, v{VKA}")
    a(f"v_xor_b32 v{VKB}, 16, v{VKA}\nv_add_u32 v{VKB}, {8192-1024}, v{VKB}")
    a(f"v_xor_b32 v{T3}, 7, v{T1}\nv_lshlrev_b32 v{T3}, 4, v{T3}\nv_lshl_add_u32 v{VHALO}, v{T0}, 10, v{T3}")
    a(f"v_xor_b32 v{T3}, v{T2}, v{T1}\nv_lshlrev_b32 v{T3}, 4, v{T3}\nv_lshl_add_u32 v{VQ}, v{T0}, 10, v{T3}")
    a(f"s_lshl_b32 s{S_T0}, s{x}, 15\ns_lshl_b32 s{S_T1}, s{S_R}, 17\ns_add_u32 s{S_T0}, s{S_T0}, s{S_T1}")
    a(f"v_add_u32 v{VQ}, s{S_T0}, v{VQ}")
    a(f"v_xor_b32 v{VQ+1}, 64, v{VQ}\nv_add_u32 v{VQ+2}, {2*(8192-1024)}, v{VQ}\nv_add_u32 v{VQ+1}, {8192-1024}, v{VQ+1}\nv_add_u32 v{VQ+3}, {2*(8192-1024)}, v{VQ+1}")
    a(f"v_bfe_u32 v{T3}, v0, 1, 3\nv_xor_b32 v{T3}, v{T3}, v{T2}\nv_lshlrev_b32 v{T3}, 1, v{T3}\nv_and_b32 v{VW}, 1, v0\nv_or_b32 v{T3}, v{T3}, v{VW}\nv_lshlrev_b32 v{T3}, 4, v{T3}")
    a(f"v_xor_b32 v{VW+2}, 128, v{T3}")
    a(f"s_mul_i32 s{S_T0}, s{S_C}, 224\ns_and_b32 s{S_T0}, s{S_T0}, 0xffffffc0\ns_mul_i32 s{S_T1}, s{x}, {16*3584}\ns_add_u32 s{S_T0}, s{S_T0}, s{S_T1}")
    a(f"v_mul_u32_u24 v{T2}, 3584, v{T2}\nv_add_u32 v{T2}, s{S_T0}, v{T2}")
    d = 4*3584 - 1024
    a(f"v_add_u32 v{VW}, v{T2}, v{T3}\nv_add_u32 v{VW+2}, v{T2}, v{VW+2}\nv_add_u32 v{VW+1}, {d}, v{VW}\nv_add_u32 v{VW+2}, {2*d}, v{VW+2}\nv_add_u32 v{VW+3}, {d}, v{VW+2}")
    a(f"s_lshl_b32 s{S_T0}, s{S_XCD}, 9\ns_lshl_b32 s{S_T1}, s{x}, 7\ns_add_u32 s{S_T0}, s{S_T0}, s{S_T1}")
    a(f"v_lshl_add_u32 v{T0}, v{T0}, 4, s{S_T0}")
    a(f"s_lshl_b32 s{S_U0}, s{S_J}, 16\ns_lshl_b32 s{S_T1}, s{S_XCD}, 7\ns_add_u32 s{S_U0}, s{S_U0}, s{S_T1}")
    a(f"s_lshl_b32 s{S_U1}, s{x}, 12")
    a(f"s_lshl_b32 s{S_U2}, s{x}, 11")
    a("s_waitcnt lgkmcnt(0)")
    stamp(0)
    srd(a, R_K, P_K, 2 << 20); srd(a, R_V, P_V, 2 << 20); srd(a, R_Q, P_Q, 2 << 20); srd(a, R_W1, P_W1, 512*3584)
    def kv_loads():
        L = a.newlabel("Lnohalo")
        a(f"s_cmp_lg_u32 s{x}, 0\ns_cbranch_scc1 {L}")
        a(f"s_sub_u32 s{S_T0}, s{S_U0}, 8192\ns_cmp_eq_u32 s{S_J}, 0\ns_cselect_b32 s{S_T0}, 0, s{S_T0}\ns_cselect_b32 s{S_T1}, 0x80000000, 0")
        a(f"v_or_b32 v{VHALO}, s{S_T1}, v{VHALO}\ns_mov_b32 m0, {L_KST}\ns_nop 0")
        a(f"buffer_load_dwordx4 v{VHALO}, s[{R_K}:{R_K+3}], s{S_T0} offen lds")
        a.label(L)
        a(f"s_add_u32 m0, s{S_U2}, {L_KST+1024}\ns_nop 0")
        a.vmem(f"buffer_load_dwordx4 v{VKA}, s[{R_K}:{R_K+3}], s{S_U0} offen lds", "kv")
        a.vmem(f"buffer_load_dwordx4 v{VKB}, s[{R_K}:{R_K+3}], s{S_U0} offen offset:1024 lds", "kv")
        a(f"s_add_u32 m0, s{S_U2}, {L_VST}\ns_nop 0")
        a.vmem(f"buffer_load_dwordx4 v{VKA}, s[{R_V}:{R_V+3}], s{S_U0} offen lds", "kv")
        a.vmem(f"buffer_load_dwordx4 v{VKB}, s[{R_V}:{R_V+3}], s{S_U0} offen offset:1024 lds", "kv")
        a.vmem(f"global_load_dwordx4 v[{TAPS}:{TAPS+3}], v{T0}, s[{P_SH}:{P_SH+1}]", "kv")
    def chunk_ops(i):
        slot = i % 3
        ops = []
        def mk(kind, n):
            def f():
                if n == 0:
                    if kind == "q":
                        a(f"s_add_u32 s{S_T0}, s{S_KC0}, {i}\ns_and_b32 s{S_T0}, s{S_T0}, 7\ns_lshl_b32 s{S_U3}, s{S_T0}, 7\ns_mul_i32 s{S_U4}, s{S_T0}, {64*3584}")
                    a(f"s_add_u32 m0, s{S_U1}, {(L_Q if kind=='q' else L_W) + slot*16384}\ns_nop 0")
                off = f" offset:{1024*n}" if n else ""
                if kind == "q": a.vmem(f"buffer_load_dwordx4 v{VQ+n}, s[{R_Q}:{R_Q+3}], s{S_U3} offen{off} lds", f"c{i}")
                else: a.vmem(f"buffer_load_dwordx4 v{VW+n}, s[{R_W1}:{R_W1+3}], s{S_U4} offen{off} lds", f"c{i}")
            return f
        return [mk("q", n) for n in range(4)] + [mk("w", n) for n in range(4)]
    def chunk(i):
        for f in chunk_ops(i): f()
    kv_loads()
    chunk(0); chunk(1); chunk(2)
    stamp(1)
    srd(a, R_WS, P_WS, WS_SIZE); srd(a, R_DBG, P_DBG, 256); srd(a, R_W2, P_W2, 1792*1024); srd(a, R_OUT, P_OUT, 2 << 20)
    a(f"s_lshl_b32 s{S_T0}, s{S_XCD}, 6\ns_lshl1_add_u32 s{S_T0}, s{S_J}, s{S_T0}\ns_lshr_b32 s{S_T1}, s{x}, 1\ns_add_u32 s{S_U5}, s{S_T0}, s{S_T1}")
    a(f"s_lshl_b32 s{S_T0}, s{S_U5}, 12")
    srd(a, R_SSM, P_SSM, 4096, add=f"s{S_T0}")
    a(f"s_add_u32 s{S_T0}, s{S_T0}, {WS_UR}")
    srd(a, R_UR, P_WS, 4096, add=f"s{S_T0}")
    S_HB, S_UB = 98, 99
    a(f"s_mul_i32 s{S_T1}, s{S_T1}, {CH_STRIDE}\ns_and_b32 s{S_T2}, s{x}, 1")
    a(f"s_mul_i32 s{S_HB}, s{S_T2}, {H_STRIDE}\ns_add_u32 s{S_HB}, s{S_HB}, s{S_T1}\ns_add_u32 s{S_HB}, s{S_HB}, {L_CT+128}")
    a(f"s_mul_i32 s{S_UB}, s{S_T2}, {U_STRIDE}\ns_add_u32 s{S_UB}, s{S_UB}, s{S_T1}\ns_add_u32 s{S_UB}, s{S_UB}, {L_CT+U_OFF}")
    a(f"s_add_u32 s{S_T0}, s{S_UB}, 4096\ns_sub_u32 s{S_T1}, s{S_HB}, 512")
    a(f"v_mov_b32 v{T0}, s{S_T0}\nv_mov_b32 v{T1}, s{S_T1}\nv_cmp_gt_u32 vcc, 56, v0\nv_mov_b32 v20, 0\nv_mov_b32 v21, 0")
    a(f"v_cndmask_b32 v{T0}, v{T1}, v{T0}, vcc\nv_lshl_add_u32 v{T0}, v0, 3, v{T0}")
    a.lds(f"ds_write_b64 v{T0}, v[20:21]")
    a(f"v_mov_b32 v{T1}, {L_SYNC}")
    a.lds(f"ds_write_b64 v{T1}, v[20:21]")
    PK, PH, PV, PST = 20, 21, 22, 23
    a(f"v_and_b32 v{T0}, 7, v0\nv_lshrrev_b32 v{T1}, 5, v0\ns_lshl_b32 s{S_T0}, s{x}, 1")
    a.wait(lg="all")
    a(f"v_add_u32 v{T1}, s{S_T0}, v{T1}\nv_bfe_u32 v{T2}, v0, 3, 2\nv_lshlrev_b32 v{T2}, 2, v{T2}")
    a(f"v_lshl_add_u32 v{T2}, v{T0}, 10, v{T2}")
    a(f"v_xor_b32 v{T3}, v{T1}, v{T0}\nv_lshl_add_u32 v{PK}, v{T3}, 4, v{T2}")
    a(f"v_add_u32 v{PV}, {L_VST}, v{PK}\nv_add_u32 v{PK}, {L_KST+1024}, v{PK}")
    a(f"v_add_u32 v{T3}, 7, v{T0}\nv_and_b32 v{T3}, 7, v{T3}\nv_xor_b32 v{T3}, v{T1}, v{T3}\nv_lshl_add_u32 v{PH}, v{T3}, 4, v{T2}\nv_add_u32 v{PH}, {L_KST}, v{PH}")
    a(f"v_xor_b32 v{T3}, 7, v{T0}\nv_lshlrev_b32 v{T3}, 4, v{T3}\nv_lshrrev_b32 v{T1}, 3, v0\nv_lshl_add_u32 v{PST}, v{T1}, 13, v{T3}")
    VMK, VMD = 24, 25
    a(f"v_and_b32 v{VMK}, 7, v0\nv_lshlrev_b32 v{VMK}, 2, v{VMK}")
    W2A, W2B = 26, 27
    w2_addr(a, W2A, W2B, T0, T1)

    KR, VR = 32, 44
    KF, TF, VF, OUT = 56, 80, 88, 92
    ACC = 100
    prep = []
    P = prep.append
    P(("lds", f"ds_read_b32 v{KR+1}, v{PH} offset:{5*128}"))
    P(("lds", f"ds_read2_b32 v[{KR+2}:{KR+3}], v{PH} offset0:{6*32} offset1:{7*32}"))
    for i in range(4): P(("lds", f"ds_read2_b32 v[{KR+4+2*i}:{KR+5+2*i}], v{PK} offset0:{64*i} offset1:{64*i+32}"))
    for i in range(4): P(("lds", f"ds_read2_b32 v[{VR+2*i}:{VR+1+2*i}], v{PV} offset0:{64*i} offset1:{64*i+32}"))
    for m in range(4):
        P(("v", f"v_lshlrev_b32 v{TF+2*m}, 16, v{TAPS+m}")); P(("v", f"v_and_b32 v{TF+2*m+1}, 0xffff0000, v{TAPS+m}"))
    P(("waitlg",))
    for i in range(1, 12):
        P(("v", f"v_lshlrev_b32 v{KF+i}, 16, v{KR+i}")); P(("v", f"v_and_b32 v{KF+12+i}, 0xffff0000, v{KR+i}"))
    for e in range(2):
        for t in range(8):
            k0 = KF + 12*e + 4 + t
            P(("v", f"v_mul_f32 v{ACC+t}, v{k0-3}, v{TF+4*e+3}"))
        for tau in (2, 1, 0):
            for t in range(8):
                P(("v", f"v_fmac_f32 v{ACC+t}, v{KF+12*e+4+t-tau}, v{TF+4*e+tau}"))
        for t in range(8):
            P(("v", f"v_lshlrev_b32 v{VF+(t&1)}, 16, v{VR+t}" if e == 0 else f"v_and_b32 v{VF+(t&1)}, 0xffff0000, v{VR+t}"))
            P(("v", f"v_mul_f32 v{ACC+t}, v{ACC+t}, v{VF+(t&1)}"))
        for m in range(4):
            P(("v", f"v_cvt_pk_bf16_f32 v{OUT+4*e+m}, v{ACC+7-2*m}, v{ACC+6-2*m}"))
        P(("st", e))
    def emit(op):
        if op[0] == "lds": a.lds(op[1])
        elif op[0] == "v": a(op[1])
        elif op[0] == "waitlg": a.wait(lg="all")
        elif op[0] == "st":
            e = op[1]
            if e == 0:
                a(f"s_lshl_b32 s{S_T2}, s{S_XCD}, 18\ns_lshl_b32 s{S_T3}, s{x}, 16\ns_add_u32 s{S_T2}, s{S_T2}, s{S_T3}")
                a(f"s_lshl_b32 s{S_T3}, s{S_J}, 7\ns_sub_u32 s{S_T2}, s{S_T2}, s{S_T3}\ns_add_u32 s{S_T2}, s{S_T2}, {WS_UR + 2*1984}")
            else:
                a(f"s_add_u32 s{S_T2}, s{S_T2}, 4096")
            a.vmem(f"buffer_store_dwordx4 v[{OUT+4*e}:{OUT+4*e+3}], v{PST}, s[{R_WS}:{R_WS+3}], s{S_T2} offen sc1", "ur")

    a.wait(vm="c0"); a("s_barrier")
    stamp(2)
    a.vmem(f"buffer_load_dword v{VMD}, v{VMK}, s[{R_DBG}:{R_DBG+3}], 0 offen sc1", "mark")
    for op in prep: emit(op)
    stamp(3)
    a.wait(vm="c1"); a("s_barrier")
    chunk(3)
    a.wait(vm="c2"); a("s_barrier")
    chunk(4)
    a.wait(vm="ur")
    poll(VMK, VMD, R_DBG, 0, 1, issued=True)
    a(f"s_lshl2_add_u32 s{S_T0}, s{S_XCD}, s{x}\ns_and_b32 s{S_T1}, s{S_J}, 3\ns_lshl2_add_u32 s{S_T0}, s{S_T0}, s{S_T1}\ns_lshl_b32 s{S_PUB}, s{S_T0}, 8")
    signal(S_PUB, T0)
    stamp(4)
    for i in (3, 4, 5):
        a.wait(vm=f"c{i}"); a("s_barrier")
        chunk(i+2)
    HV0, HV1, H0, DV = 28, 29, 32, 36
    a(f"s_and_b32 s{S_T2}, s{x}, 1\ns_lshl_b32 s{S_T3}, s{S_T2}, 1\ns_sub_u32 s{S_T3}, s{S_T3}, 2")
    a(f"v_lshlrev_b32 v{HV0}, 4, v0\nv_add_u32 v{HV0}, s{S_T3}, v{HV0}\nv_add_u32 v{HV1}, 1024, v{HV0}")
    a(f"s_mov_b32 m0, s{S_HB}\ns_lshl_b32 s{S_T0}, s{S_U5}, 1\nv_mov_b32 v{T0}, s{S_T0}")
    a.vmem(f"buffer_load_dwordx4 v{HV0}, s[{R_SSM}:{R_SSM+3}], 0 offen lds", "h")
    a(f"s_add_u32 m0, s{S_HB}, 1024\ns_nop 0")
    for i in range(3):
        off = f" offset:{1024*i}" if i else ""
        a.vmem(f"buffer_load_dwordx4 v{HV1}, s[{R_SSM}:{R_SSM+3}], 0 offen{off} lds", "h")
    a.vmem(f"buffer_load_dwordx4 v[{H0}:{H0+3}], off, s[{R_SSM}:{R_SSM+3}], 0", "h")
    a.vmem(f"global_load_ushort v{DV}, v{T0}, s[{P_D}:{P_D+1}]", "h")
    for i in (12, 13): w2_dma(a, i, W2A, W2B, "w2")
    a.wait(vm="c6"); a("s_barrier")
    for i in (4, 5, 10, 11): w2_dma(a, i, W2A, W2B, "w2")
    a.wait(vm="c7"); a("s_barrier")
    stamp(5)
    for i in (0, 1, 6, 7): w2_dma(a, i, W2A, W2B, "w2")
    a.wait(vm="h")
    L = a.newlabel("Lnofix")
    a(f"s_bitcmp1_b32 s{x}, 0\ns_cbranch_scc1 {L}")
    a(f"v_alignbit_b32 v{H0+3}, v{H0+3}, v{H0+2}, 16\nv_alignbit_b32 v{H0+2}, v{H0+2}, v{H0+1}, 16\nv_alignbit_b32 v{H0+1}, v{H0+1}, v{H0}, 16\nv_lshlrev_b32 v{H0}, 16, v{H0}")
    a(f"v_mov_b32 v{T0}, s{S_HB}\ns_mov_b64 exec, 1\nds_write_b128 v{T0}, v[{H0}:{H0+3}]\ns_mov_b64 exec, -1")
    a.label(L)
    a("s_barrier")
    for i in (2, 3, 8, 9): w2_dma(a, i, W2A, W2B, "w2")
    a(f"s_lshr_b32 s{S_T0}, s{S_J}, 3\ns_lshl2_add_u32 s{S_T0}, s{S_XCD}, s{S_T0}\ns_lshl_b32 s{S_T0}, s{S_T0}, 10")
    a(f"v_and_b32 v{VMK}, 3, v0\nv_lshlrev_b32 v{VMK}, 8, v{VMK}")
    poll(VMK, VMD, R_WS, f"s{S_T0}", 8)
    stamp(6)
    a(f"s_and_b32 s{S_T2}, s{x}, 1\ns_lshl_b32 s{S_T3}, s{S_T2}, 2\nv_lshlrev_b32 v{HV0}, 4, v0\nv_add_u32 v{HV0}, s{S_T3}, v{HV0}\ns_mov_b32 m0, s{S_UB}\ns_nop 0")
    for i in range(4):
        off = f" offset:{1024*i}" if i else ""
        a.vmem(f"buffer_load_dwordx4 v{HV0}, s[{R_UR}:{R_UR+3}], 0 offen{off} sc1 lds", "u")
    CA, CB, AD = 28, 29, 32
    a(f"s_lshr_b32 s{S_T0}, s{x}, 1\ns_mul_i32 s{S_T0}, s{S_T0}, {CH_STRIDE}\ns_lshl_b32 s{S_T1}, s{S_T2}, 8\ns_add_u32 s{S_T0}, s{S_T0}, s{S_T1}")
    a(f"s_add_u32 s{S_T1}, s{S_T0}, {L_CT+U_OFF+448}\ns_add_u32 s{S_T0}, s{S_T0}, {L_CT+128-56}")
    a(f"v_and_b32 v{T0}, 1, v0\nv_bfe_u32 v{T1}, v0, 1, 3\nv_lshrrev_b32 v{T2}, 4, v0")
    a(f"v_mul_u32_u24 v{CA}, {H_STRIDE}, v{T0}\nv_lshl_add_u32 v{CA}, v{T1}, 3, v{CA}\nv_lshl_add_u32 v{CA}, v{T2}, 4, v{CA}\nv_add_u32 v{CA}, s{S_T0}, v{CA}")
    a(f"v_mul_u32_u24 v{CB}, {U_STRIDE}, v{T0}\nv_lshl_add_u32 v{CB}, v{T2}, 4, v{CB}\nv_add_u32 v{CB}, s{S_T1}, v{CB}\nv_lshlrev_b32 v{T3}, 6, v{T1}\nv_sub_u32 v{CB}, v{CB}, v{T3}")
    a(f"v_xor_b32 v{T0}, 1, v{T0}\nv_lshlrev_b32 v{T0}, 4, v{T0}\nv_lshlrev_b32 v{DV}, v{T0}, v{DV}")
    a(f"s_sub_u32 s{S_T2}, s{S_T2}, 1\nv_and_b32 v{DV}, s{S_T2}, v{DV}")
    a(f"v_lshlrev_b32 v{T1}, 1, v{T1}\nv_lshl_add_u32 v{T1}, v{T2}, 2, v{T1}")
    a(f"v_mov_b32 v{AD+1}, 0\nv_mov_b32 v{AD+3}, 0")
    a(f"v_cmp_eq_u32 vcc, 14, v{T1}\ns_nop 1\nv_cndmask_b32 v{AD}, 0, v{DV}, vcc")
    a(f"v_cmp_eq_u32 vcc, 12, v{T1}\ns_nop 1\nv_cndmask_b32 v{AD+2}, 0, v{DV}, vcc")
    a.wait(vm="all", lg="all")
    stamp(7)
    a("s_barrier")
    stamp(8)
    CACC, FA, FB = 40, 72, 104
    def reads(cc):
        buf = 64*(cc & 1); r = []
        for n in range(8):
            r.append((f"ds_read_b128 v[{FB+buf+4*n}:{FB+buf+4*n+3}], v{CB} offset:{3584-512*n+64*cc}", f"B{cc}_{n}"))
        for n in range(8):
            for hf in range(2):
                r.append((f"ds_read_b64 v[{FA+buf+4*n+2*hf}:{FA+buf+4*n+2*hf+1}], v{CA} offset:{512*n+64*cc+8*hf}", f"A{cc}_{n}"))
        return r
    r0 = reads(0)
    for ins, tag in r0[:12]: a.lds(ins, tag)
    pend = r0[12:]
    for T in range(8):
        a.wait(lg=f"B0_{T}")
        a(f"v_mfma_f32_16x16x32_bf16 v[{CACC+4*T}:{CACC+4*T+3}], v[{AD}:{AD+3}], v[{FB+4*T}:{FB+4*T+3}], 0")
        if pend: a.lds(*pend.pop(0))
    for cc in range(4):
        buf = 64*(cc & 1)
        nxt = reads(cc+1) if cc < 3 else []
        for an in range(8):
            for e in range(8-an):
                T = an + e
                a.wait(lg=[f"A{cc}_{an}", f"B{cc}_{e}"])
                a(f"v_mfma_f32_16x16x32_bf16 v[{CACC+4*T}:{CACC+4*T+3}], v[{FA+buf+4*an}:{FA+buf+4*an+3}], v[{FB+buf+4*e}:{FB+buf+4*e+3}], v[{CACC+4*T}:{CACC+4*T+3}]")
                if pend: a.lds(*pend.pop(0))
                elif nxt: a.lds(*nxt.pop(0))
        assert not pend and not nxt
    stamp(9)
    lds_sync(0, T0, T1)
    a(f"s_lshl_b32 s{S_T0}, s{x}, 13\ns_add_u32 s{S_T0}, s{S_T0}, {L_CT}\nv_lshl_add_u32 v{T2}, v0, 4, s{S_T0}")
    for T in range(8): a.lds(f"ds_write_b128 v{T2}, v[{CACC+4*T}:{CACC+4*T+3}] offset:{1024*T}")
    lds_sync(1, T0, T1)
    a(f"s_lshl_b32 s{S_T0}, s{x}, 11\ns_add_u32 s{S_T0}, s{S_T0}, {L_CT}\nv_lshl_add_u32 v{T2}, v0, 4, s{S_T0}")
    for tt in range(2):
        for src in range(4):
            a.lds(f"ds_read_b128 v[{FA+16*tt+4*src}:{FA+16*tt+4*src+3}], v{T2} offset:{8192*src+1024*tt}", f"e{tt}")
    a(f"v_bfe_u32 v{T0}, v0, 2, 2\nv_lshrrev_b32 v{T1}, 4, v0\nv_and_b32 v{T3}, 3, v0")
    a(f"v_lshlrev_b32 v{T0}, 8, v{T0}\nv_lshl_add_u32 v{T0}, v{T1}, 6, v{T0}\nv_lshl_add_u32 v{T0}, v{T3}, 4, v{T0}")
    a(f"s_lshl_b32 s{S_T0}, s{S_XCD}, 5\ns_add_u32 s{S_T0}, s{S_T0}, s{S_J}\ns_lshl_b32 s{S_T0}, s{S_T0}, 13\ns_add_u32 s{S_T0}, s{S_T0}, s{S_U2}\ns_add_u32 s{S_T0}, s{S_T0}, {WS_Y}")
    for tt in range(2):
        a.wait(lg=f"e{tt}")
        b = FA + 16*tt
        for r in range(4):
            a(f"v_add_f32 v{b+r}, v{b+r}, v{b+4+r}\nv_add_f32 v{b+8+r}, v{b+8+r}, v{b+12+r}")
        for r in range(4): a(f"v_cvt_pk_bf16_f32 v{b+4+r}, v{b+r}, v{b+8+r}")
        off = f" offset:1024" if tt else ""
        a.vmem(f"buffer_store_dwordx4 v[{b+4}:{b+7}], v{T0}, s[{R_WS}:{R_WS+3}], s{S_T0} offen{off} sc1", "y")
    XR, STT, B2R, VXO = 40, 48, 52, 30
    RHO, OCT, TOFF = 56, 57, 58
    a(f"v_lshrrev_b32 v{RHO}, 3, v0\nv_and_b32 v{OCT}, 7, v0")
    a(f"v_and_b32 v{TOFF}, 1, v{RHO}\nv_bfe_u32 v{T1}, v{RHO}, 1, 1\nv_lshl_add_u32 v{TOFF}, v{T1}, 2, v{TOFF}\nv_lshrrev_b32 v{T2}, 2, v{RHO}\nv_lshl_add_u32 v{TOFF}, v{T2}, 1, v{TOFF}")
    a(f"s_lshl_b32 s{S_T1}, s{S_R2}, 6\ns_lshl3_add_u32 s{S_T1}, s{x}, s{S_T1}")
    a(f"v_add_u32 v{T3}, s{S_T1}, v{TOFF}")
    a(f"s_lshl_b32 s{S_T2}, s{S_C2}, 7\nv_lshl_add_u32 v{T1}, v{OCT}, 4, s{S_T2}")
    a(f"v_lshl_add_u32 v{VXO}, v{T3}, 10, v{T1}\nv_lshlrev_b32 v{T3}, 3, v{T3}\ns_mov_b32 s{S_U0}, 32768\ns_mov_b32 s{S_T3}, {WS_STATS}")
    a.vmem(f"buffer_load_dwordx4 v[{XR}:{XR+3}], v{VXO}, s[{R_Q}:{R_Q+3}], 0 offen", "x")
    a.vmem(f"buffer_load_dwordx4 v[{XR+4}:{XR+7}], v{VXO}, s[{R_Q}:{R_Q+3}], s{S_U0} offen", "x")
    a.vmem(f"buffer_load_dwordx2 v[{STT}:{STT+1}], v{T3}, s[{R_WS}:{R_WS+3}], s{S_T3} offen sc1", "x")
    a.vmem(f"buffer_load_dwordx2 v[{STT+2}:{STT+3}], v{T3}, s[{R_WS}:{R_WS+3}], s{S_T3} offen offset:256 sc1", "x")
    a.vmem(f"global_load_dwordx4 v[{B2R}:{B2R+3}], v{T1}, s[{P_B2}:{P_B2+1}]", "x")
    a.wait(vm="y")
    a(f"s_add_u32 s{S_PUB}, s{S_PUB}, {CNT_Y*256}")
    signal(S_PUB, T0)
    stamp(10)
    a(f"s_lshr_b32 s{S_T0}, s{S_R2}, 3\ns_lshl2_add_u32 s{S_T0}, s{S_C2}, s{S_T0}\ns_lshl_b32 s{S_T0}, s{S_T0}, 10\ns_add_u32 s{S_T0}, s{S_T0}, {CNT_Y*256}")
    YS = 59
    a(f"v_bfe_u32 v{T1}, v0, 2, 3\nv_lshrrev_b32 v{T2}, 5, v0\nv_lshl_add_u32 v{T2}, v{T1}, 2, v{T2}\nv_lshlrev_b32 v{YS}, 13, v{T2}")
    a(f"v_lshrrev_b32 v{T1}, 1, v{T1}\nv_and_b32 v{T2}, 3, v0\nv_xor_b32 v{T1}, v{T1}, v{T2}\nv_lshl_add_u32 v{YS}, v{T1}, 4, v{YS}")
    a(f"s_lshl_b32 s{S_T1}, s{S_C2}, 18\ns_lshl_b32 s{S_T2}, s{S_R2}, 8\ns_add_u32 s{S_T1}, s{S_T1}, s{S_T2}\ns_lshl_b32 s{S_T2}, s{x}, 6\ns_add_u32 s{S_T1}, s{S_T1}, s{S_T2}\ns_add_u32 s{S_T1}, s{S_T1}, {WS_Y}")
    a(f"s_add_u32 s{S_T2}, s{S_T1}, {2*8192-1024}\ns_add_u32 m0, s{S_U2}, {L_YST}")
    poll(VMK, VMD, R_WS, f"s{S_T0}", 8)
    stamp(11)
    a.vmem(f"buffer_load_dwordx4 v{YS}, s[{R_WS}:{R_WS+3}], s{S_T1} offen sc1 lds", "ys")
    a.vmem(f"buffer_load_dwordx4 v{YS}, s[{R_WS}:{R_WS+3}], s{S_T2} offen offset:1024 sc1 lds", "ys")
    XF, PP, B2F, YR = 64, 80, 96, 104
    for n in range(2):
        for m in range(4):
            a(f"v_lshlrev_b32 v{XF+8*n+2*m}, 16, v{XR+4*n+m}\nv_and_b32 v{XF+8*n+2*m+1}, 0xffff0000, v{XR+4*n+m}")
        for m in range(8):
            a(f"v_sub_f32 v{PP+8*n+m}, v{XF+8*n+m}, v{STT+2*n}")
        for m in range(8):
            a(f"v_mul_f32 v{PP+8*n+m}, v{PP+8*n+m}, v{STT+2*n+1}")
    for m in range(4):
        a(f"v_lshlrev_b32 v{B2F+2*m}, 16, v{B2R+m}\nv_and_b32 v{B2F+2*m+1}, 0xffff0000, v{B2R+m}")
    YA0, YA1, PA0, PA1 = 60, 61, 62, 63
    a(f"v_lshrrev_b32 v{T0}, 2, v{RHO}\nv_xor_b32 v{T0}, 1, v{T0}\nv_lshrrev_b32 v{T1}, 1, v{OCT}\nv_xor_b32 v{T0}, v{T0}, v{T1}\nv_lshlrev_b32 v{T0}, 4, v{T0}")
    a(f"v_lshl_add_u32 v{T0}, v{OCT}, 6, v{T0}\nv_and_b32 v{T1}, 3, v{RHO}\nv_lshl_add_u32 v{T0}, v{T1}, 2, v{T0}")
    a(f"s_add_u32 s{S_T0}, s{S_U2}, {L_YST}\nv_xor_b32 v{YA1}, 32, v{T0}\nv_add_u32 v{YA0}, s{S_T0}, v{T0}\nv_add_u32 v{YA1}, s{S_T0}, v{YA1}")
    a(f"v_and_b32 v{T0}, 3, v{TOFF}\nv_lshlrev_b32 v{T0}, 8, v{T0}\nv_lshrrev_b32 v{T1}, 2, v{TOFF}\nv_lshl_add_u32 v{T0}, v{T1}, 7, v{T0}\nv_and_b32 v{T1}, 3, v{OCT}\nv_lshl_add_u32 v{T0}, v{T1}, 5, v{T0}")
    a(f"s_lshr_b32 s{S_T0}, s{x}, 1\ns_lshl_b32 s{S_T0}, s{S_T0}, 13\ns_and_b32 s{S_T1}, s{x}, 1\ns_lshl_b32 s{S_T1}, s{S_T1}, 10\ns_add_u32 s{S_T0}, s{S_T0}, s{S_T1}")
    a(f"s_lshl_b32 s{S_T1}, s{x}, 13\ns_add_u32 s{S_T1}, s{S_T1}, {4*8192+16}")
    a(f"v_mov_b32 v{T1}, s{S_T0}\nv_mov_b32 v{T2}, s{S_T1}\nv_cmp_lt_u32 vcc, 3, v{OCT}\nv_mov_b32 v{T3}, 16384\nv_mov_b32 v{PA1}, 32768")
    a(f"v_cndmask_b32 v{T1}, v{T1}, v{T2}, vcc\nv_cndmask_b32 v{T3}, v{T3}, v{PA1}, vcc\nv_add_u32 v{PA0}, v{T0}, v{T1}\nv_add_u32 v{PA1}, v{PA0}, v{T3}")
    a.wait(vm="all")
    for n, ya in enumerate((YA0, YA1)):
        a.lds(f"ds_read2st64_b32 v[{YR+4*n}:{YR+4*n+1}], v{ya} offset0:0 offset1:2")
        a.lds(f"ds_read2st64_b32 v[{YR+4*n+2}:{YR+4*n+3}], v{ya} offset0:4 offset1:6")
    a.wait(lg="all")
    for n in range(2):
        for m in range(4):
            a(f"v_lshlrev_b32 v{T0}, 16, v{YR+4*n+m}\nv_and_b32 v{T1}, 0xffff0000, v{YR+4*n+m}")
            a(f"v_mul_f32 v{PP+8*n+2*m}, v{PP+8*n+2*m}, v{T0}\nv_mul_f32 v{PP+8*n+2*m+1}, v{PP+8*n+2*m+1}, v{T1}")
    a(f"v_mov_b32 v{T2}, {f32(-1.4426950408889634)}")
    stamp(12)
    a("s_barrier")
    stamp(13)
    RD = 112
    for n, pa in enumerate((PA0, PA1)):
        for kq in range(4):
            for e in range(2):
                a.lds(f"ds_read_b128 v[{RD+32*n+8*kq+4*e}:{RD+32*n+8*kq+4*e+3}], v{pa} offset:{2048*kq+16*e}", f"p{n}_{kq}")
    EE = 176
    a(".p2align 3")
    for n in range(2):
        b = RD + 32*n
        def pk(op, d, x0, x1, x2=None, mod=""):
            a(f"{op} v[{d}:{d+1}], {x0}, {x1}" + (f", {x2}" if x2 else "") + mod)
        a.wait(lg=f"p{n}_1"); a("s_nop 0")
        for m in range(0, 8, 2): pk("v_pk_add_f32", b+m, v(b+m, 2), v(B2F+m, 2))
        for m in range(0, 8, 2): pk("v_pk_add_f32", b+m, v(b+m, 2), v(b+8+m, 2))
        a.wait(lg=f"p{n}_3"); a("s_nop 0")
        for m in range(0, 8, 2): pk("v_pk_add_f32", b+16+m, v(b+16+m, 2), v(b+24+m, 2))
        for m in range(0, 8, 2): pk("v_pk_add_f32", b+m, v(b+m, 2), v(b+16+m, 2))
        for m in range(0, 8, 2): pk("v_pk_mul_f32", EE+m, v(b+m, 2), v(T2, 2), mod=" op_sel_hi:[1,0]")
        for m in range(8): a(f"v_exp_f32 v{EE+m}, v{EE+m}")
        for m in range(0, 8, 2): pk("v_pk_mul_f32", b+m, v(b+m, 2), v(PP+8*n+m, 2))
        for m in range(0, 8, 2): pk("v_pk_add_f32", EE+m, v(EE+m, 2), "1.0", mod=" op_sel_hi:[1,0]")
        for m in range(8): a(f"v_rcp_f32 v{EE+m}, v{EE+m}")
        for m in range(0, 8, 2): pk("v_pk_fma_f32", b+m, v(b+m, 2), v(EE+m, 2), v(XF+8*n+m, 2))
        for m in range(4): a(f"v_cvt_pk_bf16_f32 v{b+8+m}, v{b+2*m}, v{b+2*m+1}")
        a.vmem(f"buffer_store_dwordx4 v[{b+8}:{b+11}], v{VXO}, s[{R_OUT}:{R_OUT+3}], {'s%d' % S_U0 if n else '0'} offen")
    stamp(14)
    if cfg.diag_pad or cfg.diag_amp:
        if cfg.diag_amp: a(f"s_sub_u32 s{S_T2}, s{S_ST}, s{S_EX}\ns_mul_i32 s{S_T2}, s{S_T2}, {cfg.diag_amp[1]}\ns_min_u32 s{S_T2}, s{S_T2}, 200000")
        else: a(f"s_mov_b32 s{S_T2}, {cfg.diag_pad}")
        a.label("L_pad")
        a(f"s_memrealtime s[{S_T0}:{S_T1}]\ns_waitcnt lgkmcnt(0)\ns_sub_u32 s{S_T0}, s{S_T0}, s{S_EX}\ns_cmp_lt_u32 s{S_T0}, s{S_T2}\ns_cbranch_scc1 L_pad")
    flush_stamps()
    a("s_endpgm")

def gen_m(a, cfg, stamp, flush_stamps, poll, lds_sync, signal):
    w = S_WV
    S_TH, S_FH = 98, 99
    T0, T1, T2, T3 = 10, 11, 12, 13
    QA, WA = 2, 6
    V16 = 1
    ACC, CS, QF, WF, ONES = 16, 72, 88, 120, 152
    B1R, B1F, STT, CSP, TMP = 156, 164, 180, 188, 204
    VMK, VMD = 14, 15
    a(f"s_and_b32 s{S_TH}, s{w}, 1\ns_lshr_b32 s{S_FH}, s{w}, 1")
    a(f"v_lshlrev_b32 v{V16}, 4, v0")
    a(f"s_lshl_b32 s{S_U0}, s{S_R}, 7\ns_lshl3_add_u32 s{S_U0}, s{S_C}, s{S_U0}\ns_lshl1_add_u32 s{S_U0}, s{w}, s{S_U0}")
    a(f"s_lshl_b32 s{S_U1}, s{S_U0}, 10")
    a(f"v_and_b32 v{VMK}, 7, v0\nv_lshlrev_b32 v{VMK}, 2, v{VMK}")
    a("s_waitcnt lgkmcnt(0)")
    stamp(0)
    srd(a, R_WS, P_WS, WS_SIZE); srd(a, R_Q, P_Q, 2 << 20); srd(a, R_DBG, P_DBG, 256)
    LN = a.newlabel("Lnolead")
    a(f"s_lshr_b32 s{S_T0}, s2, 3\ns_or_b32 s{S_U2}, s{S_T0}, s{w}\ns_cmp_lg_u32 s{S_U2}, 0\ns_cbranch_scc1 {LN}")
    for i in range(4): a(f"v_mov_b32 v{TMP+i}, 0")
    a(f"v_min_u32 v{T0}, 47, v0\nv_lshlrev_b32 v{T0}, 8, v{T0}\ns_mul_i32 s{S_T0}, s2, {48*256}\ns_lshl_b32 s{S_T1}, s2, 11\ns_add_u32 s{S_T1}, s{S_T1}, {WS_STATS}")
    a(f"buffer_store_dwordx4 v[{TMP}:{TMP+3}], v{V16}, s[{R_WS}:{R_WS+3}], s{S_T1} offen sc1")
    a(f"buffer_store_dwordx4 v[{TMP}:{TMP+3}], v{V16}, s[{R_WS}:{R_WS+3}], s{S_T1} offen offset:1024 sc1")
    a(f"buffer_store_dword v{TMP}, v{T0}, s[{R_WS}:{R_WS+3}], s{S_T0} offen sc1")
    a.label(LN)
    XR = TMP + 4
    a.vmem(f"buffer_load_dwordx4 v[{XR}:{XR+3}], v{V16}, s[{R_Q}:{R_Q+3}], s{S_U1} offen", "x")
    a.vmem(f"buffer_load_dwordx4 v[{XR+4}:{XR+7}], v{V16}, s[{R_Q}:{R_Q+3}], s{S_U1} offen offset:1024", "x")
    LN = a.newlabel("Lnolead")
    a(f"s_cmp_lg_u32 s{S_U2}, 0\ns_cbranch_scc1 {LN}")
    a(f"s_waitcnt vmcnt(2)\nv_mov_b32 v{T0}, 1\ns_lshl_b32 s{S_T0}, s2, 2\ns_mov_b64 exec, 1")
    a(f"buffer_store_dword v{T0}, off, s[{R_DBG}:{R_DBG+3}], s{S_T0} sc1\ns_mov_b64 exec, -1\ns_waitcnt vmcnt(1)")
    a.label(LN)
    if cfg.code_pf:
        a(f"s_getpc_b64 s[{S_T0}:{S_T1}]")
        a.label("L_pc")
        a(f"s_sub_u32 s{S_T0}, s{S_T0}, L_pc-{NAME}\ns_subb_u32 s{S_T1}, s{S_T1}, 0")
        a(f"s_lshl_b32 s{S_T2}, s{w}, 13\nv_lshl_add_u32 v{T0}, v0, 7, s{S_T2}\nv_min_u32 v{T0}, L_code_end-{NAME}-4, v{T0}")
        a(f"v_mov_b32 v{T3}, s{S_T1}\nv_add_co_u32 v{T2}, vcc, s{S_T0}, v{T0}\ns_nop 1\nv_addc_co_u32 v{T3}, vcc, 0, v{T3}, vcc")
        a.vmem(f"global_load_dword v{T0}, v[{T2}:{T3}], off", "pf")
    a(f"v_lshrrev_b32 v{T1}, 4, v0\ns_mul_i32 s{S_T0}, s{S_C}, 224\nv_lshl_add_u32 v{T2}, v{T1}, 3, s{S_T0}")
    a(f"s_lshl_b32 s{S_T1}, s{S_FH}, 7\nv_add_u32 v{T3}, s{S_T1}, v{T2}")
    for i in range(3): a.vmem(f"global_load_dwordx2 v[{B1R+2*i}:{B1R+2*i+1}], v{T3}, s[{P_B1}:{P_B1+1}] offset:{32*i}", "b1")
    a.vmem(f"global_load_dwordx2 v[{B1R+6}:{B1R+7}], v{T2}, s[{P_B1}:{P_B1+1}] offset:96", "b1")
    srd(a, R_W2, P_W2, 1792*1024)
    a(f"v_and_b32 v{T2}, 15, v0\nv_lshrrev_b32 v{T3}, 1, v{T2}\nv_xor_b32 v{T3}, v{T3}, v{T1}\nv_lshlrev_b32 v{T3}, 4, v{T3}\nv_lshl_add_u32 v{T3}, v{T2}, 7, v{T3}")
    a(f"s_lshl_b32 s{S_T0}, s{S_TH}, 6\nv_xor_b32 v{T3}, s{S_T0}, v{T3}")
    a(f"s_lshl_b32 s{S_T0}, s{S_TH}, 13\ns_lshl_b32 s{S_T1}, s{S_FH}, 12\ns_add_u32 s{S_T0}, s{S_T0}, s{S_T1}")
    a(f"v_add_u32 v{QA}, s{S_T0}, v{T3}\nv_xor_b32 v{QA+1}, 4096, v{QA}\nv_xor_b32 v{QA+2}, 64, v{QA}\nv_xor_b32 v{QA+3}, 64, v{QA+1}")
    a(f"v_bfe_u32 v{T2}, v0, 2, 3")
    a(f"v_bfe_u32 v{T3}, v0, 2, 2\nv_lshl_add_u32 v{T3}, v{T1}, 3, v{T3}\nv_lshlrev_b32 v{T3}, 8, v{T3}\nv_and_b32 v{T1}, 3, v0\nv_lshl_add_u32 v{T3}, v{T1}, 3, v{T3}")
    a(f"v_add_u32 v{T3}, {L_W}, v{T3}")
    a(f"s_and_b32 s{S_T0}, s{S_C}, 1\ns_lshl2_add_u32 s{S_T1}, s{S_FH}, s{S_T0}\ns_add_u32 s{S_T0}, s{S_T0}, 3")
    for i in range(4):
        if i == 3: a(f"v_xor_b32 v{T1}, s{S_T0}, v{T2}")
        else:
            a(f"v_xor_b32 v{T1}, s{S_T1}, v{T2}\ns_add_u32 s{S_T1}, s{S_T1}, 1")
        a(f"v_lshl_add_u32 v{WA+i}, v{T1}, 5, v{T3}")
    WA2 = TMP + 40
    a(f"s_lshl_b32 s{S_T0}, s{S_TH}, 13\ns_xor_b32 s{S_T1}, s{S_T0}, 8192")
    for i in range(4): a(f"v_add_u32 v{WA2+i}, s{S_T1}, v{WA+i}\nv_add_u32 v{WA+i}, s{S_T0}, v{WA+i}")
    for i in range(4): a(f"v_mov_b32 v{ONES+i}, 0x3f803f80")
    XF = XR + 8
    a.wait(vm="x")
    a.vmem(f"buffer_load_dword v{VMD}, v{VMK}, s[{R_DBG}:{R_DBG+3}], 0 offen sc1", "mark")
    for n in range(2):
        for m in range(4):
            a(f"v_lshlrev_b32 v{XF+8*n+2*m}, 16, v{XR+4*n+m}\nv_and_b32 v{XF+8*n+2*m+1}, 0xffff0000, v{XR+4*n+m}")
    SM = XR
    def reduce2():
        for dpp in ("row_shr:1 row_mask:0xf bank_mask:0xf bound_ctrl:0", "row_shr:2 row_mask:0xf bank_mask:0xf bound_ctrl:0", "row_shr:4 row_mask:0xf bank_mask:0xf bound_ctrl:0",
                    "row_shr:8 row_mask:0xf bank_mask:0xf bound_ctrl:0", "row_bcast:15 row_mask:0xa bank_mask:0xf", "row_bcast:31 row_mask:0xc bank_mask:0xf"):
            a("s_nop 0")
            for n in range(2): a(f"v_add_f32_dpp v{SM+n}, v{SM+n}, v{SM+n} {dpp}")
    for n in range(2): a(f"v_add_f32 v{SM+n}, v{XF+8*n}, v{XF+8*n+1}")
    for m in range(2, 8):
        for n in range(2): a(f"v_add_f32 v{SM+n}, v{SM+n}, v{XF+8*n+m}")
    reduce2()
    for n in range(2): a(f"v_mul_f32 v{SM+2+n}, {f32(1/512)}, v{SM+n}")
    a(f"v_readlane_b32 s{S_T0}, v{SM+2}, 63\nv_readlane_b32 s{S_T1}, v{SM+3}, 63\ns_nop 0")
    for n in range(2):
        for m in range(8): a(f"v_subrev_f32 v{XF+8*n+m}, s{S_T0+n}, v{XF+8*n+m}")
    for n in range(2): a(f"v_mul_f32 v{SM+n}, v{XF+8*n}, v{XF+8*n}")
    for m in range(1, 8):
        for n in range(2): a(f"v_fmac_f32 v{SM+n}, v{XF+8*n+m}, v{XF+8*n+m}")
    reduce2()
    GR = TMP
    a(f"v_mov_b32 v{T1}, {f32(1e-5)}")
    for n in range(2): a(f"v_fmamk_f32 v{SM+n}, v{SM+n}, {f32(1/512)}, v{T1}")
    for n in range(2): a(f"v_rsq_f32 v{SM+n}, v{SM+n}")
    for n in range(2): a(f"v_or_b32 v{GR+2*n}, 1, v{SM+2+n}")
    for n in range(2): a(f"v_or_b32 v{GR+2*n+1}, 1, v{SM+n}")
    a(f"s_lshl_b32 s{S_U0}, s{S_U0}, 3\ns_add_u32 s{S_U0}, s{S_U0}, {WS_STATS}\ns_mov_b32 s{S_PUB}, 0")
    a.wait(vm="b1")
    for i in range(8): a(f"v_lshlrev_b32 v{B1F+2*i}, 16, v{B1R+i}\nv_and_b32 v{B1F+2*i+1}, 0xffff0000, v{B1R+i}")
    def try_publish(final=False):
        D = a.newlabel("Lpubd"); N = a.newlabel("Lpubn")
        a(f"s_cmp_lg_u32 s{S_PUB}, 0\ns_cbranch_scc1 {D}")
        a("s_waitcnt vmcnt(0)")
        if final:
            poll(VMK, VMD, R_DBG, 0, 1, issued=True)
        else:
            a(f"v_cmp_ne_u32 vcc, 1, v{VMD}\ns_nop 0\ns_cbranch_vccz {N}")
            a(f"buffer_load_dword v{VMD}, v{VMK}, s[{R_DBG}:{R_DBG+3}], 0 offen sc1\ns_branch {D}")
            a.label(N)
        a(f"s_mov_b32 exec_lo, 0\ns_mov_b32 exec_hi, 0x80000000")
        a(f"buffer_store_dwordx4 v[{GR}:{GR+3}], off, s[{R_WS}:{R_WS+3}], s{S_U0} sc1")
        a(f"s_mov_b64 exec, -1\ns_mov_b32 s{S_PUB}, 1")
        a.label(D)
        a.vm = []
    stamp(1)
    try_publish()
    VST = TMP + 44
    a(f"v_and_b32 v{VST}, 15, v0\nv_lshlrev_b32 v{VST}, 3, v{VST}\ns_lshl_b32 s{S_T0}, s{S_FH}, 8\nv_add_u32 v{VST}, s{S_T0}, v{VST}\nv_xor_b32 v{VST+1}, 256, v{VST}")
    a(f"s_lshl_b32 s{S_U3}, s{S_R}, 10\ns_lshl_b32 s{S_T0}, s{S_TH}, 9\ns_add_u32 s{S_U3}, s{S_U3}, s{S_T0}\ns_add_u32 s{S_U3}, s{S_U3}, {WS_STATS}")
    def stats_loads():
        for tau in range(4):
            off = " offset:128" if tau & 1 else ""
            a(f"buffer_load_dwordx2 v[{STT+2*tau}:{STT+2*tau+1}], v{VST+(tau>>1)}, s[{R_WS}:{R_WS+3}], s{S_U3} offen{off} sc1")
    def rd(i, ks):
        slot = (i % 3) * 16384; b = 16*ks; wa = (WA, WA2)[ks]
        def W(n): return [(f"ds_read_b64_tr_b16 v[{WF+b+4*n+2*h}:{WF+b+4*n+2*h+1}], v{wa+n} offset:{slot+1024*h}", f"W{i}{ks}{n}") for h in range(2)]
        def Q(t): return [(f"ds_read_b128 v[{QF+b+4*t}:{QF+b+4*t+3}], v{QA+2*ks+(t>>1)} offset:{slot+2048*(t&1)}", f"Q{i}{ks}{t}")]
        return W(0) + Q(0) + Q(1) + Q(2) + Q(3) + W(1) + W(2) + W(3)
    def mm(i, ks, n, t):
        b = 16*ks
        if t == "cs":
            d = CS + 4*n; B = ONES; first = (i == 0); tags = [f"W{i}{ks}{n}"]
        else:
            d = ACC + 4*(4*n+t); B = QF+b+4*t; first = (i == 0 and ks == 0); tags = [f"W{i}{ks}{n}", f"Q{i}{ks}{t}"]
        a.wait(lg=tags)
        a(f"v_mfma_f32_16x16x32_bf16 v[{d}:{d+3}], v[{WF+b+4*n}:{WF+b+4*n+3}], v[{B}:{B+3}], {'0' if first else v(d,4)}")
    base = [(n, t) for n in range(3) for t in range(4)] + [(3, 0), (3, 1)]
    a("s_barrier")
    stamp(2)
    for ins, tag in rd(0, 0): a.lds(ins, tag)
    for i in range(8):
        pend = rd(i, 1)
        for n, t in base:
            mm(i, 0, n, t)
            if pend: a.lds(*pend.pop(0))
        if i < 7:
            order = base[:4] + [(0, "cs")] + base[4:8] + [(1, "cs")] + base[8:12] + [(2, "cs")] + base[12:] + [(3, "cs")]
            pend = rd(i+1, 0)
            for q, (n, t) in enumerate(order):
                mm(i, 1, n, t)
                if q == 4:
                    a.wait(lg="all")
                    if i < 5: try_publish(final=(i == 4))
                    if i == 5: stats_loads()
                    a("s_barrier")
                if q >= 5 and pend: a.lds(*pend.pop(0))
            assert not pend
        else:
            order = base[:4] + [(n, "cs") for n in range(4)] + base[4:]
            for q, (n, t) in enumerate(order):
                mm(i, 1, n, t)
                if q == 13:
                    a(f"s_lshl_b32 s{S_T0}, s{w}, 8\ns_add_u32 s{S_T0}, s{S_T0}, {L_CS}\nv_add_u32 v{T0}, s{S_T0}, v0\nv_and_b32 v{T1}, 48, v0")
                    a(f"s_mov_b32 exec_lo, 0x00010001\ns_mov_b32 exec_hi, 0x00010001")
                    for n2 in range(4): a.lds(f"ds_write_b128 v{T0}, v[{CS+4*n2}:{CS+4*n2+3}] offset:{64*n2}")
                    a(f"s_mov_b64 exec, -1\ns_xor_b32 s{S_T0}, s{w}, 1\ns_lshl_b32 s{S_T0}, s{S_T0}, 8\ns_add_u32 s{S_T0}, s{S_T0}, {L_CS}\nv_add_u32 v{T1}, s{S_T0}, v{T1}")
                    a.wait(lg="all")
                    a("s_barrier")
                    for n2 in range(4): a.lds(f"ds_read_b128 v[{CSP+4*n2}:{CSP+4*n2+3}], v{T1} offset:{64*n2}")
    stamp(3)
    L = a.newlabel("Lst"); D = a.newlabel("Lstd")
    a(f"s_mov_b32 s{S_SPIN}, 0")
    a.label(L)
    a("s_waitcnt vmcnt(0)")
    a(f"v_min3_u32 v{T0}, v{STT}, v{STT+1}, v{STT+2}\nv_min3_u32 v{T1}, v{STT+3}, v{STT+4}, v{STT+5}\nv_min3_u32 v{T0}, v{T0}, v{STT+6}, v{STT+7}\nv_min_u32 v{T0}, v{T0}, v{T1}")
    a(f"v_cmp_eq_u32 vcc, 0, v{T0}\ns_add_u32 s{S_SPIN}, s{S_SPIN}, 1\ns_cbranch_vccz {D}")
    a(f"s_cmp_gt_u32 s{S_SPIN}, {SPIN_MAX}\ns_cbranch_scc1 {D}")
    stats_loads()
    a(f"s_branch {L}")
    a.label(D)
    stamp(4)
    a.wait(lg="all")
    for tau in range(4): a(f"v_mul_f32 v{STT+2*tau}, v{STT+2*tau}, v{STT+2*tau+1}")
    KC = T2
    c1 = -2*1.4426950408889634*0.7978845608028654
    a(f"v_mov_b32 v{KC}, {f32(c1*0.044715)}\nv_mov_b32 v{KC+1}, {f32(c1)}")
    a(f"s_lshl_b32 s{S_T0}, s{S_R}, 2\ns_lshl1_add_u32 s{S_T0}, s{S_TH}, s{S_T0}\ns_add_u32 s{S_T0}, s{S_T0}, s{S_FH}\ns_xor_b32 s{S_T1}, s{S_T0}, 1")
    a(f"s_mul_i32 s{S_T0}, s{S_T0}, {112*1024}\ns_mul_i32 s{S_T1}, s{S_T1}, {112*1024}\ns_mul_i32 s{S_T2}, s{S_C}, {7*1024}\ns_add_u32 s{S_T2}, s{S_T2}, {WS_H}")
    a(f"s_add_u32 s{S_U2}, s{S_T0}, s{S_T2}\ns_lshl_b32 s{S_T3}, s{S_FH}, 12\ns_add_u32 s{S_U0}, s{S_U2}, s{S_T3}\ns_add_u32 s{S_U1}, s{S_T1}, s{S_T2}\ns_add_u32 s{S_U1}, s{S_U1}, s{S_T3}")
    a(".p2align 3")
    for m in range(0, 16, 2): a(f"v_pk_add_f32 v[{CS+m}:{CS+m+1}], v[{CS+m}:{CS+m+1}], v[{CSP+m}:{CSP+m+1}]")
    units = [(n, p) for n in range(3) for p in range(2)] + [(3, 0)]
    for u, (n, p) in enumerate(units):
        E = QF + 8*(u & 1); O = QF + 16 + 4*(u & 1)
        prs = [(ACC + 4*(4*n+2*p+tl) + 2*hh, 2*p+tl, 2*hh, E + 4*tl + 2*hh) for tl in range(2) for hh in range(2)]
        for z, tau, hh, e in prs: a(f"v_pk_fma_f32 v[{e}:{e+1}], v[{CS+4*n+hh}:{CS+4*n+hh+1}], v[{STT+2*tau}:{STT+2*tau+1}], v[{B1F+4*n+hh}:{B1F+4*n+hh+1}] op_sel_hi:[1,0,1] neg_lo:[0,1,0] neg_hi:[0,1,0]")
        for z, tau, hh, e in prs: a(f"v_pk_fma_f32 v[{z}:{z+1}], v[{z}:{z+1}], v[{STT+2*tau}:{STT+2*tau+1}], v[{e}:{e+1}] op_sel:[0,1,0]")
        for z, tau, hh, e in prs: a(f"v_pk_mul_f32 v[{e}:{e+1}], v[{z}:{z+1}], v[{z}:{z+1}]")
        for z, tau, hh, e in prs: a(f"v_pk_fma_f32 v[{e}:{e+1}], v[{e}:{e+1}], v[{KC}:{KC+1}], v[{KC}:{KC+1}] op_sel:[0,0,1] op_sel_hi:[1,0,1]")
        for z, tau, hh, e in prs: a(f"v_pk_mul_f32 v[{e}:{e+1}], v[{e}:{e+1}], v[{z}:{z+1}]")
        for m in range(8): a(f"v_exp_f32 v{E+m}, v{E+m}")
        for z, tau, hh, e in prs: a(f"v_pk_add_f32 v[{e}:{e+1}], v[{e}:{e+1}], 1.0 op_sel_hi:[1,0]")
        for m in range(8): a(f"v_rcp_f32 v{E+m}, v{E+m}")
        for z, tau, hh, e in prs: a(f"v_pk_mul_f32 v[{z}:{z+1}], v[{z}:{z+1}], v[{e}:{e+1}]")
        for q in (0, 2, 1, 3): a(f"v_cvt_pk_bf16_f32 v{O+q}, v{prs[q][0]}, v{prs[q][0]+1}")
        a(f"v_permlane16_swap_b32 v{O}, v{O+2}\ns_nop 0\nv_permlane16_swap_b32 v{O+1}, v{O+3}\ns_nop 0")
        so = S_U2 if n == 3 else (S_U0, S_U1)[p]
        a.vmem(f"buffer_store_dwordx4 v[{O}:{O+3}], v{V16}, s[{R_WS}:{R_WS+3}], s{so} offen offset:{1024*n} sc1", "h")
    stamp(5)
    ACC2, AR, WB = 14, 78, 142
    W2A, W2B, TR, HA, HB = 2, 3, 4, 8, 9
    w2_addr(a, W2A, W2B, T0, T1)
    a(f"v_bfe_u32 v{T0}, v0, 2, 2\nv_lshrrev_b32 v{T1}, 5, v0\nv_lshl_add_u32 v{T1}, v{T1}, 3, v{T0}\nv_lshlrev_b32 v{T1}, 7, v{T1}")
    a(f"v_lshrrev_b32 v{T0}, 1, v{T0}\nv_lshl_add_u32 v{T1}, v{T0}, 6, v{T1}\nv_bfe_u32 v{T0}, v0, 4, 1\nv_lshl_add_u32 v{T1}, v{T0}, 5, v{T1}\nv_and_b32 v{T0}, 3, v0\nv_lshl_add_u32 v{T1}, v{T0}, 3, v{T1}")
    a(f"v_add_u32 v{TR}, s{S_B}, v{T1}\nv_xor_b32 v{TR+1}, 64, v{TR}\nv_add_u32 v{TR+2}, 65536, v{TR}\nv_add_u32 v{TR+3}, 65536, v{TR+1}")
    a(f"s_mul_i32 s{S_T0}, s{S_R2}, {224*1024}\ns_mul_i32 s{S_T1}, s{w}, {28*1024}\ns_add_u32 s{S_T0}, s{S_T0}, s{S_T1}\ns_add_u32 s{S_T0}, s{S_T0}, {WS_H}")
    a(f"v_add_u32 v{HA}, s{S_T0}, v{V16}\nv_add_u32 v{HB}, {112*1024}, v{HA}")
    a("s_barrier")
    stamp(6)
    def trs(ii, tag):
        r = []
        for dt in range(2):
            for h in range(2):
                d = WB + 8*ii + 4*dt + 2*h
                r.append((f"ds_read_b64_tr_b16 v[{d}:{d+1}], v{TR+2*(ii>>3)+dt} offset:{(ii&7)*8192+512*h}", tag))
        return r
    for ii in range(14):
        for ins, tag in trs(ii, "f"): a.lds(ins, tag)
    a.wait(vm="h")
    a(f"s_lshl1_add_u32 s{S_T0}, s{S_R}, s{S_TH}\ns_lshr_b32 s{S_T1}, s{S_C}, 2\ns_lshl2_add_u32 s{S_T0}, s{S_T0}, s{S_T1}\ns_add_u32 s{S_T0}, s{S_T0}, {CNT_H}\ns_lshl_b32 s{S_PUB}, s{S_T0}, 8")
    signal(S_PUB, T0)
    a.wait(lg="all")
    stamp(7)
    for i in range(14, 28): w2_dma(a, i, W2A, W2B, "w2")
    a(f"s_lshl2_add_u32 s{S_T0}, s{S_R2}, s{w}\ns_add_u32 s{S_T0}, s{S_T0}, {CNT_H}\ns_lshl_b32 s{S_T0}, s{S_T0}, 8\nv_mov_b32 v{T0}, 0")
    poll(T0, T1, R_WS, f"s{S_T0}", 8)
    stamp(8)
    a(f"s_lshl_b32 s{S_A}, s{S_OFF}, 10")
    def hload(i):
        a(f"s_add_u32 s{S_T0}, s{S_A}, {i*1024}\ns_sub_u32 s{S_T1}, s{S_T0}, {28*1024}\ns_min_u32 s{S_T0}, s{S_T0}, s{S_T1}")
        d = AR + 8*(i & 7)
        a.vmem(f"buffer_load_dwordx4 v[{d}:{d+3}], v{HA}, s[{R_WS}:{R_WS+3}], s{S_T0} offen sc1", f"a{i}_0")
        a.vmem(f"buffer_load_dwordx4 v[{d+4}:{d+7}], v{HB}, s[{R_WS}:{R_WS+3}], s{S_T0} offen sc1", f"a{i}_1")
    for i in range(8): hload(i)
    pend = []
    for i in range(28):
        ii = i % 14
        for tt in range(2):
            for dt in range(2):
                a.wait(vm=f"a{i}_{tt}", lg=f"g{i}")
                d = ACC2 + 16*(2*tt+dt)
                a(f"v_mfma_f32_32x32x16_bf16 v[{d}:{d+15}], v[{AR+8*(i&7)+4*tt}:{AR+8*(i&7)+4*tt+3}], v[{WB+8*ii+4*dt}:{WB+8*ii+4*dt+3}], {'0' if i == 0 else v(d,16)}")
                if pend: a.lds(*pend.pop(0))
        if i + 8 < 28: hload(i+8)
        if i < 14: pend = trs(ii, f"g{i+14}")
    stamp(9)
    a(f"s_mov_b32 m0, s{S_B}\ns_nop 7")
    for tt in range(2):
        for r in range(16): a.lds(f"ds_write_addtid_b32 v{ACC2+32*tt+r} offset:{(2*tt+(r>>3))*8192+(r&7)*256}")
    a(f"s_add_u32 m0, s{S_B}, 32768\ns_nop 0")
    for tt in range(2):
        for r in range(16): a.lds(f"ds_write_addtid_b32 v{ACC2+32*tt+16+r} offset:{(4*tt+(r>>2))*8192+(r&3)*256+16}")
    a.wait(lg="all")
    stamp(10)
    a("s_barrier")
    flush_stamps()

HEADER = open("recurrent_scan__ssm_conv_h3__dense_activation_gelu__prompt.s.ref").read().split("; @launch")[0]
def full(cfg):
    a = gen(cfg)
    errs = check(a.lines)
    for e in errs: print(e, file=sys.stderr)
    assert not errs
    t = HEADER + f"; @launch grid=(256,1,1) block=(512,1,1) lds={LDS_BYTES}\n"
    t += f'.amdgcn_target "amdgcn-amd-amdhsa--gfx950"\n.text\n.globl {NAME}\n.p2align 8\n.type {NAME},@function\n'
    t += a.text()
    t += f'''.section .rodata,"a"
.p2align 6
.amdhsa_kernel {NAME}
  .amdhsa_next_free_vgpr 256
  .amdhsa_next_free_sgpr 102
  .amdhsa_accum_offset 256
  .amdhsa_group_segment_fixed_size 0
  .amdhsa_kernarg_size 112
  .amdhsa_user_sgpr_count 2
  .amdhsa_user_sgpr_kernarg_segment_ptr 1
  .amdhsa_system_sgpr_workgroup_id_x 1
  .amdhsa_float_denorm_mode_32 3
.end_amdhsa_kernel
'''
    return t
if __name__ == "__main__":
    cfg = Cfg()
    out = sys.argv[1]
    for kv in sys.argv[2:]:
        k, val = kv.split("="); setattr(cfg, k, eval(val))
    open(out, "w").write(full(cfg))
```

```python
import re

class Asm:
    def __init__(self):
        self.lines = []
        self.vm = []
        self.lg = []
        self.nlabel = 0
        self.cap = None
    def __call__(self, s):
        for l in s.split("\n"):
            l = l.strip()
            if l: self.lines.append(l)
    def label(self, name): self.lines.append(name + ":")
    def newlabel(self, p="L"):
        self.nlabel += 1
        return f"{p}_{self.nlabel}"
    def vmem(self, s, tag=None):
        if self.cap and len(self.vm) >= self.cap:
            self(f"s_waitcnt vmcnt({self.cap-1})"); self.vm = self.vm[len(self.vm)-(self.cap-1):]
        self(s); self.vm.append(tag)
        assert len(self.vm) <= 63, "vmcnt overflow"
    def lds(self, s, tag=None):
        if len(self.lg) >= 14:
            self(f"s_waitcnt lgkmcnt(13)"); self.lg = self.lg[-13:]
        self(s); self.lg.append(tag)
    def _need(self, q, tags):
        last = -1
        for i, t in enumerate(q):
            if t in tags: last = i
        return last
    def wait(self, vm=None, lg=None):
        parts = []
        if vm is not None:
            if vm == "all":
                parts.append("vmcnt(0)"); self.vm = []
            else:
                tags = vm if isinstance(vm, (list, tuple, set)) else [vm]
                last = self._need(self.vm, tags)
                if last >= 0:
                    parts.append(f"vmcnt({len(self.vm)-1-last})"); self.vm = self.vm[last+1:]
        if lg is not None:
            if lg == "all":
                parts.append("lgkmcnt(0)"); self.lg = []
            else:
                tags = lg if isinstance(lg, (list, tuple, set)) else [lg]
                last = self._need(self.lg, tags)
                if last >= 0:
                    parts.append(f"lgkmcnt({len(self.lg)-1-last})"); self.lg = self.lg[last+1:]
        if parts: self("s_waitcnt " + " ".join(parts))
    def text(self): return "\n".join(self.lines) + "\n"

def v(i, n=1): return f"v{i}" if n == 1 else f"v[{i}:{i+n-1}]"
def s(i, n=1): return f"s{i}" if n == 1 else f"s[{i}:{i+n-1}]"

_reg = re.compile(r"\b([vs])(\d+)\b|\b([vs])\[(\d+):(\d+)\]|\b(vcc|exec|m0)\b")
def regs(op):
    out = set()
    for m in _reg.finditer(op):
        if m.group(1): out.add((m.group(1), int(m.group(2))))
        elif m.group(3): out.update((m.group(3), i) for i in range(int(m.group(4)), int(m.group(5))+1))
        else: out.add((m.group(6), 0))
    return out
TRANS = ("v_exp_f32", "v_log_f32", "v_rcp_f32", "v_rsq_f32", "v_sqrt_f32", "v_sin_f32", "v_cos_f32")
def split_ops(rest):
    ops, depth, cur = [], 0, ""
    for ch in rest:
        if ch == "[": depth += 1
        if ch == "]": depth -= 1
        if ch == "," and depth == 0: ops.append(cur.strip()); cur = ""
        else: cur += ch
    if cur.strip(): ops.append(cur.strip())
    return ops
def parse(line):
    line = line.split(";")[0].strip()
    if not line or line.endswith(":") or line.startswith("."): return None
    p = line.split(None, 1)
    mn = p[0]; ops = split_ops(p[1]) if len(p) > 1 else []
    d = dict(mn=mn, line=line, w=set(), r=set(), cls="other", states=1, srcC=set(), srcAB=set(), data=set())
    if mn == "s_nop": d["states"] = int(ops[0], 0) + 1; return d
    if mn.startswith("v_mfma"):
        d["cls"] = "mfma"; d["w"] = regs(ops[0]); d["srcAB"] = regs(ops[1]) | regs(ops[2]); d["srcC"] = regs(ops[3])
        d["r"] = d["srcAB"] | d["srcC"]; d["passes"] = 8 if "32x32" in mn else 4
    elif mn.startswith("v_"):
        d["cls"] = "valu"
        d["w"] = regs(ops[0]); rs = ops[1:]
        if mn.startswith(("v_add_co", "v_addc_co", "v_sub_co")): d["w"] |= regs(ops[1]); rs = ops[2:]
        for o in rs: d["r"] |= regs(o)
        if mn.startswith(("v_fmac", "v_dot2c", "v_writelane")) or "_dpp" in mn: d["r"] |= regs(ops[0])
        if mn.startswith("v_permlane"): d["r"] |= regs(ops[0]); d["w"] |= regs(ops[1])
        if mn.startswith("v_cmpx"): d["w"].add(("exec", 0))
        d["trans"] = mn.startswith(TRANS)
    elif mn.startswith("ds_"):
        d["cls"] = "ds"
        if mn.startswith("ds_read") or "_rtn" in mn:
            d["w"] = regs(ops[0]); [d["r"].update(regs(o)) for o in ops[1:]]
        else: [d["r"].update(regs(o)) for o in ops]
        if "addtid" in mn: d["r"].add(("m0", 0))
    elif mn.startswith(("buffer_", "global_")):
        d["cls"] = "vmem"
        islds = line.rstrip().endswith(" lds")
        if "load" in mn and not islds:
            d["w"] = regs(ops[0]); [d["r"].update(regs(o)) for o in ops[1:]]
        else:
            [d["r"].update(regs(o)) for o in ops]
            if "store" in mn and ("x4" in mn or "x3" in mn):
                d["data"] = regs(ops[0]) if mn.startswith("buffer_") else regs(ops[1])
        if islds: d["r"].add(("m0", 0))
    elif mn.startswith("s_"):
        d["cls"] = "salu"
        if ops and not mn.startswith(("s_cmp", "s_waitcnt", "s_cbranch", "s_branch", "s_barrier", "s_sleep", "s_setprio", "s_endpgm")):
            d["w"] = regs(ops[0]); [d["r"].update(regs(o)) for o in ops[1:]]
            if "saveexec" in mn: d["w"].add(("exec", 0))
    return d
def check(lines):
    ins = [x for x in (parse(l) for l in lines) if x]
    errs = [f"erratum: op_sel on src1 of a packed f32 op: {c['line']}" for c in ins if c["mn"].startswith("v_pk_") and re.search(r"op_sel:\[\d,1", c["line"])]
    for i, c in enumerate(ins):
        dist = 0
        for jn in range(i-1, max(-1, i-24), -1):
            p = ins[jn]
            if p["mn"] in ("s_branch", "s_endpgm"): break
            need = 0
            vw = {x for x in p["w"] if x[0] == "v"}; sw = {x for x in p["w"] if x[0] in ("s", "vcc")}
            if p["cls"] == "valu":
                if c["cls"] == "mfma" and vw & c["r"]: need = max(need, 2)
                if c["cls"] == "valu":
                    if p.get("trans") and not c.get("trans") and vw & c["r"]: need = max(need, 1)
                    if p.get("trans") and c.get("trans") and vw & c["r"]: need = max(need, 1)
                    if c["mn"].startswith("v_permlane") and vw & c["r"]: need = max(need, 2)
                    if "_dpp" in c["mn"] and vw & c["r"]: need = max(need, 2)
                    if c["mn"].startswith(("v_readlane", "v_readfirstlane")) and vw & c["r"]: need = max(need, 1)
                    if sw & c["r"]: need = max(need, 2)
                if c["cls"] in ("ds", "vmem") and p.get("trans") and vw & c["r"]: need = max(need, 1)
                if c["cls"] == "vmem" and sw & c["r"]: need = max(need, 5)
                if ("exec", 0) in p["w"] and (c["cls"] == "mfma" or c["mn"].startswith(("v_readlane", "v_readfirstlane", "v_permlane"))): need = max(need, 4)
            if p["cls"] == "salu" and ("m0", 0) in p["w"] and ("m0", 0) in c["r"] and c["cls"] in ("ds", "vmem"): need = max(need, 1)
            if p["cls"] == "vmem" and p["data"] & {x for x in c["w"]} and c["cls"] != "salu": need = max(need, 2)
            if p["cls"] == "mfma":
                P = p["passes"]
                if c["cls"] == "mfma":
                    if p["w"] & c["srcAB"]: need = max(need, {4: 8, 8: 12}[P])
                    if p["w"] & c["srcC"] and not (p["w"] == c["srcC"] and P == c["passes"]): need = max(need, {4: 6, 8: 10}[P])
                    if p["w"] & c["w"] and not (p["w"] == c["w"] and P == c["passes"]): need = max(need, {4: 8, 8: 12}[P])
                elif c["cls"] in ("valu", "ds", "vmem"):
                    if p["w"] & (c["r"] | c["w"]): need = max(need, {4: 8, 8: 12}[P])
                    if c["cls"] == "valu" and p["srcC"] & c["w"]: need = max(need, {4: 3, 8: 7}[P])
            if need > dist: errs.append(f"hazard: need {need} have {dist}:\n    {p['line']}\n    {c['line']}")
            dist += p["states"]
    return errs
```

```python
import sys, struct
from asmlib import Asm, v, s, check

NAME = "recurrent_scan__ssm_conv_h3__dense_activation_gelu__prompt_kernel"
def f32(x): return "0x%08x" % struct.unpack("<I", struct.pack("<f", x))[0]

WS_CNT, WS_STATS, WS_STAMP, WS_UR, WS_Y, WS_H = 0, 0x20000, 0x40000, 0x100000, 0x300000, 0x500000
WS_SIZE = 0x500000 + 64*112*1024
CNT_UR, CNT_H, CNT_Y = 0, 128, 256
L_Q, L_W, L_KST = 0, 49152, 98304
L_VST = L_KST + 9*1024
L_CT = 115712; CH_STRIDE = 17600; H_STRIDE = 4224; U_OFF = 8448; U_STRIDE = 4576
L_MISC = L_CT + 2*CH_STRIDE
L_YST = L_MISC
L_CS = L_YST + 8192
L_SYNC = L_CS + 1024
LDS_BYTES = L_SYNC + 64
SPIN_MAX = 1 << 17

P_Q, P_K, P_V, P_SH, P_SSM, P_D, P_BX, P_W1, P_B1, P_W2, P_B2, P_OUT, P_DBG, P_WS = range(4, 32, 2)
S_WV, S_XCD, S_J, S_R, S_C, S_KC0, S_R2, S_C2, S_OFF, S_WAVE = range(32, 42)
S_A, S_B, S_T0, S_T1, S_T2, S_T3 = range(42, 48)
R_Q, R_K, R_V, R_W1, R_WS, R_DBG, R_W2, R_SSM, R_X0, R_OUT = range(48, 88, 4)
S_U0, S_U1, S_U2, S_U3, S_U4, S_U5, S_SPIN, S_PUB = range(88, 96)
S_EX = 96; S_ST = 100
S_ONE, S_PV = 3, 16

class Cfg:
    stamps = False
    kvpos = 2; g1stag = "four"; g2map = 2; g2stag = "none"; ntq = ""; ntw2 = ""
    markseg = 0; ssmseg = 5; stseg = 4; urseg = 1; w2touch = 5
    urpos = -1
    hsigpos = 48
    xprio = 0
    code_pf = True
    diag_pad = 0; diag_amp = None; out_flags = ""
    x_nomfma = False; x_nolds = False; x_nodma = False; segstamps = True

def srd(a, R, P, size):
    a(f"s_mov_b32 s{R}, s{P}\ns_and_b32 s{R+1}, s{P+1}, 0xffff\ns_mov_b32 s{R+2}, {size}\ns_mov_b32 s{R+3}, 0x20000")

class K:
    def __init__(self, cfg): self.a = Asm(); self.cfg = cfg
    def stamp(self, i):
        a, cfg = self.a, self.cfg
        if cfg.diag_amp and cfg.diag_amp[0] == i:
            a(f"s_memrealtime s[{S_ST}:{S_ST+1}]\ns_waitcnt lgkmcnt(0)"); a.lg = []
        if cfg.stamps:
            a(f"s_memrealtime s[{S_ST}:{S_ST+1}]\ns_memtime s[{S_EX}:{S_EX+1}]\ns_waitcnt lgkmcnt(0)\nv_writelane_b32 v255, s{S_ST}, {i}\nv_writelane_b32 v255, s{S_EX}, {32+i}")
            if i == 0: a("v_writelane_b32 v255, s86, 23")
            a.lg = []
    def flush_stamps(self):
        a = self.a
        if self.cfg.stamps:
            a(f"s_lshl_b32 s{S_T0}, s2, 3\ns_add_u32 s{S_T0}, s{S_T0}, s{S_WAVE}\ns_lshl_b32 s{S_T0}, s{S_T0}, 8\ns_add_u32 s{S_T0}, s{S_T0}, {WS_STAMP}")
            a(f"v_lshlrev_b32 v254, 2, v0\nbuffer_store_dword v255, v254, s[{R_WS}:{R_WS+3}], s{S_T0} offen")
    def vpoll(self, vaddr, vdata, R, expect):
        a = self.a; L = a.newlabel("Lpoll"); D = a.newlabel("Lpolld")
        a(f"s_mov_b32 s{S_SPIN}, 0")
        a.label(L)
        a(f"buffer_load_dword v{vdata}, v{vaddr}, s[{R}:{R+3}], 0 offen sc1\ns_waitcnt vmcnt(0)")
        a(f"v_cmp_ne_u32 vcc, {expect}, v{vdata}")
        a(f"s_add_u32 s{S_SPIN}, s{S_SPIN}, 1\ns_cmp_gt_u32 s{S_SPIN}, {SPIN_MAX}\ns_cbranch_scc1 {D}\ns_cbranch_vccnz {L}")
        a.label(D)
    def spoll(self, off_sgpr, expect):
        a = self.a; L = a.newlabel("Lsp"); D = a.newlabel("Lspd")
        a(f"s_mov_b32 s{S_SPIN}, 0")
        a.label(L)
        a(f"s_load_dword s{S_PV}, s[{P_WS}:{P_WS+1}], s{off_sgpr} glc\ns_add_u32 s{S_SPIN}, s{S_SPIN}, 1\ns_waitcnt lgkmcnt(0)")
        a(f"s_cmp_eq_u32 s{S_PV}, {expect}\ns_cbranch_scc1 {D}\ns_cmp_gt_u32 s{S_SPIN}, {SPIN_MAX}\ns_cbranch_scc0 {L}")
        a.label(D); a.lg = []
    def signal(self, cnt): self.a(f"s_mov_b32 s{S_ONE}, 1\ns_atomic_add s{S_ONE}, s[{P_WS}:{P_WS+1}], s{cnt}")
    def lds_arrive(self, word, vtmp, vone):
        a = self.a
        a(f"v_mov_b32 v{vtmp}, {L_SYNC}\nv_mov_b32 v{vone}, 1\ns_mov_b64 exec, 1")
        a.lds(f"ds_add_u32 v{vtmp}, v{vone} offset:{4*word}")
        a("s_mov_b64 exec, -1")
    def lds_wait(self, word, vtmp, vone, setaddr=True):
        a = self.a; L = a.newlabel("Lsy"); D = a.newlabel("Lsyd")
        if setaddr: a(f"v_mov_b32 v{vtmp}, {L_SYNC}")
        a(f"s_mov_b32 s{S_SPIN}, 0")
        a.label(L)
        a(f"ds_read_b32 v{vone}, v{vtmp} offset:{4*word}\ns_add_u32 s{S_SPIN}, s{S_SPIN}, 1\ns_waitcnt lgkmcnt(0)")
        a(f"v_cmp_ne_u32 vcc, 4, v{vone}\ns_cmp_gt_u32 s{S_SPIN}, {SPIN_MAX*8}\ns_cbranch_scc1 {D}\ns_cbranch_vccnz {L}")
        a.label(D); a.lg = []
    def lds_sync(self, word, vtmp, vone):
        self.a.wait(lg="all"); self.lds_arrive(word, vtmp, vone); self.lds_wait(word, vtmp, vone, setaddr=False)

def prologue(k):
    a, cfg = k.a, k.cfg
    a.label(NAME)
    if cfg.stamps: a("s_memrealtime s[86:87]")
    a("s_cmp_ge_u32 s2, 256\ns_cbranch_scc1 L_end")
    a("s_load_dwordx16 s[4:19], s[0:1], 0\ns_load_dwordx8 s[20:27], s[0:1], 64\ns_load_dwordx4 s[28:31], s[0:1], 96")
    if cfg.code_pf:
        a(f"s_getpc_b64 s[{S_T0}:{S_T1}]")
        a.label("L_pc")
        a(f"s_lshr_b32 s{S_T2}, s2, 3\ns_lshl_b32 s{S_T2}, s{S_T2}, 10\nv_lshl_add_u32 v2, v0, 1, s{S_T2}\nv_min_u32 v2, L_code_end-L_pc-4, v2")
        a(f"v_mov_b32 v3, s{S_T1}\nv_add_co_u32 v2, vcc, s{S_T0}, v2\ns_mov_b64 exec, 1\ns_nop 0\nv_addc_co_u32 v3, vcc, 0, v3, vcc")
        a(f"global_load_dword v254, v[2:3], off\ns_mov_b64 exec, -1")
    if cfg.stamps: a("v_mov_b32 v255, 0")
    if cfg.diag_pad or cfg.diag_amp: a(f"s_memrealtime s[{S_EX}:{S_EX+1}]")
    a("v_lshrrev_b32 v1, 6, v0\nv_and_b32 v0, 63, v0")
    a(f"v_readfirstlane_b32 s{S_WAVE}, v1")
    a(f"s_and_b32 s{S_XCD}, s2, 7\ns_lshr_b32 s{S_J}, s2, 3")
    a(f"s_and_b32 s{S_T0}, s{S_XCD}, 3\ns_lshr_b32 s{S_T1}, s{S_XCD}, 2")
    a(f"s_and_b32 s{S_T2}, s{S_J}, 3\ns_lshr_b32 s{S_C2}, s{S_J}, 2")
    a(f"s_lshl2_add_u32 s{S_R}, s{S_T0}, s{S_T2}\ns_lshl3_add_u32 s{S_C}, s{S_T1}, s{S_C2}")
    a(f"s_and_b32 s{S_T0}, s{S_T0}, 1")
    if cfg.g1stag == "full":
        a(f"s_lshl1_add_u32 s{S_KC0}, s{S_T2}, s{S_C2}\ns_add_u32 s{S_KC0}, s{S_KC0}, s{S_T0}\ns_and_b32 s{S_KC0}, s{S_KC0}, 7")
    else:
        a(f"s_add_u32 s{S_KC0}, s{S_T2}, s{S_C2}\ns_and_b32 s{S_KC0}, s{S_KC0}, 3\ns_lshl1_add_u32 s{S_KC0}, s{S_KC0}, s{S_T0}")
    if cfg.g2map == 1:
        a(f"s_lshl1_add_u32 s{S_R2}, s{S_R}, s{S_T1}\ns_lshl1_add_u32 s{S_OFF}, s{S_T2}, s{S_C2}")
        if cfg.g2stag == "two": a(f"s_add_u32 s{S_OFF}, s{S_T2}, s{S_C2}")
    else:
        a(f"s_and_b32 s{S_T3}, s{S_C2}, 1\ns_lshl1_add_u32 s{S_R2}, s{S_R}, s{S_T3}")
        a(f"s_lshr_b32 s{S_C2}, s{S_C2}, 1\ns_lshl1_add_u32 s{S_OFF}, s{S_C2}, s{S_R2}")
        if cfg.g2stag == "two": a(f"s_add_u32 s{S_OFF}, s{S_C2}, s{S_R2}")
        a(f"s_lshl2_add_u32 s{S_C2}, s{S_T1}, s{S_C2}")
    if cfg.g2stag == "eight": a(f"s_and_b32 s{S_OFF}, s{S_OFF}, 7\ns_mul_i32 s{S_OFF}, s{S_OFF}, 7\ns_lshr_b32 s{S_OFF}, s{S_OFF}, 1")
    elif cfg.g2stag == "two": a(f"s_and_b32 s{S_OFF}, s{S_OFF}, 1\ns_mul_i32 s{S_OFF}, s{S_OFF}, 14")
    else: a(f"s_mov_b32 s{S_OFF}, 0")
    a(f"s_and_b32 s{S_WV}, s{S_WAVE}, 3\nv_lshlrev_b32 v1, 4, v0")
    a(f"s_cmp_ge_u32 s{S_WAVE}, 4\ns_cbranch_scc0 L_M")

def gen_x(k):
    a, cfg, stamp = k.a, k.cfg, k.stamp
    x = S_WV
    a.cap = cfg.cap
    V16, W2A, W2B, TR, HA, HB = 1, 2, 3, 4, 8, 9
    T0, T1, T2, T3 = 10, 11, 12, 13
    VQ, VW, VKA, VKB, VHALO, VTA, PK, PH, PV, PST, VMK, VMD = 14, 18, 22, 23, 24, 25, 26, 27, 28, 29, 30, 31
    TAPS, JUNK = 108, 112
    ACC2, AR, WB = 14, 78, 142
    a(f"v_lshrrev_b32 v{T0}, 3, v0\nv_and_b32 v{T1}, 7, v0\nv_lshrrev_b32 v{T2}, 4, v0")
    a(f"v_xor_b32 v{T3}, v{T2}, v{T1}\nv_lshlrev_b32 v{T3}, 4, v{T3}\nv_lshl_add_u32 v{VQ}, v{T0}, 10, v{T3}")
    a(f"s_lshl_b32 s{S_T0}, s{x}, 15\ns_lshl_b32 s{S_T1}, s{S_R}, 17\ns_add_u32 s{S_T0}, s{S_T0}, s{S_T1}")
    a(f"v_add_u32 v{VQ}, s{S_T0}, v{VQ}")
    a(f"v_xor_b32 v{VQ+1}, 64, v{VQ}\nv_add_u32 v{VQ+2}, {2*(8192-1024)}, v{VQ}\nv_add_u32 v{VQ+1}, {8192-1024}, v{VQ+1}\nv_add_u32 v{VQ+3}, {2*(8192-1024)}, v{VQ+1}")
    a(f"v_bfe_u32 v{T3}, v0, 1, 3\nv_xor_b32 v{T3}, v{T3}, v{T2}\nv_lshlrev_b32 v{T3}, 1, v{T3}\nv_and_b32 v{VW}, 1, v0\nv_or_b32 v{T3}, v{T3}, v{VW}\nv_lshlrev_b32 v{T3}, 4, v{T3}")
    a(f"v_xor_b32 v{VW+2}, 128, v{T3}")
    a(f"s_mul_i32 s{S_T0}, s{S_C}, 224\ns_and_b32 s{S_T0}, s{S_T0}, 0xffffffc0\ns_mul_i32 s{S_T1}, s{x}, {16*3584}\ns_add_u32 s{S_T0}, s{S_T0}, s{S_T1}")
    a(f"v_mul_u32_u24 v{T2}, 3584, v{T2}\nv_add_u32 v{T2}, s{S_T0}, v{T2}")
    d = 4*3584 - 1024
    a(f"v_add_u32 v{VW}, v{T2}, v{T3}\nv_add_u32 v{VW+2}, v{T2}, v{VW+2}\nv_add_u32 v{VW+1}, {d}, v{VW}\nv_add_u32 v{VW+2}, {2*d}, v{VW+2}\nv_add_u32 v{VW+3}, {d}, v{VW+2}")
    a(f"s_lshl_b32 s{S_U1}, s{x}, 12\ns_lshl_b32 s{S_B}, s{x}, 11")
    a("s_waitcnt lgkmcnt(0)")
    stamp(0)
    srd(a, R_Q, P_Q, 2 << 20); srd(a, R_W1, P_W1, 512*3584)
    def chunk_ops(i):
        slot = i % 3
        def mk(kind, n):
            def f():
                if n == 0:
                    if kind == "q":
                        a(f"s_add_u32 s{S_T0}, s{S_KC0}, {i}\ns_and_b32 s{S_T0}, s{S_T0}, 7\ns_lshl_b32 s{S_U3}, s{S_T0}, 7\ns_mul_i32 s{S_U4}, s{S_T0}, {64*3584}")
                    a(f"s_add_u32 m0, s{S_U1}, {(L_Q if kind=='q' else L_W) + slot*16384}\ns_nop 0")
                off = f" offset:{1024*n}" if n else ""
                if kind == "q": a.vmem(f"buffer_load_dwordx4 v{VQ+n}, s[{R_Q}:{R_Q+3}], s{S_U3} offen{off} {cfg.ntq} lds", f"c{i}")
                else: a.vmem(f"buffer_load_dwordx4 v{VW+n}, s[{R_W1}:{R_W1+3}], s{S_U4} offen{off} {cfg.ntq} lds", f"c{i}")
            return f
        return [mk("q", n) for n in range(4)] + [mk("w", n) for n in range(4)]
    def setup_rest():
        srd(a, R_WS, P_WS, WS_SIZE); srd(a, R_DBG, P_DBG, 256); srd(a, R_W2, P_W2, 1792*1024); srd(a, R_SSM, P_SSM, 2 << 20)
        a(f"s_lshl_b32 s{S_T0}, s{S_XCD}, 6\ns_lshl1_add_u32 s{S_T0}, s{S_J}, s{S_T0}\ns_lshr_b32 s{S_T1}, s{x}, 1\ns_add_u32 s{S_U5}, s{S_T0}, s{S_T1}")
        a(f"s_mul_i32 s{S_T1}, s{S_T1}, {CH_STRIDE}\ns_and_b32 s{S_T2}, s{x}, 1")
        a(f"s_lshl_b32 s{S_T3}, s{S_T2}, 11\ns_add_u32 s{S_H1}, s{S_T1}, s{S_T3}\ns_add_u32 s{S_H1}, s{S_H1}, {L_CT+H_STRIDE+128}")
        a(f"s_mul_i32 s{S_T3}, s{S_T2}, {H_STRIDE}\ns_add_u32 s{S_T3}, s{S_T3}, s{S_T1}\ns_add_u32 s{S_T3}, s{S_T3}, {L_CT+128-512}")
        a(f"s_mul_i32 s{S_T0}, s{S_T2}, {U_STRIDE}\ns_add_u32 s{S_T0}, s{S_T0}, s{S_T1}\ns_add_u32 s{S_T0}, s{S_T0}, {L_CT+U_OFF+4096}")
        Z = JUNK
        a(f"v_mov_b32 v{T2}, s{S_T0}\nv_mov_b32 v{T3}, s{S_T3}\nv_cmp_gt_u32 vcc, 56, v0")
        for i in range(4): a(f"v_mov_b32 v{Z+i}, 0")
        a(f"v_cndmask_b32 v{T3}, v{T3}, v{T2}, vcc\nv_lshl_add_u32 v{T3}, v0, 3, v{T3}\nv_subrev_u32 v{T2}, 4, v{T2}")
        a.lds(f"ds_write_b64 v{T3}, v[{Z}:{Z+1}]")
        a.lds(f"ds_write_b32 v{T2}, v{Z}")
        a(f"v_lshlrev_b32 v{VMK}, 2, v{T1}")
        a(f"v_lshrrev_b32 v{T2}, 2, v0\nv_and_b32 v{T2}, 4, v{T2}\nv_xor_b32 v{T2}, v{T2}, v{T1}\nv_lshlrev_b32 v{T2}, 4, v{T2}\nv_lshl_add_u32 v{W2A}, v{T0}, 10, v{T2}")
        a(f"s_mul_i32 s{S_T0}, s{x}, {448*1024}\ns_lshl_b32 s{S_T1}, s{S_C2}, 7\ns_add_u32 s{S_T0}, s{S_T0}, s{S_T1}")
        a(f"v_add_u32 v{W2A}, s{S_T0}, v{W2A}\nv_add_u32 v{W2B}, {8192-1024}, v{W2A}\ns_lshl_b32 s{S_A}, s{S_OFF}, 14")
        a(f"v_bfe_u32 v{T2}, v0, 2, 2\nv_lshrrev_b32 v{T3}, 5, v0\nv_lshl_add_u32 v{T3}, v{T3}, 3, v{T2}\nv_lshlrev_b32 v{T3}, 7, v{T3}")
        a(f"v_lshrrev_b32 v{T2}, 1, v{T2}\nv_lshl_add_u32 v{T3}, v{T2}, 6, v{T3}\nv_bfe_u32 v{T2}, v0, 4, 1\nv_lshl_add_u32 v{T3}, v{T2}, 5, v{T3}\nv_and_b32 v{T2}, 3, v0\nv_lshl_add_u32 v{T3}, v{T2}, 3, v{T3}")
        a(f"v_add_u32 v{TR}, s{S_B}, v{T3}\nv_xor_b32 v{TR+1}, 64, v{TR}\nv_add_u32 v{TR+2}, 65536, v{TR}\nv_add_u32 v{TR+3}, 65536, v{TR+1}")
        a(f"s_mul_i32 s{S_T0}, s{S_R2}, {224*1024}\ns_mul_i32 s{S_T1}, s{x}, {28*1024}\ns_add_u32 s{S_T0}, s{S_T0}, s{S_T1}\ns_add_u32 s{S_T0}, s{S_T0}, {WS_H}")
        a(f"v_add_u32 v{HA}, s{S_T0}, v{V16}\nv_add_u32 v{HB}, {112*1024}, v{HA}")
        a(f"s_lshr_b32 s{S_T0}, s{S_J}, 3\ns_lshl2_add_u32 s{S_T0}, s{S_XCD}, s{S_T0}\ns_lshl2_add_u32 s{S_T0}, s{S_T0}, s{x}\ns_lshl_b32 s{S_PUB}, s{S_T0}, 8")
        a.wait(lg="all")
    S_H1 = 17
    if cfg.binit == 0: a("s_barrier")
    for f in chunk_ops(0): f()
    if cfg.binit == 1: a("s_barrier")
    setup_rest()
    for f in chunk_ops(1): f()
    stamp(1)
    def ssm_loads():
        a(f"s_lshl_b32 s{S_T0}, s{S_U5}, 12\ns_and_b32 s{S_T1}, s{x}, 1\ns_lshl_b32 s{S_T1}, s{S_T1}, 11\ns_mov_b32 m0, s{S_H1}\ns_add_u32 s{S_T0}, s{S_T0}, s{S_T1}")
        a.vmem(f"buffer_load_dwordx4 v{V16}, s[{R_SSM}:{R_SSM+3}], s{S_T0} offen nt lds", "h")
        a.vmem(f"buffer_load_dwordx4 v{V16}, s[{R_SSM}:{R_SSM+3}], s{S_T0} offen offset:1024 nt lds", "h")
        a(f"s_lshl_b32 s{S_T0}, s{S_U5}, 12\ns_add_u32 s{S_T0}, s{S_T0}, 2044\ns_load_dword s{S_U0}, s[{P_SSM}:{P_SSM+1}], s{S_T0}")
    def w2_touch():
        if cfg.w2x:
            assert cfg.g2map == 2
            a(f"s_lshl2_add_u32 s{S_T0}, s{S_J}, s{x}\ns_mul_i32 s{S_T0}, s{S_T0}, {14*1024}\ns_lshr_b32 s{S_T1}, s{S_XCD}, 2\ns_lshl_b32 s{S_T1}, s{S_T1}, 9\ns_add_u32 s{S_T0}, s{S_T0}, s{S_T1}")
            a(f"v_lshrrev_b32 v{T2}, 2, v0\nv_and_b32 v{T3}, 3, v0\nv_lshlrev_b32 v{T3}, 7, v{T3}\nv_lshl_add_u32 v{T2}, v{T2}, 10, v{T3}\ns_mov_b32 exec_hi, 0x00ffffff")
            a.vmem(f"buffer_load_dword v{JUNK}, v{T2}, s[{R_W2}:{R_W2+3}], s{S_T0} offen {cfg.w2x}", "tw")
            a(f"s_mov_b64 exec, -1")
            return
        a(f"s_lshl2_add_u32 s{S_T0}, s2, s{x}\ns_mul_i32 s{S_T0}, s{S_T0}, {14*128}\nv_lshlrev_b32 v{T2}, 7, v0\ns_mov_b64 exec, 0x3fff")
        a.vmem(f"buffer_load_dword v{JUNK}, v{T2}, s[{R_W2}:{R_W2+3}], s{S_T0} offen", "tw")
        a(f"s_mov_b64 exec, -1")
    def w2_dma(i):
        ii = i % 14
        if cfg.g2stag == "none": a(f"s_mov_b32 s{S_T0}, {i*16384}")
        else: a(f"s_add_u32 s{S_T0}, s{S_A}, {i*16384}\ns_sub_u32 s{S_T1}, s{S_T0}, {28*16384}\ns_min_u32 s{S_T0}, s{S_T0}, s{S_T1}")
        a(f"s_add_u32 m0, s{S_B}, {ii*8192}\ns_nop 0")
        a.vmem(f"buffer_load_dwordx4 v{W2A}, s[{R_W2}:{R_W2+3}], s{S_T0} offen {cfg.ntw2} lds", f"w{i}")
        a.vmem(f"buffer_load_dwordx4 v{W2B}, s[{R_W2}:{R_W2+3}], s{S_T0} offen offset:1024 {cfg.ntw2} lds", f"w{i}")
    def ustage():
        L = a.newlabel("Lurok")
        a(f"s_cmp_eq_u32 s{S_PV}, 8\ns_cbranch_scc1 {L}")
        keep = list(a.lg); k.spoll(S_PUB, 8); a.lg = keep
        a.label(L)
        stamp(11)
        a(f"s_xor_b32 s{S_T1}, s{x}, 3\ns_lshl_b32 s{S_T1}, s{S_T1}, 10\ns_and_b32 s{S_T0}, s{S_U5}, 0xfffffffe\ns_lshl_b32 s{S_T0}, s{S_T0}, 12\ns_add_u32 s{S_T0}, s{S_T0}, s{S_T1}\ns_add_u32 s{S_T0}, s{S_T0}, {WS_UR}")
        for ch in range(2):
            for cp in range(2):
                a(f"s_add_u32 m0, s{S_T1}, {L_CT + ch*CH_STRIDE + U_OFF + cp*(U_STRIDE-4)}")
                a(f"s_add_u32 s{S_T0}, s{S_T0}, 4096" if (ch == 1 and cp == 0) else "s_nop 0")
                a.vmem(f"buffer_load_dwordx4 v{V16}, s[{R_WS}:{R_WS+3}], s{S_T0} offen sc1 lds", "u")
    MK = R_X0
    early = [12, 13, 4, 5, 10, 11]; late = [0, 1, 6, 7, 2, 3, 8, 9]
    a.wait(vm="c0"); a("s_barrier")
    for i in range(7):
        if cfg.segstamps or i == 0: stamp(2 + i)
        dm = []
        if i + 2 <= 7: dm += chunk_ops(i + 2)[:1 if cfg.x_nodma else 8]
        if i == cfg.w2touch: dm.append(w2_touch)
        if i == cfg.ssmseg: dm.append(ssm_loads)
        if i == 6: dm += [(lambda q=q: w2_dma(q)) for q in early[:cfg.nearly]]
        if i == cfg.markseg:
            L = a.newlabel("Lmk")
            a(f"s_cmp_lg_u32 s{x}, 0\ns_cbranch_scc1 {L}\ns_load_dwordx8 s[{MK}:{MK+7}], s[{P_DBG}:{P_DBG+1}], 0")
            a.label(L)
        for f in dm: f()
        if i == cfg.markseg:
            L = a.newlabel("Lmk")
            a(f"s_cmp_lg_u32 s{x}, 0\ns_cbranch_scc1 {L}\ns_waitcnt lgkmcnt(0)")
            a(f"s_and_b64 s[{MK}:{MK+1}], s[{MK}:{MK+1}], s[{MK+2}:{MK+3}]\ns_and_b64 s[{MK+4}:{MK+5}], s[{MK+4}:{MK+5}], s[{MK+6}:{MK+7}]\ns_and_b64 s[{MK}:{MK+1}], s[{MK}:{MK+1}], s[{MK+4}:{MK+5}]\ns_and_b32 s{MK}, s{MK}, s{MK+1}")
            a(f"s_cbranch_scc1 {L}")
            k.vpoll(VMK, VMD, R_DBG, 1)
            a.label(L)
        if i == 6: a(f"s_load_dword s{S_PV}, s[{P_WS}:{P_WS+1}], s{S_PUB} glc")
        a.wait(vm=f"c{i+1}"); a("s_barrier")
    if cfg.segstamps: stamp(9)
    if cfg.xprio: a(f"s_setprio {cfg.xprio}")
    for q in early[cfg.nearly:]: w2_dma(q)
    a("s_waitcnt lgkmcnt(0)")
    ustage()
    for q in late[:4]: w2_dma(q)
    HD = 40
    a(f"v_add_u32 v{T0}, s{S_H1}, v{V16}\nv_subrev_u32 v{T1}, 4, v{T0}\nv_subrev_u32 v{T2}, {H_STRIDE}, v{T0}")
    a(f"s_bitcmp1_b32 s{x}, 0\ns_cselect_b32 s{S_U0}, s{S_U0}, 0")
    a.wait(vm="h")
    for n in range(2):
        a.lds(f"ds_read_b128 v[{HD+8*n}:{HD+8*n+3}], v{T0} offset:{1024*n}")
        a.lds(f"ds_read_b32 v{HD+8*n+4}, v{T1} offset:{1024*n}")
    a.wait(lg="all")
    a(f"v_writelane_b32 v{HD+4}, s{S_U0}, 0")
    for n in range(2):
        b = HD + 8*n
        a(f"v_alignbit_b32 v{b+3}, v{b+3}, v{b+2}, 16\nv_alignbit_b32 v{b+2}, v{b+2}, v{b+1}, 16\nv_alignbit_b32 v{b+1}, v{b+1}, v{b}, 16\nv_alignbit_b32 v{b}, v{b}, v{b+4}, 16")
        a.lds(f"ds_write_b128 v{T2}, v[{b}:{b+3}] offset:{1024*n}")
    k.lds_wait(4, T0, T1)
    stamp(10)
    def trs(ii, tag):
        return [(f"ds_read_b64_tr_b16 v[{WB+8*ii+4*dt+2*h}:{WB+8*ii+4*dt+2*h+1}], v{TR+2*(ii>>3)+dt} offset:{(ii&7)*8192+512*h}", tag) for dt in range(2) for h in range(2)]
    arrived = False
    for n, i in enumerate(late):
        if n < 4: continue
        w2_dma(i)
        if n == cfg.uarr_d:
            a.wait(vm="u"); k.lds_arrive(0, T0, T1); arrived = True
    order = early + late
    for n, ii in enumerate(order + [None]):
        if ii is not None:
            a.wait(vm=f"w{ii}")
            for ins, tag in trs(ii, f"f{ii}"): a.lds(ins, tag)
        if n > 0:
            a.wait(lg=f"f{order[n-1]}")
            w2_dma(14 + order[n-1])
        if not arrived and (n == cfg.uarr or "u" not in a.vm):
            a.wait(vm="u"); k.lds_arrive(0, T0, T1); arrived = True
    assert arrived
    stamp(12)
    a(f"s_lshl2_add_u32 s{S_T0}, s{S_R2}, s{x}\ns_add_u32 s{S_T0}, s{S_T0}, {CNT_H}\ns_lshl_b32 s{S_T0}, s{S_T0}, 8")
    a(f"s_lshl_b32 s{S_A}, s{S_OFF}, 10")
    if cfg.xprio: a("s_setprio 0")
    k.spoll(S_T0, 8)
    stamp(13)
    def hload(i):
        if cfg.g2stag == "none":
            off = f" offset:{1024*(i&3)}" if i & 3 else ""
            if cfg.g2_hot: off = ""; a(f"s_mov_b32 s{S_T0}, {i*16384}")
            elif i & 3 == 0: a(f"s_mov_b32 s{S_T0}, {i*1024}")
        else:
            off = ""
            a(f"s_add_u32 s{S_T0}, s{S_A}, {i*1024}\ns_sub_u32 s{S_T1}, s{S_T0}, {28*1024}\ns_min_u32 s{S_T0}, s{S_T0}, s{S_T1}")
        d = AR + 8*(i & 7)
        if cfg.g2_noload and i >= 8: return
        RR = R_W2 if cfg.g2_hot else R_WS
        a.vmem(f"buffer_load_dwordx4 v[{d}:{d+3}], v{W2A if cfg.g2_hot else HA}, s[{RR}:{RR+3}], s{S_T0} offen{off} {cfg.hflag}", f"a{i}_0")
        a.vmem(f"buffer_load_dwordx4 v[{d+4}:{d+7}], v{W2B if cfg.g2_hot else HB}, s[{RR}:{RR+3}], s{S_T0} offen{off} {cfg.hflag}", f"a{i}_1")
    a.cap = None
    LA = cfg.la
    for i in range(LA): hload(i)
    pend = []
    for i in range(28):
        ii = i % 14
        for tt in range(2):
            for dt in range(2):
                a.wait(vm=f"a{i}_{tt}", lg=f"g{i}")
                d = ACC2 + 16*(2*tt+dt)
                if not cfg.g2_nomfma or i == 0: a(f"v_mfma_f32_32x32x16_bf16 v[{d}:{d+15}], v[{AR+8*(i&7)+4*tt}:{AR+8*(i&7)+4*tt+3}], v[{WB+8*ii+4*dt}:{WB+8*ii+4*dt+3}], {'0' if i == 0 else v(d,16)}")
                if pend: a.lds(*pend.pop(0))
        if i + LA < 28: hload(i+LA)
        if i < 14: pend = trs(ii, f"g{i+14}")
    stamp(14)
    a(f"s_mov_b32 m0, s{S_B}\ns_nop 7")
    for tt in range(2):
        for r in range(16): a.lds(f"ds_write_addtid_b32 v{ACC2+32*tt+r} offset:{(2*tt+(r>>3))*8192+(r&7)*256}")
    a(f"s_add_u32 m0, s{S_B}, 32768\ns_nop 0")
    for tt in range(2):
        for r in range(16): a.lds(f"ds_write_addtid_b32 v{ACC2+32*tt+16+r} offset:{(4*tt+(r>>2))*8192+(r&3)*256+16}")
    a.wait(lg="all")
    stamp(15)
    a("s_barrier")
    k.flush_stamps()
    a("s_endpgm")

def gen_m(k):
    a, cfg, stamp = k.a, k.cfg, k.stamp
    w = S_WV
    S_TH, S_FH = 98, 99
    V16, QA, WA = 1, 2, 6
    T0, T1, T2, T3 = 10, 11, 12, 13
    VCW, VCR = 14, 15
    ACC, CS, QF, WF, ONES, B1F, STT, CSP, WA2, VST, GR = 16, 72, 88, 120, 152, 156, 172, 180, 196, 200, 202
    CA, CB, AD, EXW, EXR, YST, VXO, VSA, VB2, YS0, YS1, YA0, YA1, PA0, PA1, DV, JUNK = 208, 209, 210, 214, 215, 216, 217, 218, 219, 220, 221, 222, 223, 224, 225, 226, 227
    XR, XF, B1R = 88, 96, 112
    LAM = -(2*1.4426950408889634*0.7978845608028654*0.044715) ** (1/3)
    MU = 2*1.4426950408889634*0.7978845608028654 / -LAM
    a(f"s_and_b32 s{S_TH}, s{w}, 1\ns_lshr_b32 s{S_FH}, s{w}, 1")
    a(f"s_lshl_b32 s{S_U0}, s{S_R}, 7\ns_lshl3_add_u32 s{S_U0}, s{S_C}, s{S_U0}\ns_lshl1_add_u32 s{S_U0}, s{w}, s{S_U0}")
    a(f"s_lshl_b32 s{S_U1}, s{S_U0}, 10\ns_or_b32 s{S_U2}, s{S_J}, s{w}")
    a(f"v_lshrrev_b32 v{T1}, 4, v0\ns_mul_i32 s{S_T0}, s{S_C}, 224\nv_lshl_add_u32 v{VCW}, v{T1}, 3, s{S_T0}")
    a(f"s_lshl_b32 s{S_T1}, s{S_FH}, 7\nv_add_u32 v{VCR}, s{S_T1}, v{VCW}")
    a(f"s_lshl_b32 s{S_T0}, s{S_XCD}, 6\ns_lshl1_add_u32 s{S_T0}, s{S_J}, s{S_T0}\ns_add_u32 s{S_T0}, s{S_T0}, s{S_FH}\ns_lshl_b32 s{S_T0}, s{S_T0}, 1\nv_mov_b32 v{DV}, s{S_T0}")
    VKA, VKB, VHALO, VTA, PK, PH, PV, PST, TAPS = 236, 237, 238, 239, 240, 241, 242, 243, 244
    a(f"v_lshrrev_b32 v{T0}, 3, v0\nv_and_b32 v{T2}, 7, v0\ns_lshl_b32 s{S_T0}, s{w}, 1\ns_lshl_b32 s{S_T1}, s{w}, 14")
    a(f"v_xor_b32 v{T3}, s{S_T0}, v{T2}\nv_lshlrev_b32 v{T3}, 4, v{T3}\nv_lshl_add_u32 v{VKA}, v{T0}, 10, v{T3}\nv_add_u32 v{VKA}, s{S_T1}, v{VKA}")
    a(f"v_xor_b32 v{VKB}, 16, v{VKA}\nv_add_u32 v{VKB}, {8192-1024}, v{VKB}")
    a(f"v_xor_b32 v{T3}, 7, v{T2}\nv_lshlrev_b32 v{T3}, 4, v{T3}\nv_lshl_add_u32 v{VHALO}, v{T0}, 10, v{T3}\nv_lshl_add_u32 v{PST}, v{T0}, 13, v{T3}")
    a(f"s_lshl_b32 s{S_T0}, s{S_XCD}, 9\ns_lshl_b32 s{S_T1}, s{w}, 7\ns_add_u32 s{S_T0}, s{S_T0}, s{S_T1}\nv_lshl_add_u32 v{VTA}, v{T0}, 4, s{S_T0}")
    a(f"s_lshl_b32 s{S_U4}, s{S_J}, 16\ns_lshl_b32 s{S_T1}, s{S_XCD}, 7\ns_add_u32 s{S_U4}, s{S_U4}, s{S_T1}\ns_lshl_b32 s{S_B}, s{w}, 11")
    for i in range(4): a(f"v_mov_b32 v{GR+i}, 0")
    a(f"v_mov_b32 v{T3}, {L_SYNC}")
    a(f"ds_write_b128 v{T3}, v[{GR}:{GR+3}]\nds_write_b128 v{T3}, v[{GR}:{GR+3}] offset:16")
    a("s_waitcnt lgkmcnt(0)")
    stamp(0)
    srd(a, R_K, P_K, 2 << 20); srd(a, R_V, P_V, 2 << 20); srd(a, R_WS, P_WS, WS_SIZE); srd(a, R_Q, P_Q, 2 << 20)
    LN = a.newlabel("Lnolead")
    a(f"s_cmp_lg_u32 s{S_U2}, 0\ns_cbranch_scc1 {LN}")
    a(f"v_min_u32 v{T0}, 47, v0\nv_lshlrev_b32 v{T0}, 8, v{T0}\ns_mul_i32 s{S_T0}, s2, {48*256}\ns_lshl_b32 s{S_T1}, s2, 11\ns_add_u32 s{S_T1}, s{S_T1}, {WS_STATS}")
    a(f"buffer_store_dwordx4 v[{GR}:{GR+3}], v{V16}, s[{R_WS}:{R_WS+3}], s{S_T1} offen sc1")
    a(f"buffer_store_dwordx4 v[{GR}:{GR+3}], v{V16}, s[{R_WS}:{R_WS+3}], s{S_T1} offen offset:1024 sc1")
    a(f"buffer_store_dword v{GR}, v{T0}, s[{R_WS}:{R_WS+3}], s{S_T0} offen sc1")
    a.label(LN)
    def x_loads():
        a.vmem(f"buffer_load_dwordx4 v[{XR}:{XR+3}], v{V16}, s[{R_Q}:{R_Q+3}], s{S_U1} offen {cfg.ntq}", "x")
        a.vmem(f"buffer_load_dwordx4 v[{XR+4}:{XR+7}], v{V16}, s[{R_Q}:{R_Q+3}], s{S_U1} offen offset:1024 {cfg.ntq}", "x")
    x_loads()
    L = a.newlabel("Lnohalo")
    a(f"s_cmp_lg_u32 s{w}, 3\ns_cbranch_scc1 {L}")
    a(f"s_sub_u32 s{S_T0}, s{S_U4}, 8192\ns_cmp_eq_u32 s{S_J}, 0\ns_cselect_b32 s{S_T0}, 0, s{S_T0}\ns_cselect_b32 s{S_T1}, 0x80000000, 0")
    a(f"v_or_b32 v{VHALO}, s{S_T1}, v{VHALO}\ns_mov_b32 m0, {L_KST}\ns_mov_b32 exec_lo, 0\ns_mov_b32 exec_hi, 0xffffff00")
    a(f"buffer_load_dwordx4 v{VHALO}, s[{R_K}:{R_K+3}], s{S_T0} offen nt lds\ns_mov_b64 exec, -1")
    a.label(L)
    a(f"s_add_u32 m0, s{S_B}, {L_KST+1024}\ns_nop 0")
    a.vmem(f"buffer_load_dwordx4 v{VKA}, s[{R_K}:{R_K+3}], s{S_U4} offen nt lds", "kv")
    a.vmem(f"buffer_load_dwordx4 v{VKB}, s[{R_K}:{R_K+3}], s{S_U4} offen offset:1024 nt lds", "kv")
    a(f"s_add_u32 m0, s{S_B}, {L_VST}\ns_nop 0")
    a.vmem(f"buffer_load_dwordx4 v{VKA}, s[{R_V}:{R_V+3}], s{S_U4} offen nt lds", "kv")
    a.vmem(f"buffer_load_dwordx4 v{VKB}, s[{R_V}:{R_V+3}], s{S_U4} offen offset:1024 nt lds", "kv")
    a.vmem(f"global_load_dwordx4 v[{TAPS}:{TAPS+3}], v{VTA}, s[{P_SH}:{P_SH+1}]", "kv")
    a("s_barrier")
    for i in range(3): a.vmem(f"global_load_dwordx2 v[{B1R+2*i}:{B1R+2*i+1}], v{VCR}, s[{P_B1}:{P_B1+1}] offset:{32*i}", "b1")
    a.vmem(f"global_load_dwordx2 v[{B1R+6}:{B1R+7}], v{VCW}, s[{P_B1}:{P_B1+1}] offset:96", "b1")
    a.vmem(f"global_load_ushort v{DV}, v{DV}, s[{P_D}:{P_D+1}]", "b1")
    LN = a.newlabel("Lnolead")
    a(f"s_cmp_lg_u32 s{S_U2}, 0\ns_cbranch_scc1 {LN}")
    a(f"s_waitcnt vmcnt({len(a.vm)})\ns_lshl_b32 s{S_T0}, s2, 2\ns_mov_b32 s{S_ONE}, 1\ns_atomic_add s{S_ONE}, s[{P_DBG}:{P_DBG+1}], s{S_T0}")
    a.label(LN)
    srd(a, R_OUT, P_OUT, 2 << 20)
    a(f"v_and_b32 v{T2}, 15, v0\nv_lshrrev_b32 v{T3}, 1, v{T2}\nv_xor_b32 v{T3}, v{T3}, v{T1}\nv_lshlrev_b32 v{T3}, 4, v{T3}\nv_lshl_add_u32 v{T3}, v{T2}, 7, v{T3}")
    a(f"s_lshl_b32 s{S_T0}, s{S_TH}, 6\nv_xor_b32 v{T3}, s{S_T0}, v{T3}")
    a(f"s_lshl_b32 s{S_T0}, s{S_TH}, 13\ns_lshl_b32 s{S_T1}, s{S_FH}, 12\ns_add_u32 s{S_T0}, s{S_T0}, s{S_T1}")
    a(f"v_add_u32 v{QA}, s{S_T0}, v{T3}\nv_xor_b32 v{QA+1}, 4096, v{QA}\nv_xor_b32 v{QA+2}, 64, v{QA}\nv_xor_b32 v{QA+3}, 64, v{QA+1}")
    a(f"s_lshl_b32 s{S_T0}, s{S_FH}, 8\nv_lshl_add_u32 v{VST}, v{T2}, 3, s{S_T0}\nv_xor_b32 v{VST+1}, 256, v{VST}")
    a(f"v_bfe_u32 v{T2}, v0, 2, 3")
    a(f"v_bfe_u32 v{T3}, v0, 2, 2\nv_lshl_add_u32 v{T3}, v{T1}, 3, v{T3}\nv_lshlrev_b32 v{T3}, 8, v{T3}\nv_and_b32 v{T0}, 3, v0\nv_lshl_add_u32 v{T3}, v{T0}, 3, v{T3}")
    a(f"v_add_u32 v{T3}, {L_W}, v{T3}")
    a(f"s_and_b32 s{S_T0}, s{S_C}, 1\ns_lshl2_add_u32 s{S_T1}, s{S_FH}, s{S_T0}\ns_add_u32 s{S_T0}, s{S_T0}, 3")
    for i in range(4):
        if i == 3: a(f"v_xor_b32 v{T0}, s{S_T0}, v{T2}")
        else: a(f"v_xor_b32 v{T0}, s{S_T1}, v{T2}\ns_add_u32 s{S_T1}, s{S_T1}, 1")
        a(f"v_lshl_add_u32 v{WA+i}, v{T0}, 5, v{T3}")
    a(f"s_lshl_b32 s{S_T0}, s{S_TH}, 13\ns_xor_b32 s{S_T1}, s{S_T0}, 8192")
    for i in range(4): a(f"v_add_u32 v{WA2+i}, s{S_T1}, v{WA+i}\nv_add_u32 v{WA+i}, s{S_T0}, v{WA+i}")
    for i in range(4): a(f"v_mov_b32 v{ONES+i}, 0x3f803f80")
    a(f"s_lshl_b32 s{S_T0}, s{w}, 8\ns_add_u32 s{S_T0}, s{S_T0}, {L_CS}\nv_add_u32 v{VCW}, s{S_T0}, v0\nv_and_b32 v{VCR}, 48, v0")
    a(f"s_xor_b32 s{S_T0}, s{w}, 1\ns_lshl_b32 s{S_T0}, s{S_T0}, 8\ns_add_u32 s{S_T0}, s{S_T0}, {L_CS}\nv_add_u32 v{VCR}, s{S_T0}, v{VCR}")
    a(f"s_lshl_b32 s{S_U3}, s{S_R}, 10\ns_lshl_b32 s{S_T0}, s{S_TH}, 9\ns_add_u32 s{S_U3}, s{S_U3}, s{S_T0}\ns_add_u32 s{S_U3}, s{S_U3}, {WS_STATS}")
    a(f"s_mul_i32 s{S_T0}, s{S_FH}, {CH_STRIDE}\ns_lshl_b32 s{S_T1}, s{S_TH}, 8\ns_add_u32 s{S_T0}, s{S_T0}, s{S_T1}")
    a(f"s_add_u32 s{S_T1}, s{S_T0}, {L_CT+U_OFF+448}\ns_add_u32 s{S_T0}, s{S_T0}, {L_CT+128-56}")
    a(f"v_and_b32 v{T0}, 1, v0\nv_bfe_u32 v{T2}, v0, 1, 3")
    a(f"v_mul_u32_u24 v{CA}, {H_STRIDE}, v{T0}\nv_lshl_add_u32 v{CA}, v{T2}, 3, v{CA}\nv_lshl_add_u32 v{CA}, v{T1}, 4, v{CA}\nv_add_u32 v{CA}, s{S_T0}, v{CA}")
    a(f"v_mul_u32_u24 v{CB}, {U_STRIDE}, v{T0}\nv_lshl_add_u32 v{CB}, v{T1}, 4, v{CB}\nv_add_u32 v{CB}, s{S_T1}, v{CB}\nv_lshlrev_b32 v{T3}, 6, v{T2}\nv_sub_u32 v{CB}, v{CB}, v{T3}")
    a(f"v_xor_b32 v{AD+1}, 1, v{T0}\nv_lshlrev_b32 v{AD+1}, 4, v{AD+1}")
    a(f"v_lshlrev_b32 v{AD+3}, 1, v{T2}\nv_lshl_add_u32 v{AD+3}, v{T1}, 2, v{AD+3}")
    a(f"s_lshl_b32 s{S_T0}, s{w}, 13\ns_add_u32 s{S_T0}, s{S_T0}, {L_CT}\nv_add_u32 v{EXW}, s{S_T0}, v{V16}")
    a(f"s_add_u32 s{S_T0}, s{S_B}, {L_CT}\nv_add_u32 v{EXR}, s{S_T0}, v{V16}")
    a(f"v_bfe_u32 v{T0}, v0, 2, 2\nv_and_b32 v{T3}, 3, v0\nv_lshlrev_b32 v{T0}, 8, v{T0}\nv_lshl_add_u32 v{T0}, v{T1}, 6, v{T0}\nv_lshl_add_u32 v{YST}, v{T3}, 4, v{T0}")
    a(f"s_lshl_b32 s{S_T0}, s{S_XCD}, 5\ns_add_u32 s{S_T0}, s{S_T0}, s{S_J}\ns_lshl_b32 s{S_T0}, s{S_T0}, 13\ns_add_u32 s{S_T0}, s{S_T0}, s{S_B}\ns_add_u32 s{S_T0}, s{S_T0}, {WS_Y}\nv_add_u32 v{YST}, s{S_T0}, v{YST}")
    a(f"s_lshl_b32 s{S_T1}, s{w}, 1\nv_and_b32 v{T0}, 15, v0\nv_xor_b32 v{T0}, s{S_T1}, v{T0}\nv_lshlrev_b32 v{T0}, 4, v{T0}\nv_lshl_add_u32 v{YS0}, v{T1}, 13, v{T0}\nv_xor_b32 v{YS1}, 16, v{YS0}")
    a(f"s_lshl_b32 s{S_T1}, s{S_C2}, 18\ns_lshl_b32 s{S_T2}, s{S_R2}, 8\ns_add_u32 s{S_T1}, s{S_T1}, s{S_T2}\ns_lshl_b32 s{S_T2}, s{w}, 16\ns_add_u32 s{S_T1}, s{S_T1}, s{S_T2}\ns_add_u32 s{S_T1}, s{S_T1}, {WS_Y}")
    a(f"s_add_u32 s{S_T2}, s{S_T1}, {4*8192-1024}\nv_add_u32 v{YS0}, s{S_T1}, v{YS0}\nv_add_u32 v{YS1}, s{S_T2}, v{YS1}")
    RHO, OCT, TOFF = ACC, ACC+1, ACC+2
    a(f"v_lshrrev_b32 v{RHO}, 3, v0\nv_and_b32 v{OCT}, 7, v0")
    a(f"v_and_b32 v{TOFF}, 1, v{RHO}\nv_bfe_u32 v{T0}, v{RHO}, 1, 1\nv_lshl_add_u32 v{TOFF}, v{T0}, 2, v{TOFF}\nv_lshrrev_b32 v{T2}, 2, v{RHO}\nv_lshl_add_u32 v{TOFF}, v{T2}, 1, v{TOFF}")
    a(f"s_lshl_b32 s{S_T1}, s{S_R2}, 6\ns_lshl3_add_u32 s{S_T1}, s{w}, s{S_T1}\nv_add_u32 v{T3}, s{S_T1}, v{TOFF}")
    a(f"s_lshl_b32 s{S_T2}, s{S_C2}, 7\nv_lshl_add_u32 v{VB2}, v{OCT}, 4, s{S_T2}\nv_lshl_add_u32 v{VXO}, v{T3}, 10, v{VB2}\nv_lshlrev_b32 v{VSA}, 3, v{T3}\nv_add_u32 v{VSA}, {WS_STATS}, v{VSA}")
    a(f"s_lshl_b32 s{S_T0}, s{w}, 2\ns_or_b32 s{S_T0}, s{S_T0}, 1\nv_xor_b32 v{T0}, s{S_T0}, v{T2}\nv_xor_b32 v{T0}, v{T0}, v{OCT}\nv_lshlrev_b32 v{T0}, 4, v{T0}")
    a(f"v_lshl_add_u32 v{T0}, v{OCT}, 10, v{T0}\nv_and_b32 v{T2}, 3, v{RHO}\nv_lshl_add_u32 v{T0}, v{T2}, 2, v{T0}")
    a(f"v_xor_b32 v{YA1}, 32, v{T0}\nv_add_u32 v{YA0}, {L_YST}, v{T0}\nv_add_u32 v{YA1}, {L_YST}, v{YA1}")
    a(f"v_and_b32 v{T0}, 3, v{TOFF}\nv_lshlrev_b32 v{T0}, 8, v{T0}\nv_lshrrev_b32 v{T2}, 2, v{TOFF}\nv_lshl_add_u32 v{T0}, v{T2}, 7, v{T0}\nv_and_b32 v{T2}, 3, v{OCT}\nv_lshl_add_u32 v{T0}, v{T2}, 5, v{T0}")
    a(f"s_lshl_b32 s{S_T0}, s{S_FH}, 13\ns_lshl_b32 s{S_T1}, s{S_TH}, 10\ns_add_u32 s{S_T0}, s{S_T0}, s{S_T1}")
    a(f"s_lshl_b32 s{S_T1}, s{w}, 13\ns_add_u32 s{S_T1}, s{S_T1}, {4*8192+16}")
    a(f"v_mov_b32 v{PA0}, s{S_T0}\nv_mov_b32 v{T2}, s{S_T1}\nv_cmp_lt_u32 vcc, 3, v{OCT}\nv_mov_b32 v{T3}, 16384\nv_mov_b32 v{PA1}, 32768")
    a(f"v_cndmask_b32 v{PA0}, v{PA0}, v{T2}, vcc\nv_cndmask_b32 v{T3}, v{T3}, v{PA1}, vcc\nv_add_u32 v{PA0}, v{T0}, v{PA0}\nv_add_u32 v{PA1}, v{PA0}, v{T3}")
    a(f"s_lshl_b32 s{S_T0}, s{w}, 1\nv_lshrrev_b32 v{PV}, 5, v0\nv_add_u32 v{PV}, s{S_T0}, v{PV}")
    a(f"v_bfe_u32 v{T2}, v0, 3, 2\nv_lshlrev_b32 v{T2}, 2, v{T2}\nv_lshl_add_u32 v{T2}, v{OCT}, 10, v{T2}")
    a(f"v_add_u32 v{T3}, 7, v{OCT}\nv_and_b32 v{T3}, 7, v{T3}\nv_xor_b32 v{T3}, v{PV}, v{T3}\nv_lshl_add_u32 v{PH}, v{T3}, 4, v{T2}\nv_add_u32 v{PH}, {L_KST}, v{PH}")
    a(f"v_xor_b32 v{T3}, v{PV}, v{OCT}\nv_lshl_add_u32 v{PK}, v{T3}, 4, v{T2}")
    a(f"v_add_u32 v{PV}, {L_VST}, v{PK}\nv_add_u32 v{PK}, {L_KST+1024}, v{PK}")
    a.wait(vm="x")
    for n in range(2):
        for m in range(4):
            a(f"v_lshlrev_b32 v{XF+8*n+2*m}, 16, v{XR+4*n+m}\nv_and_b32 v{XF+8*n+2*m+1}, 0xffff0000, v{XR+4*n+m}")
    SM = XR
    def reduce2():
        for dpp in ("row_shr:1 row_mask:0xf bank_mask:0xf bound_ctrl:0", "row_shr:2 row_mask:0xf bank_mask:0xf bound_ctrl:0", "row_shr:4 row_mask:0xf bank_mask:0xf bound_ctrl:0",
                    "row_shr:8 row_mask:0xf bank_mask:0xf bound_ctrl:0", "row_bcast:15 row_mask:0xa bank_mask:0xf", "row_bcast:31 row_mask:0xc bank_mask:0xf"):
            a("s_nop 0")
            for n in range(2): a(f"v_add_f32_dpp v{SM+n}, v{SM+n}, v{SM+n} {dpp}")
    for n in range(2): a(f"v_add_f32 v{SM+n}, v{XF+8*n}, v{XF+8*n+1}")
    for m in range(2, 8):
        for n in range(2): a(f"v_add_f32 v{SM+n}, v{SM+n}, v{XF+8*n+m}")
    reduce2()
    for n in range(2): a(f"v_mul_f32 v{SM+2+n}, {f32(1/512)}, v{SM+n}")
    a(f"v_readlane_b32 s{S_T0}, v{SM+2}, 63\nv_readlane_b32 s{S_T1}, v{SM+3}, 63\ns_nop 0")
    for n in range(2):
        for m in range(8): a(f"v_subrev_f32 v{XF+8*n+m}, s{S_T0+n}, v{XF+8*n+m}")
    for n in range(2): a(f"v_mul_f32 v{SM+n}, v{XF+8*n}, v{XF+8*n}")
    for m in range(1, 8):
        for n in range(2): a(f"v_fmac_f32 v{SM+n}, v{XF+8*n+m}, v{XF+8*n+m}")
    reduce2()
    a(f"v_mov_b32 v{T1}, {f32(1e-5)}")
    for n in range(2): a(f"v_fmamk_f32 v{SM+n}, v{SM+n}, {f32(1/512)}, v{T1}")
    for n in range(2): a(f"v_rsq_f32 v{SM+n}, v{SM+n}")
    for n in range(2): a(f"v_or_b32 v{GR+2*n}, 1, v{SM+2+n}")
    for n in range(2): a(f"v_or_b32 v{GR+2*n+1}, 1, v{SM+n}")
    a(f"s_lshl_b32 s{S_U0}, s{S_U0}, 3\ns_add_u32 s{S_U0}, s{S_U0}, {WS_STATS}")
    stamp(14)
    KR, VR, KF, TF, VF, OUT, PA = 16, 28, 36, 60, 68, 120, 128
    a.wait(vm="kv")
    k.lds_arrive(5, T0, T1)
    for m in range(4): a(f"v_lshlrev_b32 v{TF+4*(m&1)+(m>>1)}, 16, v{TAPS+m}\nv_and_b32 v{TF+4*(m&1)+2+(m>>1)}, 0xffff0000, v{TAPS+m}")
    a(f"s_lshl_b32 s{S_T2}, s{S_XCD}, 18\ns_lshl_b32 s{S_T3}, s{w}, 16\ns_add_u32 s{S_T2}, s{S_T2}, s{S_T3}")
    a(f"s_lshl_b32 s{S_T3}, s{S_J}, 7\ns_sub_u32 s{S_T2}, s{S_T2}, s{S_T3}\ns_add_u32 s{S_T2}, s{S_T2}, {WS_UR + 2*1984}\ns_add_u32 s{S_T3}, s{S_T2}, 4096")
    k.lds_wait(5, T0, T1, setaddr=False)
    stamp(15)
    a.lds(f"ds_read_b32 v{KR+1}, v{PH} offset:{5*128}", "k")
    a.lds(f"ds_read2_b32 v[{KR+2}:{KR+3}], v{PH} offset0:{6*32} offset1:{7*32}", "k")
    for i in range(4): a.lds(f"ds_read2_b32 v[{KR+4+2*i}:{KR+5+2*i}], v{PK} offset0:{64*i} offset1:{64*i+32}", "k")
    for i in range(4): a.lds(f"ds_read2_b32 v[{VR+2*i}:{VR+1+2*i}], v{PV} offset0:{64*i} offset1:{64*i+32}", "v")
    a.wait(lg="k")
    for i in range(1, 12): a(f"v_lshlrev_b32 v{KF+2*i}, 16, v{KR+i}\nv_and_b32 v{KF+2*i+1}, 0xffff0000, v{KR+i}")
    a.wait(lg="v")
    for t in range(8): a(f"v_lshlrev_b32 v{VF+2*t}, 16, v{VR+t}\nv_and_b32 v{VF+2*t+1}, 0xffff0000, v{VR+t}")
    a(".p2align 3")
    for t in range(8): a(f"v_pk_mul_f32 v[{PA+2*t}:{PA+2*t+1}], v[{KF+2*(1+t)}:{KF+2*(1+t)+1}], v[{TF+6}:{TF+7}]")
    for tau in (2, 1, 0):
        for t in range(8): a(f"v_pk_fma_f32 v[{PA+2*t}:{PA+2*t+1}], v[{KF+2*(4+t-tau)}:{KF+2*(4+t-tau)+1}], v[{TF+2*tau}:{TF+2*tau+1}], v[{PA+2*t}:{PA+2*t+1}]")
    for t in range(8): a(f"v_pk_mul_f32 v[{PA+2*t}:{PA+2*t+1}], v[{PA+2*t}:{PA+2*t+1}], v[{VF+2*t}:{VF+2*t+1}]")
    for e in range(2):
        for m in range(4): a(f"v_cvt_pk_bf16_f32 v{OUT+4*e+m}, v{PA+2*(7-2*m)+e}, v{PA+2*(6-2*m)+e}")
        a.vmem(f"buffer_store_dwordx4 v[{OUT+4*e}:{OUT+4*e+3}], v{PST}, s[{R_WS}:{R_WS+3}], s{(S_T2, S_T3)[e]} offen sc1", "ur")
    a.wait(vm="b1")
    for i in range(8): a(f"v_lshlrev_b32 v{B1F+2*i}, 16, v{B1R+i}\nv_and_b32 v{B1F+2*i+1}, 0xffff0000, v{B1R+i}")
    for i in range(16): a(f"v_mul_f32 v{B1F+i}, {f32(LAM)}, v{B1F+i}")
    a(f"v_lshlrev_b32 v{DV}, v{AD+1}, v{DV}\ns_sub_u32 s{S_T2}, s{S_TH}, 1\nv_and_b32 v{DV}, s{S_T2}, v{DV}")
    a(f"v_cmp_eq_u32 vcc, 14, v{AD+3}\nv_mov_b32 v{AD+1}, 0\ns_nop 0\nv_cndmask_b32 v{AD}, 0, v{DV}, vcc")
    a(f"v_cmp_eq_u32 vcc, 12, v{AD+3}\nv_mov_b32 v{AD+3}, 0\ns_nop 0\nv_cndmask_b32 v{AD+2}, 0, v{DV}, vcc")
    S_H0, S_H1, S_H2, S_YP, S_YC = R_X0, R_X0+1, R_X0+2, R_X0+3, 17
    a(f"s_lshl_b32 s{S_T0}, s{S_R}, 2\ns_lshl1_add_u32 s{S_T0}, s{S_TH}, s{S_T0}\ns_add_u32 s{S_T0}, s{S_T0}, s{S_FH}\ns_xor_b32 s{S_T1}, s{S_T0}, 1")
    a(f"s_mul_i32 s{S_T0}, s{S_T0}, {112*1024}\ns_mul_i32 s{S_T1}, s{S_T1}, {112*1024}\ns_mul_i32 s{S_T2}, s{S_C}, {7*1024}\ns_add_u32 s{S_T2}, s{S_T2}, {WS_H}")
    a(f"s_add_u32 s{S_H2}, s{S_T0}, s{S_T2}\ns_lshl_b32 s{S_T3}, s{S_FH}, 12\ns_add_u32 s{S_H0}, s{S_H2}, s{S_T3}\ns_add_u32 s{S_H1}, s{S_T1}, s{S_T2}\ns_add_u32 s{S_H1}, s{S_H1}, s{S_T3}")
    a(f"s_lshl1_add_u32 s{S_T0}, s{S_R}, s{S_TH}\ns_lshr_b32 s{S_T1}, s{S_C}, 2\ns_lshl2_add_u32 s{S_T0}, s{S_T0}, s{S_T1}\ns_add_u32 s{S_T0}, s{S_T0}, {CNT_H}\ns_lshl_b32 s{S_PUB}, s{S_T0}, 8")
    a(f"s_lshl2_add_u32 s{S_T0}, s{S_XCD}, s{w}\ns_lshr_b32 s{S_T1}, s{S_J}, 3\ns_lshl2_add_u32 s{S_T0}, s{S_T0}, s{S_T1}\ns_add_u32 s{S_T0}, s{S_T0}, {CNT_Y}\ns_lshl_b32 s{S_YP}, s{S_T0}, 8")
    a(f"s_lshr_b32 s{S_T0}, s{S_R2}, 3\ns_lshl2_add_u32 s{S_T0}, s{S_C2}, s{S_T0}\ns_lshl2_add_u32 s{S_T0}, s{S_T0}, s{w}\ns_add_u32 s{S_T0}, s{S_T0}, {CNT_Y}\ns_lshl_b32 s{S_YC}, s{S_T0}, 8")
    KC = T2
    a(f"v_mov_b32 v{KC}, {f32(MU)}\nv_mov_b32 v{KC+1}, {f32(LAM)}\ns_mov_b32 s{S_U1}, 32768")
    def publish():
        a(f"s_mov_b32 exec_lo, 0\ns_mov_b32 exec_hi, 0x80000000")
        a.vmem(f"buffer_store_dwordx4 v[{GR}:{GR+3}], off, s[{R_WS}:{R_WS+3}], s{S_U0} sc1", "pub")
        a(f"s_mov_b64 exec, -1")
    def stats_loads():
        for tau in range(4):
            off = " offset:128" if tau & 1 else ""
            a(f"buffer_load_dwordx2 v[{STT+2*tau}:{STT+2*tau+1}], v{VST+(tau>>1)}, s[{R_WS}:{R_WS+3}], s{S_U3} offen{off} sc1")
    a.wait(lg="all")
    stamp(1)
    def rd(i, ks):
        slot = (i % 3) * 16384; b = 16*ks; wa = (WA, WA2)[ks]
        def W(n): return [(f"ds_read_b64_tr_b16 v[{WF+b+4*n+2*h}:{WF+b+4*n+2*h+1}], v{wa+n} offset:{slot+1024*h}", f"W{i}{ks}{n}") for h in range(2)]
        def Q(t): return [(f"ds_read_b128 v[{QF+b+4*t}:{QF+b+4*t+3}], v{QA+2*ks+(t>>1)} offset:{slot+2048*(t&1)}", f"Q{i}{ks}{t}")]
        if cfg.x_nolds: return []
        return W(0) + Q(0) + Q(1) + Q(2) + Q(3) + W(1) + W(2) + W(3)
    def mm(i, ks, n, t):
        b = 16*ks
        if t == "cs":
            d = CS + 4*n; B = ONES; first = (i == 0); tags = [f"W{i}{ks}{n}"]
        else:
            d = ACC + 4*(4*n+t); B = QF+b+4*t; first = (i == 0 and ks == 0); tags = [f"W{i}{ks}{n}", f"Q{i}{ks}{t}"]
            if cfg.coarse and n == 0 and t == 0 and (i, ks) != (0, 0): tags.append(f"Q{i}{ks}3")
        a.wait(lg=tags)
        if cfg.x_nomfma: return
        a(f"v_mfma_f32_16x16x32_bf16 v[{d}:{d+3}], v[{WF+b+4*n}:{WF+b+4*n+3}], v[{B}:{B+3}], {'0' if first else v(d,4)}")
    base = [(n, t) for n in range(3) for t in range(4)] + [(3, 0), (3, 1)]
    withcs = base[:4] + [(0, "cs")] + base[4:8] + [(1, "cs")] + base[8:12] + [(2, "cs")] + [(3, "cs")] + base[12:]
    a("s_barrier")
    stamp(2)
    for ins, tag in rd(0, 0): a.lds(ins, tag)
    for i in range(8):
        pend = rd(i, 1)
        for n, t in (base if i < 7 else withcs):
            mm(i, 0, n, t)
            if pend: a.lds(*pend.pop(0))
        pend = rd(i+1, 0) if i < 7 else [(f"ds_read_b128 v[{CSP+4*n2}:{CSP+4*n2+3}], v{VCR} offset:{64*n2}", "csp") for n2 in range(4)]
        bq = cfg.bq if i < 7 else 9
        for q, (n, t) in enumerate(withcs if i < 7 else base):
            mm(i, 1, n, t)
            if i == 7 and 3 <= q <= 6:
                a(f"s_mov_b32 exec_lo, 0x00010001\ns_mov_b32 exec_hi, 0x00010001")
                a.lds(f"ds_write_b128 v{VCW}, v[{CS+4*(q-3)}:{CS+4*(q-3)+3}] offset:{64*(q-3)}")
                a("s_mov_b64 exec, -1")
            if i == 7 and q == 7: k.lds_arrive(4, T0, T1)
            if i == 7 and q == bq: k.lds_wait(4, T0, T1, setaddr=False)
            if q == bq and i < 7:
                a.wait(lg="all")
                a("s_barrier")
                if i == cfg.urseg:
                    a.wait(vm="ur"); a(f"s_sub_u32 s{S_T0}, s{S_YP}, {CNT_Y*256}"); k.signal(S_T0)
                if i == cfg.markseg: publish()
                if i == cfg.stseg: stats_loads()
            if q >= bq + (0 if cfg.rdnow else 1) and pend: a.lds(*pend.pop(0))
        assert not pend
    stamp(3)
    L = a.newlabel("Lst"); D = a.newlabel("Lstd")
    a(f"s_mov_b32 s{S_SPIN}, 0")
    a.label(L)
    a("s_waitcnt vmcnt(0)")
    a(f"v_min3_u32 v{T0}, v{STT}, v{STT+1}, v{STT+2}\nv_min3_u32 v{T1}, v{STT+3}, v{STT+4}, v{STT+5}\nv_min3_u32 v{T0}, v{T0}, v{STT+6}, v{STT+7}\nv_min_u32 v{T0}, v{T0}, v{T1}")
    a(f"v_cmp_eq_u32 vcc, 0, v{T0}\ns_add_u32 s{S_SPIN}, s{S_SPIN}, 1\ns_cbranch_vccz {D}")
    a(f"s_cmp_gt_u32 s{S_SPIN}, {SPIN_MAX}\ns_cbranch_scc1 {D}")
    stats_loads()
    a(f"s_branch {L}")
    a.label(D)
    a.vm = []
    for tau in range(4): a(f"v_mul_f32 v{STT+2*tau+1}, v{KC+1}, v{STT+2*tau+1}")
    for tau in range(4): a(f"v_mul_f32 v{STT+2*tau}, v{STT+2*tau}, v{STT+2*tau+1}")
    a.wait(lg="all")
    stamp(4)
    a(".p2align 3")
    for m in range(0, 16, 2): a(f"v_pk_add_f32 v[{CS+m}:{CS+m+1}], v[{CS+m}:{CS+m+1}], v[{CSP+m}:{CSP+m+1}]")
    units = [(n, p) for n in range(3) for p in range(2)] + [(3, 0)]
    for u, (n, p) in enumerate(units):
        E = 176 + 4 + 8*(u & 1); O = 228 + 4*(u & 1)
        prs = [(ACC + 4*(4*n+2*p+tl) + 2*hh, 2*p+tl, 2*hh, E + 4*tl + 2*hh) for tl in range(2) for hh in range(2)]
        for z, tau, hh, e in prs: a(f"v_pk_fma_f32 v[{e}:{e+1}], v[{CS+4*n+hh}:{CS+4*n+hh+1}], v[{STT+2*tau}:{STT+2*tau+1}], v[{B1F+4*n+hh}:{B1F+4*n+hh+1}] op_sel_hi:[1,0,1] neg_lo:[0,1,0] neg_hi:[0,1,0]")
        for z, tau, hh, e in prs: a(f"v_pk_fma_f32 v[{z}:{z+1}], v[{z}:{z+1}], v[{STT+2*tau}:{STT+2*tau+1}], v[{e}:{e+1}] op_sel:[0,1,0]")
        for z, tau, hh, e in prs: a(f"v_pk_fma_f32 v[{e}:{e+1}], v[{z}:{z+1}], v[{z}:{z+1}], v[{KC}:{KC+1}] op_sel_hi:[1,1,0]")
        for z, tau, hh, e in prs: a(f"v_pk_mul_f32 v[{e}:{e+1}], v[{e}:{e+1}], v[{z}:{z+1}]")
        for m in range(8): a(f"v_exp_f32 v{E+m}, v{E+m}")
        for z, tau, hh, e in prs: a(f"v_pk_fma_f32 v[{e}:{e+1}], v[{e}:{e+1}], v[{KC}:{KC+1}], v[{KC}:{KC+1}] op_sel:[0,1,1]")
        for m in range(8): a(f"v_rcp_f32 v{E+m}, v{E+m}")
        for z, tau, hh, e in prs: a(f"v_pk_mul_f32 v[{z}:{z+1}], v[{z}:{z+1}], v[{e}:{e+1}]")
        for q in (0, 2, 1, 3): a(f"v_cvt_pk_bf16_f32 v{O+q}, v{prs[q][0]}, v{prs[q][0]+1}")
        a(f"v_permlane16_swap_b32 v{O}, v{O+2}\n{'s_setprio 3' if cfg.xprio else 's_nop 0'}\nv_permlane16_swap_b32 v{O+1}, v{O+3}\ns_nop 0")
        so = S_H2 if n == 3 else (S_H0, S_H1)[p]
        a.vmem(f"buffer_store_dwordx4 v[{O}:{O+3}], v{V16}, s[{R_WS}:{R_WS+3}], s{so} offen offset:{1024*n} sc1", "h")
        if cfg.xprio: a("s_setprio 0\ns_nop 0")
    stamp(5)
    k.lds_wait(0, T0, T1)
    stamp(6)
    CACC, FA, FB = 16, 48, 80
    def reads(cc):
        buf = 64*(cc & 1); r = []
        for n in range(8): r.append((f"ds_read_b128 v[{FB+buf+4*n}:{FB+buf+4*n+3}], v{CB} offset:{3584-512*n+64*cc}", f"B{cc}_{n}"))
        for n in range(8):
            for hf in range(2): r.append((f"ds_read_b64 v[{FA+buf+4*n+2*hf}:{FA+buf+4*n+2*hf+1}], v{CA} offset:{512*n+64*cc+8*hf}", f"A{cc}_{n}"))
        return r
    r0 = reads(0)
    for ins, tag in r0[:12]: a.lds(ins, tag)
    pend = r0[12:]
    cnt = [0]
    def tick():
        cnt[0] += 1
        if cnt[0] == cfg.hsigpos: a.wait(vm="h"); k.signal(S_PUB)
    if cfg.hsigpos == 0: a.wait(vm="h"); k.signal(S_PUB)
    for T in range(8):
        a.wait(lg=f"B0_{T}")
        a(f"v_mfma_f32_16x16x32_bf16 v[{CACC+4*T}:{CACC+4*T+3}], v[{AD}:{AD+3}], v[{FB+4*T}:{FB+4*T+3}], 0")
        if pend: a.lds(*pend.pop(0))
        tick()
    wq = []
    for cc in range(4):
        buf = 64*(cc & 1)
        nxt = reads(cc+1) if cc < 3 else []
        for an in range(8):
            for e in range(8-an):
                T = an + e
                a.wait(lg=[f"A{cc}_{an}", f"B{cc}_{e}"])
                a(f"v_mfma_f32_16x16x32_bf16 v[{CACC+4*T}:{CACC+4*T+3}], v[{FA+buf+4*an}:{FA+buf+4*an+3}], v[{FB+buf+4*e}:{FB+buf+4*e+3}], v[{CACC+4*T}:{CACC+4*T+3}]")
                if pend: a.lds(*pend.pop(0))
                elif nxt:
                    a.lds(*nxt.pop(0))
                    if cc == 2 and not nxt: k.lds_arrive(1, T0, T1)
                tick()
                if cc == 3:
                    if an == 0 and e == 6: k.lds_wait(1, T0, T1, setaddr=False)
                    if e == 0: wq.append((cnt[0] + 8, T))
                    if wq and wq[0][0] <= cnt[0]:
                        T2_ = wq.pop(0)[1]
                        a.lds(f"ds_write_b128 v{EXW}, v[{CACC+4*T2_}:{CACC+4*T2_+3}] offset:{1024*T2_}")
        assert not pend and not nxt
    stamp(7)
    for n, (_, T2_) in enumerate(wq):
        if T2_ >= 5: a("s_nop 2")
        a.lds(f"ds_write_b128 v{EXW}, v[{CACC+4*T2_}:{CACC+4*T2_+3}] offset:{1024*T2_}")
    k.lds_arrive(2, T0, T1); k.lds_wait(2, T0, T1, setaddr=False)
    for tt in range(2):
        for src in range(4):
            a.lds(f"ds_read_b128 v[{FA+16*tt+4*src}:{FA+16*tt+4*src+3}], v{EXR} offset:{8192*src+1024*tt}", f"e{tt}")
    for tt in range(2):
        a.wait(lg=f"e{tt}")
        b = FA + 16*tt
        for r in range(4): a(f"v_add_f32 v{b+r}, v{b+r}, v{b+4+r}\nv_add_f32 v{b+8+r}, v{b+8+r}, v{b+12+r}")
        for r in range(4): a(f"v_cvt_pk_bf16_f32 v{b+4+r}, v{b+r}, v{b+8+r}")
        a.vmem(f"buffer_store_dwordx4 v[{b+4}:{b+7}], v{YST}, s[{R_WS}:{R_WS+3}], 0 offen{' offset:1024' if tt else ''} sc1", "y")
    stamp(8)
    XR2, ST2, B2R = 16, 24, 28
    a.vmem(f"buffer_load_dwordx4 v[{XR2}:{XR2+3}], v{VXO}, s[{R_Q}:{R_Q+3}], 0 offen", "x")
    a.vmem(f"buffer_load_dwordx4 v[{XR2+4}:{XR2+7}], v{VXO}, s[{R_Q}:{R_Q+3}], s{S_U1} offen", "x")
    a.vmem(f"buffer_load_dwordx2 v[{ST2}:{ST2+1}], v{VSA}, s[{R_WS}:{R_WS+3}], 0 offen sc1", "x")
    a.vmem(f"buffer_load_dwordx2 v[{ST2+2}:{ST2+3}], v{VSA}, s[{R_WS}:{R_WS+3}], 0 offen offset:256 sc1", "x")
    a.vmem(f"global_load_dwordx4 v[{B2R}:{B2R+3}], v{VB2}, s[{P_B2}:{P_B2+1}]", "x")
    a(f"s_add_u32 m0, s{S_B}, {L_YST}")
    a.wait(vm="y")
    k.signal(S_YP)
    a.wait(vm="x")
    XF2, PP, B2F, YR = 80, 96, 32, 40
    for n in range(2):
        for m in range(4): a(f"v_lshlrev_b32 v{XF2+8*n+2*m}, 16, v{XR2+4*n+m}\nv_and_b32 v{XF2+8*n+2*m+1}, 0xffff0000, v{XR2+4*n+m}")
        for m in range(8): a(f"v_sub_f32 v{PP+8*n+m}, v{XF2+8*n+m}, v{ST2+2*n}")
        for m in range(8): a(f"v_mul_f32 v{PP+8*n+m}, v{PP+8*n+m}, v{ST2+2*n+1}")
    for m in range(4): a(f"v_lshlrev_b32 v{B2F+2*m}, 16, v{B2R+m}\nv_and_b32 v{B2F+2*m+1}, 0xffff0000, v{B2R+m}")
    stamp(9)
    k.spoll(S_YC, 8)
    stamp(10)
    a.vmem(f"buffer_load_dwordx4 v{YS0}, s[{R_WS}:{R_WS+3}], 0 offen sc1 lds", "ys")
    a.vmem(f"buffer_load_dwordx4 v{YS1}, s[{R_WS}:{R_WS+3}], 0 offen offset:1024 sc1 lds", "ys")
    a.wait(vm="all")
    k.lds_sync(3, T0, T1)
    for n, ya in enumerate((YA0, YA1)):
        a.lds(f"ds_read2st64_b32 v[{YR+4*n}:{YR+4*n+1}], v{ya} offset0:0 offset1:1")
        a.lds(f"ds_read2st64_b32 v[{YR+4*n+2}:{YR+4*n+3}], v{ya} offset0:2 offset1:3")
    a.wait(lg="all")
    for n in range(2):
        for m in range(4):
            a(f"v_lshlrev_b32 v{T0}, 16, v{YR+4*n+m}\nv_and_b32 v{T1}, 0xffff0000, v{YR+4*n+m}")
            a(f"v_mul_f32 v{PP+8*n+2*m}, v{PP+8*n+2*m}, v{T0}\nv_mul_f32 v{PP+8*n+2*m+1}, v{PP+8*n+2*m+1}, v{T1}")
    a(f"v_mov_b32 v{T2}, {f32(-1.4426950408889634)}")
    stamp(11)
    a("s_barrier")
    stamp(12)
    RD, EE = 112, 176
    for n, pa in enumerate((PA0, PA1)):
        for kq in range(4):
            for e in range(2):
                a.lds(f"ds_read_b128 v[{RD+32*n+8*kq+4*e}:{RD+32*n+8*kq+4*e+3}], v{pa} offset:{2048*kq+16*e}", f"p{n}_{kq}")
    a(".p2align 3")
    def pk(op, d, x0, x1, x2=None, mod=""): a(f"{op} v[{d}:{d+1}], {x0}, {x1}" + (f", {x2}" if x2 else "") + mod)
    for n in range(2):
        b = RD + 32*n
        a.wait(lg=f"p{n}_1"); a(".p2align 3")
        for m in range(0, 8, 2): pk("v_pk_add_f32", b+m, v(b+m, 2), v(B2F+m, 2))
        for m in range(0, 8, 2): pk("v_pk_add_f32", b+m, v(b+m, 2), v(b+8+m, 2))
        a.wait(lg=f"p{n}_3"); a(".p2align 3")
        for m in range(0, 8, 2): pk("v_pk_add_f32", b+16+m, v(b+16+m, 2), v(b+24+m, 2))
        for m in range(0, 8, 2): pk("v_pk_add_f32", b+m, v(b+m, 2), v(b+16+m, 2))
        for m in range(0, 8, 2): pk("v_pk_mul_f32", EE+m, v(b+m, 2), v(T2, 2), mod=" op_sel_hi:[1,0]")
        for m in range(8): a(f"v_exp_f32 v{EE+m}, v{EE+m}")
        for m in range(0, 8, 2): pk("v_pk_mul_f32", b+m, v(b+m, 2), v(PP+8*n+m, 2))
        for m in range(0, 8, 2): pk("v_pk_add_f32", EE+m, v(EE+m, 2), "1.0", mod=" op_sel_hi:[1,0]")
        for m in range(8): a(f"v_rcp_f32 v{EE+m}, v{EE+m}")
        for m in range(0, 8, 2): pk("v_pk_fma_f32", b+m, v(b+m, 2), v(EE+m, 2), v(XF2+8*n+m, 2))
        for m in range(4): a(f"v_cvt_pk_bf16_f32 v{b+8+m}, v{b+2*m}, v{b+2*m+1}")
        a.vmem(f"buffer_store_dwordx4 v[{b+8}:{b+11}], v{VXO}, s[{R_OUT}:{R_OUT+3}], {'s%d' % S_U1 if n else '0'} offen {cfg.out_flags}")
    stamp(13)
    if cfg.diag_pad or cfg.diag_amp:
        if cfg.diag_amp: a(f"s_sub_u32 s{S_T2}, s{S_ST}, s{S_EX}\ns_mul_i32 s{S_T2}, s{S_T2}, {cfg.diag_amp[1]}\ns_min_u32 s{S_T2}, s{S_T2}, 200000")
        else: a(f"s_mov_b32 s{S_T2}, {cfg.diag_pad}")
        a.label("L_pad")
        a(f"s_memrealtime s[{S_T0}:{S_T1}]\ns_waitcnt lgkmcnt(0)\ns_sub_u32 s{S_T0}, s{S_T0}, s{S_EX}\ns_cmp_lt_u32 s{S_T0}, s{S_T2}\ns_cbranch_scc1 L_pad")
    k.flush_stamps()

Cfg.g2_nomfma = False; Cfg.g2_hot = False; Cfg.g2_noload = False; Cfg.hflag = 'sc1'; Cfg.seg7 = 4; Cfg.nearly = 4; Cfg.binit = 0; Cfg.cap = 10; Cfg.la = 5; Cfg.uarr = 8; Cfg.uarr_d = 5; Cfg.w2x = False; Cfg.bq = 4; Cfg.rdnow = False; Cfg.coarse = False
HEADER = open("recurrent_scan__ssm_conv_h3__dense_activation_gelu__prompt.s.ref").read().split("; @launch")[0]
def full(cfg):
    k = K(cfg); a = k.a
    prologue(k); gen_x(k)
    a.vm = []; a.lg = []
    a(".p2align 6"); a.label("L_M")
    gen_m(k)
    a.label("L_end"); a("s_endpgm"); a.label("L_code_end")
    errs = check(a.lines)
    for e in errs: print(e, file=sys.stderr)
    assert not errs
    t = HEADER + f"; @launch grid=(256,1,1) block=(512,1,1) lds={LDS_BYTES}\n"
    t += f'.amdgcn_target "amdgcn-amd-amdhsa--gfx950"\n.text\n.globl {NAME}\n.p2align 8\n.type {NAME},@function\n'
    t += a.text()
    t += f'''.section .rodata,"a"
.p2align 6
.amdhsa_kernel {NAME}
  .amdhsa_next_free_vgpr 256
  .amdhsa_next_free_sgpr 102
  .amdhsa_accum_offset 256
  .amdhsa_group_segment_fixed_size 0
  .amdhsa_kernarg_size 112
  .amdhsa_user_sgpr_count 2
  .amdhsa_user_sgpr_kernarg_segment_ptr 1
  .amdhsa_system_sgpr_workgroup_id_x 1
  .amdhsa_float_denorm_mode_32 3
.end_amdhsa_kernel
'''
    return t
if __name__ == "__main__":
    cfg = Cfg()
    for kv in sys.argv[2:]:
        kk, val = kv.split("=", 1); assert hasattr(cfg, kk), kk; setattr(cfg, kk, eval(val))
    open(sys.argv[1], "w").write(full(cfg))
```

```python
import sys, struct
from asmlib import Asm, v, s, check

NAME = "recurrent_scan__ssm_conv_h3__dense_activation_gelu__prompt_kernel"
def f32(x): return "0x%08x" % struct.unpack("<I", struct.pack("<f", x))[0]

WS_CNT, WS_STATS, WS_STAMP, WS_UR, WS_Y, WS_H = 0, 0x20000, 0x40000, 0x100000, 0x300000, 0x500000
WS_SIZE = 0x500000 + 64*112*1024
CNT_UR, CNT_H, CNT_Y = 0, 128, 256
L_Q, L_W, L_KST = 0, 49152, 98304
L_VST = L_KST + 9*1024
L_CT = 115712; CH_STRIDE = 17600; H_STRIDE = 4224; U_OFF = 8448; U_STRIDE = 4576
L_MISC = L_CT + 2*CH_STRIDE
L_YST = L_MISC
L_CS = L_YST + 8192
L_SYNC = L_CS + 1024
LDS_BYTES = L_SYNC + 64
SPIN_MAX = 1 << 17

P_Q, P_K, P_V, P_SH, P_SSM, P_D, P_BX, P_W1, P_B1, P_W2, P_B2, P_OUT, P_DBG, P_WS = range(4, 32, 2)
S_WV, S_XCD, S_J, S_R, S_C, S_KC0, S_R2, S_C2, S_OFF, S_WAVE = range(32, 42)
S_A, S_B, S_T0, S_T1, S_T2, S_T3 = range(42, 48)
R_Q, R_K, R_V, R_W1, R_WS, R_DBG, R_W2, R_SSM, R_X0, R_OUT = range(48, 88, 4)
S_U0, S_U1, S_U2, S_U3, S_U4, S_U5, S_SPIN, S_PUB = range(88, 96)
S_EX = 96; S_ST = 100
S_ONE, S_PV = 3, 16

class Cfg:
    stamps = False
    kvpos = 2; g1stag = "four"; g2map = 2; g2stag = "none"; ntq = ""; ntw2 = ""
    markseg = 0; ssmseg = 3; stseg = 4; urseg = 2; w2touch = 3
    urpos = -1
    hsigpos = 48
    xprio = 1
    code_pf = True
    diag_pad = 0; diag_amp = None; out_flags = ""
    x_nomfma = False; x_nolds = False; x_nodma = False; segstamps = True

def srd(a, R, P, size):
    a(f"s_mov_b64 s[{R}:{R+1}], s[{P}:{P+1}]\ns_mov_b32 s{R+2}, {size}\ns_mov_b32 s{R+3}, 0x20000")

class K:
    def __init__(self, cfg): self.a = Asm(); self.cfg = cfg
    def stamp(self, i):
        a, cfg = self.a, self.cfg
        if cfg.diag_amp and cfg.diag_amp[0] == i:
            a(f"s_memrealtime s[{S_ST}:{S_ST+1}]\ns_waitcnt lgkmcnt(0)"); a.lg = []
        if cfg.stamps == "min" and i == 0:
            a("v_writelane_b32 v255, s86, 23"); return
        if cfg.stamps == "min" and not (i == 13 and self.role == "m"): return
        if cfg.stamps:
            a(f"s_memrealtime s[{S_ST}:{S_ST+1}]\ns_memtime s[{S_EX}:{S_EX+1}]\ns_waitcnt lgkmcnt(0)\nv_writelane_b32 v255, s{S_ST}, {i}\nv_writelane_b32 v255, s{S_EX}, {32+i}")
            if i == 0: a("v_writelane_b32 v255, s86, 23")
            a.lg = []
    def flush_stamps(self):
        a = self.a
        if self.cfg.stamps:
            a(f"s_lshl_b32 s{S_T0}, s2, 3\ns_add_u32 s{S_T0}, s{S_T0}, s{S_WAVE}\ns_lshl_b32 s{S_T0}, s{S_T0}, 8\ns_add_u32 s{S_T0}, s{S_T0}, {WS_STAMP}")
            a(f"v_lshlrev_b32 v254, 2, v0\nbuffer_store_dword v255, v254, s[{R_WS}:{R_WS+3}], s{S_T0} offen")
    def vpoll(self, vaddr, vdata, R, expect):
        a = self.a; L = a.newlabel("Lpoll"); D = a.newlabel("Lpolld")
        a(f"s_mov_b32 s{S_SPIN}, 0")
        a.label(L)
        a(f"buffer_load_dword v{vdata}, v{vaddr}, s[{R}:{R+3}], 0 offen sc1\ns_waitcnt vmcnt(0)")
        a(f"v_cmp_ne_u32 vcc, {expect}, v{vdata}")
        a(f"s_add_u32 s{S_SPIN}, s{S_SPIN}, 1\ns_cmp_gt_u32 s{S_SPIN}, {SPIN_MAX}\ns_cbranch_scc1 {D}\ns_cbranch_vccnz {L}")
        a.label(D)
    def spoll(self, off_sgpr, expect):
        a = self.a; L = a.newlabel("Lsp"); D = a.newlabel("Lspd")
        a(f"s_mov_b32 s{S_SPIN}, 0")
        a.label(L)
        a(f"s_load_dword s{S_PV}, s[{P_WS}:{P_WS+1}], s{off_sgpr} glc\ns_add_u32 s{S_SPIN}, s{S_SPIN}, 1\ns_waitcnt lgkmcnt(0)")
        a(f"s_cmp_eq_u32 s{S_PV}, {expect}\ns_cbranch_scc1 {D}")
        if self.cfg.psleep: a(f"s_sleep {self.cfg.psleep}")
        a(f"s_cmp_gt_u32 s{S_SPIN}, {SPIN_MAX}\ns_cbranch_scc0 {L}")
        a.label(D); a.lg = []
    def signal(self, cnt): self.a(f"s_mov_b32 s{S_ONE}, 1\ns_atomic_add s{S_ONE}, s[{P_WS}:{P_WS+1}], s{cnt}")
    def lds_arrive(self, word, vtmp, vone):
        a = self.a
        a(f"v_mov_b32 v{vtmp}, {L_SYNC}\nv_mov_b32 v{vone}, 1\ns_mov_b64 exec, 1")
        a.lds(f"ds_add_u32 v{vtmp}, v{vone} offset:{4*word}")
        a("s_mov_b64 exec, -1")
    def lds_wait(self, word, vtmp, vone, setaddr=True, sleep=0):
        a = self.a; L = a.newlabel("Lsy"); D = a.newlabel("Lsyd")
        if setaddr: a(f"v_mov_b32 v{vtmp}, {L_SYNC}")
        a(f"s_mov_b32 s{S_SPIN}, 0")
        a.label(L)
        a(f"ds_read_b32 v{vone}, v{vtmp} offset:{4*word}\ns_add_u32 s{S_SPIN}, s{S_SPIN}, 1\ns_waitcnt lgkmcnt(0)")
        a(f"v_cmp_ne_u32 vcc, 4, v{vone}\ns_cmp_gt_u32 s{S_SPIN}, {SPIN_MAX*8}\ns_cbranch_scc1 {D}")
        if sleep: a(f"s_cbranch_vccz {D}\ns_sleep {sleep}\ns_branch {L}")
        else: a(f"s_cbranch_vccnz {L}")
        a.label(D); a.lg = []
    def lds_sync(self, word, vtmp, vone):
        self.a.wait(lg="all"); self.lds_arrive(word, vtmp, vone); self.lds_wait(word, vtmp, vone, setaddr=False)

def prologue(k):
    a, cfg = k.a, k.cfg
    a.label(NAME)
    if cfg.stamps: a("s_memrealtime s[86:87]")
    a("s_cmp_ge_u32 s2, 256\ns_cbranch_scc1 L_end")
    a("s_load_dwordx16 s[4:19], s[0:1], 0\ns_load_dwordx8 s[20:27], s[0:1], 64\ns_load_dwordx4 s[28:31], s[0:1], 96")
    if cfg.code_pf:
        a(f"s_getpc_b64 s[{S_T0}:{S_T1}]")
        a.label("L_pc")
        a(f"s_lshr_b32 s{S_T2}, s2, 3\ns_lshl_b32 s{S_T2}, s{S_T2}, 10\nv_lshl_add_u32 v2, v0, 1, s{S_T2}\nv_min_u32 v2, L_code_end-L_pc-4, v2")
        a(f"v_mov_b32 v3, s{S_T1}\nv_add_co_u32 v2, vcc, s{S_T0}, v2\ns_mov_b64 exec, 1\ns_nop 0\nv_addc_co_u32 v3, vcc, 0, v3, vcc")
        a(f"global_load_dword v254, v[2:3], off\ns_mov_b64 exec, -1")
    if cfg.stamps: a("v_mov_b32 v255, 0")
    if cfg.diag_pad or cfg.diag_amp: a(f"s_memrealtime s[{S_EX}:{S_EX+1}]")
    a("v_lshrrev_b32 v1, 6, v0\nv_and_b32 v0, 63, v0")
    a(f"v_readfirstlane_b32 s{S_WAVE}, v1")
    a(f"s_and_b32 s{S_XCD}, s2, 7\ns_lshr_b32 s{S_J}, s2, 3")
    a(f"s_and_b32 s{S_T0}, s{S_XCD}, 3\ns_lshr_b32 s{S_T1}, s{S_XCD}, 2")
    a(f"s_and_b32 s{S_T2}, s{S_J}, 3\ns_lshr_b32 s{S_C2}, s{S_J}, 2")
    a(f"s_lshl2_add_u32 s{S_R}, s{S_T0}, s{S_T2}\ns_lshl3_add_u32 s{S_C}, s{S_T1}, s{S_C2}")
    a(f"s_and_b32 s{S_T0}, s{S_T0}, 1")
    if cfg.g1stag == "full":
        a(f"s_lshl1_add_u32 s{S_KC0}, s{S_T2}, s{S_C2}\ns_add_u32 s{S_KC0}, s{S_KC0}, s{S_T0}\ns_and_b32 s{S_KC0}, s{S_KC0}, 7")
    else:
        a(f"s_add_u32 s{S_KC0}, s{S_T2}, s{S_C2}\ns_and_b32 s{S_KC0}, s{S_KC0}, 3\ns_lshl1_add_u32 s{S_KC0}, s{S_KC0}, s{S_T0}")
    a(f"s_mov_b32 s{R_Q+2}, {2<<20}\ns_mov_b32 s{R_Q+3}, 0x20000")
    a(f"s_and_b32 s{S_WV}, s{S_WAVE}, 3\nv_lshlrev_b32 v1, 4, v0\ns_lshl_b32 s{S_B}, s{S_WV}, 11")
    a(f"v_lshrrev_b32 v10, 3, v0\nv_lshrrev_b32 v11, 4, v0\nv_and_b32 v12, 7, v0")
    a(f"s_cmp_ge_u32 s{S_WAVE}, 4\ns_cbranch_scc1 L_X")

def g2_index(k):
    a, cfg = k.a, k.cfg
    assert cfg.g2stag == "none"
    a(f"s_lshr_b32 s{S_T1}, s{S_XCD}, 2")
    if cfg.g2map == 1: a(f"s_lshl1_add_u32 s{S_R2}, s{S_R}, s{S_T1}")
    else:
        a(f"s_and_b32 s{S_T3}, s{S_C2}, 1\ns_lshl1_add_u32 s{S_R2}, s{S_R}, s{S_T3}")
        a(f"s_lshr_b32 s{S_C2}, s{S_C2}, 1\ns_lshl2_add_u32 s{S_C2}, s{S_T1}, s{S_C2}")

def gen_x(k):
    a, cfg, stamp = k.a, k.cfg, k.stamp
    x = S_WV
    a.cap = cfg.cap
    V16, W2A, W2B, TR, HA, HB = 1, 2, 3, 4, 8, 9
    T0, T1, T2, T3 = 10, 11, 12, 13
    VQ, VW, VKA, VKB, VHALO, VTA, PK, PH, PV, PST, VMK, VMD = 14, 18, 22, 23, 24, 25, 26, 27, 28, 29, 30, 31
    TAPS, JUNK = 108, 112
    ACC2, AR, WB = 14, 78, 142
    a(f"v_xor_b32 v{T3}, v{T2}, v{T1}\nv_lshlrev_b32 v{T3}, 4, v{T3}\nv_lshl_add_u32 v{VQ}, v{T0}, 10, v{T3}")
    a(f"s_lshl2_add_u32 s{S_T0}, s{S_R}, s{x}\ns_lshl_b32 s{S_T0}, s{S_T0}, 15\ns_movk_i32 s{S_T2}, {8192-1024}\ns_lshl_b32 s{S_T3}, s{S_T2}, 1")
    a(f"v_add_u32 v{VQ}, s{S_T0}, v{VQ}")
    a(f"v_xor_b32 v{VQ+1}, 64, v{VQ}\nv_add_u32 v{VQ+2}, s{S_T3}, v{VQ}\nv_add_u32 v{VQ+1}, s{S_T2}, v{VQ+1}\nv_add_u32 v{VQ+3}, s{S_T3}, v{VQ+1}")
    d = 4*3584 - 1024
    a(f"v_lshlrev_b32 v{T3}, 5, v{T1}\nv_xor_b32 v{T3}, v{T3}, v{V16}\nv_and_b32 v{T3}, 0xff, v{T3}\nv_xor_b32 v{VW+2}, 0x80, v{T3}")
    a(f"s_mulk_i32 s{S_U1}, 224\ns_andn2_b32 s{S_U1}, s{S_U1}, 63\ns_mul_i32 s{S_T1}, s{x}, {16*3584}\ns_add_u32 s{S_T0}, s{S_U1}, s{S_T1}".replace(f"s_mulk_i32 s{S_U1}, 224", f"s_mul_i32 s{S_U1}, s{S_C}, 224"))
    a(f"s_movk_i32 s{S_T1}, 3584\ns_movk_i32 s{S_T2}, {d}\ns_lshl1_add_u32 s{S_T3}, s{S_T2}, s{S_T0}")
    a(f"v_mad_u32_u24 v{VW}, v{T1}, s{S_T1}, v{T3}\nv_mad_u32_u24 v{VW+2}, v{T1}, s{S_T1}, v{VW+2}")
    a(f"v_add_u32 v{VW}, s{S_T0}, v{VW}\nv_add_u32 v{VW+2}, s{S_T3}, v{VW+2}\nv_add_u32 v{VW+1}, s{S_T2}, v{VW}\nv_add_u32 v{VW+3}, s{S_T2}, v{VW+2}")
    a(f"s_lshl_b32 s{S_U1}, s{x}, 12\ns_mov_b32 s{R_W1+2}, {512*3584}\ns_mov_b32 s{R_W1+3}, s{R_Q+3}")
    a("s_waitcnt lgkmcnt(0)")
    a(f"s_mov_b64 s[{R_Q}:{R_Q+1}], s[{P_Q}:{P_Q+1}]\ns_mov_b64 s[{R_W1}:{R_W1+1}], s[{P_W1}:{P_W1+1}]")
    def chunk_ops(i):
        slot = i % 3
        def mk(kind, n):
            def f():
                if n == 0:
                    if kind == "q":
                        a(f"s_add_u32 s{S_T0}, s{S_KC0}, {i}\ns_and_b32 s{S_T0}, s{S_T0}, 7\ns_lshl_b32 s{S_U3}, s{S_T0}, 7\ns_mul_i32 s{S_U4}, s{S_T0}, {64*3584}")
                    a(f"s_add_u32 m0, s{S_U1}, {(L_Q if kind=='q' else L_W) + slot*16384}\ns_nop 0")
                off = f" offset:{1024*n}" if n else ""
                if kind == "q": a.vmem(f"buffer_load_dwordx4 v{VQ+n}, s[{R_Q}:{R_Q+3}], s{S_U3} offen{off} {cfg.ntq} lds", f"c{i}")
                else: a.vmem(f"buffer_load_dwordx4 v{VW+n}, s[{R_W1}:{R_W1+3}], s{S_U4} offen{off} {cfg.ntq} lds", f"c{i}")
            return f
        return [mk("q", n) for n in range(4)] + [mk("w", n) for n in range(4)]
    def setup_rest():
        stamp(0)
        g2_index(k)
        a(f"v_mov_b32 v{T1}, v{T2}")
        srd(a, R_WS, P_WS, WS_SIZE); srd(a, R_DBG, P_DBG, 256); srd(a, R_W2, P_W2, 1792*1024); srd(a, R_SSM, P_SSM, 2 << 20)
        a(f"s_lshl_b32 s{S_T0}, s{S_XCD}, 6\ns_lshl1_add_u32 s{S_T0}, s{S_J}, s{S_T0}\ns_lshr_b32 s{S_T1}, s{x}, 1\ns_add_u32 s{S_U5}, s{S_T0}, s{S_T1}")
        a(f"s_mul_i32 s{S_T1}, s{S_T1}, {CH_STRIDE}\ns_and_b32 s{S_T2}, s{x}, 1")
        a(f"s_lshl_b32 s{S_T3}, s{S_T2}, 11\ns_add_u32 s{S_H1}, s{S_T1}, s{S_T3}\ns_add_u32 s{S_H1}, s{S_H1}, {L_CT+H_STRIDE+128}")
        a(f"s_mul_i32 s{S_T3}, s{S_T2}, {H_STRIDE}\ns_add_u32 s{S_T3}, s{S_T3}, s{S_T1}\ns_add_u32 s{S_T3}, s{S_T3}, {L_CT+128-512}")
        a(f"s_mul_i32 s{S_T0}, s{S_T2}, {U_STRIDE}\ns_add_u32 s{S_T0}, s{S_T0}, s{S_T1}\ns_add_u32 s{S_T0}, s{S_T0}, {L_CT+U_OFF+4096}")
        Z = JUNK
        a(f"v_mov_b32 v{T2}, s{S_T0}\nv_mov_b32 v{T3}, s{S_T3}\nv_cmp_gt_u32 vcc, 56, v0")
        for i in range(4): a(f"v_mov_b32 v{Z+i}, 0")
        a(f"v_cndmask_b32 v{T3}, v{T3}, v{T2}, vcc\nv_lshl_add_u32 v{T3}, v0, 3, v{T3}\nv_subrev_u32 v{T2}, 4, v{T2}")
        a.lds(f"ds_write_b64 v{T3}, v[{Z}:{Z+1}]")
        a.lds(f"ds_write_b32 v{T2}, v{Z}")
        a(f"v_lshlrev_b32 v{VMK}, 2, v{T1}")
        a(f"v_lshrrev_b32 v{T2}, 2, v0\nv_and_b32 v{T2}, 4, v{T2}\nv_xor_b32 v{T2}, v{T2}, v{T1}\nv_lshlrev_b32 v{T2}, 4, v{T2}\nv_lshl_add_u32 v{W2A}, v{T0}, 10, v{T2}")
        a(f"s_mul_i32 s{S_T0}, s{x}, {448*1024}\ns_lshl_b32 s{S_T1}, s{S_C2}, 7\ns_add_u32 s{S_T0}, s{S_T0}, s{S_T1}")
        a(f"v_add_u32 v{W2A}, s{S_T0}, v{W2A}\nv_add_u32 v{W2B}, {8192-1024}, v{W2A}")
        a(f"v_bfe_u32 v{T2}, v0, 2, 2\nv_lshrrev_b32 v{T3}, 5, v0\nv_lshl_add_u32 v{T3}, v{T3}, 3, v{T2}\nv_lshlrev_b32 v{T3}, 7, v{T3}")
        a(f"v_lshrrev_b32 v{T2}, 1, v{T2}\nv_lshl_add_u32 v{T3}, v{T2}, 6, v{T3}\nv_bfe_u32 v{T2}, v0, 4, 1\nv_lshl_add_u32 v{T3}, v{T2}, 5, v{T3}\nv_and_b32 v{T2}, 3, v0\nv_lshl_add_u32 v{T3}, v{T2}, 3, v{T3}")
        a(f"v_add_u32 v{TR}, s{S_B}, v{T3}\nv_xor_b32 v{TR+1}, 64, v{TR}\nv_add_u32 v{TR+2}, 65536, v{TR}\nv_add_u32 v{TR+3}, 65536, v{TR+1}")
        a(f"s_mul_i32 s{S_T0}, s{S_R2}, {224*1024}\ns_mul_i32 s{S_T1}, s{x}, {28*1024}\ns_add_u32 s{S_T0}, s{S_T0}, s{S_T1}\ns_add_u32 s{S_T0}, s{S_T0}, {WS_H}")
        a(f"v_add_u32 v{HA}, s{S_T0}, v{V16}\nv_add_u32 v{HB}, {112*1024}, v{HA}")
        a(f"s_lshr_b32 s{S_T0}, s{S_J}, 3\ns_lshl2_add_u32 s{S_T0}, s{S_XCD}, s{S_T0}\ns_lshl2_add_u32 s{S_T0}, s{S_T0}, s{x}\ns_lshl_b32 s{S_PUB}, s{S_T0}, 8")
        a(f"s_lshl2_add_u32 s{S_T0}, s2, s{x}\ns_mul_i32 s{S_T0}, s{S_T0}, 1792\ns_add_u32 s{S_PW}, s{P_W2}, s{S_T0}\ns_addc_u32 s{S_PW+1}, s{P_W2+1}, 0")
        a(f"s_lshl_b32 s{S_T0}, s{S_U5}, 12\ns_and_b32 s{S_T1}, s{x}, 1\ns_lshl_b32 s{S_T1}, s{S_T1}, 11\ns_add_u32 s{S_U2}, s{S_T0}, s{S_T1}\ns_add_u32 s{S_PS}, s{P_SSM}, s{S_U2}\ns_addc_u32 s{S_PS+1}, s{P_SSM+1}, 0")
        a.wait(lg="all")
    S_H1 = 17; S_PW, S_PS = R_K, R_K + 2; S_HO = R_V
    if cfg.binit == 0: a("s_barrier")
    c0 = chunk_ops(0); c1 = chunk_ops(1)
    for f in c0[:cfg.n0]: f()
    setup_rest()
    a.cap = cfg.cap0
    for f in c0[cfg.n0:]: f()
    def pre1():
        if cfg.ssmseg == -2: ssm_loads()
        if cfg.w2touch == -2: w2_touch()
        for f in c1[:cfg.n1]: f()
        stamp(1)
    def ssm_loads():
        a(f"s_mov_b32 m0, s{S_H1}\ns_lshl_b32 s{S_T0}, s{S_U5}, 12")
        a.vmem(f"buffer_load_dwordx4 v{V16}, s[{R_SSM}:{R_SSM+3}], s{S_U2} offen {cfg.ssmf} lds", "h")
        a.vmem(f"buffer_load_dwordx4 v{V16}, s[{R_SSM}:{R_SSM+3}], s{S_U2} offen offset:1024 {cfg.ssmf} lds", "h")
        a(f"s_add_u32 s{S_T0}, s{S_T0}, 2044\ns_load_dword s{S_U0}, s[{P_SSM}:{P_SSM+1}], s{S_T0}")
    spf = [f"s_load_dword s{S_ONE}, s[{S_PW}:{S_PW+1}], {64*n}" for n in range(28)] + [f"s_load_dword s{S_ONE}, s[{S_PS}:{S_PS+1}], {64*n}" for n in range(32)]
    if cfg.spfw: spf = spf[:28]
    if not cfg.spf: spf = []
    def w2_touch():
        if cfg.w2x:
            assert cfg.g2map == 2
            a(f"s_lshl2_add_u32 s{S_T0}, s{S_J}, s{x}\ns_mul_i32 s{S_T0}, s{S_T0}, {14*1024}\ns_lshr_b32 s{S_T1}, s{S_XCD}, 2\ns_lshl_b32 s{S_T1}, s{S_T1}, 9\ns_add_u32 s{S_T0}, s{S_T0}, s{S_T1}")
            a(f"v_lshrrev_b32 v{T2}, 2, v0\nv_and_b32 v{T3}, 3, v0\nv_lshlrev_b32 v{T3}, 7, v{T3}\nv_lshl_add_u32 v{T2}, v{T2}, 10, v{T3}\ns_mov_b32 exec_hi, 0x00ffffff")
            a.vmem(f"buffer_load_dword v{JUNK}, v{T2}, s[{R_W2}:{R_W2+3}], s{S_T0} offen {cfg.w2x}", "tw")
            a(f"s_mov_b64 exec, -1")
            return
        a(f"s_lshl2_add_u32 s{S_T0}, s2, s{x}\ns_mul_i32 s{S_T0}, s{S_T0}, {14*128}\nv_lshlrev_b32 v{T2}, 7, v0\ns_mov_b64 exec, 0x3fff")
        a.vmem(f"buffer_load_dword v{JUNK}, v{T2}, s[{R_W2}:{R_W2+3}], s{S_T0} offen", "tw")
        a(f"s_mov_b64 exec, -1")
    def w2_dma(i):
        ii = i % 14
        if cfg.g2stag == "none": a(f"s_mov_b32 s{S_T0}, {i*16384}")
        else: a(f"s_add_u32 s{S_T0}, s{S_A}, {i*16384}\ns_sub_u32 s{S_T1}, s{S_T0}, {28*16384}\ns_min_u32 s{S_T0}, s{S_T0}, s{S_T1}")
        a(f"s_add_u32 m0, s{S_B}, {ii*8192}\ns_nop 0")
        a.vmem(f"buffer_load_dwordx4 v{W2A}, s[{R_W2}:{R_W2+3}], s{S_T0} offen {cfg.ntw2} lds", f"w{i}")
        a.vmem(f"buffer_load_dwordx4 v{W2B}, s[{R_W2}:{R_W2+3}], s{S_T0} offen offset:1024 {cfg.ntw2} lds", f"w{i}")
    def ustage():
        L = a.newlabel("Lurok")
        a(f"s_cmp_eq_u32 s{S_PV}, 8\ns_cbranch_scc1 {L}")
        keep = list(a.lg); k.spoll(S_PUB, 8); a.lg = keep
        a.label(L)
        stamp(11)
        a(f"s_xor_b32 s{S_T1}, s{x}, 3\ns_lshl_b32 s{S_T1}, s{S_T1}, 10\ns_and_b32 s{S_T0}, s{S_U5}, 0xfffffffe\ns_lshl_b32 s{S_T0}, s{S_T0}, 12\ns_add_u32 s{S_T0}, s{S_T0}, s{S_T1}\ns_add_u32 s{S_T0}, s{S_T0}, {WS_UR}")
        for ch in range(2):
            for cp in range(2):
                a(f"s_add_u32 m0, s{S_T1}, {L_CT + ch*CH_STRIDE + U_OFF + cp*(U_STRIDE-4)}")
                a(f"s_add_u32 s{S_T0}, s{S_T0}, 4096" if (ch == 1 and cp == 0) else "s_nop 0")
                a.vmem(f"buffer_load_dwordx4 v{V16}, s[{R_WS}:{R_WS+3}], s{S_T0} offen sc1 lds", "u")
    MK = R_X0
    early = [12, 13, 4, 5, 10, 11]; late = [0, 1, 6, 7, 2, 3, 8, 9]
    pre1()
    a.wait(vm="c0"); a("s_barrier")
    for i in range(7):
        if cfg.segstamps or i == 0: stamp(2 + i)
        if i >= cfg.capseg: a.cap = cfg.cap
        dm = []
        if i == 0: dm += c1[cfg.n1:]
        if i + 2 <= 7: dm += chunk_ops(i + 2)[:1 if cfg.x_nodma else 8]
        if i == cfg.w2touch: dm.append(w2_touch)
        if i == cfg.ssmseg: dm.append(ssm_loads)
        if i == 6: dm += [(lambda q=q: w2_dma(q)) for q in early[:cfg.nearly]]
        if i == cfg.markseg:
            L = a.newlabel("Lmk")
            a(f"s_cmp_lg_u32 s{x}, 0\ns_cbranch_scc1 {L}\ns_load_dwordx8 s[{MK}:{MK+7}], s[{P_DBG}:{P_DBG+1}], 0")
            a.label(L)
        nsp = cfg.spf[1] if cfg.spf and i >= cfg.spf[0] else 0
        for nf, f in enumerate(dm):
            f()
            for _ in range(min(2, nsp)):
                if spf: a(spf.pop(0))
                nsp -= 1
        if i == cfg.markseg:
            L = a.newlabel("Lmk")
            a(f"s_cmp_lg_u32 s{x}, 0\ns_cbranch_scc1 {L}\ns_waitcnt lgkmcnt(0)")
            a(f"s_and_b64 s[{MK}:{MK+1}], s[{MK}:{MK+1}], s[{MK+2}:{MK+3}]\ns_and_b64 s[{MK+4}:{MK+5}], s[{MK+4}:{MK+5}], s[{MK+6}:{MK+7}]\ns_and_b64 s[{MK}:{MK+1}], s[{MK}:{MK+1}], s[{MK+4}:{MK+5}]\ns_and_b32 s{MK}, s{MK}, s{MK+1}")
            a(f"s_cbranch_scc1 {L}")
            k.vpoll(VMK, VMD, R_DBG, 1)
            a.label(L)
        if i == 6: a(f"s_load_dword s{S_PV}, s[{P_WS}:{P_WS+1}], s{S_PUB} glc")
        a.wait(vm=f"c{i+1}"); a("s_barrier")
    if cfg.segstamps: stamp(9)
    assert not spf
    a.cap = cfg.cap2
    for q in early[cfg.nearly:]: w2_dma(q)
    a("s_waitcnt lgkmcnt(0)")
    ustage()
    for q in late[:4]: w2_dma(q)
    k.lds_wait(4, T0, T1)
    if cfg.xprio: a(f"s_setprio {cfg.xprio}")
    stamp(10)
    def trs(ii, tag):
        return [(f"ds_read_b64_tr_b16 v[{WB+8*ii+4*dt+2*h}:{WB+8*ii+4*dt+2*h+1}], v{TR+2*(ii>>3)+dt} offset:{(ii&7)*8192+512*h}", tag) for dt in range(2) for h in range(2)]
    HD = 40
    def shift_reads():
        a(f"v_add_u32 v{T0}, s{S_H1}, v{V16}\nv_subrev_u32 v{T1}, 4, v{T0}\nv_subrev_u32 v{T2}, {H_STRIDE}, v{T0}")
        a(f"s_bitcmp1_b32 s{x}, 0\ns_cselect_b32 s{S_U0}, s{S_U0}, 0")
        a.wait(vm="h")
        for n in range(2):
            a.lds(f"ds_read_b128 v[{HD+8*n}:{HD+8*n+3}], v{T0} offset:{1024*n}", "sh")
            a.lds(f"ds_read_b32 v{HD+8*n+4}, v{T1} offset:{1024*n}", "sh")
    def shift_writes():
        a.wait(lg="sh")
        a(f"v_writelane_b32 v{HD+4}, s{S_U0}, 0")
        for n in range(2):
            b = HD + 8*n
            a(f"v_alignbit_b32 v{b+3}, v{b+3}, v{b+2}, 16\nv_alignbit_b32 v{b+2}, v{b+2}, v{b+1}, 16\nv_alignbit_b32 v{b+1}, v{b+1}, v{b}, 16\nv_alignbit_b32 v{b}, v{b}, v{b+4}, 16")
            a.lds(f"ds_write_b128 v{T2}, v[{b}:{b+3}] offset:{1024*n}")
        a.wait(vm="u"); k.lds_arrive(0, T0, T1)
    order = early + late
    seq = late[4:] + [14 + q for q in order]
    filled = 0
    def fill(force=None):
        nonlocal filled
        n = 0
        while filled < 14 and ((n < 2 and f"w{order[filled]}" not in a.vm and order[filled] in issued) or (force is not None and filled <= force)):
            a.wait(vm=f"w{order[filled]}")
            for ins, tag in trs(order[filled], f"f{order[filled]}"): a.lds(ins, tag)
            filled += 1; n += 1
    issued = set(early + late[:4])
    for n, q in enumerate(seq):
        if q >= 14:
            fill(force=order.index(q - 14)); a.wait(lg=f"f{q-14}")
        if not (cfg.x_nop2 and q >= 14): w2_dma(q)
        issued.add(q)
        if n == 0: shift_reads()
        elif n == 1: shift_writes()
        else: fill()
    stamp(12)
    a(f"s_lshl2_add_u32 s{S_T0}, s{S_R2}, s{x}\ns_add_u32 s{S_T0}, s{S_T0}, {CNT_H}\ns_lshl_b32 s{S_T0}, s{S_T0}, 8")
    HO = [None] + [R_V + n for n in range(4)] + [R_OUT, R_OUT + 1]
    for n in range(1, 7): a(f"s_movk_i32 s{HO[n]}, {4096*n}")
    if cfg.xprio: a("s_setprio 0")
    k.spoll(S_T0, 8)
    stamp(13)
    NL = cfg.nl
    hs = [(i, tt) for i in range(28 - NL) for tt in range(2)] + [(i, tt) for tt in range(2) for i in range(28 - NL, 28)]
    def hload(n):
        i, tt = hs[n]; d = AR + 4*(n & 15)
        off = f" offset:{1024*(i&3)}" if i & 3 else ""
        a.vmem(f"buffer_load_dwordx4 v[{d}:{d+3}], v{(HA, HB)[tt]}, s[{R_WS}:{R_WS+3}], {'s%d' % HO[i>>2] if i >= 4 else 0} offen{off} sc1", f"a{n}")
    def pwrites(tt):
        return ([("m0", 0)] + [f"ds_write_addtid_b32 v{ACC2+32*tt+r} offset:{(2*tt+(r>>3))*8192+(r&7)*256}" for r in range(16)] +
                [("m0", 32768)] + [f"ds_write_addtid_b32 v{ACC2+32*tt+16+r} offset:{(4*tt+(r>>2))*8192+(r&3)*256+16}" for r in range(16)])
    def pw(q):
        o = q.pop(0)
        if isinstance(o, tuple):
            a(f"s_add_u32 m0, s{S_B}, {o[1]}\ns_nop 0"); o = q.pop(0)
        a.lds(o)
    a.cap = None
    LA = 2*cfg.la
    for n in range(LA): hload(n)
    pend = []; w0 = pwrites(0); tail = 0
    for n, (i, tt) in enumerate(hs):
        ii = i % 14
        for dt in range(2):
            a.wait(vm=f"a{n}", lg=f"g{i}")
            d = ACC2 + 16*(2*tt+dt)
            a(f"v_mfma_f32_32x32x16_bf16 v[{d}:{d+15}], v[{AR+4*(n&15)}:{AR+4*(n&15)+3}], v[{WB+8*ii+4*dt}:{WB+8*ii+4*dt+3}], {'0' if i == 0 else v(d,16)}")
            if pend: a.lds(*pend.pop(0))
            if NL and n >= 56 - NL:
                tail += 1
                if tail == 1: a("s_nop 6")
                elif tail == 2: a("s_nop 1"); pw(w0); pw(w0)
                else:
                    for _ in range(3):
                        if w0: pw(w0)
        if n + LA < 56: hload(n + LA)
        if i < 14 and tt == 1: pend = trs(ii, f"g{i+14}")
    stamp(14)
    if not NL: a("s_nop 7")
    while w0: pw(w0)
    k.lds_arrive(6, T0, T1)
    a("s_nop 3")
    w1 = pwrites(1)
    while w1: pw(w1)
    k.lds_arrive(7, T0, T1)
    stamp(15)
    k.flush_stamps()
    a("s_endpgm")

def gen_m(k):
    a, cfg, stamp = k.a, k.cfg, k.stamp
    w = S_WV
    S_TH, S_FH = 98, 99
    V16, QA, WA = 1, 2, 6
    T0, T1, T2, T3 = 10, 11, 12, 13
    VCW, VCR = 14, 15
    ACC, CS, QF, WF, ONES, B1F, STT, CSP, WA2, VST, GR = 16, 72, 88, 120, 152, 156, 172, 180, 196, 200, 202
    CA, CB, AD, EXW, EXR, YST, VXO, VSA, VB2, YS0, YS1, YA0, YA1, PA0, PA1, DV, JUNK = 208, 209, 210, 214, 215, 216, 217, 218, 219, 220, 221, 222, 223, 224, 225, 226, 227
    XR, XF, B1R = 88, 96, 112
    LAM = -(2*1.4426950408889634*0.7978845608028654*0.044715) ** (1/3)
    MU = 2*1.4426950408889634*0.7978845608028654 / -LAM
    VKA, VKB, VHALO, VTA, PK, PH, PV, PST, TAPS = 236, 237, 238, 239, 240, 241, 242, 243, 244
    a(f"s_lshl_b32 s{S_U0}, s{S_R}, 7\ns_lshl3_add_u32 s{S_U0}, s{S_C}, s{S_U0}\ns_lshl1_add_u32 s{S_U0}, s{w}, s{S_U0}")
    a(f"s_lshl_b32 s{S_U1}, s{S_U0}, 10\ns_or_b32 s{S_U2}, s{S_J}, s{w}\ns_lshl_b32 s{S_T0}, s{w}, 1")
    a(f"v_xor_b32 v{T3}, s{S_T0}, v{T2}\nv_lshlrev_b32 v{T3}, 4, v{T3}\nv_lshl_add_u32 v{VKA}, v{T0}, 10, v{T3}")
    a(f"v_xor_b32 v{VKB}, 16, v{VKA}\nv_add_u32 v{VKB}, {8192-1024}, v{VKB}")
    a(f"s_lshl2_add_u32 s{S_U4}, s{S_J}, s{w}\ns_lshl_b32 s{S_U4}, s{S_U4}, 7\ns_add_u32 s{S_U4}, s{S_U4}, s{S_XCD}\ns_lshl_b32 s{S_U4}, s{S_U4}, 7")
    a(f"s_mov_b64 s[{R_K+2}:{R_K+3}], s[{R_Q+2}:{R_Q+3}]\ns_mov_b64 s[{R_V+2}:{R_V+3}], s[{R_Q+2}:{R_Q+3}]\ns_mov_b32 s{R_WS+2}, {WS_SIZE}\ns_mov_b32 s{R_WS+3}, s{R_Q+3}")
    for i in range(4): a(f"v_mov_b32 v{GR+i}, 0")
    a(f"v_and_b32 v{T3}, 16, v{V16}\nv_add_u32 v{T3}, {L_SYNC}, v{T3}\nds_write_b128 v{T3}, v[{GR}:{GR+3}]")
    a(f"s_add_u32 m0, s{S_B}, {L_KST+1024}")
    a("s_waitcnt lgkmcnt(0)")
    a(f"s_mov_b64 s[{R_Q}:{R_Q+1}], s[{P_Q}:{P_Q+1}]\ns_mov_b64 s[{R_K}:{R_K+1}], s[{P_K}:{P_K+1}]\ns_mov_b64 s[{R_V}:{R_V+1}], s[{P_V}:{P_V+1}]\ns_mov_b64 s[{R_WS}:{R_WS+1}], s[{P_WS}:{P_WS+1}]")
    LN = a.newlabel("Lnolead")
    a(f"s_cmp_lg_u32 s{S_U2}, 0\ns_cbranch_scc1 {LN}")
    a(f"v_min_u32 v{T3}, 47, v0\nv_lshlrev_b32 v{T3}, 8, v{T3}\ns_mul_i32 s{S_T0}, s2, {48*256}\ns_lshl_b32 s{S_T1}, s2, 11\ns_add_u32 s{S_T1}, s{S_T1}, {WS_STATS}")
    a(f"buffer_store_dwordx4 v[{GR}:{GR+3}], v{V16}, s[{R_WS}:{R_WS+3}], s{S_T1} offen sc1")
    a(f"buffer_store_dwordx4 v[{GR}:{GR+3}], v{V16}, s[{R_WS}:{R_WS+3}], s{S_T1} offen offset:1024 sc1")
    a(f"buffer_store_dword v{GR}, v{T3}, s[{R_WS}:{R_WS+3}], s{S_T0} offen sc1")
    a.label(LN)
    a.vmem(f"buffer_load_dwordx4 v[{XR}:{XR+3}], v{V16}, s[{R_Q}:{R_Q+3}], s{S_U1} offen {cfg.ntq}", "x")
    a.vmem(f"buffer_load_dwordx4 v[{XR+4}:{XR+7}], v{V16}, s[{R_Q}:{R_Q+3}], s{S_U1} offen offset:1024 {cfg.ntq}", "x")
    a.vmem(f"buffer_load_dwordx4 v{VKA}, s[{R_K}:{R_K+3}], s{S_U4} offen nt lds", "kv")
    a.vmem(f"buffer_load_dwordx4 v{VKB}, s[{R_K}:{R_K+3}], s{S_U4} offen offset:1024 nt lds", "kv")
    L = a.newlabel("Lnohalo")
    a(f"s_cmp_lg_u32 s{w}, 3\ns_cbranch_scc1 {L}")
    a(f"s_sub_u32 s{S_T0}, s{S_U4}, {56*1024}\ns_cselect_b32 s{S_T0}, 0, s{S_T0}\ns_cselect_b32 s{S_T1}, 0x80000010, 16")
    a(f"v_xor_b32 v{VHALO}, s{S_T1}, v{VKA}\ns_mov_b32 m0, {L_KST}\ns_lshl_b64 exec, -1, 40")
    a(f"buffer_load_dwordx4 v{VHALO}, s[{R_K}:{R_K+3}], s{S_T0} offen nt lds\ns_mov_b64 exec, -1")
    a.label(L)
    a(f"s_add_u32 m0, s{S_B}, {L_VST}\ns_lshl2_add_u32 s{S_T0}, s{S_XCD}, s{w}")
    a.vmem(f"buffer_load_dwordx4 v{VKA}, s[{R_V}:{R_V+3}], s{S_U4} offen nt lds", "kv")
    a.vmem(f"buffer_load_dwordx4 v{VKB}, s[{R_V}:{R_V+3}], s{S_U4} offen offset:1024 nt lds", "kv")
    a(f"s_lshl_b32 s{S_T0}, s{S_T0}, 7\nv_lshl_add_u32 v{VTA}, v{T0}, 4, s{S_T0}")
    a.vmem(f"global_load_dwordx4 v[{TAPS}:{TAPS+3}], v{VTA}, s[{P_SH}:{P_SH+1}]", "kv")
    a(f"s_lshr_b32 s{S_FH}, s{w}, 1")
    a(f"s_mul_i32 s{S_T0}, s{S_C}, 224\nv_lshl_add_u32 v{VCW}, v{T1}, 3, s{S_T0}")
    a(f"s_lshl_b32 s{S_T1}, s{S_FH}, 7\nv_add_u32 v{VCR}, s{S_T1}, v{VCW}")
    a(f"s_lshl_b32 s{S_T0}, s{S_XCD}, 6\ns_lshl1_add_u32 s{S_T0}, s{S_J}, s{S_T0}\ns_add_u32 s{S_T0}, s{S_T0}, s{S_FH}\ns_lshl_b32 s{S_T0}, s{S_T0}, 1\nv_mov_b32 v{DV}, s{S_T0}")
    for i in range(3): a.vmem(f"global_load_dwordx2 v[{B1R+2*i}:{B1R+2*i+1}], v{VCR}, s[{P_B1}:{P_B1+1}] offset:{32*i}", "b1")
    a.vmem(f"global_load_dwordx2 v[{B1R+6}:{B1R+7}], v{VCW}, s[{P_B1}:{P_B1+1}] offset:96", "b1")
    a.vmem(f"global_load_ushort v{DV}, v{DV}, s[{P_D}:{P_D+1}]", "b1")
    a("s_barrier")
    a("s_branch L_M2")
    k.split = len(a.lines)
    a(".p2align 6"); a.label("L_M2")
    stamp(0)
    g2_index(k)
    a(f"s_and_b32 s{S_TH}, s{w}, 1")
    a(f"v_xor_b32 v{T3}, 7, v{T2}\nv_lshlrev_b32 v{T3}, 4, v{T3}\nv_lshl_add_u32 v{PST}, v{T0}, 13, v{T3}")
    LN = a.newlabel("Lnolead")
    a(f"s_cmp_lg_u32 s{S_U2}, 0\ns_cbranch_scc1 {LN}")
    a(f"s_waitcnt vmcnt({len(a.vm)})\ns_lshl_b32 s{S_T0}, s2, 2\ns_mov_b32 s{S_ONE}, 1\ns_atomic_add s{S_ONE}, s[{P_DBG}:{P_DBG+1}], s{S_T0}")
    a.label(LN)
    srd(a, R_OUT, P_OUT, 2 << 20)
    a(f"v_and_b32 v{T2}, 15, v0\nv_lshrrev_b32 v{T3}, 1, v{T2}\nv_xor_b32 v{T3}, v{T3}, v{T1}\nv_lshlrev_b32 v{T3}, 4, v{T3}\nv_lshl_add_u32 v{T3}, v{T2}, 7, v{T3}")
    a(f"s_lshl_b32 s{S_T0}, s{S_TH}, 6\nv_xor_b32 v{T3}, s{S_T0}, v{T3}")
    a(f"s_lshl_b32 s{S_T0}, s{S_TH}, 13\ns_lshl_b32 s{S_T1}, s{S_FH}, 12\ns_add_u32 s{S_T0}, s{S_T0}, s{S_T1}")
    a(f"v_add_u32 v{QA}, s{S_T0}, v{T3}\nv_xor_b32 v{QA+1}, 4096, v{QA}\nv_xor_b32 v{QA+2}, 64, v{QA}\nv_xor_b32 v{QA+3}, 64, v{QA+1}")
    a(f"s_lshl_b32 s{S_T0}, s{S_FH}, 8\nv_lshl_add_u32 v{VST}, v{T2}, 3, s{S_T0}\nv_xor_b32 v{VST+1}, 256, v{VST}")
    a(f"v_bfe_u32 v{T2}, v0, 2, 3")
    a(f"v_bfe_u32 v{T3}, v0, 2, 2\nv_lshl_add_u32 v{T3}, v{T1}, 3, v{T3}\nv_lshlrev_b32 v{T3}, 8, v{T3}\nv_and_b32 v{T0}, 3, v0\nv_lshl_add_u32 v{T3}, v{T0}, 3, v{T3}")
    a(f"v_add_u32 v{T3}, {L_W}, v{T3}")
    a(f"s_and_b32 s{S_T0}, s{S_C}, 1\ns_lshl2_add_u32 s{S_T1}, s{S_FH}, s{S_T0}\ns_add_u32 s{S_T0}, s{S_T0}, 3")
    for i in range(4):
        if i == 3: a(f"v_xor_b32 v{T0}, s{S_T0}, v{T2}")
        else: a(f"v_xor_b32 v{T0}, s{S_T1}, v{T2}\ns_add_u32 s{S_T1}, s{S_T1}, 1")
        a(f"v_lshl_add_u32 v{WA+i}, v{T0}, 5, v{T3}")
    a(f"s_lshl_b32 s{S_T0}, s{S_TH}, 13\ns_xor_b32 s{S_T1}, s{S_T0}, 8192")
    for i in range(4): a(f"v_add_u32 v{WA2+i}, s{S_T1}, v{WA+i}\nv_add_u32 v{WA+i}, s{S_T0}, v{WA+i}")
    for i in range(4): a(f"v_mov_b32 v{ONES+i}, 0x3f803f80")
    a(f"s_lshl_b32 s{S_T0}, s{w}, 8\ns_add_u32 s{S_T0}, s{S_T0}, {L_CS}\nv_add_u32 v{VCW}, s{S_T0}, v0\nv_and_b32 v{VCR}, 48, v0")
    a(f"s_xor_b32 s{S_T0}, s{w}, 1\ns_lshl_b32 s{S_T0}, s{S_T0}, 8\ns_add_u32 s{S_T0}, s{S_T0}, {L_CS}\nv_add_u32 v{VCR}, s{S_T0}, v{VCR}")
    a(f"s_lshl_b32 s{S_U3}, s{S_R}, 10\ns_lshl_b32 s{S_T0}, s{S_TH}, 9\ns_add_u32 s{S_U3}, s{S_U3}, s{S_T0}\ns_add_u32 s{S_U3}, s{S_U3}, {WS_STATS}")
    a(f"s_mul_i32 s{S_T0}, s{S_FH}, {CH_STRIDE}\ns_lshl_b32 s{S_T1}, s{S_TH}, 8\ns_add_u32 s{S_T0}, s{S_T0}, s{S_T1}")
    a(f"s_add_u32 s{S_T1}, s{S_T0}, {L_CT+U_OFF+448}\ns_add_u32 s{S_T0}, s{S_T0}, {L_CT+128-56}")
    a(f"v_and_b32 v{T0}, 1, v0\nv_bfe_u32 v{T2}, v0, 1, 3")
    a(f"v_mul_u32_u24 v{CA}, {H_STRIDE}, v{T0}\nv_lshl_add_u32 v{CA}, v{T2}, 3, v{CA}\nv_lshl_add_u32 v{CA}, v{T1}, 4, v{CA}\nv_add_u32 v{CA}, s{S_T0}, v{CA}")
    a(f"v_mul_u32_u24 v{CB}, {U_STRIDE}, v{T0}\nv_lshl_add_u32 v{CB}, v{T1}, 4, v{CB}\nv_add_u32 v{CB}, s{S_T1}, v{CB}\nv_lshlrev_b32 v{T3}, 6, v{T2}\nv_sub_u32 v{CB}, v{CB}, v{T3}")
    a(f"v_xor_b32 v{AD+1}, 1, v{T0}\nv_lshlrev_b32 v{AD+1}, 4, v{AD+1}")
    a(f"v_lshlrev_b32 v{AD+3}, 1, v{T2}\nv_lshl_add_u32 v{AD+3}, v{T1}, 2, v{AD+3}")
    a(f"s_lshl_b32 s{S_T0}, s{w}, 13\ns_add_u32 s{S_T0}, s{S_T0}, {L_CT}\nv_add_u32 v{EXW}, s{S_T0}, v{V16}")
    a(f"s_add_u32 s{S_T0}, s{S_B}, {L_CT}\nv_add_u32 v{EXR}, s{S_T0}, v{V16}")
    a(f"v_bfe_u32 v{T0}, v0, 2, 2\nv_and_b32 v{T3}, 3, v0\nv_lshlrev_b32 v{T0}, 8, v{T0}\nv_lshl_add_u32 v{T0}, v{T1}, 6, v{T0}\nv_lshl_add_u32 v{YST}, v{T3}, 4, v{T0}")
    a(f"s_lshl_b32 s{S_T0}, s{S_XCD}, 5\ns_add_u32 s{S_T0}, s{S_T0}, s{S_J}\ns_lshl_b32 s{S_T0}, s{S_T0}, 13\ns_add_u32 s{S_T0}, s{S_T0}, s{S_B}\ns_add_u32 s{S_T0}, s{S_T0}, {WS_Y}\nv_add_u32 v{YST}, s{S_T0}, v{YST}")
    a(f"s_lshl_b32 s{S_T1}, s{w}, 1\nv_and_b32 v{T0}, 15, v0\nv_xor_b32 v{T0}, s{S_T1}, v{T0}\nv_lshlrev_b32 v{T0}, 4, v{T0}\nv_lshl_add_u32 v{YS0}, v{T1}, 13, v{T0}\nv_xor_b32 v{YS1}, 16, v{YS0}")
    a(f"s_lshl_b32 s{S_T1}, s{S_C2}, 18\ns_lshl_b32 s{S_T2}, s{S_R2}, 8\ns_add_u32 s{S_T1}, s{S_T1}, s{S_T2}\ns_lshl_b32 s{S_T2}, s{w}, 16\ns_add_u32 s{S_T1}, s{S_T1}, s{S_T2}\ns_add_u32 s{S_T1}, s{S_T1}, {WS_Y}")
    a(f"s_add_u32 s{S_T2}, s{S_T1}, {4*8192-1024}\nv_add_u32 v{YS0}, s{S_T1}, v{YS0}\nv_add_u32 v{YS1}, s{S_T2}, v{YS1}")
    RHO, OCT, TOFF = ACC, ACC+1, ACC+2
    a(f"v_lshrrev_b32 v{RHO}, 3, v0\nv_and_b32 v{OCT}, 7, v0")
    a(f"v_and_b32 v{TOFF}, 1, v{RHO}\nv_bfe_u32 v{T0}, v{RHO}, 1, 1\nv_lshl_add_u32 v{TOFF}, v{T0}, 2, v{TOFF}\nv_lshrrev_b32 v{T2}, 2, v{RHO}\nv_lshl_add_u32 v{TOFF}, v{T2}, 1, v{TOFF}")
    a(f"s_lshl_b32 s{S_T1}, s{S_R2}, 6\ns_lshl3_add_u32 s{S_T1}, s{w}, s{S_T1}\nv_add_u32 v{T3}, s{S_T1}, v{TOFF}")
    a(f"s_lshl_b32 s{S_T2}, s{S_C2}, 7\nv_lshl_add_u32 v{VB2}, v{OCT}, 4, s{S_T2}\nv_lshl_add_u32 v{VXO}, v{T3}, 10, v{VB2}\nv_lshlrev_b32 v{VSA}, 3, v{T3}\nv_add_u32 v{VSA}, {WS_STATS}, v{VSA}")
    a(f"s_lshl_b32 s{S_T0}, s{w}, 2\ns_or_b32 s{S_T0}, s{S_T0}, 1\nv_xor_b32 v{T0}, s{S_T0}, v{T2}\nv_xor_b32 v{T0}, v{T0}, v{OCT}\nv_lshlrev_b32 v{T0}, 4, v{T0}")
    a(f"v_lshl_add_u32 v{T0}, v{OCT}, 10, v{T0}\nv_and_b32 v{T2}, 3, v{RHO}\nv_lshl_add_u32 v{T0}, v{T2}, 2, v{T0}")
    a(f"v_xor_b32 v{YA1}, 32, v{T0}\nv_add_u32 v{YA0}, {L_YST}, v{T0}\nv_add_u32 v{YA1}, {L_YST}, v{YA1}")
    a(f"v_and_b32 v{T0}, 3, v{TOFF}\nv_lshlrev_b32 v{T0}, 8, v{T0}\nv_lshrrev_b32 v{T2}, 2, v{TOFF}\nv_lshl_add_u32 v{T0}, v{T2}, 7, v{T0}\nv_and_b32 v{T2}, 3, v{OCT}\nv_lshl_add_u32 v{T0}, v{T2}, 5, v{T0}")
    a(f"s_lshl_b32 s{S_T0}, s{S_FH}, 13\ns_lshl_b32 s{S_T1}, s{S_TH}, 10\ns_add_u32 s{S_T0}, s{S_T0}, s{S_T1}")
    a(f"s_lshl_b32 s{S_T1}, s{w}, 13\ns_add_u32 s{S_T1}, s{S_T1}, {4*8192+16}")
    a(f"v_mov_b32 v{PA0}, s{S_T0}\nv_mov_b32 v{T2}, s{S_T1}\nv_cmp_lt_u32 vcc, 3, v{OCT}\nv_mov_b32 v{T3}, 16384\nv_mov_b32 v{PA1}, 32768")
    a(f"v_cndmask_b32 v{PA0}, v{PA0}, v{T2}, vcc\nv_cndmask_b32 v{T3}, v{T3}, v{PA1}, vcc\nv_add_u32 v{PA0}, v{T0}, v{PA0}\nv_add_u32 v{PA1}, v{PA0}, v{T3}")
    a(f"s_lshl_b32 s{S_T0}, s{w}, 1\nv_lshrrev_b32 v{PV}, 5, v0\nv_add_u32 v{PV}, s{S_T0}, v{PV}")
    a(f"v_bfe_u32 v{T2}, v0, 3, 2\nv_lshlrev_b32 v{T2}, 2, v{T2}\nv_lshl_add_u32 v{T2}, v{OCT}, 10, v{T2}")
    a(f"v_add_u32 v{T3}, 7, v{OCT}\nv_and_b32 v{T3}, 7, v{T3}\nv_xor_b32 v{T3}, v{PV}, v{T3}\nv_lshl_add_u32 v{PH}, v{T3}, 4, v{T2}\nv_add_u32 v{PH}, {L_KST}, v{PH}")
    a(f"v_xor_b32 v{T3}, v{PV}, v{OCT}\nv_lshl_add_u32 v{PK}, v{T3}, 4, v{T2}")
    a(f"v_add_u32 v{PV}, {L_VST}, v{PK}\nv_add_u32 v{PK}, {L_KST+1024}, v{PK}")
    a.wait(vm="x")
    for n in range(2):
        for m in range(4):
            a(f"v_lshlrev_b32 v{XF+8*n+2*m}, 16, v{XR+4*n+m}\nv_and_b32 v{XF+8*n+2*m+1}, 0xffff0000, v{XR+4*n+m}")
    SM = XR
    def reduce2():
        for dpp in ("row_shr:1 row_mask:0xf bank_mask:0xf bound_ctrl:0", "row_shr:2 row_mask:0xf bank_mask:0xf bound_ctrl:0", "row_shr:4 row_mask:0xf bank_mask:0xf bound_ctrl:0",
                    "row_shr:8 row_mask:0xf bank_mask:0xf bound_ctrl:0", "row_bcast:15 row_mask:0xa bank_mask:0xf", "row_bcast:31 row_mask:0xc bank_mask:0xf"):
            a("s_nop 0")
            for n in range(2): a(f"v_add_f32_dpp v{SM+n}, v{SM+n}, v{SM+n} {dpp}")
    for n in range(2): a(f"v_add_f32 v{SM+n}, v{XF+8*n}, v{XF+8*n+1}")
    for m in range(2, 8):
        for n in range(2): a(f"v_add_f32 v{SM+n}, v{SM+n}, v{XF+8*n+m}")
    reduce2()
    for n in range(2): a(f"v_mul_f32 v{SM+2+n}, {f32(1/512)}, v{SM+n}")
    a(f"v_readlane_b32 s{S_T0}, v{SM+2}, 63\nv_readlane_b32 s{S_T1}, v{SM+3}, 63\ns_nop 0")
    for n in range(2):
        for m in range(8): a(f"v_subrev_f32 v{XF+8*n+m}, s{S_T0+n}, v{XF+8*n+m}")
    for n in range(2): a(f"v_mul_f32 v{SM+n}, v{XF+8*n}, v{XF+8*n}")
    for m in range(1, 8):
        for n in range(2): a(f"v_fmac_f32 v{SM+n}, v{XF+8*n+m}, v{XF+8*n+m}")
    reduce2()
    a(f"v_mov_b32 v{T1}, {f32(1e-5)}")
    for n in range(2): a(f"v_fmamk_f32 v{SM+n}, v{SM+n}, {f32(1/512)}, v{T1}")
    for n in range(2): a(f"v_rsq_f32 v{SM+n}, v{SM+n}")
    for n in range(2): a(f"v_or_b32 v{GR+2*n}, 1, v{SM+2+n}")
    for n in range(2): a(f"v_or_b32 v{GR+2*n+1}, 1, v{SM+n}")
    a(f"s_lshl_b32 s{S_U0}, s{S_U0}, 3\ns_add_u32 s{S_U0}, s{S_U0}, {WS_STATS}")
    stamp(14)
    KR, VR, KF, TF, VF, OUT, PA = 16, 28, 36, 60, 68, 228, 128
    def urstore(e): a.vmem(f"buffer_store_dwordx4 v[{OUT+4*e}:{OUT+4*e+3}], v{PST}, s[{R_WS}:{R_WS+3}], s{(S_U4, S_U5)[e]} offen sc1", "ur")
    a.wait(vm="kv")
    k.lds_arrive(5, T0, T1)
    for m in range(4): a(f"v_lshlrev_b32 v{TF+4*(m&1)+(m>>1)}, 16, v{TAPS+m}\nv_and_b32 v{TF+4*(m&1)+2+(m>>1)}, 0xffff0000, v{TAPS+m}")
    a(f"s_lshl_b32 s{S_T2}, s{S_XCD}, 18\ns_lshl_b32 s{S_T3}, s{w}, 16\ns_add_u32 s{S_T2}, s{S_T2}, s{S_T3}")
    a(f"s_lshl_b32 s{S_T3}, s{S_J}, 7\ns_sub_u32 s{S_T2}, s{S_T2}, s{S_T3}\ns_add_u32 s{S_U4}, s{S_T2}, {WS_UR + 2*1984}\ns_add_u32 s{S_U5}, s{S_U4}, 4096")
    k.lds_wait(5, T0, T1, setaddr=False)
    stamp(15)
    a.lds(f"ds_read_b32 v{KR+1}, v{PH} offset:{5*128}", "k")
    a.lds(f"ds_read2_b32 v[{KR+2}:{KR+3}], v{PH} offset0:{6*32} offset1:{7*32}", "k")
    for i in range(4): a.lds(f"ds_read2_b32 v[{KR+4+2*i}:{KR+5+2*i}], v{PK} offset0:{64*i} offset1:{64*i+32}", "k")
    for i in range(4): a.lds(f"ds_read2_b32 v[{VR+2*i}:{VR+1+2*i}], v{PV} offset0:{64*i} offset1:{64*i+32}", "v")
    a.wait(lg="k")
    for i in range(1, 12): a(f"v_lshlrev_b32 v{KF+2*i}, 16, v{KR+i}\nv_and_b32 v{KF+2*i+1}, 0xffff0000, v{KR+i}")
    a.wait(lg="v")
    for t in range(8): a(f"v_lshlrev_b32 v{VF+2*t}, 16, v{VR+t}\nv_and_b32 v{VF+2*t+1}, 0xffff0000, v{VR+t}")
    a(".p2align 3")
    for t in range(8): a(f"v_pk_mul_f32 v[{PA+2*t}:{PA+2*t+1}], v[{KF+2*(1+t)}:{KF+2*(1+t)+1}], v[{TF+6}:{TF+7}]")
    for tau in (2, 1, 0):
        for t in range(8): a(f"v_pk_fma_f32 v[{PA+2*t}:{PA+2*t+1}], v[{KF+2*(4+t-tau)}:{KF+2*(4+t-tau)+1}], v[{TF+2*tau}:{TF+2*tau+1}], v[{PA+2*t}:{PA+2*t+1}]")
    for t in range(8): a(f"v_pk_mul_f32 v[{PA+2*t}:{PA+2*t+1}], v[{PA+2*t}:{PA+2*t+1}], v[{VF+2*t}:{VF+2*t+1}]")
    for e in range(2):
        for m in range(4): a(f"v_cvt_pk_bf16_f32 v{OUT+4*e+m}, v{PA+2*(7-2*m)+e}, v{PA+2*(6-2*m)+e}")
        if cfg.urst < 0: urstore(e)
    a.wait(vm="b1")
    for i in range(8): a(f"v_lshlrev_b32 v{B1F+2*i}, 16, v{B1R+i}\nv_and_b32 v{B1F+2*i+1}, 0xffff0000, v{B1R+i}")
    for i in range(16): a(f"v_mul_f32 v{B1F+i}, {f32(LAM)}, v{B1F+i}")
    a(f"v_lshlrev_b32 v{DV}, v{AD+1}, v{DV}\ns_sub_u32 s{S_T2}, s{S_TH}, 1\nv_and_b32 v{DV}, s{S_T2}, v{DV}")
    a(f"v_cmp_eq_u32 vcc, 14, v{AD+3}\nv_mov_b32 v{AD+1}, 0\ns_nop 0\nv_cndmask_b32 v{AD}, 0, v{DV}, vcc")
    a(f"v_cmp_eq_u32 vcc, 12, v{AD+3}\nv_mov_b32 v{AD+3}, 0\ns_nop 0\nv_cndmask_b32 v{AD+2}, 0, v{DV}, vcc")
    S_H0, S_H1, S_H2, S_YP, S_YC = R_X0, R_X0+1, R_X0+2, R_X0+3, 17
    a(f"s_lshl_b32 s{S_T0}, s{S_R}, 2\ns_lshl1_add_u32 s{S_T0}, s{S_TH}, s{S_T0}\ns_add_u32 s{S_T0}, s{S_T0}, s{S_FH}\ns_xor_b32 s{S_T1}, s{S_T0}, 1")
    a(f"s_mul_i32 s{S_T0}, s{S_T0}, {112*1024}\ns_mul_i32 s{S_T1}, s{S_T1}, {112*1024}\ns_mul_i32 s{S_T2}, s{S_C}, {7*1024}\ns_add_u32 s{S_T2}, s{S_T2}, {WS_H}")
    a(f"s_add_u32 s{S_H2}, s{S_T0}, s{S_T2}\ns_lshl_b32 s{S_T3}, s{S_FH}, 12\ns_add_u32 s{S_H0}, s{S_H2}, s{S_T3}\ns_add_u32 s{S_H1}, s{S_T1}, s{S_T2}\ns_add_u32 s{S_H1}, s{S_H1}, s{S_T3}")
    a(f"s_lshl1_add_u32 s{S_T0}, s{S_R}, s{S_TH}\ns_lshr_b32 s{S_T1}, s{S_C}, 2\ns_lshl2_add_u32 s{S_T0}, s{S_T0}, s{S_T1}\ns_add_u32 s{S_T0}, s{S_T0}, {CNT_H}\ns_lshl_b32 s{S_PUB}, s{S_T0}, 8")
    a(f"s_lshl2_add_u32 s{S_T0}, s{S_XCD}, s{w}\ns_lshr_b32 s{S_T1}, s{S_J}, 3\ns_lshl2_add_u32 s{S_T0}, s{S_T0}, s{S_T1}\ns_add_u32 s{S_T0}, s{S_T0}, {CNT_Y}\ns_lshl_b32 s{S_YP}, s{S_T0}, 8")
    a(f"s_lshr_b32 s{S_T0}, s{S_R2}, 3\ns_lshl2_add_u32 s{S_T0}, s{S_C2}, s{S_T0}\ns_lshl2_add_u32 s{S_T0}, s{S_T0}, s{w}\ns_add_u32 s{S_T0}, s{S_T0}, {CNT_Y}\ns_lshl_b32 s{S_YC}, s{S_T0}, 8")
    KC = T2
    a(f"v_mov_b32 v{KC}, {f32(MU)}\nv_mov_b32 v{KC+1}, {f32(LAM)}\ns_mov_b32 s{S_U1}, 32768")
    def publish():
        a(f"s_mov_b32 exec_lo, 0\ns_mov_b32 exec_hi, 0x80000000")
        a.vmem(f"buffer_store_dwordx4 v[{GR}:{GR+3}], off, s[{R_WS}:{R_WS+3}], s{S_U0} sc1", "pub")
        a(f"s_mov_b64 exec, -1")
    def stats_loads():
        for tau in range(4):
            off = " offset:128" if tau & 1 else ""
            a(f"buffer_load_dwordx2 v[{STT+2*tau}:{STT+2*tau+1}], v{VST+(tau>>1)}, s[{R_WS}:{R_WS+3}], s{S_U3} offen{off} sc1")
    a.wait(lg="all")
    stamp(1)
    def rd(i, ks):
        slot = (i % 3) * 16384; b = 16*ks; wa = (WA, WA2)[ks]
        def W(n): return [(f"ds_read_b64_tr_b16 v[{WF+b+4*n+2*h}:{WF+b+4*n+2*h+1}], v{wa+n} offset:{slot+1024*h}", f"W{i}{ks}{n}") for h in range(2)]
        def Q(t): return [(f"ds_read_b128 v[{QF+b+4*t}:{QF+b+4*t+3}], v{QA+2*ks+(t>>1)} offset:{slot+2048*(t&1)}", f"Q{i}{ks}{t}")]
        if cfg.x_nolds: return []
        return W(0) + Q(0) + Q(1) + Q(2) + Q(3) + W(1) + W(2) + W(3)
    def mm(i, ks, n, t):
        b = 16*ks
        if t == "cs":
            d = CS + 4*n; B = ONES; first = (i == 0); tags = [f"W{i}{ks}{n}"]
        else:
            d = ACC + 4*(4*n+t); B = QF+b+4*t; first = (i == 0 and ks == 0); tags = [f"W{i}{ks}{n}", f"Q{i}{ks}{t}"]
            if cfg.coarse and n == 0 and t == 0 and (i, ks) != (0, 0): tags.append(f"Q{i}{ks}3")
        a.wait(lg=tags)
        if cfg.x_nomfma: return
        a(f"v_mfma_f32_16x16x32_bf16 v[{d}:{d+3}], v[{WF+b+4*n}:{WF+b+4*n+3}], v[{B}:{B+3}], {'0' if first else v(d,4)}")
    base = [(n, t) for n in range(3) for t in range(4)] + [(3, 0), (3, 1)]
    withcs = base[:4] + [(0, "cs")] + base[4:8] + [(1, "cs")] + base[8:12] + [(2, "cs")] + [(3, "cs")] + base[12:]
    a("s_barrier")
    stamp(2)
    for ins, tag in rd(0, 0): a.lds(ins, tag)
    for i in range(8):
        pend = rd(i, 1)
        for n, t in (base if i < 7 else withcs):
            mm(i, 0, n, t)
            if pend: a.lds(*pend.pop(0))
        pend = rd(i+1, 0) if i < 7 else [(f"ds_read_b128 v[{CSP+4*n2}:{CSP+4*n2+3}], v{VCR} offset:{64*n2}", "csp") for n2 in range(4)]
        bq = cfg.bq if i < 7 else 9
        for q, (n, t) in enumerate(withcs if i < 7 else base):
            mm(i, 1, n, t)
            if i == 7 and 3 <= q <= 6:
                a(f"s_mov_b32 exec_lo, 0x00010001\ns_mov_b32 exec_hi, 0x00010001")
                a.lds(f"ds_write_b128 v{VCW}, v[{CS+4*(q-3)}:{CS+4*(q-3)+3}] offset:{64*(q-3)}")
                a("s_mov_b64 exec, -1")
            if i == 7 and q == 7: k.lds_arrive(4, T0, T1)
            if i == 7 and q == bq: k.lds_wait(4, T0, T1, setaddr=False)
            if q == bq and i < 7:
                a.wait(lg="all")
                a("s_barrier")
                if i == cfg.urseg:
                    a.wait(vm="ur"); a(f"s_sub_u32 s{S_T0}, s{S_YP}, {CNT_Y*256}"); k.signal(S_T0)
                if i == cfg.urst: urstore(0); urstore(1)
                if i == cfg.markseg: publish()
                if i == cfg.stseg: stats_loads()
            if q >= bq + (0 if cfg.rdnow else 1) and pend: a.lds(*pend.pop(0))
        assert not pend
    stamp(3)
    L = a.newlabel("Lst"); D = a.newlabel("Lstd")
    a(f"s_mov_b32 s{S_SPIN}, 0")
    a.label(L)
    a("s_waitcnt vmcnt(0)")
    a(f"v_min3_u32 v{T0}, v{STT}, v{STT+1}, v{STT+2}\nv_min3_u32 v{T1}, v{STT+3}, v{STT+4}, v{STT+5}\nv_min3_u32 v{T0}, v{T0}, v{STT+6}, v{STT+7}\nv_min_u32 v{T0}, v{T0}, v{T1}")
    a(f"v_cmp_eq_u32 vcc, 0, v{T0}\ns_add_u32 s{S_SPIN}, s{S_SPIN}, 1\ns_cbranch_vccz {D}")
    a(f"s_cmp_gt_u32 s{S_SPIN}, {SPIN_MAX}\ns_cbranch_scc1 {D}")
    stats_loads()
    a(f"s_branch {L}")
    a.label(D)
    a.vm = []
    for tau in range(4): a(f"v_mul_f32 v{STT+2*tau+1}, v{KC+1}, v{STT+2*tau+1}")
    for tau in range(4): a(f"v_mul_f32 v{STT+2*tau}, v{STT+2*tau}, v{STT+2*tau+1}")
    a.wait(lg="all")
    stamp(4)
    a(".p2align 3")
    for m in range(0, 16, 2): a(f"v_pk_add_f32 v[{CS+m}:{CS+m+1}], v[{CS+m}:{CS+m+1}], v[{CSP+m}:{CSP+m+1}]")
    units = [(n, p) for n in range(3) for p in range(2)] + [(3, 0)]
    for u, (n, p) in enumerate(units):
        E = 176 + 4 + 8*(u & 1); O = 228 + 4*(u & 1)
        prs = [(ACC + 4*(4*n+2*p+tl) + 2*hh, 2*p+tl, 2*hh, E + 4*tl + 2*hh) for tl in range(2) for hh in range(2)]
        for z, tau, hh, e in prs: a(f"v_pk_fma_f32 v[{e}:{e+1}], v[{CS+4*n+hh}:{CS+4*n+hh+1}], v[{STT+2*tau}:{STT+2*tau+1}], v[{B1F+4*n+hh}:{B1F+4*n+hh+1}] op_sel_hi:[1,0,1] neg_lo:[0,1,0] neg_hi:[0,1,0]")
        for z, tau, hh, e in prs: a(f"v_pk_fma_f32 v[{z}:{z+1}], v[{z}:{z+1}], v[{STT+2*tau}:{STT+2*tau+1}], v[{e}:{e+1}] op_sel:[0,1,0]")
        for z, tau, hh, e in prs: a(f"v_pk_fma_f32 v[{e}:{e+1}], v[{z}:{z+1}], v[{z}:{z+1}], v[{KC}:{KC+1}] op_sel_hi:[1,1,0]")
        for z, tau, hh, e in prs: a(f"v_pk_mul_f32 v[{e}:{e+1}], v[{e}:{e+1}], v[{z}:{z+1}]")
        for m in range(8): a(f"v_exp_f32 v{E+m}, v{E+m}")
        for z, tau, hh, e in prs: a(f"v_pk_fma_f32 v[{e}:{e+1}], v[{e}:{e+1}], v[{KC}:{KC+1}], v[{KC}:{KC+1}] op_sel:[0,1,1]")
        for m in range(8): a(f"v_rcp_f32 v{E+m}, v{E+m}")
        for z, tau, hh, e in prs: a(f"v_pk_mul_f32 v[{z}:{z+1}], v[{z}:{z+1}], v[{e}:{e+1}]")
        for q in (0, 2, 1, 3): a(f"v_cvt_pk_bf16_f32 v{O+q}, v{prs[q][0]}, v{prs[q][0]+1}")
        a(f"v_permlane16_swap_b32 v{O}, v{O+2}\n{'s_setprio 3' if cfg.xprio else 's_nop 0'}\nv_permlane16_swap_b32 v{O+1}, v{O+3}\ns_nop 0")
        so = S_H2 if n == 3 else (S_H0, S_H1)[p]
        if not cfg.x_nohst or u == 6: a.vmem(f"buffer_store_dwordx4 v[{O}:{O+3}], v{V16}, s[{R_WS}:{R_WS+3}], s{so} offen offset:{1024*n} sc1", "h")
        if cfg.xprio: a("s_setprio 0\ns_nop 0")
    stamp(5)
    k.lds_wait(0, T0, T1)
    stamp(6)
    CACC, FA, FB = 16, 48, 80
    def reads(cc):
        buf = 64*(cc & 1); r = []
        for n in range(8): r.append((f"ds_read_b128 v[{FB+buf+4*n}:{FB+buf+4*n+3}], v{CB} offset:{3584-512*n+64*cc}", f"B{cc}_{n}"))
        for n in range(8):
            for hf in range(2): r.append((f"ds_read_b64 v[{FA+buf+4*n+2*hf}:{FA+buf+4*n+2*hf+1}], v{CA} offset:{512*n+64*cc+8*hf}", f"A{cc}_{n}"))
        return r
    r0 = reads(0)
    for ins, tag in r0[:12]: a.lds(ins, tag)
    pend = r0[12:]
    cnt = [0]; ool = []
    a(f"s_mov_b32 s{S_U2}, 0")
    def tick():
        cnt[0] += 1
        if cfg.dynsig:
            lo, step, hi = cfg.dynsig
            if lo <= cnt[0] <= hi and (cnt[0] - lo) % step == 0:
                last = cnt[0] + step > hi
                L = a.newlabel("Lhs"); B = a.newlabel("Lhb")
                if last: a(f"s_cmp_lg_u32 s{S_U2}, 0")
                else: a(f"s_getreg_b32 s{S_T0}, hwreg(HW_REG_IB_STS, 0, 4)\ns_or_b32 s{S_T0}, s{S_T0}, s{S_U2}")
                a(f"s_cbranch_scc0 {L}"); a.label(B)
                ool.append(f"{L}:\ns_waitcnt vmcnt(0)\ns_mov_b32 s{S_U2}, 1\ns_atomic_add s{S_U2}, s[{P_WS}:{P_WS+1}], s{S_PUB}\ns_branch {B}")
                if last: a.vm = []
        elif cnt[0] == cfg.hsigpos: a.wait(vm="h"); k.signal(S_PUB)
    if cfg.hsigpos == 0: a.wait(vm="h"); k.signal(S_PUB)
    for T in range(8):
        a.wait(lg=f"B0_{T}")
        a(f"v_mfma_f32_16x16x32_bf16 v[{CACC+4*T}:{CACC+4*T+3}], v[{AD}:{AD+3}], v[{FB+4*T}:{FB+4*T+3}], 0")
        if pend: a.lds(*pend.pop(0))
        tick()
    wq = []
    for cc in range(4):
        buf = 64*(cc & 1)
        nxt = reads(cc+1) if cc < 3 else []
        for an in range(8):
            for e in range(8-an):
                T = an + e
                a.wait(lg=[f"A{cc}_{an}", f"B{cc}_{e}"])
                a(f"v_mfma_f32_16x16x32_bf16 v[{CACC+4*T}:{CACC+4*T+3}], v[{FA+buf+4*an}:{FA+buf+4*an+3}], v[{FB+buf+4*e}:{FB+buf+4*e+3}], v[{CACC+4*T}:{CACC+4*T+3}]")
                if pend: a.lds(*pend.pop(0))
                elif nxt:
                    a.lds(*nxt.pop(0))
                    if cc == 2 and not nxt: k.lds_arrive(1, T0, T1)
                tick()
                if cc == 3:
                    if an == 0 and e == 6: k.lds_wait(1, T0, T1, setaddr=False)
                    if e == 0: wq.append((cnt[0] + 8, T))
                    if wq and wq[0][0] <= cnt[0]:
                        T2_ = wq.pop(0)[1]
                        a.lds(f"ds_write_b128 v{EXW}, v[{CACC+4*T2_}:{CACC+4*T2_+3}] offset:{1024*T2_}")
        assert not pend and not nxt
    stamp(7)
    for n, (_, T2_) in enumerate(wq):
        if T2_ >= 5: a("s_nop 2")
        a.lds(f"ds_write_b128 v{EXW}, v[{CACC+4*T2_}:{CACC+4*T2_+3}] offset:{1024*T2_}")
    k.lds_arrive(2, T0, T1); k.lds_wait(2, T0, T1, setaddr=False)
    for tt in range(2):
        for src in range(4):
            a.lds(f"ds_read_b128 v[{FA+16*tt+4*src}:{FA+16*tt+4*src+3}], v{EXR} offset:{8192*src+1024*tt}", f"e{tt}")
    for tt in range(2):
        a.wait(lg=f"e{tt}")
        b = FA + 16*tt
        for r in range(4): a(f"v_add_f32 v{b+r}, v{b+r}, v{b+4+r}\nv_add_f32 v{b+8+r}, v{b+8+r}, v{b+12+r}")
        for r in range(4): a(f"v_cvt_pk_bf16_f32 v{b+4+r}, v{b+r}, v{b+8+r}")
        a.vmem(f"buffer_store_dwordx4 v[{b+4}:{b+7}], v{YST}, s[{R_WS}:{R_WS+3}], 0 offen{' offset:1024' if tt else ''} sc1", "y")
    stamp(8)
    XR2, ST2, B2R = 16, 24, 28
    a.vmem(f"buffer_load_dwordx4 v[{XR2}:{XR2+3}], v{VXO}, s[{R_Q}:{R_Q+3}], 0 offen", "x")
    a.vmem(f"buffer_load_dwordx4 v[{XR2+4}:{XR2+7}], v{VXO}, s[{R_Q}:{R_Q+3}], s{S_U1} offen", "x")
    a.vmem(f"buffer_load_dwordx2 v[{ST2}:{ST2+1}], v{VSA}, s[{R_WS}:{R_WS+3}], 0 offen sc1", "x")
    a.vmem(f"buffer_load_dwordx2 v[{ST2+2}:{ST2+3}], v{VSA}, s[{R_WS}:{R_WS+3}], 0 offen offset:256 sc1", "x")
    a.vmem(f"global_load_dwordx4 v[{B2R}:{B2R+3}], v{VB2}, s[{P_B2}:{P_B2+1}]", "x")
    a(f"s_add_u32 m0, s{S_B}, {L_YST}")
    a.wait(vm="y")
    k.signal(S_YP)
    a.wait(vm="x")
    XF2, PP, B2F, YR = 80, 96, 32, 40
    for n in range(2):
        for m in range(4): a(f"v_lshlrev_b32 v{XF2+8*n+2*m}, 16, v{XR2+4*n+m}\nv_and_b32 v{XF2+8*n+2*m+1}, 0xffff0000, v{XR2+4*n+m}")
        for m in range(8): a(f"v_sub_f32 v{PP+8*n+m}, v{XF2+8*n+m}, v{ST2+2*n}")
        for m in range(8): a(f"v_mul_f32 v{PP+8*n+m}, v{PP+8*n+m}, v{ST2+2*n+1}")
    for m in range(4): a(f"v_lshlrev_b32 v{B2F+2*m}, 16, v{B2R+m}\nv_and_b32 v{B2F+2*m+1}, 0xffff0000, v{B2R+m}")
    stamp(9)
    k.spoll(S_YC, 8)
    stamp(10)
    a.vmem(f"buffer_load_dwordx4 v{YS0}, s[{R_WS}:{R_WS+3}], 0 offen sc1 lds", "ys")
    a.vmem(f"buffer_load_dwordx4 v{YS1}, s[{R_WS}:{R_WS+3}], 0 offen offset:1024 sc1 lds", "ys")
    a.wait(vm="all")
    k.lds_sync(3, T0, T1)
    for n, ya in enumerate((YA0, YA1)):
        a.lds(f"ds_read2st64_b32 v[{YR+4*n}:{YR+4*n+1}], v{ya} offset0:0 offset1:1")
        a.lds(f"ds_read2st64_b32 v[{YR+4*n+2}:{YR+4*n+3}], v{ya} offset0:2 offset1:3")
    a.wait(lg="all")
    for n in range(2):
        for m in range(4):
            a(f"v_lshlrev_b32 v{T0}, 16, v{YR+4*n+m}\nv_and_b32 v{T1}, 0xffff0000, v{YR+4*n+m}")
            a(f"v_mul_f32 v{PP+8*n+2*m}, v{PP+8*n+2*m}, v{T0}\nv_mul_f32 v{PP+8*n+2*m+1}, v{PP+8*n+2*m+1}, v{T1}")
    a(f"v_mov_b32 v{T2}, {f32(-1.4426950408889634)}")
    stamp(11)
    RD, EE = 112, 176
    def pk(op, d, x0, x1, x2=None, mod=""): a(f"{op} v[{d}:{d+1}], {x0}, {x1}" + (f", {x2}" if x2 else "") + mod)
    def preads(n):
        for kq in range(4):
            for e in range(2):
                a.lds(f"ds_read_b128 v[{RD+32*n+8*kq+4*e}:{RD+32*n+8*kq+4*e+3}], v{(PA0, PA1)[n]} offset:{2048*kq+16*e}", f"p{n}_{kq}")
    k.lds_wait(6, T0, T1, sleep=cfg.fsleep)
    stamp(12)
    preads(0)
    for n in range(2):
        b = RD + 32*n
        a.wait(lg=f"p{n}_1"); a(".p2align 3")
        for m in range(0, 8, 2): pk("v_pk_add_f32", b+m, v(b+m, 2), v(B2F+m, 2))
        for m in range(0, 8, 2): pk("v_pk_add_f32", b+m, v(b+m, 2), v(b+8+m, 2))
        a.wait(lg=f"p{n}_3"); a(".p2align 3")
        for m in range(0, 8, 2): pk("v_pk_add_f32", b+16+m, v(b+16+m, 2), v(b+24+m, 2))
        for m in range(0, 8, 2): pk("v_pk_add_f32", b+m, v(b+m, 2), v(b+16+m, 2))
        for m in range(0, 8, 2): pk("v_pk_mul_f32", EE+m, v(b+m, 2), v(T2, 2), mod=" op_sel_hi:[1,0]")
        for m in range(8): a(f"v_exp_f32 v{EE+m}, v{EE+m}")
        for m in range(0, 8, 2): pk("v_pk_mul_f32", b+m, v(b+m, 2), v(PP+8*n+m, 2))
        for m in range(0, 8, 2): pk("v_pk_add_f32", EE+m, v(EE+m, 2), "1.0", mod=" op_sel_hi:[1,0]")
        if n == 0:
            k.lds_wait(7, T0, T1, setaddr=False); preads(1); a(".p2align 3")
        for m in range(8): a(f"v_rcp_f32 v{EE+m}, v{EE+m}")
        for m in range(0, 8, 2): pk("v_pk_fma_f32", b+m, v(b+m, 2), v(EE+m, 2), v(XF2+8*n+m, 2))
        for m in range(4): a(f"v_cvt_pk_bf16_f32 v{b+8+m}, v{b+2*m}, v{b+2*m+1}")
        a.vmem(f"buffer_store_dwordx4 v[{b+8}:{b+11}], v{VXO}, s[{R_OUT}:{R_OUT+3}], {'s%d' % S_U1 if n else '0'} offen {cfg.out_flags}")
    stamp(13)
    if cfg.diag_pad or cfg.diag_amp:
        if cfg.diag_amp: a(f"s_sub_u32 s{S_T2}, s{S_ST}, s{S_EX}\ns_mul_i32 s{S_T2}, s{S_T2}, {cfg.diag_amp[1]}\ns_min_u32 s{S_T2}, s{S_T2}, 200000")
        else: a(f"s_mov_b32 s{S_T2}, {cfg.diag_pad}")
        a.label("L_pad")
        a(f"s_memrealtime s[{S_T0}:{S_T1}]\ns_waitcnt lgkmcnt(0)\ns_sub_u32 s{S_T0}, s{S_T0}, s{S_EX}\ns_cmp_lt_u32 s{S_T0}, s{S_T2}\ns_cbranch_scc1 L_pad")
    k.flush_stamps()
    a("s_endpgm")
    for o in ool: a(o)

Cfg.g2_nomfma = False; Cfg.g2_hot = False; Cfg.g2_noload = False; Cfg.hflag = 'sc1'; Cfg.seg7 = 4; Cfg.nearly = 4; Cfg.binit = 0; Cfg.cap = 9; Cfg.la = 5; Cfg.x_nohst = False; Cfg.spf = None; Cfg.spfw = True; Cfg.n0 = 8; Cfg.n1 = 8; Cfg.cap0 = 16; Cfg.capseg = 0; Cfg.ssmf = 'nt'; Cfg.cap2 = 9; Cfg.nl = 5; Cfg.fsleep = 1; Cfg.dynsig = None; Cfg.urst = 0; Cfg.x_nop2 = False; Cfg.psleep = 0; Cfg.uarr = 8; Cfg.uarr_d = 5; Cfg.w2x = False; Cfg.bq = 4; Cfg.rdnow = False; Cfg.coarse = False
HEADER = open("recurrent_scan__ssm_conv_h3__dense_activation_gelu__prompt.s.ref").read().split("; @launch")[0]
def full(cfg):
    kp = K(cfg); prologue(kp)
    km = K(cfg); km.role = 'm'; km.a.nlabel = 1000; gen_m(km)
    kx = K(cfg); kx.role = 'x'; gen_x(kx)
    errs = check(kp.a.lines + km.a.lines) + check(kp.a.lines + kx.a.lines)
    a = Asm()
    a.lines = kp.a.lines + km.a.lines[:km.split] + ["L_X:"] + kx.a.lines + km.a.lines[km.split:] + ["L_end:", "s_endpgm", "L_code_end:"]
    for e in errs: print(e, file=sys.stderr)
    assert not errs
    t = HEADER + f"; @launch grid=(256,1,1) block=(512,1,1) lds={LDS_BYTES}\n"
    t += f'.amdgcn_target "amdgcn-amd-amdhsa--gfx950"\n.text\n.globl {NAME}\n.p2align 8\n.type {NAME},@function\n'
    t += a.text()
    t += f'''.section .rodata,"a"
.p2align 6
.amdhsa_kernel {NAME}
  .amdhsa_next_free_vgpr 256
  .amdhsa_next_free_sgpr 102
  .amdhsa_accum_offset 256
  .amdhsa_group_segment_fixed_size 0
  .amdhsa_kernarg_size 112
  .amdhsa_user_sgpr_count 2
  .amdhsa_user_sgpr_kernarg_segment_ptr 1
  .amdhsa_system_sgpr_workgroup_id_x 1
  .amdhsa_float_denorm_mode_32 3
.end_amdhsa_kernel
'''
    return t
if __name__ == "__main__":
    cfg = Cfg()
    for kv in sys.argv[2:]:
        kk, val = kv.split("=", 1); assert hasattr(cfg, kk), kk; setattr(cfg, kk, eval(val))
    open(sys.argv[1], "w").write(full(cfg))
```

```python
import sys, struct
from asmlib import Asm, v, s, check

NAME = "recurrent_scan__ssm_conv_h3__dense_activation_gelu__prompt_kernel"
def f32(x): return "0x%08x" % struct.unpack("<I", struct.pack("<f", x))[0]

WS_CNT, WS_STATS, WS_STAMP, WS_UR, WS_Y, WS_H = 0, 0x20000, 0x40000, 0x100000, 0x300000, 0x500000
WS_SIZE = 0x500000 + 64*112*1024
CNT_UR, CNT_H, CNT_Y = 0, 128, 256
L_Q, L_W, L_KST = 0, 49152, 98304
L_VST = L_KST + 9*1024
L_CT = 115712; CH_STRIDE = 17600; H_STRIDE = 4224; U_OFF = 8448; U_STRIDE = 4576
L_MISC = L_CT + 2*CH_STRIDE
L_YST = L_MISC
L_CS = L_YST + 8192
L_SYNC = L_CS + 1024
LDS_BYTES = L_SYNC + 64
SPIN_MAX = 1 << 17

P_Q, P_K, P_V, P_SH, P_SSM, P_D, P_BX, P_W1, P_B1, P_W2, P_B2, P_OUT, P_DBG, P_WS = range(4, 32, 2)
S_WV, S_XCD, S_J, S_R, S_C, S_KC0, S_R2, S_C2, S_OFF, S_WAVE = range(32, 42)
S_A, S_B, S_T0, S_T1, S_T2, S_T3 = range(42, 48)
R_Q, R_K, R_V, R_W1, R_WS, R_DBG, R_W2, R_SSM, R_X0, R_OUT = range(48, 88, 4)
S_U0, S_U1, S_U2, S_U3, S_U4, S_U5, S_SPIN, S_PUB = range(88, 96)
S_EX = 96; S_ST = 100
S_ONE, S_PV = 3, 16

class Cfg:
    stamps = False
    kvpos = 2; g1stag = "four"; g2map = 2; g2stag = "none"; ntq = ""; ntw2 = ""
    markseg = 0; ssmseg = 3; stseg = 4; urseg = 2; w2touch = 3
    urpos = -1
    hsigpos = 48
    xprio = 1
    code_pf = True
    diag_pad = 0; diag_amp = None; out_flags = ""
    x_nomfma = False; x_nolds = False; x_nodma = False; segstamps = True

def srd(a, R, P, size):
    a(f"s_mov_b64 s[{R}:{R+1}], s[{P}:{P+1}]\ns_mov_b32 s{R+2}, {size}\ns_mov_b32 s{R+3}, 0x20000")

class K:
    def __init__(self, cfg): self.a = Asm(); self.cfg = cfg; self.ool = []
    def stamp(self, i):
        a, cfg = self.a, self.cfg
        if cfg.diag2 and self.role == cfg.diag2[0] and i in cfg.diag2[1:3]:
            a(f"s_memrealtime s[{S_ST}:{S_ST+1}]\ns_waitcnt lgkmcnt(0)"); a.lg = []
            a(f"s_mov_b32 s{S_EX+1}, s{S_ST}" if i == cfg.diag2[1] else f"s_sub_u32 s{S_EX+1}, s{S_ST}, s{S_EX+1}")
        if cfg.diag_amp and cfg.diag_amp[0] == i:
            a(f"s_memrealtime s[{S_ST}:{S_ST+1}]\ns_waitcnt lgkmcnt(0)"); a.lg = []
        if cfg.stamps == "min" and i == 0:
            a("v_writelane_b32 v255, s86, 23"); return
        if cfg.stamps == "min" and not (i == 13 and self.role == "m"): return
        if cfg.stamps:
            a(f"s_memrealtime s[{S_ST}:{S_ST+1}]\ns_memtime s[{S_EX}:{S_EX+1}]\ns_waitcnt lgkmcnt(0)\nv_writelane_b32 v255, s{S_ST}, {i}\nv_writelane_b32 v255, s{S_EX}, {32+i}")
            if i == 0: a("v_writelane_b32 v255, s86, 23")
            a.lg = []
    def flush_stamps(self):
        a = self.a; cfg = self.cfg
        if cfg.diag2 and self.role == cfg.diag2[0]:
            a(f"s_mul_i32 s{S_T2}, s{S_EX+1}, {cfg.diag2[3]}\ns_add_u32 s{S_T2}, s{S_T2}, 2000\ns_min_u32 s{S_T2}, s{S_T2}, 200000")
            if cfg.diag2[4] is not None: a(f"s_lshl2_add_u32 s{S_T0}, s2, s{S_WV}\ns_cmp_eq_u32 s{S_T0}, {cfg.diag2[4]}\ns_cselect_b32 s{S_T2}, s{S_T2}, 0")
            a.label("L_pad2")
            a(f"s_memrealtime s[{S_T0}:{S_T1}]\ns_waitcnt lgkmcnt(0)\ns_sub_u32 s{S_T0}, s{S_T0}, s{S_EX}\ns_cmp_lt_u32 s{S_T0}, s{S_T2}\ns_cbranch_scc1 L_pad2")
        if self.cfg.stamps:
            a(f"s_lshl_b32 s{S_T0}, s2, 3\ns_add_u32 s{S_T0}, s{S_T0}, s{S_WAVE}\ns_lshl_b32 s{S_T0}, s{S_T0}, 8\ns_add_u32 s{S_T0}, s{S_T0}, {WS_STAMP}")
            a(f"v_lshlrev_b32 v254, 2, v0\nbuffer_store_dword v255, v254, s[{R_WS}:{R_WS+3}], s{S_T0} offen")
    def vpoll(self, vaddr, vdata, R, expect):
        a = self.a; L = a.newlabel("Lpoll"); D = a.newlabel("Lpolld")
        a(f"s_mov_b32 s{S_SPIN}, 0")
        a.label(L)
        a(f"buffer_load_dword v{vdata}, v{vaddr}, s[{R}:{R+3}], 0 offen sc1\ns_waitcnt vmcnt(0)")
        a(f"v_cmp_ne_u32 vcc, {expect}, v{vdata}")
        a(f"s_add_u32 s{S_SPIN}, s{S_SPIN}, 1\ns_cmp_gt_u32 s{S_SPIN}, {SPIN_MAX}\ns_cbranch_scc1 {D}\ns_cbranch_vccnz {L}")
        a.label(D)
    def spoll(self, off_sgpr, expect):
        a = self.a; L = a.newlabel("Lsp"); D = a.newlabel("Lspd")
        a(f"s_mov_b32 s{S_SPIN}, 0")
        a.label(L)
        a(f"s_load_dword s{S_PV}, s[{P_WS}:{P_WS+1}], s{off_sgpr} glc\ns_add_u32 s{S_SPIN}, s{S_SPIN}, 1\ns_waitcnt lgkmcnt(0)")
        a(f"s_cmp_eq_u32 s{S_PV}, {expect}\ns_cbranch_scc1 {D}")
        if self.cfg.psleep: a(f"s_sleep {self.cfg.psleep}")
        a(f"s_cmp_gt_u32 s{S_SPIN}, {SPIN_MAX}\ns_cbranch_scc0 {L}")
        a.label(D); a.lg = []
    def signal(self, cnt, inc=1): self.a(f"s_movk_i32 s{S_ONE}, {inc}\ns_atomic_add s{S_ONE}, s[{P_WS}:{P_WS+1}], s{cnt}")
    def lds_arrive(self, word, vtmp, vone):
        a = self.a
        a(f"v_mov_b32 v{vtmp}, {L_SYNC}\nv_mov_b32 v{vone}, 1\ns_mov_b64 exec, 1")
        a.lds(f"ds_add_u32 v{vtmp}, v{vone} offset:{4*word}")
        a("s_mov_b64 exec, -1")
    def lds_wait(self, word, vtmp, vone, setaddr=True, sleep=0):
        a = self.a; L = a.newlabel("Lsy"); D = a.newlabel("Lsyd")
        if setaddr: a(f"v_mov_b32 v{vtmp}, {L_SYNC}")
        a(f"s_mov_b32 s{S_SPIN}, 0")
        a.label(L)
        a(f"ds_read_b32 v{vone}, v{vtmp} offset:{4*word}\ns_add_u32 s{S_SPIN}, s{S_SPIN}, 1\ns_waitcnt lgkmcnt(0)")
        a(f"v_cmp_ne_u32 vcc, 4, v{vone}\ns_cmp_gt_u32 s{S_SPIN}, {SPIN_MAX*8}\ns_cbranch_scc1 {D}")
        if sleep: a(f"s_cbranch_vccz {D}\ns_sleep {sleep}\ns_branch {L}")
        else: a(f"s_cbranch_vccnz {L}")
        a.label(D); a.lg = []
    def lds_peek(self, word, vaddr, vdst, tag): self.a.lds(f"ds_read_b32 v{vdst}, v{vaddr} offset:{4*word}", tag)
    def lds_check(self, word, vaddr, vdst, tag):
        a = self.a; L = a.newlabel("Lck"); B = a.newlabel("Lckb"); S = a.newlabel("Lcks")
        a.wait(lg=tag)
        a(f"v_cmp_ne_u32 vcc, 4, v{vdst}\ns_mov_b32 s{S_SPIN}, 0\ns_cbranch_vccnz {L}"); a.label(B)
        self.ool.append(f"{L}:\nds_read_b32 v{vdst}, v{vaddr} offset:{4*word}\ns_add_u32 s{S_SPIN}, s{S_SPIN}, 1\ns_waitcnt lgkmcnt(0)\nv_cmp_ne_u32 vcc, 4, v{vdst}\n"
                        f"s_cmp_gt_u32 s{S_SPIN}, {SPIN_MAX*8}\ns_cbranch_scc1 {B}\ns_cbranch_vccnz {L}\ns_branch {B}")
    def speek(self, off): self.a(f"s_load_dword s{S_PV}, s[{P_WS}:{P_WS+1}], s{off} glc")
    def scheck(self, off, mask, expect):
        a = self.a; L = a.newlabel("Lsc"); B = a.newlabel("Lscb")
        m = f"s_and_b32 s{S_PV}, s{S_PV}, {mask}\n" if mask else ""
        a(f"s_mov_b32 s{S_SPIN}, 0\ns_waitcnt lgkmcnt(0)\n{m}s_cmp_lg_u32 s{S_PV}, {expect}\ns_cbranch_scc1 {L}"); a.label(B); a.lg = []
        self.ool.append(f"{L}:\ns_load_dword s{S_PV}, s[{P_WS}:{P_WS+1}], s{off} glc\ns_add_u32 s{S_SPIN}, s{S_SPIN}, 1\ns_cmp_gt_u32 s{S_SPIN}, {SPIN_MAX}\ns_waitcnt lgkmcnt(0)\ns_cbranch_scc1 {B}\n"
                        f"{m}s_cmp_lg_u32 s{S_PV}, {expect}\ns_cbranch_scc1 {L}\ns_branch {B}")
    def lds_sync(self, word, vtmp, vone):
        self.a.wait(lg="all"); self.lds_arrive(word, vtmp, vone); self.lds_wait(word, vtmp, vone, setaddr=False)

def prologue(k):
    a, cfg = k.a, k.cfg
    a.label(NAME)
    if cfg.stamps: a("s_memrealtime s[86:87]")
    a("s_cmp_ge_u32 s2, 256\ns_cbranch_scc1 L_end")
    a("s_load_dwordx16 s[4:19], s[0:1], 0\ns_load_dwordx8 s[20:27], s[0:1], 64\ns_load_dwordx4 s[28:31], s[0:1], 96")
    if cfg.code_pf:
        a(f"s_getpc_b64 s[{S_T0}:{S_T1}]")
        a.label("L_pc")
        a(f"s_lshr_b32 s{S_T2}, s2, 3\ns_lshl_b32 s{S_T2}, s{S_T2}, 10\nv_lshl_add_u32 v2, v0, 1, s{S_T2}\nv_min_u32 v2, L_code_end-L_pc-4, v2")
        a(f"v_mov_b32 v3, s{S_T1}\nv_add_co_u32 v2, vcc, s{S_T0}, v2\ns_mov_b64 exec, 1\ns_nop 0\nv_addc_co_u32 v3, vcc, 0, v3, vcc")
        a(f"global_load_dword v254, v[2:3], off\ns_mov_b64 exec, -1")
    if cfg.stamps: a("v_mov_b32 v255, 0")
    if cfg.diag_pad or cfg.diag_amp or cfg.diag2: a(f"s_memrealtime s[{S_EX}:{S_EX+1}]")
    a("v_lshrrev_b32 v1, 6, v0\nv_and_b32 v0, 63, v0")
    a(f"v_readfirstlane_b32 s{S_WAVE}, v1")
    a(f"s_and_b32 s{S_XCD}, s2, 7\ns_lshr_b32 s{S_J}, s2, 3")
    a(f"s_and_b32 s{S_T0}, s{S_XCD}, 3\ns_lshr_b32 s{S_T1}, s{S_XCD}, 2")
    a(f"s_and_b32 s{S_T2}, s{S_J}, 3\ns_lshr_b32 s{S_C2}, s{S_J}, 2")
    a(f"s_lshl2_add_u32 s{S_R}, s{S_T0}, s{S_T2}\ns_lshl3_add_u32 s{S_C}, s{S_T1}, s{S_C2}")
    a(f"s_and_b32 s{S_T0}, s{S_T0}, 1")
    if cfg.g1stag == "full":
        a(f"s_lshl1_add_u32 s{S_KC0}, s{S_T2}, s{S_C2}\ns_add_u32 s{S_KC0}, s{S_KC0}, s{S_T0}\ns_and_b32 s{S_KC0}, s{S_KC0}, 7")
    else:
        a(f"s_add_u32 s{S_KC0}, s{S_T2}, s{S_C2}\ns_and_b32 s{S_KC0}, s{S_KC0}, 3\ns_lshl1_add_u32 s{S_KC0}, s{S_KC0}, s{S_T0}")
    a(f"s_mov_b32 s{R_Q+2}, {2<<20}\ns_mov_b32 s{R_Q+3}, 0x20000")
    a(f"s_and_b32 s{S_WV}, s{S_WAVE}, 3\nv_lshlrev_b32 v1, 4, v0\ns_lshl_b32 s{S_B}, s{S_WV}, 11")
    a(f"v_lshrrev_b32 v10, 3, v0\nv_lshrrev_b32 v11, 4, v0\nv_and_b32 v12, 7, v0")
    a(f"s_cmp_ge_u32 s{S_WAVE}, 4\ns_cbranch_scc1 L_X")

def g2_index(k):
    a, cfg = k.a, k.cfg
    assert cfg.g2stag == "none"
    a(f"s_lshr_b32 s{S_T1}, s{S_XCD}, 2")
    if cfg.g2map == 1: a(f"s_lshl1_add_u32 s{S_R2}, s{S_R}, s{S_T1}")
    else:
        a(f"s_and_b32 s{S_T3}, s{S_C2}, 1\ns_lshl1_add_u32 s{S_R2}, s{S_R}, s{S_T3}")
        a(f"s_lshr_b32 s{S_C2}, s{S_C2}, 1\ns_lshl2_add_u32 s{S_C2}, s{S_T1}, s{S_C2}")

def gen_x(k):
    a, cfg, stamp = k.a, k.cfg, k.stamp
    x = S_WV
    a.cap = cfg.cap
    V16, W2A, W2B, TR, HA, HB = 1, 2, 3, 4, 8, 9
    T0, T1, T2, T3 = 10, 11, 12, 13
    VQ, VW, VKA, VKB, VHALO, VTA, PK, PH, PV, PST, VMK, VMD = 14, 18, 22, 23, 24, 25, 26, 27, 28, 29, 30, 31
    TAPS, JUNK = 108, 112
    ACC2, AR, WB = 14, 78, 142
    a(f"v_xor_b32 v{T3}, v{T2}, v{T1}\nv_lshlrev_b32 v{T3}, 4, v{T3}\nv_lshl_add_u32 v{VQ}, v{T0}, 10, v{T3}")
    a(f"s_lshl2_add_u32 s{S_T0}, s{S_R}, s{x}\ns_lshl_b32 s{S_T0}, s{S_T0}, 15\ns_movk_i32 s{S_T2}, {8192-1024}\ns_lshl_b32 s{S_T3}, s{S_T2}, 1")
    a(f"v_add_u32 v{VQ}, s{S_T0}, v{VQ}")
    a(f"v_xor_b32 v{VQ+1}, 64, v{VQ}\nv_add_u32 v{VQ+2}, s{S_T3}, v{VQ}\nv_add_u32 v{VQ+1}, s{S_T2}, v{VQ+1}\nv_add_u32 v{VQ+3}, s{S_T3}, v{VQ+1}")
    d = 4*3584 - 1024
    a(f"v_lshlrev_b32 v{T3}, 5, v{T1}\nv_xor_b32 v{T3}, v{T3}, v{V16}\nv_and_b32 v{T3}, 0xff, v{T3}\nv_xor_b32 v{VW+2}, 0x80, v{T3}")
    a(f"s_mulk_i32 s{S_U1}, 224\ns_andn2_b32 s{S_U1}, s{S_U1}, 63\ns_mul_i32 s{S_T1}, s{x}, {16*3584}\ns_add_u32 s{S_T0}, s{S_U1}, s{S_T1}".replace(f"s_mulk_i32 s{S_U1}, 224", f"s_mul_i32 s{S_U1}, s{S_C}, 224"))
    a(f"s_movk_i32 s{S_T1}, 3584\ns_movk_i32 s{S_T2}, {d}\ns_lshl1_add_u32 s{S_T3}, s{S_T2}, s{S_T0}")
    a(f"v_mad_u32_u24 v{VW}, v{T1}, s{S_T1}, v{T3}\nv_mad_u32_u24 v{VW+2}, v{T1}, s{S_T1}, v{VW+2}")
    a(f"v_add_u32 v{VW}, s{S_T0}, v{VW}\nv_add_u32 v{VW+2}, s{S_T3}, v{VW+2}\nv_add_u32 v{VW+1}, s{S_T2}, v{VW}\nv_add_u32 v{VW+3}, s{S_T2}, v{VW+2}")
    a(f"s_lshl_b32 s{S_U1}, s{x}, 12\ns_mov_b32 s{R_W1+2}, {512*3584}\ns_mov_b32 s{R_W1+3}, s{R_Q+3}")
    a("s_waitcnt lgkmcnt(0)")
    a(f"s_mov_b64 s[{R_Q}:{R_Q+1}], s[{P_Q}:{P_Q+1}]\ns_mov_b64 s[{R_W1}:{R_W1+1}], s[{P_W1}:{P_W1+1}]")
    if cfg.wsoff: a(f"s_add_u32 s{P_WS}, s{P_WS}, {cfg.wsoff}\ns_addc_u32 s{P_WS+1}, s{P_WS+1}, 0")
    def chunk_ops(i):
        slot = i % 3
        def mk(kind, n):
            def f():
                if n == 0:
                    if kind == "q":
                        a(f"s_add_u32 s{S_T0}, s{S_KC0}, {i}\ns_and_b32 s{S_T0}, s{S_T0}, 7\ns_lshl_b32 s{S_U3}, s{S_T0}, 7\ns_mul_i32 s{S_U4}, s{S_T0}, {64*3584}")
                    a(f"s_add_u32 m0, s{S_U1}, {(L_Q if kind=='q' else L_W) + slot*16384}\ns_nop 0")
                off = f" offset:{1024*n}" if n else ""
                if kind == "q": a.vmem(f"buffer_load_dwordx4 v{VQ+n}, s[{R_Q}:{R_Q+3}], s{S_U3} offen{off} {cfg.ntq} lds", f"c{i}")
                else: a.vmem(f"buffer_load_dwordx4 v{VW+n}, s[{R_W1}:{R_W1+3}], s{S_U4} offen{off} {cfg.ntq} lds", f"c{i}")
            return f
        return [mk("q", n) for n in range(4)] + [mk("w", n) for n in range(4)]
    def setup_rest():
        stamp(0)
        g2_index(k)
        a(f"v_mov_b32 v{T1}, v{T2}")
        srd(a, R_WS, P_WS, WS_SIZE); srd(a, R_DBG, P_DBG, 256); srd(a, R_W2, P_W2, 1792*1024); srd(a, R_SSM, P_SSM, 2 << 20)
        a(f"s_lshl_b32 s{S_T0}, s{S_XCD}, 6\ns_lshl1_add_u32 s{S_T0}, s{S_J}, s{S_T0}\ns_lshr_b32 s{S_T1}, s{x}, 1\ns_add_u32 s{S_U5}, s{S_T0}, s{S_T1}")
        a(f"s_mul_i32 s{S_T1}, s{S_T1}, {CH_STRIDE}\ns_and_b32 s{S_T2}, s{x}, 1")
        a(f"s_lshl_b32 s{S_T3}, s{S_T2}, 11\ns_add_u32 s{S_H1}, s{S_T1}, s{S_T3}\ns_add_u32 s{S_H1}, s{S_H1}, {L_CT+H_STRIDE+128}")
        a(f"s_mul_i32 s{S_T3}, s{S_T2}, {H_STRIDE}\ns_add_u32 s{S_T3}, s{S_T3}, s{S_T1}\ns_add_u32 s{S_T3}, s{S_T3}, {L_CT+128-512}")
        a(f"s_mul_i32 s{S_T0}, s{S_T2}, {U_STRIDE}\ns_add_u32 s{S_T0}, s{S_T0}, s{S_T1}\ns_add_u32 s{S_T0}, s{S_T0}, {L_CT+U_OFF+4096}")
        Z = JUNK
        a(f"v_mov_b32 v{T2}, s{S_T0}\nv_mov_b32 v{T3}, s{S_T3}\nv_cmp_gt_u32 vcc, 56, v0")
        for i in range(4): a(f"v_mov_b32 v{Z+i}, 0")
        a(f"v_cndmask_b32 v{T3}, v{T3}, v{T2}, vcc\nv_lshl_add_u32 v{T3}, v0, 3, v{T3}\nv_subrev_u32 v{T2}, 4, v{T2}")
        a.lds(f"ds_write_b64 v{T3}, v[{Z}:{Z+1}]")
        a.lds(f"ds_write_b32 v{T2}, v{Z}")
        a(f"v_lshlrev_b32 v{VMK}, 2, v{T1}")
        a(f"v_lshrrev_b32 v{T2}, 2, v0\nv_and_b32 v{T2}, 4, v{T2}\nv_xor_b32 v{T2}, v{T2}, v{T1}\nv_lshlrev_b32 v{T2}, 4, v{T2}\nv_lshl_add_u32 v{W2A}, v{T0}, 10, v{T2}")
        a(f"s_mul_i32 s{S_T0}, s{x}, {448*1024}\ns_lshl_b32 s{S_T1}, s{S_C2}, 7\ns_add_u32 s{S_T0}, s{S_T0}, s{S_T1}")
        a(f"v_add_u32 v{W2A}, s{S_T0}, v{W2A}\nv_add_u32 v{W2B}, {8192-1024}, v{W2A}")
        a(f"v_bfe_u32 v{T2}, v0, 2, 2\nv_lshrrev_b32 v{T3}, 5, v0\nv_lshl_add_u32 v{T3}, v{T3}, 3, v{T2}\nv_lshlrev_b32 v{T3}, 7, v{T3}")
        a(f"v_lshrrev_b32 v{T2}, 1, v{T2}\nv_lshl_add_u32 v{T3}, v{T2}, 6, v{T3}\nv_bfe_u32 v{T2}, v0, 4, 1\nv_lshl_add_u32 v{T3}, v{T2}, 5, v{T3}\nv_and_b32 v{T2}, 3, v0\nv_lshl_add_u32 v{T3}, v{T2}, 3, v{T3}")
        a(f"v_add_u32 v{TR}, s{S_B}, v{T3}\nv_xor_b32 v{TR+1}, 64, v{TR}\nv_add_u32 v{TR+2}, 65536, v{TR}\nv_add_u32 v{TR+3}, 65536, v{TR+1}")
        a(f"s_mul_i32 s{S_T0}, s{S_R2}, {224*1024}\ns_mul_i32 s{S_T1}, s{x}, {28*1024}\ns_add_u32 s{S_T0}, s{S_T0}, s{S_T1}\ns_add_u32 s{S_T0}, s{S_T0}, {WS_H}")
        a(f"v_add_u32 v{HA}, s{S_T0}, v{V16}\nv_add_u32 v{HB}, {112*1024}, v{HA}")
        a(f"s_lshr_b32 s{S_T0}, s{S_J}, 3\ns_lshl2_add_u32 s{S_T0}, s{S_XCD}, s{S_T0}\ns_lshl2_add_u32 s{S_T0}, s{S_T0}, s{x}\ns_lshl_b32 s{S_PUB}, s{S_T0}, 8")
        a(f"s_lshl2_add_u32 s{S_T0}, s2, s{x}\ns_mul_i32 s{S_T0}, s{S_T0}, 1792\ns_add_u32 s{S_PW}, s{P_W2}, s{S_T0}\ns_addc_u32 s{S_PW+1}, s{P_W2+1}, 0")
        a(f"s_lshl_b32 s{S_T0}, s{S_U5}, 12\ns_and_b32 s{S_T1}, s{x}, 1\ns_lshl_b32 s{S_T1}, s{S_T1}, 11\ns_add_u32 s{S_U2}, s{S_T0}, s{S_T1}\ns_add_u32 s{S_PS}, s{P_SSM}, s{S_U2}\ns_addc_u32 s{S_PS+1}, s{P_SSM+1}, 0")
        a.wait(lg="all")
    S_H1 = 17; S_PW, S_PS = R_K, R_K + 2; S_HO = R_V
    if cfg.binit == 0: a("s_barrier")
    c0 = chunk_ops(0); c1 = chunk_ops(1)
    for f in c0[:cfg.n0]: f()
    setup_rest()
    a.cap = cfg.cap0
    for f in c0[cfg.n0:]: f()
    def pre1():
        if cfg.ssmseg == -2: ssm_loads()
        if cfg.w2touch == -2: w2_touch()
        for f in c1[:cfg.n1]: f()
        stamp(1)
    def ssm_loads():
        a(f"s_mov_b32 m0, s{S_H1}\ns_lshl_b32 s{S_T0}, s{S_U5}, 12")
        a.vmem(f"buffer_load_dwordx4 v{V16}, s[{R_SSM}:{R_SSM+3}], s{S_U2} offen {cfg.ssmf} lds", "h")
        a.vmem(f"buffer_load_dwordx4 v{V16}, s[{R_SSM}:{R_SSM+3}], s{S_U2} offen offset:1024 {cfg.ssmf} lds", "h")
        a(f"s_add_u32 s{S_T0}, s{S_T0}, 2044\ns_load_dword s{S_U0}, s[{P_SSM}:{P_SSM+1}], s{S_T0}")
    spf = [f"s_load_dword s{S_ONE}, s[{S_PW}:{S_PW+1}], {64*n}" for n in range(28)] + [f"s_load_dword s{S_ONE}, s[{S_PS}:{S_PS+1}], {64*n}" for n in range(32)]
    if cfg.spfw: spf = spf[:28]
    if not cfg.spf: spf = []
    def w2_touch():
        if cfg.w2x:
            assert cfg.g2map == 2
            a(f"s_lshl2_add_u32 s{S_T0}, s{S_J}, s{x}\ns_mul_i32 s{S_T0}, s{S_T0}, {14*1024}\ns_lshr_b32 s{S_T1}, s{S_XCD}, 2\ns_lshl_b32 s{S_T1}, s{S_T1}, 9\ns_add_u32 s{S_T0}, s{S_T0}, s{S_T1}")
            a(f"v_lshrrev_b32 v{T2}, 2, v0\nv_and_b32 v{T3}, 3, v0\nv_lshlrev_b32 v{T3}, 7, v{T3}\nv_lshl_add_u32 v{T2}, v{T2}, 10, v{T3}\ns_mov_b32 exec_hi, 0x00ffffff")
            a.vmem(f"buffer_load_dword v{JUNK}, v{T2}, s[{R_W2}:{R_W2+3}], s{S_T0} offen {cfg.w2x}", "tw")
            a(f"s_mov_b64 exec, -1")
            return
        a(f"s_lshl2_add_u32 s{S_T0}, s2, s{x}\ns_mul_i32 s{S_T0}, s{S_T0}, {14*128}\nv_lshlrev_b32 v{T2}, 7, v0\ns_mov_b64 exec, 0x3fff")
        a.vmem(f"buffer_load_dword v{JUNK}, v{T2}, s[{R_W2}:{R_W2+3}], s{S_T0} offen", "tw")
        a(f"s_mov_b64 exec, -1")
    if cfg.hsplit: SG = [7*cc + t for cc in range(4) for t in (0, 1, 4, 5)] + [7*cc + t for cc in range(4) for t in (2, 3, 6)]
    else: SG = list(range(28))
    def w2_dma(i):
        ii = i % 14
        if cfg.g2stag == "none": a(f"s_mov_b32 s{S_T0}, {SG[i]*16384}")
        else: a(f"s_add_u32 s{S_T0}, s{S_A}, {i*16384}\ns_sub_u32 s{S_T1}, s{S_T0}, {28*16384}\ns_min_u32 s{S_T0}, s{S_T0}, s{S_T1}")
        a(f"s_add_u32 m0, s{S_B}, {ii*8192}\ns_nop 0")
        a.vmem(f"buffer_load_dwordx4 v{W2A}, s[{R_W2}:{R_W2+3}], s{S_T0} offen {cfg.ntw2} lds", f"w{i}")
        a.vmem(f"buffer_load_dwordx4 v{W2B}, s[{R_W2}:{R_W2+3}], s{S_T0} offen offset:1024 {cfg.ntw2} lds", f"w{i}")
    def ustage():
        L = a.newlabel("Lurok")
        a(f"s_cmp_eq_u32 s{S_PV}, 8\ns_cbranch_scc1 {L}")
        keep = list(a.lg); k.spoll(S_PUB, 8); a.lg = keep
        a.label(L)
        stamp(11)
        a(f"s_xor_b32 s{S_T1}, s{x}, 3\ns_lshl_b32 s{S_T1}, s{S_T1}, 10\ns_and_b32 s{S_T0}, s{S_U5}, 0xfffffffe\ns_lshl_b32 s{S_T0}, s{S_T0}, 12\ns_add_u32 s{S_T0}, s{S_T0}, s{S_T1}\ns_add_u32 s{S_T0}, s{S_T0}, {WS_UR}")
        for ch in range(2):
            for cp in range(2):
                a(f"s_add_u32 m0, s{S_T1}, {L_CT + ch*CH_STRIDE + U_OFF + cp*(U_STRIDE-4)}")
                a(f"s_add_u32 s{S_T0}, s{S_T0}, 4096" if (ch == 1 and cp == 0) else "s_nop 0")
                a.vmem(f"buffer_load_dwordx4 v{V16}, s[{R_WS}:{R_WS+3}], s{S_T0} offen sc1 lds", "u")
    MK = R_X0
    early = [12, 13, 4, 5, 10, 11]; late = [0, 1, 6, 7, 2, 3, 8, 9]
    pre1()
    a.wait(vm="c0"); a("s_barrier")
    for i in range(7):
        if cfg.segstamps or i == 0: stamp(2 + i)
        if i >= cfg.capseg: a.cap = cfg.cap
        dm = []
        if i == 0: dm += c1[cfg.n1:]
        if i + 2 <= 7: dm += chunk_ops(i + 2)[:1 if cfg.x_nodma else 8]
        if i == cfg.w2touch: dm.append(w2_touch)
        if i == cfg.ssmseg: dm.append(ssm_loads)
        if i == 6: dm += [(lambda q=q: w2_dma(q)) for q in early[:cfg.nearly]]
        if i == cfg.markseg:
            L = a.newlabel("Lmk")
            a(f"s_cmp_lg_u32 s{x}, 0\ns_cbranch_scc1 {L}\ns_load_dwordx8 s[{MK}:{MK+7}], s[{P_DBG}:{P_DBG+1}], 0")
            a.label(L)
        nsp = cfg.spf[1] if cfg.spf and i >= cfg.spf[0] else 0
        for nf, f in enumerate(dm):
            f()
            for _ in range(min(2, nsp)):
                if spf: a(spf.pop(0))
                nsp -= 1
        if i == cfg.markseg:
            L = a.newlabel("Lmk")
            a(f"s_cmp_lg_u32 s{x}, 0\ns_cbranch_scc1 {L}\ns_waitcnt lgkmcnt(0)")
            a(f"s_and_b64 s[{MK}:{MK+1}], s[{MK}:{MK+1}], s[{MK+2}:{MK+3}]\ns_and_b64 s[{MK+4}:{MK+5}], s[{MK+4}:{MK+5}], s[{MK+6}:{MK+7}]\ns_and_b64 s[{MK}:{MK+1}], s[{MK}:{MK+1}], s[{MK+4}:{MK+5}]\ns_and_b32 s{MK}, s{MK}, s{MK+1}")
            a(f"s_cbranch_scc1 {L}")
            k.vpoll(VMK, VMD, R_DBG, 1)
            a.label(L)
        if i == 6: a(f"s_load_dword s{S_PV}, s[{P_WS}:{P_WS+1}], s{S_PUB} glc")
        a.wait(vm=f"c{i+1}"); a("s_barrier")
    if cfg.segstamps: stamp(9)
    assert not spf
    a.cap = cfg.cap2
    for q in early[cfg.nearly:]: w2_dma(q)
    a("s_waitcnt lgkmcnt(0)")
    ustage()
    for q in late[:4]: w2_dma(q)
    k.lds_wait(4, T0, T1)
    if cfg.xprio: a(f"s_setprio {cfg.xprio}")
    stamp(10)
    def trs(ii, tag):
        return [(f"ds_read_b64_tr_b16 v[{WB+8*ii+4*dt+2*h}:{WB+8*ii+4*dt+2*h+1}], v{TR+2*(ii>>3)+dt} offset:{(ii&7)*8192+512*h}", tag) for dt in range(2) for h in range(2)]
    HD = 40
    def shift_reads():
        a(f"v_add_u32 v{T0}, s{S_H1}, v{V16}\nv_subrev_u32 v{T1}, 4, v{T0}\nv_subrev_u32 v{T2}, {H_STRIDE}, v{T0}")
        a(f"s_bitcmp1_b32 s{x}, 0\ns_cselect_b32 s{S_U0}, s{S_U0}, 0")
        a.wait(vm="h")
        for n in range(2):
            a.lds(f"ds_read_b128 v[{HD+8*n}:{HD+8*n+3}], v{T0} offset:{1024*n}", "sh")
            a.lds(f"ds_read_b32 v{HD+8*n+4}, v{T1} offset:{1024*n}", "sh")
    def shift_writes():
        a.wait(lg="sh")
        a(f"v_writelane_b32 v{HD+4}, s{S_U0}, 0")
        for n in range(2):
            b = HD + 8*n
            a(f"v_alignbit_b32 v{b+3}, v{b+3}, v{b+2}, 16\nv_alignbit_b32 v{b+2}, v{b+2}, v{b+1}, 16\nv_alignbit_b32 v{b+1}, v{b+1}, v{b}, 16\nv_alignbit_b32 v{b}, v{b}, v{b+4}, 16")
            a.lds(f"ds_write_b128 v{T2}, v[{b}:{b+3}] offset:{1024*n}")
        a.wait(vm="u"); k.lds_arrive(0, T0, T1)
    order = early + late
    seq = late[4:] + [14 + q for q in order]
    filled = 0
    def fill(force=None):
        nonlocal filled
        n = 0
        while filled < 14 and ((n < 2 and f"w{order[filled]}" not in a.vm and order[filled] in issued) or (force is not None and filled <= force)):
            a.wait(vm=f"w{order[filled]}")
            for ins, tag in trs(order[filled], f"f{order[filled]}"): a.lds(ins, tag)
            filled += 1; n += 1
    issued = set(early + late[:4])
    a(f"s_lshl2_add_u32 s{S_T0}, s{S_R2}, s{x}\ns_add_u32 s{S_T0}, s{S_T0}, {CNT_H}\ns_lshl_b32 s{S_PUB}, s{S_T0}, 8")
    HO = [None] + [R_V + n for n in range(4)] + [R_OUT, R_OUT + 1]
    for n in range(1, 7): a(f"s_movk_i32 s{HO[n]}, {4096*n}")
    for n, q in enumerate(seq):
        if n == len(seq) - cfg.apeek: k.speek(S_PUB)
        if q >= 14:
            fill(force=order.index(q - 14)); a.wait(lg=f"f{q-14}")
        if not (cfg.x_nop2 and q >= 14): w2_dma(q)
        issued.add(q)
        if n == 0: shift_reads()
        elif n == 1: shift_writes()
        else: fill()
    stamp(12)
    if cfg.xprio: a("s_setprio 0")
    if cfg.hsplit: k.scheck(S_PUB, 0xff, 8)
    else: k.scheck(S_PUB, None, 0x800)
    stamp(13)
    NL = cfg.nl
    hs = [(i, tt) for i in range(28 - NL) for tt in range(2)] + [(i, tt) for tt in range(2) for i in range(28 - NL, 28)]
    def hload(n):
        i, tt = hs[n]; d = AR + 4*(n & 15); i = SG[i]
        if cfg.hsplit and n == 32 - cfg.bpeek: k.speek(S_PUB)
        if cfg.hsplit and n == 32: k.scheck(S_PUB, None, 0x808)
        off = f" offset:{1024*(i&3)}" if i & 3 else ""
        a.vmem(f"buffer_load_dwordx4 v[{d}:{d+3}], v{(HA, HB)[tt]}, s[{R_WS}:{R_WS+3}], {'s%d' % HO[i>>2] if i >= 4 else 0} offen{off} sc1", f"a{n}")
    def pwrites(tt):
        return ([("m0", 0)] + [f"ds_write_addtid_b32 v{ACC2+32*tt+r} offset:{(2*tt+(r>>3))*8192+(r&7)*256}" for r in range(16)] +
                [("m0", 32768)] + [f"ds_write_addtid_b32 v{ACC2+32*tt+16+r} offset:{(4*tt+(r>>2))*8192+(r&3)*256+16}" for r in range(16)])
    def pw(q):
        o = q.pop(0)
        if isinstance(o, tuple):
            a(f"s_add_u32 m0, s{S_B}, {o[1]}\ns_nop 0"); o = q.pop(0)
        a.lds(o)
    a.cap = None
    LA = 2*cfg.la
    for n in range(LA): hload(n)
    pend = []; w0 = pwrites(0); tail = 0
    for n, (i, tt) in enumerate(hs):
        ii = i % 14
        for dt in range(2):
            a.wait(vm=f"a{n}", lg=f"g{i}")
            d = ACC2 + 16*(2*tt+dt)
            a(f"v_mfma_f32_32x32x16_bf16 v[{d}:{d+15}], v[{AR+4*(n&15)}:{AR+4*(n&15)+3}], v[{WB+8*ii+4*dt}:{WB+8*ii+4*dt+3}], {'0' if i == 0 else v(d,16)}")
            if pend: a.lds(*pend.pop(0))
            if NL and n >= 56 - NL:
                tail += 1
                if tail == 1: a("s_nop 6")
                elif tail == 2: a("s_nop 1"); pw(w0); pw(w0)
                else:
                    for _ in range(3):
                        if w0: pw(w0)
        if n + LA < 56: hload(n + LA)
        if i < 14 and tt == 1: pend = trs(ii, f"g{i+14}")
    stamp(14)
    if not NL: a("s_nop 7")
    while w0: pw(w0)
    k.lds_arrive(6, T0, T1)
    a("s_nop 3")
    w1 = pwrites(1)
    while w1: pw(w1)
    k.lds_arrive(7, T0, T1)
    stamp(15)
    k.flush_stamps()
    a("s_endpgm")
    for o in k.ool: a(o)

def gen_m(k):
    a, cfg, stamp = k.a, k.cfg, k.stamp
    w = S_WV
    S_TH, S_FH = 98, 99
    V16, QA, WA = 1, 2, 6
    T0, T1, T2, T3 = 10, 11, 12, 13
    VCW, VCR = 14, 15
    ACC, CS, QF, WF, ONES, B1F, STT, CSP, WA2, VST, GR = 16, 72, 88, 120, 152, 156, 172, 180, 196, 200, 202
    CA, CB, AD, EXW, EXR, YST, VXO, VSA, VB2, YS0, YS1, YA0, YA1, PA0, PA1, DV, JUNK = 208, 209, 210, 214, 215, 216, 217, 218, 219, 220, 221, 222, 223, 224, 225, 226, 227
    XR, XF, B1R = 88, 96, 112
    LAM = -(2*1.4426950408889634*0.7978845608028654*0.044715) ** (1/3)
    MU = 2*1.4426950408889634*0.7978845608028654 / -LAM
    VKA, VKB, VHALO, VTA, PK, PH, PV, PST, TAPS = 236, 237, 238, 239, 240, 241, 242, 243, 244
    a(f"s_lshl_b32 s{S_U0}, s{S_R}, 7\ns_lshl3_add_u32 s{S_U0}, s{S_C}, s{S_U0}\ns_lshl1_add_u32 s{S_U0}, s{w}, s{S_U0}")
    a(f"s_lshl_b32 s{S_U1}, s{S_U0}, 10\ns_or_b32 s{S_U2}, s{S_J}, s{w}\ns_lshl_b32 s{S_T0}, s{w}, 1")
    a(f"v_xor_b32 v{T3}, s{S_T0}, v{T2}\nv_lshlrev_b32 v{T3}, 4, v{T3}\nv_lshl_add_u32 v{VKA}, v{T0}, 10, v{T3}")
    a(f"v_xor_b32 v{VKB}, 16, v{VKA}\nv_add_u32 v{VKB}, {8192-1024}, v{VKB}")
    a(f"s_lshl2_add_u32 s{S_U4}, s{S_J}, s{w}\ns_lshl_b32 s{S_U4}, s{S_U4}, 7\ns_add_u32 s{S_U4}, s{S_U4}, s{S_XCD}\ns_lshl_b32 s{S_U4}, s{S_U4}, 7")
    a(f"s_mov_b64 s[{R_K+2}:{R_K+3}], s[{R_Q+2}:{R_Q+3}]\ns_mov_b64 s[{R_V+2}:{R_V+3}], s[{R_Q+2}:{R_Q+3}]\ns_mov_b32 s{R_WS+2}, {WS_SIZE}\ns_mov_b32 s{R_WS+3}, s{R_Q+3}")
    for i in range(4): a(f"v_mov_b32 v{GR+i}, 0")
    a(f"v_and_b32 v{T3}, 16, v{V16}\nv_add_u32 v{T3}, {L_SYNC}, v{T3}\nds_write_b128 v{T3}, v[{GR}:{GR+3}]")
    a(f"s_add_u32 m0, s{S_B}, {L_KST+1024}")
    a("s_waitcnt lgkmcnt(0)")
    if cfg.wsoff: a(f"s_add_u32 s{P_WS}, s{P_WS}, {cfg.wsoff}\ns_addc_u32 s{P_WS+1}, s{P_WS+1}, 0")
    a(f"s_mov_b64 s[{R_Q}:{R_Q+1}], s[{P_Q}:{P_Q+1}]\ns_mov_b64 s[{R_K}:{R_K+1}], s[{P_K}:{P_K+1}]\ns_mov_b64 s[{R_V}:{R_V+1}], s[{P_V}:{P_V+1}]\ns_mov_b64 s[{R_WS}:{R_WS+1}], s[{P_WS}:{P_WS+1}]")
    LN = a.newlabel("Lnolead")
    a(f"s_cmp_lg_u32 s{S_U2}, 0\ns_cbranch_scc1 {LN}")
    a(f"v_min_u32 v{T3}, 47, v0\nv_lshlrev_b32 v{T3}, 8, v{T3}\ns_mul_i32 s{S_T0}, s2, {48*256}\ns_lshl_b32 s{S_T1}, s2, 11\ns_add_u32 s{S_T1}, s{S_T1}, {WS_STATS}")
    a(f"buffer_store_dwordx4 v[{GR}:{GR+3}], v{V16}, s[{R_WS}:{R_WS+3}], s{S_T1} offen sc1")
    a(f"buffer_store_dwordx4 v[{GR}:{GR+3}], v{V16}, s[{R_WS}:{R_WS+3}], s{S_T1} offen offset:1024 sc1")
    a(f"buffer_store_dword v{GR}, v{T3}, s[{R_WS}:{R_WS+3}], s{S_T0} offen sc1")
    a.label(LN)
    a.vmem(f"buffer_load_dwordx4 v[{XR}:{XR+3}], v{V16}, s[{R_Q}:{R_Q+3}], s{S_U1} offen {cfg.ntq}", "x")
    a.vmem(f"buffer_load_dwordx4 v[{XR+4}:{XR+7}], v{V16}, s[{R_Q}:{R_Q+3}], s{S_U1} offen offset:1024 {cfg.ntq}", "x")
    a.vmem(f"buffer_load_dwordx4 v{VKA}, s[{R_K}:{R_K+3}], s{S_U4} offen nt lds", "kv")
    a.vmem(f"buffer_load_dwordx4 v{VKB}, s[{R_K}:{R_K+3}], s{S_U4} offen offset:1024 nt lds", "kv")
    L = a.newlabel("Lnohalo")
    a(f"s_cmp_lg_u32 s{w}, 3\ns_cbranch_scc1 {L}")
    a(f"s_sub_u32 s{S_T0}, s{S_U4}, {56*1024}\ns_cselect_b32 s{S_T0}, 0, s{S_T0}\ns_cselect_b32 s{S_T1}, 0x80000010, 16")
    a(f"v_xor_b32 v{VHALO}, s{S_T1}, v{VKA}\ns_mov_b32 m0, {L_KST}\ns_lshl_b64 exec, -1, 40")
    a(f"buffer_load_dwordx4 v{VHALO}, s[{R_K}:{R_K+3}], s{S_T0} offen nt lds\ns_mov_b64 exec, -1")
    a.label(L)
    a(f"s_add_u32 m0, s{S_B}, {L_VST}\ns_lshl2_add_u32 s{S_T0}, s{S_XCD}, s{w}")
    a.vmem(f"buffer_load_dwordx4 v{VKA}, s[{R_V}:{R_V+3}], s{S_U4} offen nt lds", "kv")
    a.vmem(f"buffer_load_dwordx4 v{VKB}, s[{R_V}:{R_V+3}], s{S_U4} offen offset:1024 nt lds", "kv")
    a(f"s_lshl_b32 s{S_T0}, s{S_T0}, 7\nv_lshl_add_u32 v{VTA}, v{T0}, 4, s{S_T0}")
    a.vmem(f"global_load_dwordx4 v[{TAPS}:{TAPS+3}], v{VTA}, s[{P_SH}:{P_SH+1}]", "kv")
    a(f"s_lshr_b32 s{S_FH}, s{w}, 1")
    a(f"s_mul_i32 s{S_T0}, s{S_C}, 224\nv_lshl_add_u32 v{VCW}, v{T1}, 3, s{S_T0}")
    a(f"s_lshl_b32 s{S_T1}, s{S_FH}, 7\nv_add_u32 v{VCR}, s{S_T1}, v{VCW}")
    a(f"s_lshl_b32 s{S_T0}, s{S_XCD}, 6\ns_lshl1_add_u32 s{S_T0}, s{S_J}, s{S_T0}\ns_add_u32 s{S_T0}, s{S_T0}, s{S_FH}\ns_lshl_b32 s{S_T0}, s{S_T0}, 1\nv_mov_b32 v{DV}, s{S_T0}")
    for i in range(3): a.vmem(f"global_load_dwordx2 v[{B1R+2*i}:{B1R+2*i+1}], v{VCR}, s[{P_B1}:{P_B1+1}] offset:{32*i}", "b1")
    a.vmem(f"global_load_dwordx2 v[{B1R+6}:{B1R+7}], v{VCW}, s[{P_B1}:{P_B1+1}] offset:96", "b1")
    a.vmem(f"global_load_ushort v{DV}, v{DV}, s[{P_D}:{P_D+1}]", "b1")
    a("s_barrier")
    a("s_branch L_M2")
    k.split = len(a.lines)
    a(".p2align 6"); a.label("L_M2")
    stamp(0)
    g2_index(k)
    a(f"s_and_b32 s{S_TH}, s{w}, 1")
    a(f"v_xor_b32 v{T3}, 7, v{T2}\nv_lshlrev_b32 v{T3}, 4, v{T3}\nv_lshl_add_u32 v{PST}, v{T0}, 13, v{T3}")
    LN = a.newlabel("Lnolead")
    a(f"s_cmp_lg_u32 s{S_U2}, 0\ns_cbranch_scc1 {LN}")
    a(f"s_waitcnt vmcnt({len(a.vm)})\ns_lshl_b32 s{S_T0}, s2, 2\ns_mov_b32 s{S_ONE}, 1\ns_atomic_add s{S_ONE}, s[{P_DBG}:{P_DBG+1}], s{S_T0}")
    a.label(LN)
    srd(a, R_OUT, P_OUT, 2 << 20)
    a(f"v_and_b32 v{T2}, 15, v0\nv_lshrrev_b32 v{T3}, 1, v{T2}\nv_xor_b32 v{T3}, v{T3}, v{T1}\nv_lshlrev_b32 v{T3}, 4, v{T3}\nv_lshl_add_u32 v{T3}, v{T2}, 7, v{T3}")
    a(f"s_lshl_b32 s{S_T0}, s{S_TH}, 6\nv_xor_b32 v{T3}, s{S_T0}, v{T3}")
    a(f"s_lshl_b32 s{S_T0}, s{S_TH}, 13\ns_lshl_b32 s{S_T1}, s{S_FH}, 12\ns_add_u32 s{S_T0}, s{S_T0}, s{S_T1}")
    a(f"v_add_u32 v{QA}, s{S_T0}, v{T3}\nv_xor_b32 v{QA+1}, 4096, v{QA}\nv_xor_b32 v{QA+2}, 64, v{QA}\nv_xor_b32 v{QA+3}, 64, v{QA+1}")
    a(f"s_lshl_b32 s{S_T0}, s{S_FH}, 8\nv_lshl_add_u32 v{VST}, v{T2}, 3, s{S_T0}\nv_xor_b32 v{VST+1}, 256, v{VST}")
    a(f"v_bfe_u32 v{T2}, v0, 2, 3")
    a(f"v_bfe_u32 v{T3}, v0, 2, 2\nv_lshl_add_u32 v{T3}, v{T1}, 3, v{T3}\nv_lshlrev_b32 v{T3}, 8, v{T3}\nv_and_b32 v{T0}, 3, v0\nv_lshl_add_u32 v{T3}, v{T0}, 3, v{T3}")
    a(f"v_add_u32 v{T3}, {L_W}, v{T3}")
    a(f"s_and_b32 s{S_T0}, s{S_C}, 1\ns_lshl2_add_u32 s{S_T1}, s{S_FH}, s{S_T0}\ns_add_u32 s{S_T0}, s{S_T0}, 3")
    for i in range(4):
        if i == 3: a(f"v_xor_b32 v{T0}, s{S_T0}, v{T2}")
        else: a(f"v_xor_b32 v{T0}, s{S_T1}, v{T2}\ns_add_u32 s{S_T1}, s{S_T1}, 1")
        a(f"v_lshl_add_u32 v{WA+i}, v{T0}, 5, v{T3}")
    a(f"s_lshl_b32 s{S_T0}, s{S_TH}, 13\ns_xor_b32 s{S_T1}, s{S_T0}, 8192")
    for i in range(4): a(f"v_add_u32 v{WA2+i}, s{S_T1}, v{WA+i}\nv_add_u32 v{WA+i}, s{S_T0}, v{WA+i}")
    for i in range(4): a(f"v_mov_b32 v{ONES+i}, 0x3f803f80")
    a(f"s_lshl_b32 s{S_T0}, s{w}, 8\ns_add_u32 s{S_T0}, s{S_T0}, {L_CS}\nv_add_u32 v{VCW}, s{S_T0}, v0\nv_and_b32 v{VCR}, 48, v0")
    a(f"s_xor_b32 s{S_T0}, s{w}, 1\ns_lshl_b32 s{S_T0}, s{S_T0}, 8\ns_add_u32 s{S_T0}, s{S_T0}, {L_CS}\nv_add_u32 v{VCR}, s{S_T0}, v{VCR}")
    a(f"s_lshl_b32 s{S_U3}, s{S_R}, 10\ns_lshl_b32 s{S_T0}, s{S_TH}, 9\ns_add_u32 s{S_U3}, s{S_U3}, s{S_T0}\ns_add_u32 s{S_U3}, s{S_U3}, {WS_STATS}")
    a(f"s_mul_i32 s{S_T0}, s{S_FH}, {CH_STRIDE}\ns_lshl_b32 s{S_T1}, s{S_TH}, 8\ns_add_u32 s{S_T0}, s{S_T0}, s{S_T1}")
    a(f"s_add_u32 s{S_T1}, s{S_T0}, {L_CT+U_OFF+448}\ns_add_u32 s{S_T0}, s{S_T0}, {L_CT+128-56}")
    a(f"v_and_b32 v{T0}, 1, v0\nv_bfe_u32 v{T2}, v0, 1, 3")
    a(f"v_mul_u32_u24 v{CA}, {H_STRIDE}, v{T0}\nv_lshl_add_u32 v{CA}, v{T2}, 3, v{CA}\nv_lshl_add_u32 v{CA}, v{T1}, 4, v{CA}\nv_add_u32 v{CA}, s{S_T0}, v{CA}")
    a(f"v_mul_u32_u24 v{CB}, {U_STRIDE}, v{T0}\nv_lshl_add_u32 v{CB}, v{T1}, 4, v{CB}\nv_add_u32 v{CB}, s{S_T1}, v{CB}\nv_lshlrev_b32 v{T3}, 6, v{T2}\nv_sub_u32 v{CB}, v{CB}, v{T3}")
    a(f"v_xor_b32 v{AD+1}, 1, v{T0}\nv_lshlrev_b32 v{AD+1}, 4, v{AD+1}")
    a(f"v_lshlrev_b32 v{AD+3}, 1, v{T2}\nv_lshl_add_u32 v{AD+3}, v{T1}, 2, v{AD+3}")
    a(f"s_lshl_b32 s{S_T0}, s{w}, 13\ns_add_u32 s{S_T0}, s{S_T0}, {L_CT}\nv_add_u32 v{EXW}, s{S_T0}, v{V16}")
    a(f"s_add_u32 s{S_T0}, s{S_B}, {L_CT}\nv_add_u32 v{EXR}, s{S_T0}, v{V16}")
    a(f"v_bfe_u32 v{T0}, v0, 2, 2\nv_and_b32 v{T3}, 3, v0\nv_lshlrev_b32 v{T0}, 8, v{T0}\nv_lshl_add_u32 v{T0}, v{T1}, 6, v{T0}\nv_lshl_add_u32 v{YST}, v{T3}, 4, v{T0}")
    a(f"s_lshl_b32 s{S_T0}, s{S_XCD}, 5\ns_add_u32 s{S_T0}, s{S_T0}, s{S_J}\ns_lshl_b32 s{S_T0}, s{S_T0}, 13\ns_add_u32 s{S_T0}, s{S_T0}, s{S_B}\ns_add_u32 s{S_T0}, s{S_T0}, {WS_Y}\nv_add_u32 v{YST}, s{S_T0}, v{YST}")
    a(f"s_lshl_b32 s{S_T1}, s{w}, 1\nv_and_b32 v{T0}, 15, v0\nv_xor_b32 v{T0}, s{S_T1}, v{T0}\nv_lshlrev_b32 v{T0}, 4, v{T0}\nv_lshl_add_u32 v{YS0}, v{T1}, 13, v{T0}\nv_xor_b32 v{YS1}, 16, v{YS0}")
    a(f"s_lshl_b32 s{S_T1}, s{S_C2}, 18\ns_lshl_b32 s{S_T2}, s{S_R2}, 8\ns_add_u32 s{S_T1}, s{S_T1}, s{S_T2}\ns_lshl_b32 s{S_T2}, s{w}, 16\ns_add_u32 s{S_T1}, s{S_T1}, s{S_T2}\ns_add_u32 s{S_T1}, s{S_T1}, {WS_Y}")
    a(f"s_add_u32 s{S_T2}, s{S_T1}, {4*8192-1024}\nv_add_u32 v{YS0}, s{S_T1}, v{YS0}\nv_add_u32 v{YS1}, s{S_T2}, v{YS1}")
    RHO, OCT, TOFF = ACC, ACC+1, ACC+2
    a(f"v_lshrrev_b32 v{RHO}, 3, v0\nv_and_b32 v{OCT}, 7, v0")
    a(f"v_and_b32 v{TOFF}, 1, v{RHO}\nv_bfe_u32 v{T0}, v{RHO}, 1, 1\nv_lshl_add_u32 v{TOFF}, v{T0}, 2, v{TOFF}\nv_lshrrev_b32 v{T2}, 2, v{RHO}\nv_lshl_add_u32 v{TOFF}, v{T2}, 1, v{TOFF}")
    a(f"s_lshl_b32 s{S_T1}, s{S_R2}, 6\ns_lshl3_add_u32 s{S_T1}, s{w}, s{S_T1}\nv_add_u32 v{T3}, s{S_T1}, v{TOFF}")
    a(f"s_lshl_b32 s{S_T2}, s{S_C2}, 7\nv_lshl_add_u32 v{VB2}, v{OCT}, 4, s{S_T2}\nv_lshl_add_u32 v{VXO}, v{T3}, 10, v{VB2}\nv_lshlrev_b32 v{VSA}, 3, v{T3}\nv_add_u32 v{VSA}, {WS_STATS}, v{VSA}")
    a(f"s_lshl_b32 s{S_T0}, s{w}, 2\ns_or_b32 s{S_T0}, s{S_T0}, 1\nv_xor_b32 v{T0}, s{S_T0}, v{T2}\nv_xor_b32 v{T0}, v{T0}, v{OCT}\nv_lshlrev_b32 v{T0}, 4, v{T0}")
    a(f"v_lshl_add_u32 v{T0}, v{OCT}, 10, v{T0}\nv_and_b32 v{T2}, 3, v{RHO}\nv_lshl_add_u32 v{T0}, v{T2}, 2, v{T0}")
    a(f"v_xor_b32 v{YA1}, 32, v{T0}\nv_add_u32 v{YA0}, {L_YST}, v{T0}\nv_add_u32 v{YA1}, {L_YST}, v{YA1}")
    a(f"v_and_b32 v{T0}, 3, v{TOFF}\nv_lshlrev_b32 v{T0}, 8, v{T0}\nv_lshrrev_b32 v{T2}, 2, v{TOFF}\nv_lshl_add_u32 v{T0}, v{T2}, 7, v{T0}\nv_and_b32 v{T2}, 3, v{OCT}\nv_lshl_add_u32 v{T0}, v{T2}, 5, v{T0}")
    a(f"s_lshl_b32 s{S_T0}, s{S_FH}, 13\ns_lshl_b32 s{S_T1}, s{S_TH}, 10\ns_add_u32 s{S_T0}, s{S_T0}, s{S_T1}")
    a(f"s_lshl_b32 s{S_T1}, s{w}, 13\ns_add_u32 s{S_T1}, s{S_T1}, {4*8192+16}")
    a(f"v_mov_b32 v{PA0}, s{S_T0}\nv_mov_b32 v{T2}, s{S_T1}\nv_cmp_lt_u32 vcc, 3, v{OCT}\nv_mov_b32 v{T3}, 16384\nv_mov_b32 v{PA1}, 32768")
    a(f"v_cndmask_b32 v{PA0}, v{PA0}, v{T2}, vcc\nv_cndmask_b32 v{T3}, v{T3}, v{PA1}, vcc\nv_add_u32 v{PA0}, v{T0}, v{PA0}\nv_add_u32 v{PA1}, v{PA0}, v{T3}")
    a(f"s_lshl_b32 s{S_T0}, s{w}, 1\nv_lshrrev_b32 v{PV}, 5, v0\nv_add_u32 v{PV}, s{S_T0}, v{PV}")
    a(f"v_bfe_u32 v{T2}, v0, 3, 2\nv_lshlrev_b32 v{T2}, 2, v{T2}\nv_lshl_add_u32 v{T2}, v{OCT}, 10, v{T2}")
    a(f"v_add_u32 v{T3}, 7, v{OCT}\nv_and_b32 v{T3}, 7, v{T3}\nv_xor_b32 v{T3}, v{PV}, v{T3}\nv_lshl_add_u32 v{PH}, v{T3}, 4, v{T2}\nv_add_u32 v{PH}, {L_KST}, v{PH}")
    a(f"v_xor_b32 v{T3}, v{PV}, v{OCT}\nv_lshl_add_u32 v{PK}, v{T3}, 4, v{T2}")
    a(f"v_add_u32 v{PV}, {L_VST}, v{PK}\nv_add_u32 v{PK}, {L_KST+1024}, v{PK}")
    a.wait(vm="x")
    for n in range(2):
        for m in range(4):
            a(f"v_lshlrev_b32 v{XF+8*n+2*m}, 16, v{XR+4*n+m}\nv_and_b32 v{XF+8*n+2*m+1}, 0xffff0000, v{XR+4*n+m}")
    SM = XR
    def reduce2():
        for dpp in ("row_shr:1 row_mask:0xf bank_mask:0xf bound_ctrl:0", "row_shr:2 row_mask:0xf bank_mask:0xf bound_ctrl:0", "row_shr:4 row_mask:0xf bank_mask:0xf bound_ctrl:0",
                    "row_shr:8 row_mask:0xf bank_mask:0xf bound_ctrl:0", "row_bcast:15 row_mask:0xa bank_mask:0xf", "row_bcast:31 row_mask:0xc bank_mask:0xf"):
            a("s_nop 0")
            for n in range(2): a(f"v_add_f32_dpp v{SM+n}, v{SM+n}, v{SM+n} {dpp}")
    for n in range(2): a(f"v_add_f32 v{SM+n}, v{XF+8*n}, v{XF+8*n+1}")
    for m in range(2, 8):
        for n in range(2): a(f"v_add_f32 v{SM+n}, v{SM+n}, v{XF+8*n+m}")
    reduce2()
    for n in range(2): a(f"v_mul_f32 v{SM+2+n}, {f32(1/512)}, v{SM+n}")
    a(f"v_readlane_b32 s{S_T0}, v{SM+2}, 63\nv_readlane_b32 s{S_T1}, v{SM+3}, 63\ns_nop 0")
    for n in range(2):
        for m in range(8): a(f"v_subrev_f32 v{XF+8*n+m}, s{S_T0+n}, v{XF+8*n+m}")
    for n in range(2): a(f"v_mul_f32 v{SM+n}, v{XF+8*n}, v{XF+8*n}")
    for m in range(1, 8):
        for n in range(2): a(f"v_fmac_f32 v{SM+n}, v{XF+8*n+m}, v{XF+8*n+m}")
    reduce2()
    a(f"v_mov_b32 v{T1}, {f32(1e-5)}")
    for n in range(2): a(f"v_fmamk_f32 v{SM+n}, v{SM+n}, {f32(1/512)}, v{T1}")
    for n in range(2): a(f"v_rsq_f32 v{SM+n}, v{SM+n}")
    for n in range(2): a(f"v_or_b32 v{GR+2*n}, 1, v{SM+2+n}")
    for n in range(2): a(f"v_or_b32 v{GR+2*n+1}, 1, v{SM+n}")
    a(f"s_lshl_b32 s{S_U0}, s{S_U0}, 3\ns_add_u32 s{S_U0}, s{S_U0}, {WS_STATS}")
    stamp(14)
    KR, VR, KF, TF, VF, OUT, PA = 16, 28, 36, 60, 68, 228, 128
    def urstore(e): a.vmem(f"buffer_store_dwordx4 v[{OUT+4*e}:{OUT+4*e+3}], v{PST}, s[{R_WS}:{R_WS+3}], s{(S_U4, S_U5)[e]} offen sc1", "ur")
    a.wait(vm="kv")
    k.lds_arrive(5, T0, T1)
    for m in range(4): a(f"v_lshlrev_b32 v{TF+4*(m&1)+(m>>1)}, 16, v{TAPS+m}\nv_and_b32 v{TF+4*(m&1)+2+(m>>1)}, 0xffff0000, v{TAPS+m}")
    a(f"s_lshl_b32 s{S_T2}, s{S_XCD}, 18\ns_lshl_b32 s{S_T3}, s{w}, 16\ns_add_u32 s{S_T2}, s{S_T2}, s{S_T3}")
    a(f"s_lshl_b32 s{S_T3}, s{S_J}, 7\ns_sub_u32 s{S_T2}, s{S_T2}, s{S_T3}\ns_add_u32 s{S_U4}, s{S_T2}, {WS_UR + 2*1984}\ns_add_u32 s{S_U5}, s{S_U4}, 4096")
    k.lds_wait(5, T0, T1, setaddr=False)
    stamp(15)
    a.lds(f"ds_read_b32 v{KR+1}, v{PH} offset:{5*128}", "k")
    a.lds(f"ds_read2_b32 v[{KR+2}:{KR+3}], v{PH} offset0:{6*32} offset1:{7*32}", "k")
    for i in range(4): a.lds(f"ds_read2_b32 v[{KR+4+2*i}:{KR+5+2*i}], v{PK} offset0:{64*i} offset1:{64*i+32}", "k")
    for i in range(4): a.lds(f"ds_read2_b32 v[{VR+2*i}:{VR+1+2*i}], v{PV} offset0:{64*i} offset1:{64*i+32}", "v")
    a.wait(lg="k")
    for i in range(1, 12): a(f"v_lshlrev_b32 v{KF+2*i}, 16, v{KR+i}\nv_and_b32 v{KF+2*i+1}, 0xffff0000, v{KR+i}")
    a.wait(lg="v")
    for t in range(8): a(f"v_lshlrev_b32 v{VF+2*t}, 16, v{VR+t}\nv_and_b32 v{VF+2*t+1}, 0xffff0000, v{VR+t}")
    a(".p2align 3")
    for t in range(8): a(f"v_pk_mul_f32 v[{PA+2*t}:{PA+2*t+1}], v[{KF+2*(1+t)}:{KF+2*(1+t)+1}], v[{TF+6}:{TF+7}]")
    for tau in (2, 1, 0):
        for t in range(8): a(f"v_pk_fma_f32 v[{PA+2*t}:{PA+2*t+1}], v[{KF+2*(4+t-tau)}:{KF+2*(4+t-tau)+1}], v[{TF+2*tau}:{TF+2*tau+1}], v[{PA+2*t}:{PA+2*t+1}]")
    for t in range(8): a(f"v_pk_mul_f32 v[{PA+2*t}:{PA+2*t+1}], v[{PA+2*t}:{PA+2*t+1}], v[{VF+2*t}:{VF+2*t+1}]")
    for e in range(2):
        for m in range(4): a(f"v_cvt_pk_bf16_f32 v{OUT+4*e+m}, v{PA+2*(7-2*m)+e}, v{PA+2*(6-2*m)+e}")
        if cfg.urst < 0: urstore(e)
    a.wait(vm="b1")
    for i in range(8): a(f"v_lshlrev_b32 v{B1F+2*i}, 16, v{B1R+i}\nv_and_b32 v{B1F+2*i+1}, 0xffff0000, v{B1R+i}")
    for i in range(16): a(f"v_mul_f32 v{B1F+i}, {f32(LAM)}, v{B1F+i}")
    a(f"v_lshlrev_b32 v{DV}, v{AD+1}, v{DV}\ns_sub_u32 s{S_T2}, s{S_TH}, 1\nv_and_b32 v{DV}, s{S_T2}, v{DV}")
    a(f"v_cmp_eq_u32 vcc, 14, v{AD+3}\nv_mov_b32 v{AD+1}, 0\ns_nop 0\nv_cndmask_b32 v{AD}, 0, v{DV}, vcc")
    a(f"v_cmp_eq_u32 vcc, 12, v{AD+3}\nv_mov_b32 v{AD+3}, 0\ns_nop 0\nv_cndmask_b32 v{AD+2}, 0, v{DV}, vcc")
    S_H0, S_H1, S_H2, S_YP, S_YC = R_X0, R_X0+1, R_X0+2, R_X0+3, 17
    a(f"s_lshl_b32 s{S_T0}, s{S_R}, 2\ns_lshl1_add_u32 s{S_T0}, s{S_TH}, s{S_T0}\ns_add_u32 s{S_T0}, s{S_T0}, s{S_FH}\ns_xor_b32 s{S_T1}, s{S_T0}, 1")
    a(f"s_mul_i32 s{S_T0}, s{S_T0}, {112*1024}\ns_mul_i32 s{S_T1}, s{S_T1}, {112*1024}\ns_mul_i32 s{S_T2}, s{S_C}, {7*1024}\ns_add_u32 s{S_T2}, s{S_T2}, {WS_H}")
    a(f"s_add_u32 s{S_H2}, s{S_T0}, s{S_T2}\ns_lshl_b32 s{S_T3}, s{S_FH}, 12\ns_add_u32 s{S_H0}, s{S_H2}, s{S_T3}\ns_add_u32 s{S_H1}, s{S_T1}, s{S_T2}\ns_add_u32 s{S_H1}, s{S_H1}, s{S_T3}")
    a(f"s_lshl1_add_u32 s{S_T0}, s{S_R}, s{S_TH}\ns_lshr_b32 s{S_T1}, s{S_C}, 2\ns_lshl2_add_u32 s{S_T0}, s{S_T0}, s{S_T1}\ns_add_u32 s{S_T0}, s{S_T0}, {CNT_H}\ns_lshl_b32 s{S_PUB}, s{S_T0}, 8")
    a(f"s_lshl2_add_u32 s{S_T0}, s{S_XCD}, s{w}\ns_lshr_b32 s{S_T1}, s{S_J}, 3\ns_lshl2_add_u32 s{S_T0}, s{S_T0}, s{S_T1}\ns_add_u32 s{S_T0}, s{S_T0}, {CNT_Y}\ns_lshl_b32 s{S_YP}, s{S_T0}, 8")
    a(f"s_lshr_b32 s{S_T0}, s{S_R2}, 3\ns_lshl2_add_u32 s{S_T0}, s{S_C2}, s{S_T0}\ns_lshl2_add_u32 s{S_T0}, s{S_T0}, s{w}\ns_add_u32 s{S_T0}, s{S_T0}, {CNT_Y}\ns_lshl_b32 s{S_YC}, s{S_T0}, 8")
    KC = T2
    a(f"v_mov_b32 v{KC}, {f32(MU)}\nv_mov_b32 v{KC+1}, {f32(LAM)}\ns_mov_b32 s{S_U1}, 32768")
    def publish():
        a(f"s_mov_b32 exec_lo, 0\ns_mov_b32 exec_hi, 0x80000000")
        a.vmem(f"buffer_store_dwordx4 v[{GR}:{GR+3}], off, s[{R_WS}:{R_WS+3}], s{S_U0} sc1", "pub")
        a(f"s_mov_b64 exec, -1")
    def stats_loads():
        for tau in range(4):
            off = " offset:128" if tau & 1 else ""
            a(f"buffer_load_dwordx2 v[{STT+2*tau}:{STT+2*tau+1}], v{VST+(tau>>1)}, s[{R_WS}:{R_WS+3}], s{S_U3} offen{off} sc1")
    a.wait(lg="all")
    stamp(1)
    def rd(i, ks):
        slot = (i % 3) * 16384; b = 16*ks; wa = (WA, WA2)[ks]
        def W(n): return [(f"ds_read_b64_tr_b16 v[{WF+b+4*n+2*h}:{WF+b+4*n+2*h+1}], v{wa+n} offset:{slot+1024*h}", f"W{i}{ks}{n}") for h in range(2)]
        def Q(t): return [(f"ds_read_b128 v[{QF+b+4*t}:{QF+b+4*t+3}], v{QA+2*ks+(t>>1)} offset:{slot+2048*(t&1)}", f"Q{i}{ks}{t}")]
        if cfg.x_nolds: return []
        return W(0) + Q(0) + Q(1) + Q(2) + Q(3) + W(1) + W(2) + W(3)
    def mm(i, ks, n, t):
        b = 16*ks
        if t == "cs":
            d = CS + 4*n; B = ONES; first = (i == 0); tags = [f"W{i}{ks}{n}"]
        else:
            d = ACC + 4*(4*n+t); B = QF+b+4*t; first = (i == 0 and ks == 0); tags = [f"W{i}{ks}{n}", f"Q{i}{ks}{t}"]
            if cfg.coarse and n == 0 and t == 0 and (i, ks) != (0, 0): tags.append(f"Q{i}{ks}3")
        a.wait(lg=tags)
        if cfg.x_nomfma: return
        a(f"v_mfma_f32_16x16x32_bf16 v[{d}:{d+3}], v[{WF+b+4*n}:{WF+b+4*n+3}], v[{B}:{B+3}], {'0' if first else v(d,4)}")
    base = [(n, t) for n in range(3) for t in range(4)] + [(3, 0), (3, 1)]
    withcs = base[:4] + [(0, "cs")] + base[4:8] + [(1, "cs")] + base[8:12] + [(2, "cs")] + [(3, "cs")] + base[12:]
    a("s_barrier")
    stamp(2)
    for ins, tag in rd(0, 0): a.lds(ins, tag)
    VSY = JUNK
    a(f"v_mov_b32 v{VSY}, {L_SYNC}")
    def stats_check():
        L = a.newlabel("Lst"); B = a.newlabel("Lstb")
        chk = (f"v_min3_u32 v{T0}, v{STT}, v{STT+1}, v{STT+2}\nv_min3_u32 v{T1}, v{STT+3}, v{STT+4}, v{STT+5}", f"v_min3_u32 v{T0}, v{T0}, v{STT+6}, v{STT+7}\nv_min_u32 v{T0}, v{T0}, v{T1}", f"v_cmp_eq_u32 vcc, 0, v{T0}")
        n0 = len(a.lines); stats_loads(); ld = "\n".join(a.lines[n0:]); del a.lines[n0:]
        k.ool.append(f"{L}:\n{ld}\ns_add_u32 s{S_SPIN}, s{S_SPIN}, 1\ns_waitcnt vmcnt(0)\n" + "\n".join(chk) + f"\ns_cmp_gt_u32 s{S_SPIN}, {SPIN_MAX}\ns_cbranch_scc1 {B}\ns_cbranch_vccnz {L}\ns_branch {B}")
        return (["s_waitcnt vmcnt(0)\n" + chk[0], chk[1], chk[2] + f"\ns_mov_b32 s{S_SPIN}, 0\ns_cbranch_vccnz {L}\n{B}:"] +
                [f"v_mul_f32 v{STT+4*q+1}, v{KC+1}, v{STT+4*q+1}\nv_mul_f32 v{STT+4*q+3}, v{KC+1}, v{STT+4*q+3}" for q in range(2)] +
                [f"v_mul_f32 v{STT+4*q}, v{STT+4*q}, v{STT+4*q+1}\nv_mul_f32 v{STT+4*q+2}, v{STT+4*q+2}, v{STT+4*q+3}" for q in range(2)])
    for i in range(8):
        pend = rd(i, 1)
        lastA = base[:4] + [(n, "cs") for n in range(4)] + base[4:]
        for q, (n, t) in enumerate(base if i < 7 else lastA):
            mm(i, 0, n, t)
            if pend: a.lds(*pend.pop(0))
            elif i == 7 and q < 16:
                a(f"s_mov_b64 exec, s[{S_T2}:{S_T3}]")
                a.lds(f"ds_write_b128 v{VCW}, v[{CS+4*(q-12)}:{CS+4*(q-12)+3}] offset:{64*(q-12)}")
                a("s_mov_b64 exec, -1")
            elif i == 7 and q == 16:
                a(f"v_mov_b32 v{T1}, 1\ns_mov_b64 exec, 1"); a.lds(f"ds_add_u32 v{VSY}, v{T1} offset:16"); a("s_mov_b64 exec, -1")
        if i < 7:
            pend = rd(i+1, 0)
            for q, (n, t) in enumerate(withcs):
                mm(i, 1, n, t)
                if q == cfg.bq:
                    a.wait(lg="all")
                    a("s_barrier")
                    if i == cfg.urseg:
                        a.wait(vm="ur"); a(f"s_sub_u32 s{S_T0}, s{S_YP}, {CNT_Y*256}"); k.signal(S_T0)
                    if i == cfg.urst: urstore(0); urstore(1)
                    if i == cfg.markseg: publish()
                    if i == cfg.stseg: stats_loads()
                    if i == 6: a(f"s_mov_b32 s{S_T2}, 0x00010001\ns_mov_b32 s{S_T3}, s{S_T2}")
                if q >= cfg.bq + (0 if cfg.rdnow else 1) and pend: a.lds(*pend.pop(0))
        else:
            side = stats_check()
            pend = [(f"ds_read_b128 v[{CSP+4*n2}:{CSP+4*n2+3}], v{VCR} offset:{64*n2}", "csp") for n2 in range(4)]
            for q, (n, t) in enumerate(base):
                mm(i, 1, n, t)
                if q == 2: k.lds_peek(4, VSY, GR, "pk4")
                if q == 7: k.lds_check(4, VSY, GR, "pk4")
                if q >= 7 and pend: a.lds(*pend.pop(0))
                if side and q != 7: a(side.pop(0))
        assert not pend
    a.vm = []
    stamp(3)
    a.wait(lg="all")
    a(".p2align 3")
    for m in range(0, 16, 2): a(f"v_pk_add_f32 v[{CS+m}:{CS+m+1}], v[{CS+m}:{CS+m+1}], v[{CSP+m}:{CSP+m+1}]")
    CACC, FAB = 16, ((88, 120), (48, 152))
    def reads(cc):
        FA, FB = FAB[cc & 1]; r = []
        for n in range(8):
            r.append((f"ds_read_b128 v[{FB+4*n}:{FB+4*n+3}], v{CB} offset:{3584-512*n+64*cc}", f"B{cc}_{n}"))
            for hf in range(2): r.append((f"ds_read_b64 v[{FA+4*n+2*hf}:{FA+4*n+2*hf+1}], v{CA} offset:{512*n+64*cc+8*hf}", f"A{cc}_{n}"))
        return r
    pend = reads(0)
    units = [(n, p) for n in range(3) for p in range(2)] + [(3, 0)]
    for u, (n, p) in enumerate(units):
        E = 176 + 4 + 8*(u & 1); O = 228 + 4*(u & 1)
        prs = [(ACC + 4*(4*n+2*p+tl) + 2*hh, 2*p+tl, 2*hh, E + 4*tl + 2*hh) for tl in range(2) for hh in range(2)]
        for z, tau, hh, e in prs: a(f"v_pk_fma_f32 v[{e}:{e+1}], v[{CS+4*n+hh}:{CS+4*n+hh+1}], v[{STT+2*tau}:{STT+2*tau+1}], v[{B1F+4*n+hh}:{B1F+4*n+hh+1}] op_sel_hi:[1,0,1] neg_lo:[0,1,0] neg_hi:[0,1,0]")
        for z, tau, hh, e in prs: a(f"v_pk_fma_f32 v[{z}:{z+1}], v[{z}:{z+1}], v[{STT+2*tau}:{STT+2*tau+1}], v[{e}:{e+1}] op_sel:[0,1,0]")
        for z, tau, hh, e in prs: a(f"v_pk_fma_f32 v[{e}:{e+1}], v[{z}:{z+1}], v[{z}:{z+1}], v[{KC}:{KC+1}] op_sel_hi:[1,1,0]")
        for z, tau, hh, e in prs: a(f"v_pk_mul_f32 v[{e}:{e+1}], v[{e}:{e+1}], v[{z}:{z+1}]")
        if u == 6: k.lds_peek(0, VSY, GR, "pk0")
        for m in range(8): a(f"v_exp_f32 v{E+m}, v{E+m}")
        for z, tau, hh, e in prs: a(f"v_pk_fma_f32 v[{e}:{e+1}], v[{e}:{e+1}], v[{KC}:{KC+1}], v[{KC}:{KC+1}] op_sel:[0,1,1]")
        if u == 6 and cfg.earlyrd: k.lds_check(0, VSY, GR, "pk0")
        for m in range(8):
            a(f"v_rcp_f32 v{E+m}, v{E+m}")
            if u == 6 and cfg.earlyrd: a.lds(*pend.pop(0))
        for z, tau, hh, e in prs: a(f"v_pk_mul_f32 v[{z}:{z+1}], v[{z}:{z+1}], v[{e}:{e+1}]")
        for q in (0, 2, 1, 3): a(f"v_cvt_pk_bf16_f32 v{O+q}, v{prs[q][0]}, v{prs[q][0]+1}")
        a(f"v_permlane16_swap_b32 v{O}, v{O+2}\n{'s_setprio 3' if cfg.xprio else 's_nop 0'}\nv_permlane16_swap_b32 v{O+1}, v{O+3}\ns_nop 0")
        so = S_H2 if n == 3 else (S_H0, S_H1)[p]
        if not cfg.x_nohst or u == 6: a.vmem(f"buffer_store_dwordx4 v[{O}:{O+3}], v{V16}, s[{R_WS}:{R_WS+3}], s{so} offen offset:{1024*n} sc1", "h" if u > 3 else "ha")
        if cfg.xprio: a("s_setprio 0\ns_nop 0")
    stamp(5)
    if not cfg.earlyrd: k.lds_check(0, VSY, GR, "pk0")
    stamp(6)
    while len(pend) > 15: a.lds(*pend.pop(0))
    cnt = [0]
    def tick():
        if cfg.hsplit and cnt[0] == cfg.asigpos: a.wait(vm="ha"); k.signal(S_PUB, 1)
        if cnt[0] == cfg.hsigpos: a.wait(vm="h"); k.signal(S_PUB, 0x100)
        cnt[0] += 1
    tick()
    wq = []
    for cc in range(4):
        FA, FB = FAB[cc & 1]
        nxt = reads(cc+1) if cc < 3 else []
        for T in range(8):
            for an in ([-1] if cc == 0 else []) + list(range(T+1)):
                d = CACC + 4*T
                if an < 0:
                    a.wait(lg=f"B0_{T}")
                    a(f"v_mfma_f32_16x16x32_bf16 v[{d}:{d+3}], v[{AD}:{AD+3}], v[{FB+4*T}:{FB+4*T+3}], 0")
                else:
                    e = T - an
                    a.wait(lg=[f"A{cc}_{an}", f"B{cc}_{e}"])
                    a(f"v_mfma_f32_16x16x32_bf16 v[{d}:{d+3}], v[{FA+4*an}:{FA+4*an+3}], v[{FB+4*e}:{FB+4*e+3}], v[{d}:{d+3}]")
                if pend: a.lds(*pend.pop(0))
                elif nxt:
                    a.lds(*nxt.pop(0))
                    if cc == 2 and not nxt:
                        a(f"v_mov_b32 v{T1}, 1\ns_mov_b64 exec, 1"); a.lds(f"ds_add_u32 v{VSY}, v{T1} offset:4"); a("s_mov_b64 exec, -1")
                tick()
                if cc == 3:
                    if (T, an) == (1, 0): k.lds_peek(1, VSY, T0, "pk1")
                    if (T, an) == (3, 2): k.lds_check(1, VSY, T0, "pk1")
                    if an == T: wq.append((cnt[0] + 8, T))
                    if wq and wq[0][0] <= cnt[0] and (T, an) > (3, 2):
                        T2_ = wq.pop(0)[1]
                        a.lds(f"ds_write_b128 v{EXW}, v[{CACC+4*T2_}:{CACC+4*T2_+3}] offset:{1024*T2_}")
        assert not pend and not nxt
    stamp(7)
    assert [t for _, t in wq] == [7]
    a("s_nop 6")
    a.lds(f"ds_write_b128 v{EXW}, v[{CACC+28}:{CACC+31}] offset:{1024*7}")
    a(f"s_mov_b64 exec, 1"); a.lds(f"ds_add_u32 v{VSY}, v{T1} offset:8"); a("s_mov_b64 exec, -1")
    k.lds_wait(2, VSY, T0, setaddr=False)
    FA = 48
    for tt in range(2):
        for src in range(4):
            a.lds(f"ds_read_b128 v[{FA+16*tt+4*src}:{FA+16*tt+4*src+3}], v{EXR} offset:{8192*src+1024*tt}", f"e{tt}")
    for tt in range(2):
        a.wait(lg=f"e{tt}")
        b = FA + 16*tt
        for r in range(4): a(f"v_add_f32 v{b+r}, v{b+r}, v{b+4+r}\nv_add_f32 v{b+8+r}, v{b+8+r}, v{b+12+r}")
        for r in range(4): a(f"v_cvt_pk_bf16_f32 v{b+4+r}, v{b+r}, v{b+8+r}")
        a.vmem(f"buffer_store_dwordx4 v[{b+4}:{b+7}], v{YST}, s[{R_WS}:{R_WS+3}], 0 offen{' offset:1024' if tt else ''} sc1", "y")
    stamp(8)
    XR2, ST2, B2R = 16, 24, 28
    a.vmem(f"buffer_load_dwordx4 v[{XR2}:{XR2+3}], v{VXO}, s[{R_Q}:{R_Q+3}], 0 offen", "x")
    a.vmem(f"buffer_load_dwordx4 v[{XR2+4}:{XR2+7}], v{VXO}, s[{R_Q}:{R_Q+3}], s{S_U1} offen", "x")
    a.vmem(f"buffer_load_dwordx2 v[{ST2}:{ST2+1}], v{VSA}, s[{R_WS}:{R_WS+3}], 0 offen sc1", "x")
    a.vmem(f"buffer_load_dwordx2 v[{ST2+2}:{ST2+3}], v{VSA}, s[{R_WS}:{R_WS+3}], 0 offen offset:256 sc1", "x")
    a.vmem(f"global_load_dwordx4 v[{B2R}:{B2R+3}], v{VB2}, s[{P_B2}:{P_B2+1}]", "x")
    a(f"s_add_u32 m0, s{S_B}, {L_YST}")
    a.wait(vm="y")
    k.signal(S_YP)
    a.wait(vm="x")
    XF2, PP, B2F, YR = 80, 96, 32, 40
    for n in range(2):
        for m in range(4): a(f"v_lshlrev_b32 v{XF2+8*n+2*m}, 16, v{XR2+4*n+m}\nv_and_b32 v{XF2+8*n+2*m+1}, 0xffff0000, v{XR2+4*n+m}")
        for m in range(8): a(f"v_sub_f32 v{PP+8*n+m}, v{XF2+8*n+m}, v{ST2+2*n}")
        for m in range(8): a(f"v_mul_f32 v{PP+8*n+m}, v{PP+8*n+m}, v{ST2+2*n+1}")
    for m in range(4): a(f"v_lshlrev_b32 v{B2F+2*m}, 16, v{B2R+m}\nv_and_b32 v{B2F+2*m+1}, 0xffff0000, v{B2R+m}")
    stamp(9)
    k.spoll(S_YC, 8)
    stamp(10)
    a.vmem(f"buffer_load_dwordx4 v{YS0}, s[{R_WS}:{R_WS+3}], 0 offen sc1 lds", "ys")
    a.vmem(f"buffer_load_dwordx4 v{YS1}, s[{R_WS}:{R_WS+3}], 0 offen offset:1024 sc1 lds", "ys")
    a(f"v_mov_b32 v{T2}, {f32(-1.4426950408889634)}")
    RD, EE = 112, 176
    S_ARR, S_YRD = S_U2, S_U3
    def pk(op, d, x0, x1, x2=None, mod=""): a(f"{op} v[{d}:{d+1}], {x0}, {x1}" + (f", {x2}" if x2 else "") + mod)
    def preads(n):
        for kq in range(4):
            for e in range(2):
                a.lds(f"ds_read_b128 v[{RD+32*n+8*kq+4*e}:{RD+32*n+8*kq+4*e+3}], v{(PA0, PA1)[n]} offset:{2048*kq+16*e}", f"p{n}_{kq}")
    yrd = "\n".join(f"ds_read2st64_b32 v[{YR+4*n+2*q}:{YR+4*n+2*q+1}], v{ya} offset0:{2*q} offset1:{2*q+1}" for n, ya in enumerate((YA0, YA1)) for q in range(2))
    arr3 = f"s_waitcnt vmcnt(0)\ns_mov_b64 exec, 1\nds_add_u32 v{VSY}, v{T1} offset:12\ns_mov_b64 exec, -1\ns_mov_b32 s{S_ARR}, 1"
    L = a.newlabel("Lf"); N = a.newlabel("Lfn"); D = a.newlabel("Lfd")
    a(f"s_mov_b32 s{S_ARR}, 0\ns_mov_b32 s{S_SPIN}, 0")
    a.label(L)
    a(f"s_getreg_b32 s{S_T0}, hwreg(HW_REG_IB_STS, 0, 4)\ns_or_b32 s{S_T0}, s{S_T0}, s{S_ARR}\ns_cbranch_scc1 {N}\n{arr3}")
    a.label(N)
    a(f"ds_read_b32 v{T0}, v{VSY} offset:24\ns_add_u32 s{S_SPIN}, s{S_SPIN}, 1\ns_waitcnt lgkmcnt(0)")
    a(f"v_cmp_ne_u32 vcc, 4, v{T0}\ns_cmp_gt_u32 s{S_SPIN}, {SPIN_MAX*8}\ns_cbranch_scc1 {D}")
    if cfg.fsleep: a(f"s_cbranch_vccz {D}\ns_sleep {cfg.fsleep}\ns_branch {L}")
    else: a(f"s_cbranch_vccnz {L}")
    a.label(D); a.lg = []
    stamp(12)
    preads(0)
    k.lds_peek(3, VSY, T3+0, "pk3")
    for n in range(2):
        b = RD + 32*n
        a.wait(lg=f"p{n}_1"); a(".p2align 3")
        for m in range(0, 8, 2): pk("v_pk_add_f32", b+m, v(b+m, 2), v(B2F+m, 2))
        for m in range(0, 8, 2): pk("v_pk_add_f32", b+m, v(b+m, 2), v(b+8+m, 2))
        a.wait(lg=f"p{n}_3"); a(".p2align 3")
        for m in range(0, 8, 2): pk("v_pk_add_f32", b+16+m, v(b+16+m, 2), v(b+24+m, 2))
        if n == 0: k.lds_peek(7, VSY, T0, "pk7")
        for m in range(0, 8, 2): pk("v_pk_add_f32", b+m, v(b+m, 2), v(b+16+m, 2))
        for m in range(0, 8, 2): pk("v_pk_mul_f32", EE+m, v(b+m, 2), v(T2, 2), mod=" op_sel_hi:[1,0]")
        for m in range(8): a(f"v_exp_f32 v{EE+m}, v{EE+m}")
        if n == 0:
            Y = a.newlabel("Lny")
            a.wait(lg="pk7")
            a(f"v_cmp_ne_u32 vcc, 4, v{T3}\ns_mov_b32 s{S_YRD}, 0\ns_cbranch_vccnz {Y}\n{yrd}\ns_mov_b32 s{S_YRD}, 1")
            a.label(Y)
            k.lds_check(7, VSY, T0, "pk7"); preads(1); a(".p2align 3")
        for m in range(0, 8, 2): pk("v_pk_mul_f32", b+m, v(b+m, 2), v(PP+8*n+m, 2))
        for m in range(0, 8, 2): pk("v_pk_add_f32", EE+m, v(EE+m, 2), "1.0", mod=" op_sel_hi:[1,0]")
        for m in range(8): a(f"v_rcp_f32 v{EE+m}, v{EE+m}")
        for m in range(0, 8, 2): pk("v_pk_mul_f32", b+m, v(b+m, 2), v(EE+m, 2))
    L = a.newlabel("Lys"); B = a.newlabel("Lysb"); N = a.newlabel("Lysn")
    a(f"s_cmp_eq_u32 s{S_YRD}, 0\ns_cbranch_scc1 {L}"); a.label(B)
    k.ool.append(f"{L}:\ns_mov_b32 s{S_SPIN}, 0\ns_cmp_lg_u32 s{S_ARR}, 0\ns_cbranch_scc1 {N}\n{arr3}\n{N}:\nds_read_b32 v{T0}, v{VSY} offset:12\ns_add_u32 s{S_SPIN}, s{S_SPIN}, 1\ns_waitcnt lgkmcnt(0)\n"
                 f"v_cmp_ne_u32 vcc, 4, v{T0}\ns_cmp_gt_u32 s{S_SPIN}, {SPIN_MAX*8}\ns_cbranch_scc1 {B}\ns_cbranch_vccnz {N}\n{yrd}\ns_waitcnt lgkmcnt(0)\ns_branch {B}")
    stamp(11)
    for n in range(2):
        b = RD + 32*n
        for m in range(4): a(f"v_lshlrev_b32 v{EE+2*m}, 16, v{YR+4*n+m}\nv_and_b32 v{EE+2*m+1}, 0xffff0000, v{YR+4*n+m}")
        for m in range(0, 8, 2): pk("v_pk_fma_f32", b+m, v(b+m, 2), v(EE+m, 2), v(XF2+8*n+m, 2))
        for m in range(4): a(f"v_cvt_pk_bf16_f32 v{b+8+m}, v{b+2*m}, v{b+2*m+1}")
        a.vmem(f"buffer_store_dwordx4 v[{b+8}:{b+11}], v{VXO}, s[{R_OUT}:{R_OUT+3}], {'s%d' % S_U1 if n else '0'} offen {cfg.out_flags}")
    stamp(13)
    if cfg.diag_pad or cfg.diag_amp:
        if cfg.diag_amp: a(f"s_sub_u32 s{S_T2}, s{S_ST}, s{S_EX}\ns_mul_i32 s{S_T2}, s{S_T2}, {cfg.diag_amp[1]}\ns_min_u32 s{S_T2}, s{S_T2}, 200000")
        else: a(f"s_mov_b32 s{S_T2}, {cfg.diag_pad}")
        a.label("L_pad")
        a(f"s_memrealtime s[{S_T0}:{S_T1}]\ns_waitcnt lgkmcnt(0)\ns_sub_u32 s{S_T0}, s{S_T0}, s{S_EX}\ns_cmp_lt_u32 s{S_T0}, s{S_T2}\ns_cbranch_scc1 L_pad")
    k.flush_stamps()
    a("s_endpgm")
    for o in k.ool: a(o)

Cfg.g2_nomfma = False; Cfg.g2_hot = False; Cfg.g2_noload = False; Cfg.hflag = 'sc1'; Cfg.seg7 = 4; Cfg.nearly = 4; Cfg.binit = 0; Cfg.cap = 9; Cfg.la = 5; Cfg.x_nohst = False; Cfg.spf = None; Cfg.spfw = True; Cfg.n0 = 8; Cfg.n1 = 8; Cfg.cap0 = 16; Cfg.capseg = 0; Cfg.ssmf = 'nt'; Cfg.cap2 = 9; Cfg.nl = 5; Cfg.fsleep = 1; Cfg.dynsig = None; Cfg.urst = 0; Cfg.x_nop2 = False; Cfg.psleep = 0; Cfg.hsplit = True; Cfg.asigpos = 0; Cfg.apeek = 3; Cfg.bpeek = 8; Cfg.earlyrd = True; Cfg.diag2 = None; Cfg.wsoff = 0; Cfg.uarr = 8; Cfg.uarr_d = 5; Cfg.w2x = False; Cfg.bq = 4; Cfg.rdnow = False; Cfg.coarse = False
HEADER = open("recurrent_scan__ssm_conv_h3__dense_activation_gelu__prompt.s.ref").read().split("; @launch")[0]
def full(cfg):
    kp = K(cfg); prologue(kp)
    km = K(cfg); km.role = 'm'; km.a.nlabel = 1000; gen_m(km)
    kx = K(cfg); kx.role = 'x'; gen_x(kx)
    errs = check(kp.a.lines + km.a.lines) + check(kp.a.lines + kx.a.lines)
    a = Asm()
    a.lines = kp.a.lines + km.a.lines[:km.split] + ["L_X:"] + kx.a.lines + km.a.lines[km.split:] + ["L_end:", "s_endpgm", "L_code_end:"]
    for e in errs: print(e, file=sys.stderr)
    assert not errs
    t = HEADER + f"; @launch grid=(256,1,1) block=(512,1,1) lds={LDS_BYTES}\n"
    t += f'.amdgcn_target "amdgcn-amd-amdhsa--gfx950"\n.text\n.globl {NAME}\n.p2align 8\n.type {NAME},@function\n'
    t += a.text()
    t += f'''.section .rodata,"a"
.p2align 6
.amdhsa_kernel {NAME}
  .amdhsa_next_free_vgpr 256
  .amdhsa_next_free_sgpr 102
  .amdhsa_accum_offset 256
  .amdhsa_group_segment_fixed_size 0
  .amdhsa_kernarg_size 112
  .amdhsa_user_sgpr_count 2
  .amdhsa_user_sgpr_kernarg_segment_ptr 1
  .amdhsa_system_sgpr_workgroup_id_x 1
  .amdhsa_float_denorm_mode_32 3
.end_amdhsa_kernel
'''
    return t
if __name__ == "__main__":
    cfg = Cfg()
    for kv in sys.argv[2:]:
        kk, val = kv.split("=", 1); assert hasattr(cfg, kk), kk; setattr(cfg, kk, eval(val))
    open(sys.argv[1], "w").write(full(cfg))
```

```python
import sys, struct
from asmlib import Asm, v, s, check

NAME = "recurrent_scan__ssm_conv_h3__dense_activation_gelu__prompt_kernel"
def f32(x): return "0x%08x" % struct.unpack("<I", struct.pack("<f", x))[0]

WS_CNT, WS_STATS, WS_STAMP, WS_UR, WS_Y, WS_H = 0, 0x20000, 0x40000, 0x100000, 0x300000, 0x500000
WS_SIZE = 0x500000 + 64*112*1024
CNT_UR, CNT_H, CNT_Y = 0, 128, 256
L_Q, L_W, L_KST = 0, 49152, 98304
L_VST = L_KST + 9*1024
L_CT = 115712; CH_STRIDE = 17600; H_STRIDE = 4224; U_OFF = 8448; U_STRIDE = 4576
L_MISC = L_CT + 2*CH_STRIDE
L_YST = L_MISC
L_CS = L_YST + 8192
L_SYNC = L_CS + 1024
L_TAP = L_SYNC + 64; L_B1 = L_TAP + 512; L_B2 = L_B1 + 256
LDS_BYTES = L_B2 + 128
SPIN_MAX = 1 << 17

P_Q, P_K, P_V, P_SH, P_SSM, P_D, P_BX, P_W1, P_B1, P_W2, P_B2, P_OUT, P_DBG, P_WS = range(4, 32, 2)
S_WV, S_XCD, S_J, S_R, S_C, S_KC0, S_R2, S_C2, S_OFF, S_WAVE = range(32, 42)
S_A, S_B, S_T0, S_T1, S_T2, S_T3 = range(42, 48)
R_Q, R_K, R_V, R_W1, R_WS, R_DBG, R_W2, R_SSM, R_X0, R_OUT = range(48, 88, 4)
S_U0, S_U1, S_U2, S_U3, S_U4, S_U5, S_SPIN, S_PUB = range(88, 96)
S_EX = 96; S_ST = 100
S_ONE, S_PV = 3, 16
S_C16, S_CL = S_OFF, S_A

class Cfg:
    stamps = False
    kvpos = 2; g1stag = "four"; g2map = 2; g2stag = "none"; ntq = ""; ntw2 = ""
    markseg = 0; ssmseg = 6; stseg = 4; urseg = 2; w2touch = 3
    urpos = -1
    hsigpos = 80
    xprio = 1
    code_pf = True
    diag_pad = 0; diag_amp = None; out_flags = ""
    x_nomfma = False; x_nolds = False; x_nodma = False; segstamps = True

def srd(a, R, P, size):
    a(f"s_mov_b64 s[{R}:{R+1}], s[{P}:{P+1}]\ns_mov_b32 s{R+2}, {size}\ns_mov_b32 s{R+3}, 0x20000")

class K:
    def __init__(self, cfg): self.a = Asm(); self.cfg = cfg; self.ool = []; self.nls = 0
    def stamp(self, i):
        a, cfg = self.a, self.cfg
        if cfg.diag2 and self.role == cfg.diag2[0] and i in cfg.diag2[1:3]:
            a(f"s_memrealtime s[{S_ST}:{S_ST+1}]\ns_waitcnt lgkmcnt(0)"); a.lg = []
            a(f"s_mov_b32 s{S_EX+1}, s{S_ST}" if i == cfg.diag2[1] else f"s_sub_u32 s{S_EX+1}, s{S_ST}, s{S_EX+1}")
        if cfg.diag_amp and cfg.diag_amp[0] == i:
            a(f"s_memrealtime s[{S_ST}:{S_ST+1}]\ns_waitcnt lgkmcnt(0)"); a.lg = []
        if cfg.stamps == "min" and i == 0:
            a("v_writelane_b32 v255, s86, 23"); return
        if cfg.stamps == "min" and not (i == 13 and self.role == "m"): return
        if cfg.stamps:
            a(f"s_memrealtime s[{S_ST}:{S_ST+1}]\ns_memtime s[{S_EX}:{S_EX+1}]\ns_waitcnt lgkmcnt(0)\nv_writelane_b32 v255, s{S_ST}, {i}\nv_writelane_b32 v255, s{S_EX}, {32+i}")
            if i == 0: a("v_writelane_b32 v255, s86, 23")
            a.lg = []
    LS = [52, 54, 56, 58, 60, 62, 68, 70, 72, 74, 76, 78]
    def lstamp(self, grp):
        if self.cfg.stamps and self.cfg.lst == grp:
            j = self.nls; self.nls += 1
            self.a(f"s_memtime s[{self.LS[j]}:{self.LS[j]+1}]")
    def flush_stamps(self):
        a = self.a; cfg = self.cfg
        if self.nls:
            a("s_waitcnt lgkmcnt(0)")
            for j in range(self.nls): a(f"v_writelane_b32 v255, s{self.LS[j]}, {(24+j) if j < 8 else (48+j)}")
        if cfg.diag2 and self.role == cfg.diag2[0]:
            a(f"s_mul_i32 s{S_T2}, s{S_EX+1}, {cfg.diag2[3]}\ns_add_u32 s{S_T2}, s{S_T2}, 2000\ns_min_u32 s{S_T2}, s{S_T2}, 200000")
            if cfg.diag2[4] is not None: a(f"s_lshl2_add_u32 s{S_T0}, s2, s{S_WV}\ns_cmp_eq_u32 s{S_T0}, {cfg.diag2[4]}\ns_cselect_b32 s{S_T2}, s{S_T2}, 0")
            a.label("L_pad2")
            a(f"s_memrealtime s[{S_T0}:{S_T1}]\ns_waitcnt lgkmcnt(0)\ns_sub_u32 s{S_T0}, s{S_T0}, s{S_EX}\ns_cmp_lt_u32 s{S_T0}, s{S_T2}\ns_cbranch_scc1 L_pad2")
        if self.cfg.stamps:
            a(f"s_lshl_b32 s{S_T0}, s2, 3\ns_add_u32 s{S_T0}, s{S_T0}, s{S_WAVE}\ns_lshl_b32 s{S_T0}, s{S_T0}, 8\ns_add_u32 s{S_T0}, s{S_T0}, {WS_STAMP}")
            a(f"v_lshlrev_b32 v254, 2, v0\nbuffer_store_dword v255, v254, s[{R_WS}:{R_WS+3}], s{S_T0} offen")
    def vpoll(self, vaddr, vdata, R, expect):
        a = self.a; L = a.newlabel("Lpoll"); D = a.newlabel("Lpolld")
        a(f"s_mov_b32 s{S_SPIN}, 0")
        a.label(L)
        a(f"buffer_load_dword v{vdata}, v{vaddr}, s[{R}:{R+3}], 0 offen sc1\ns_waitcnt vmcnt(0)")
        a(f"v_cmp_ne_u32 vcc, {expect}, v{vdata}")
        a(f"s_add_u32 s{S_SPIN}, s{S_SPIN}, 1\ns_cmp_gt_u32 s{S_SPIN}, {SPIN_MAX}\ns_cbranch_scc1 {D}\ns_cbranch_vccnz {L}")
        a.label(D)
    def spoll(self, off_sgpr, expect):
        a = self.a; L = a.newlabel("Lsp"); D = a.newlabel("Lspd")
        a(f"s_mov_b32 s{S_SPIN}, 0")
        a.label(L)
        a(f"s_load_dword s{S_PV}, s[{P_WS}:{P_WS+1}], s{off_sgpr} glc\ns_add_u32 s{S_SPIN}, s{S_SPIN}, 1\ns_waitcnt lgkmcnt(0)")
        a(f"s_cmp_eq_u32 s{S_PV}, {expect}\ns_cbranch_scc1 {D}")
        if self.cfg.psleep: a(f"s_sleep {self.cfg.psleep}")
        a(f"s_cmp_gt_u32 s{S_SPIN}, {SPIN_MAX}\ns_cbranch_scc0 {L}")
        a.label(D); a.lg = []
    def signal(self, cnt, inc=1): self.a(f"s_movk_i32 s{S_ONE}, {inc}\ns_atomic_add s{S_ONE}, s[{P_WS}:{P_WS+1}], s{cnt}")
    def lds_arrive(self, word, vtmp, vone):
        a = self.a
        a(f"v_mov_b32 v{vtmp}, {L_SYNC}\nv_mov_b32 v{vone}, 1\ns_mov_b64 exec, 1")
        a.lds(f"ds_add_u32 v{vtmp}, v{vone} offset:{4*word}")
        a("s_mov_b64 exec, -1")
    def lds_wait(self, word, vtmp, vone, setaddr=True, sleep=0):
        a = self.a; L = a.newlabel("Lsy"); D = a.newlabel("Lsyd")
        if setaddr: a(f"v_mov_b32 v{vtmp}, {L_SYNC}")
        a(f"s_mov_b32 s{S_SPIN}, 0")
        a.label(L)
        a(f"ds_read_b32 v{vone}, v{vtmp} offset:{4*word}\ns_add_u32 s{S_SPIN}, s{S_SPIN}, 1\ns_waitcnt lgkmcnt(0)")
        a(f"v_cmp_ne_u32 vcc, 4, v{vone}\ns_cmp_gt_u32 s{S_SPIN}, {SPIN_MAX*8}\ns_cbranch_scc1 {D}")
        if sleep: a(f"s_cbranch_vccz {D}\ns_sleep {sleep}\ns_branch {L}")
        else: a(f"s_cbranch_vccnz {L}")
        a.label(D); a.lg = []
    def lds_peek(self, word, vaddr, vdst, tag): self.a.lds(f"ds_read_b32 v{vdst}, v{vaddr} offset:{4*word}", tag)
    def lds_check(self, word, vaddr, vdst, tag):
        a = self.a; L = a.newlabel("Lck"); B = a.newlabel("Lckb"); S = a.newlabel("Lcks")
        a.wait(lg=tag)
        a(f"v_cmp_ne_u32 vcc, 4, v{vdst}\ns_mov_b32 s{S_SPIN}, 0\ns_cbranch_vccnz {L}"); a.label(B)
        self.ool.append(f"{L}:\nds_read_b32 v{vdst}, v{vaddr} offset:{4*word}\ns_add_u32 s{S_SPIN}, s{S_SPIN}, 1\ns_waitcnt lgkmcnt(0)\nv_cmp_ne_u32 vcc, 4, v{vdst}\n"
                        f"s_cmp_gt_u32 s{S_SPIN}, {SPIN_MAX*8}\ns_cbranch_scc1 {B}\ns_cbranch_vccnz {L}\ns_branch {B}")
    def speek(self, off): self.a(f"s_load_dword s{S_PV}, s[{P_WS}:{P_WS+1}], s{off} glc")
    def scheck(self, off, mask, expect):
        a = self.a; L = a.newlabel("Lsc"); B = a.newlabel("Lscb")
        m = f"s_and_b32 s{S_PV}, s{S_PV}, {mask}\n" if mask else ""
        a(f"s_mov_b32 s{S_SPIN}, 0\ns_waitcnt lgkmcnt(0)\n{m}s_cmp_lg_u32 s{S_PV}, {expect}\ns_cbranch_scc1 {L}"); a.label(B); a.lg = []
        self.ool.append(f"{L}:\ns_load_dword s{S_PV}, s[{P_WS}:{P_WS+1}], s{off} glc\ns_add_u32 s{S_SPIN}, s{S_SPIN}, 1\ns_cmp_gt_u32 s{S_SPIN}, {SPIN_MAX}\ns_waitcnt lgkmcnt(0)\ns_cbranch_scc1 {B}\n"
                        f"{m}s_cmp_lg_u32 s{S_PV}, {expect}\ns_cbranch_scc1 {L}\ns_branch {B}")
    def lds_sync(self, word, vtmp, vone):
        self.a.wait(lg="all"); self.lds_arrive(word, vtmp, vone); self.lds_wait(word, vtmp, vone, setaddr=False)

def prologue(k):
    a, cfg = k.a, k.cfg
    a.label(NAME)
    if cfg.stamps: a("s_memrealtime s[86:87]")
    a("s_cmp_ge_u32 s2, 256\ns_cbranch_scc1 L_end")
    a("s_load_dwordx16 s[4:19], s[0:1], 0\ns_load_dwordx8 s[20:27], s[0:1], 64\ns_load_dwordx4 s[28:31], s[0:1], 96")
    if cfg.code_pf:
        a(f"s_getpc_b64 s[{S_T0}:{S_T1}]")
        a.label("L_pc")
        a(f"s_lshr_b32 s{S_T2}, s2, 3\ns_lshl_b32 s{S_T2}, s{S_T2}, 10\nv_lshl_add_u32 v2, v0, 1, s{S_T2}\nv_min_u32 v2, L_code_end-L_pc-4, v2")
        a(f"v_mov_b32 v3, s{S_T1}\nv_add_co_u32 v2, vcc, s{S_T0}, v2\ns_mov_b64 exec, 1\ns_nop 0\nv_addc_co_u32 v3, vcc, 0, v3, vcc")
        a(f"global_load_dword v254, v[2:3], off\ns_mov_b64 exec, -1")
    if cfg.stamps: a("v_mov_b32 v255, 0")
    if cfg.diag_pad or cfg.diag_amp or cfg.diag2: a(f"s_memrealtime s[{S_EX}:{S_EX+1}]")
    a("v_lshrrev_b32 v1, 6, v0\nv_and_b32 v0, 63, v0")
    a(f"v_readfirstlane_b32 s{S_WAVE}, v1")
    a(f"s_and_b32 s{S_XCD}, s2, 7\ns_lshr_b32 s{S_J}, s2, 3")
    a(f"s_lshr_b32 s{S_T0}, s{S_XCD}, 1\ns_and_b32 s{S_T1}, s{S_XCD}, 1")
    a(f"s_and_b32 s{S_T2}, s{S_J}, 3\ns_lshr_b32 s{S_CL}, s{S_J}, 2")
    a(f"s_lshl2_add_u32 s{S_R}, s{S_T0}, s{S_T2}\ns_lshl3_add_u32 s{S_C16}, s{S_T1}, s{S_CL}\ns_sub_u32 s{S_C}, s{S_C16}, s{S_T1}\ns_min_u32 s{S_C}, s{S_C}, 13")
    a(f"s_and_b32 s{S_T0}, s{S_T0}, 1")
    a(f"s_add_u32 s{S_KC0}, s{S_T2}, s{S_CL}\ns_and_b32 s{S_KC0}, s{S_KC0}, 3\ns_lshl1_add_u32 s{S_KC0}, s{S_KC0}, s{S_T0}")
    a(f"s_lshl1_add_u32 s{S_T3}, s{S_T2}, s{S_CL}")
    if cfg.g2map == 1: a(f"s_and_b32 s{S_C2}, s{S_T3}, 7\ns_lshl1_add_u32 s{S_R2}, s{S_R}, s{S_T1}")
    else: a(f"s_and_b32 s{S_R2}, s{S_CL}, 1\ns_lshl1_add_u32 s{S_R2}, s{S_R}, s{S_R2}\ns_bfe_u32 s{S_C2}, s{S_T3}, 0x20001\ns_lshl2_add_u32 s{S_C2}, s{S_T1}, s{S_C2}")
    a(f"s_mov_b32 s{R_Q+2}, {2<<20}\ns_mov_b32 s{R_Q+3}, 0x20000")
    a(f"s_and_b32 s{S_WV}, s{S_WAVE}, 3\nv_lshlrev_b32 v1, 4, v0\ns_lshl_b32 s{S_B}, s{S_WV}, 11")
    a(f"v_lshrrev_b32 v10, 3, v0\nv_lshrrev_b32 v11, 4, v0\nv_and_b32 v12, 7, v0")
    a(f"s_cmp_ge_u32 s{S_WAVE}, 4\ns_cbranch_scc1 L_X")

def gen_x(k):
    a, cfg, stamp = k.a, k.cfg, k.stamp
    x = S_WV
    a.cap = cfg.cap
    V16, W2A, W2B, TR, HA, HB = 1, 2, 3, 4, 8, 9
    T0, T1, T2, T3 = 10, 11, 12, 13
    VQ, VW, VKA, VKB, VHALO, VTA, PK, PH, PV, PST, VMK, VMD = 14, 18, 22, 23, 24, 25, 26, 27, 28, 29, 30, 31
    TAPS, JUNK = 108, 112
    ACC2, AR, WB = 14, 78, 142
    a(f"v_xor_b32 v{T3}, v{T2}, v{T1}\nv_lshlrev_b32 v{T3}, 4, v{T3}\nv_lshl_add_u32 v{VQ}, v{T0}, 10, v{T3}")
    a(f"s_lshl2_add_u32 s{S_T0}, s{S_R}, s{x}\ns_lshl_b32 s{S_T0}, s{S_T0}, 15\ns_movk_i32 s{S_T2}, {8192-1024}\ns_lshl_b32 s{S_T3}, s{S_T2}, 1")
    a(f"v_add_u32 v{VQ}, s{S_T0}, v{VQ}")
    a(f"v_xor_b32 v{VQ+1}, 64, v{VQ}\nv_add_u32 v{VQ+2}, s{S_T3}, v{VQ}\nv_add_u32 v{VQ+1}, s{S_T2}, v{VQ+1}\nv_add_u32 v{VQ+3}, s{S_T3}, v{VQ+1}")
    d = 4*3584 - 1024
    a(f"v_lshlrev_b32 v{T3}, 5, v{T1}\nv_xor_b32 v{T3}, v{T3}, v{V16}\nv_and_b32 v{T3}, 0xff, v{T3}\nv_xor_b32 v{VW+2}, 0x80, v{T3}")
    a(f"s_lshl_b32 s{S_U1}, s{S_C}, 8\ns_mul_i32 s{S_T1}, s{x}, {16*3584}\ns_add_u32 s{S_T0}, s{S_U1}, s{S_T1}")
    a(f"s_movk_i32 s{S_T1}, 3584\ns_movk_i32 s{S_T2}, {d}\ns_lshl1_add_u32 s{S_T3}, s{S_T2}, s{S_T0}")
    a(f"v_mad_u32_u24 v{VW}, v{T1}, s{S_T1}, v{T3}\nv_mad_u32_u24 v{VW+2}, v{T1}, s{S_T1}, v{VW+2}")
    a(f"v_add_u32 v{VW}, s{S_T0}, v{VW}\nv_add_u32 v{VW+2}, s{S_T3}, v{VW+2}\nv_add_u32 v{VW+1}, s{S_T2}, v{VW}\nv_add_u32 v{VW+3}, s{S_T2}, v{VW+2}")
    a(f"s_lshl_b32 s{S_U1}, s{x}, 12\ns_mov_b32 s{R_W1+2}, {512*3584}\ns_mov_b32 s{R_W1+3}, s{R_Q+3}")
    a("s_waitcnt lgkmcnt(0)")
    a(f"s_mov_b64 s[{R_Q}:{R_Q+1}], s[{P_Q}:{P_Q+1}]\ns_mov_b64 s[{R_W1}:{R_W1+1}], s[{P_W1}:{P_W1+1}]")
    if cfg.wsoff: a(f"s_add_u32 s{P_WS}, s{P_WS}, {cfg.wsoff}\ns_addc_u32 s{P_WS+1}, s{P_WS+1}, 0")
    def chunk_ops(i):
        slot = i % 3
        def mk(kind, n):
            def f():
                if n == 0:
                    if kind == "q":
                        a(f"s_add_u32 s{S_T0}, s{S_KC0}, {i}\ns_and_b32 s{S_T0}, s{S_T0}, 7\ns_lshl_b32 s{S_U3}, s{S_T0}, 7\ns_mul_i32 s{S_U4}, s{S_T0}, {64*3584}")
                    a(f"s_add_u32 m0, s{S_U1}, {(L_Q if kind=='q' else L_W) + slot*16384}\ns_nop 0")
                off = f" offset:{1024*n}" if n else ""
                if kind == "q": a.vmem(f"buffer_load_dwordx4 v{VQ+n}, s[{R_Q}:{R_Q+3}], s{S_U3} offen{off} {cfg.ntq} lds", f"c{i}")
                else: a.vmem(f"buffer_load_dwordx4 v{VW+n}, s[{R_W1}:{R_W1+3}], s{S_U4} offen{off} {cfg.ntq} lds", f"c{i}")
            return f
        return [mk("q", n) for n in range(4)] + [mk("w", n) for n in range(4)]
    def setup_rest():
        stamp(0)
        a(f"v_mov_b32 v{T1}, v{T2}")
        srd(a, R_WS, P_WS, WS_SIZE); srd(a, R_DBG, P_DBG, 256); srd(a, R_W2, P_W2, 1792*1024); srd(a, R_SSM, P_SSM, 2 << 20)
        a(f"s_lshl_b32 s{S_T0}, s{S_XCD}, 6\ns_lshl1_add_u32 s{S_T0}, s{S_J}, s{S_T0}\ns_lshr_b32 s{S_T1}, s{x}, 1\ns_add_u32 s{S_U5}, s{S_T0}, s{S_T1}")
        a(f"s_mul_i32 s{S_T1}, s{S_T1}, {CH_STRIDE}\ns_and_b32 s{S_T2}, s{x}, 1")
        a(f"s_lshl_b32 s{S_T3}, s{S_T2}, 11\ns_add_u32 s{S_H1}, s{S_T1}, s{S_T3}\ns_add_u32 s{S_H1}, s{S_H1}, {L_CT+H_STRIDE+128}")
        a(f"s_mul_i32 s{S_T3}, s{S_T2}, {H_STRIDE}\ns_add_u32 s{S_T3}, s{S_T3}, s{S_T1}\ns_add_u32 s{S_T3}, s{S_T3}, {L_CT+128-512}")
        a(f"s_mul_i32 s{S_T0}, s{S_T2}, {U_STRIDE}\ns_add_u32 s{S_T0}, s{S_T0}, s{S_T1}\ns_add_u32 s{S_T0}, s{S_T0}, {L_CT+U_OFF+4096}")
        Z = JUNK
        a(f"v_mov_b32 v{T2}, s{S_T0}\nv_mov_b32 v{T3}, s{S_T3}\nv_cmp_gt_u32 vcc, 56, v0")
        for i in range(4): a(f"v_mov_b32 v{Z+i}, 0")
        a(f"v_cndmask_b32 v{T3}, v{T3}, v{T2}, vcc\nv_lshl_add_u32 v{T3}, v0, 3, v{T3}\nv_subrev_u32 v{T2}, 4, v{T2}")
        a.lds(f"ds_write_b64 v{T3}, v[{Z}:{Z+1}]")
        a.lds(f"ds_write_b32 v{T2}, v{Z}")
        a(f"v_lshlrev_b32 v{VMK}, 2, v{T1}")
        a(f"v_lshrrev_b32 v{T2}, 2, v0\nv_and_b32 v{T2}, 4, v{T2}\nv_xor_b32 v{T2}, v{T2}, v{T1}\nv_lshlrev_b32 v{T2}, 4, v{T2}\nv_lshl_add_u32 v{W2A}, v{T0}, 10, v{T2}")
        a(f"s_mul_i32 s{S_T0}, s{x}, {448*1024}\ns_lshl_b32 s{S_T1}, s{S_C2}, 7\ns_add_u32 s{S_T0}, s{S_T0}, s{S_T1}")
        a(f"v_add_u32 v{W2A}, s{S_T0}, v{W2A}\nv_add_u32 v{W2B}, {8192-1024}, v{W2A}")
        a(f"v_bfe_u32 v{T2}, v0, 2, 2\nv_lshrrev_b32 v{T3}, 5, v0\nv_lshl_add_u32 v{T3}, v{T3}, 3, v{T2}\nv_lshlrev_b32 v{T3}, 7, v{T3}")
        a(f"v_lshrrev_b32 v{T2}, 1, v{T2}\nv_lshl_add_u32 v{T3}, v{T2}, 6, v{T3}\nv_bfe_u32 v{T2}, v0, 4, 1\nv_lshl_add_u32 v{T3}, v{T2}, 5, v{T3}\nv_and_b32 v{T2}, 3, v0\nv_lshl_add_u32 v{T3}, v{T2}, 3, v{T3}")
        a(f"v_add_u32 v{TR}, s{S_B}, v{T3}\nv_xor_b32 v{TR+1}, 64, v{TR}\nv_add_u32 v{TR+2}, 65536, v{TR}\nv_add_u32 v{TR+3}, 65536, v{TR+1}")
        a(f"s_mul_i32 s{S_T0}, s{S_R2}, {224*1024}\ns_mul_i32 s{S_T1}, s{x}, {28*1024}\ns_add_u32 s{S_T0}, s{S_T0}, s{S_T1}\ns_add_u32 s{S_T0}, s{S_T0}, {WS_H}")
        a(f"v_add_u32 v{HA}, s{S_T0}, v{V16}\nv_add_u32 v{HB}, {112*1024}, v{HA}")
        a(f"s_lshr_b32 s{S_T0}, s{S_J}, 3\ns_lshl2_add_u32 s{S_T0}, s{S_XCD}, s{S_T0}\ns_lshl2_add_u32 s{S_T0}, s{S_T0}, s{x}\ns_lshl_b32 s{S_PUB}, s{S_T0}, 8")
        a(f"s_lshl_b32 s{S_T0}, s{S_U5}, 12\ns_and_b32 s{S_T1}, s{x}, 1\ns_lshl_b32 s{S_T1}, s{S_T1}, 11\ns_add_u32 s{S_U2}, s{S_T0}, s{S_T1}")
        a.wait(lg="all")
    S_H1 = 17; S_PW, S_PS = R_K, R_K + 2; S_HO = R_V
    a("s_barrier")
    a(f"s_cmp_eq_u32 s{S_CL}, 7\ns_cbranch_scc1 L_Xs")
    a.cap = cfg.cap0
    for f in chunk_ops(0): f()
    a.label("L_Xs")
    setup_rest()
    def ssm_loads():
        a(f"s_mov_b32 m0, s{S_H1}\ns_lshl_b32 s{S_T0}, s{S_U5}, 12")
        a.vmem(f"buffer_load_dwordx4 v{V16}, s[{R_SSM}:{R_SSM+3}], s{S_U2} offen {cfg.ssmf} lds", "h")
        a.vmem(f"buffer_load_dwordx4 v{V16}, s[{R_SSM}:{R_SSM+3}], s{S_U2} offen offset:1024 {cfg.ssmf} lds", "h")
        a(f"s_add_u32 s{S_T0}, s{S_T0}, 2044\ns_load_dword s{S_U0}, s[{P_SSM}:{P_SSM+1}], s{S_T0}")
    SG = [4*m + n for m in range(7) for n in (0, 1)] + [4*m + n for m in range(7) for n in (2, 3)]
    def w2_dma(i):
        ii = i % 14
        a(f"s_add_u32 m0, s{S_B}, {ii*8192}\ns_mov_b32 s{S_T0}, {SG[i]*16384}")
        a.vmem(f"buffer_load_dwordx4 v{W2A}, s[{R_W2}:{R_W2+3}], s{S_T0} offen {cfg.ntw2} lds", f"w{i}")
        a.vmem(f"buffer_load_dwordx4 v{W2B}, s[{R_W2}:{R_W2+3}], s{S_T0} offen offset:1024 {cfg.ntw2} lds", f"w{i}")
    def ustage():
        L = a.newlabel("Lurok")
        a(f"s_cmp_eq_u32 s{S_PV}, 8\ns_cbranch_scc1 {L}")
        keep = list(a.lg); k.spoll(S_PUB, 8); a.lg = keep
        a.label(L)
        stamp(11)
        a(f"s_xor_b32 s{S_T1}, s{x}, 3\ns_lshl_b32 s{S_T1}, s{S_T1}, 10\ns_and_b32 s{S_T0}, s{S_U5}, 0xfffffffe\ns_lshl_b32 s{S_T0}, s{S_T0}, 12\ns_add_u32 s{S_T0}, s{S_T0}, s{S_T1}\ns_add_u32 s{S_T0}, s{S_T0}, {WS_UR}")
        for ch in range(2):
            for cp in range(2):
                a(f"s_add_u32 m0, s{S_T1}, {L_CT + ch*CH_STRIDE + U_OFF + cp*(U_STRIDE-4)}")
                a(f"s_add_u32 s{S_T0}, s{S_T0}, 4096" if (ch == 1 and cp == 0) else "s_nop 0")
                a.vmem(f"buffer_load_dwordx4 v{V16}, s[{R_WS}:{R_WS+3}], s{S_T0} offen sc1 lds", "u")
    MK = R_X0
    early = [12, 13, 4, 5, 10, 11]; late = [0, 1, 6, 7, 2, 3, 8, 9]
    def mark_load():
        L = a.newlabel("Lmk")
        a(f"s_cmp_lg_u32 s{x}, 0\ns_cbranch_scc1 {L}\ns_load_dwordx8 s[{MK}:{MK+7}], s[{P_DBG}:{P_DBG+1}], 0")
        a.label(L)
    def mark_check():
        L = a.newlabel("Lmk")
        a(f"s_cmp_lg_u32 s{x}, 0\ns_cbranch_scc1 {L}\ns_waitcnt lgkmcnt(0)")
        a(f"s_and_b64 s[{MK}:{MK+1}], s[{MK}:{MK+1}], s[{MK+2}:{MK+3}]\ns_and_b64 s[{MK+4}:{MK+5}], s[{MK+4}:{MK+5}], s[{MK+6}:{MK+7}]\ns_and_b64 s[{MK}:{MK+1}], s[{MK}:{MK+1}], s[{MK+4}:{MK+5}]\ns_and_b32 s{MK}, s{MK}, s{MK+1}")
        a(f"s_cbranch_scc1 {L}")
        k.vpoll(VMK, VMD, R_DBG, 1)
        a.label(L)
    a(f"s_cmp_eq_u32 s{S_CL}, 7\ns_cbranch_scc0 L_Xn")
    keep = list(a.vm); a.vm = []; a.cap = None
    def touches():
        a(f"s_and_b32 s{S_T0}, s2, 31\ns_lshl2_add_u32 s{S_T0}, s{S_T0}, s{x}\ns_mul_i32 s{S_T0}, s{S_T0}, {112*128}\ns_add_u32 s{S_T1}, s{S_T0}, {56*128}")
        a(f"v_lshlrev_b32 v{T2}, 7, v0\ns_bfm_b64 exec, 56, 0")
        a(f"buffer_load_dword v{JUNK}, v{T2}, s[{R_W2}:{R_W2+3}], s{S_T0} offen\nbuffer_load_dword v{JUNK}, v{T2}, s[{R_W2}:{R_W2+3}], s{S_T1} offen\ns_mov_b64 exec, -1")
        a(f"s_and_b32 s{S_T0}, s{S_J}, 3\ns_lshl2_add_u32 s{S_T0}, s{S_XCD}, s{S_T0}\ns_lshl2_add_u32 s{S_T0}, s{S_T0}, s{x}\ns_lshl_b32 s{S_T0}, s{S_T0}, 14\ns_add_u32 s{S_T1}, s{S_T0}, 8192")
        a(f"buffer_load_dword v{JUNK}, v{T2}, s[{R_SSM}:{R_SSM+3}], s{S_T0} offen nt\nbuffer_load_dword v{JUNK}, v{T2}, s[{R_SSM}:{R_SSM+3}], s{S_T1} offen nt")
    if cfg.htouch == 0: touches()
    a("s_barrier")
    mark_load(); mark_check()
    a("s_barrier")
    if cfg.htouch == 1: touches()
    ssm_loads()
    for q in early[:cfg.nearly]: w2_dma(q)
    k.speek(S_PUB)
    hv = list(a.vm)
    a("s_branch L_Xj")
    a.label("L_Xn")
    a.vm = keep; a.cap = cfg.cap0
    for f in chunk_ops(1): f()
    stamp(1)
    a.wait(vm="c0"); a("s_barrier")
    a.cap = cfg.cap
    for i in range(7):
        if cfg.segstamps or i == 0: stamp(2 + i)
        if i == 0: mark_load()
        if i + 2 <= 7:
            for f in chunk_ops(i + 2): f()
        if i == cfg.ssmseg: ssm_loads()
        if i == 6:
            for q in early[:cfg.nearly]: w2_dma(q)
            k.speek(S_PUB)
        if i == 0: mark_check()
        a.wait(vm=f"c{i+1}"); a("s_barrier")
    assert a.vm == hv[len(hv)-len(a.vm):], (a.vm, hv)
    a.vm = hv
    a.label("L_Xj")
    if cfg.segstamps: stamp(9)
    a.cap = cfg.cap2
    for q in early[cfg.nearly:]: w2_dma(q)
    a("s_waitcnt lgkmcnt(0)")
    ustage()
    for q in late[:4]: w2_dma(q)
    k.lds_wait(4, T0, T1)
    if cfg.xprio: a(f"s_setprio {cfg.xprio}")
    stamp(10)
    def trs(ii, tag):
        return [(f"ds_read_b64_tr_b16 v[{WB+8*ii+4*dt+2*h}:{WB+8*ii+4*dt+2*h+1}], v{TR+2*(ii>>3)+dt} offset:{(ii&7)*8192+512*h}", tag) for dt in range(2) for h in range(2)]
    HD = 40
    def shift_reads():
        a(f"v_add_u32 v{T0}, s{S_H1}, v{V16}\nv_subrev_u32 v{T1}, 4, v{T0}\nv_subrev_u32 v{T2}, {H_STRIDE}, v{T0}")
        a(f"s_bitcmp1_b32 s{x}, 0\ns_cselect_b32 s{S_U0}, s{S_U0}, 0")
        a.wait(vm="h")
        for n in range(2):
            a.lds(f"ds_read_b128 v[{HD+8*n}:{HD+8*n+3}], v{T0} offset:{1024*n}", "sh")
            a.lds(f"ds_read_b32 v{HD+8*n+4}, v{T1} offset:{1024*n}", "sh")
    def shift_writes():
        a.wait(lg="sh")
        a(f"v_writelane_b32 v{HD+4}, s{S_U0}, 0")
        for n in range(2):
            b = HD + 8*n
            a(f"v_alignbit_b32 v{b+3}, v{b+3}, v{b+2}, 16\nv_alignbit_b32 v{b+2}, v{b+2}, v{b+1}, 16\nv_alignbit_b32 v{b+1}, v{b+1}, v{b}, 16\nv_alignbit_b32 v{b}, v{b}, v{b+4}, 16")
            a.lds(f"ds_write_b128 v{T2}, v[{b}:{b+3}] offset:{1024*n}")
        a.wait(vm="u"); k.lds_arrive(0, T0, T1)
    order = early + late
    seq = late[4:] + [14 + q for q in order]
    filled = 0
    def fill(force=None):
        nonlocal filled
        n = 0
        while filled < 14 and ((n < 2 and f"w{order[filled]}" not in a.vm and order[filled] in issued) or (force is not None and filled <= force)):
            a.wait(vm=f"w{order[filled]}")
            for ins, tag in trs(order[filled], f"f{order[filled]}"): a.lds(ins, tag)
            filled += 1; n += 1
    issued = set(early + late[:4])
    a(f"s_lshl2_add_u32 s{S_T0}, s{S_R2}, s{x}\ns_add_u32 s{S_T0}, s{S_T0}, {CNT_H}\ns_lshl_b32 s{S_PUB}, s{S_T0}, 8")
    HO = [None] + [R_V + n for n in range(4)] + [R_OUT, R_OUT + 1]
    for n in range(1, 7): a(f"s_movk_i32 s{HO[n]}, {4096*n}")
    for n, q in enumerate(seq):
        if n == len(seq) - cfg.apeek: k.speek(S_PUB)
        if q >= 14:
            fill(force=order.index(q - 14)); a.wait(lg=f"f{q-14}")
        if not (cfg.x_nop2 and q >= 14): w2_dma(q)
        issued.add(q)
        if n == 0: shift_reads()
        elif n == 1: shift_writes()
        else: fill()
    stamp(12)
    if cfg.xprio: a("s_setprio 0")
    k.scheck(S_PUB, 0xff, 7)
    stamp(13)
    NL = cfg.nl
    hs = [(i, tt) for i in range(28 - NL) for tt in range(2)] + [(i, tt) for tt in range(2) for i in range(28 - NL, 28)]
    def hload(n):
        i, tt = hs[n]; d = AR + 4*(n & 15); i = SG[i]
        if n == 28 - cfg.bpeek: k.speek(S_PUB)
        if n == 28: k.scheck(S_PUB, None, 0x707)
        off = f" offset:{1024*(i&3)}" if i & 3 else ""
        a.vmem(f"buffer_load_dwordx4 v[{d}:{d+3}], v{(HA, HB)[tt]}, s[{R_WS}:{R_WS+3}], {'s%d' % HO[i>>2] if i >= 4 else 0} offen{off} sc1", f"a{n}")
    def pwrites(tt):
        return ([("m0", 0)] + [f"ds_write_addtid_b32 v{ACC2+32*tt+r} offset:{(2*tt+(r>>3))*8192+(r&7)*256}" for r in range(16)] +
                [("m0", 32768)] + [f"ds_write_addtid_b32 v{ACC2+32*tt+16+r} offset:{(4*tt+(r>>2))*8192+(r&3)*256+16}" for r in range(16)])
    def pw(q):
        o = q.pop(0)
        if isinstance(o, tuple):
            a(f"s_add_u32 m0, s{S_B}, {o[1]}\ns_nop 0"); o = q.pop(0)
        a.lds(o)
    a.cap = None
    LA = 2*cfg.la
    for n in range(LA): hload(n)
    pend = []; w0 = pwrites(0); tail = 0
    for n, (i, tt) in enumerate(hs):
        ii = i % 14
        for dt in range(2):
            a.wait(vm=f"a{n}", lg=f"g{i}")
            d = ACC2 + 16*(2*tt+dt)
            a(f"v_mfma_f32_32x32x16_bf16 v[{d}:{d+15}], v[{AR+4*(n&15)}:{AR+4*(n&15)+3}], v[{WB+8*ii+4*dt}:{WB+8*ii+4*dt+3}], {'0' if i == 0 else v(d,16)}")
            if pend: a.lds(*pend.pop(0))
            if NL and n >= 56 - NL:
                tail += 1
                if tail == 1: a("s_nop 6")
                elif tail == 2: a("s_nop 1"); pw(w0); pw(w0)
                else:
                    for _ in range(3):
                        if w0: pw(w0)
        if n + LA < 56: hload(n + LA)
        if i < 14 and tt == 1: pend = trs(ii, f"g{i+14}")
    stamp(14)
    if not NL: a("s_nop 7")
    while w0: pw(w0)
    k.lds_arrive(6, T0, T1)
    a("s_nop 3")
    w1 = pwrites(1)
    while w1: pw(w1)
    k.lds_arrive(7, T0, T1)
    stamp(15)
    k.flush_stamps()
    a("s_endpgm")
    for o in k.ool: a(o)

def gen_m(k):
    a, cfg, stamp = k.a, k.cfg, k.stamp
    w = S_WV
    S_TH, S_FH = 98, 99
    V16, QA, WA, VST = 1, 2, 4, 8
    T0, T1, T2, T3 = 10, 11, 12, 13
    VCW, VCR = 14, 15
    ACC, CS, QF, WF, ONES, B1F, STT, CSP, WA2, GR = 16, 80, 96, 128, 160, 164, 180, 188, 204, 248
    CA, CB, AD, EXW, EXR, YST, VXO, VSA, VB2, YS0, YS1, YA0, YA1, PA0, PA1, DV, JUNK = 208, 209, 210, 214, 215, 216, 217, 218, 219, 220, 221, 222, 223, 224, 225, 226, 227
    XR, XF, B1R = 96, 104, 120
    LAM = -(2*1.4426950408889634*0.7978845608028654*0.044715) ** (1/3)
    MU = 2*1.4426950408889634*0.7978845608028654 / -LAM
    VKA, VKB, VHALO, VTA, PK, PH, PV, PST, TAPS = 236, 237, 238, 239, 240, 241, 242, 243, 244
    a(f"s_lshl_b32 s{S_U0}, s{S_R}, 7\ns_lshl3_add_u32 s{S_U0}, s{S_C16}, s{S_U0}\ns_lshl1_add_u32 s{S_U0}, s{w}, s{S_U0}")
    a(f"s_lshl_b32 s{S_U1}, s{S_U0}, 10\ns_or_b32 s{S_U2}, s{S_J}, s{w}\ns_lshl_b32 s{S_T0}, s{w}, 1")
    a(f"v_xor_b32 v{T3}, s{S_T0}, v{T2}\nv_lshlrev_b32 v{T3}, 4, v{T3}\nv_lshl_add_u32 v{VKA}, v{T0}, 10, v{T3}")
    a(f"v_xor_b32 v{VKB}, 16, v{VKA}\nv_add_u32 v{VKB}, {8192-1024}, v{VKB}")
    a(f"s_lshl2_add_u32 s{S_U4}, s{S_J}, s{w}\ns_lshl_b32 s{S_U4}, s{S_U4}, 7\ns_add_u32 s{S_U4}, s{S_U4}, s{S_XCD}\ns_lshl_b32 s{S_U4}, s{S_U4}, 7")
    a(f"s_mov_b64 s[{R_K+2}:{R_K+3}], s[{R_Q+2}:{R_Q+3}]\ns_mov_b64 s[{R_V+2}:{R_V+3}], s[{R_Q+2}:{R_Q+3}]\ns_mov_b32 s{R_WS+2}, {WS_SIZE}\ns_mov_b32 s{R_WS+3}, s{R_Q+3}")
    for i in range(4): a(f"v_mov_b32 v{GR+i}, 0")
    a(f"v_and_b32 v{T3}, 16, v{V16}\nv_add_u32 v{T3}, {L_SYNC}, v{T3}\nds_write_b128 v{T3}, v[{GR}:{GR+3}]")
    a(f"s_add_u32 m0, s{S_B}, {L_KST+1024}")
    a("s_waitcnt lgkmcnt(0)")
    if cfg.wsoff: a(f"s_add_u32 s{P_WS}, s{P_WS}, {cfg.wsoff}\ns_addc_u32 s{P_WS+1}, s{P_WS+1}, 0")
    a(f"s_mov_b64 s[{R_Q}:{R_Q+1}], s[{P_Q}:{P_Q+1}]\ns_mov_b64 s[{R_K}:{R_K+1}], s[{P_K}:{P_K+1}]\ns_mov_b64 s[{R_V}:{R_V+1}], s[{P_V}:{P_V+1}]\ns_mov_b64 s[{R_WS}:{R_WS+1}], s[{P_WS}:{P_WS+1}]")
    LN = a.newlabel("Lnolead")
    a(f"s_cmp_lg_u32 s{S_U2}, 0\ns_cbranch_scc1 {LN}")
    a(f"v_min_u32 v{T3}, 47, v0\nv_lshlrev_b32 v{T3}, 8, v{T3}\ns_mul_i32 s{S_T0}, s2, {48*256}\ns_lshl_b32 s{S_T1}, s2, 11\ns_add_u32 s{S_T1}, s{S_T1}, {WS_STATS}")
    a(f"buffer_store_dwordx4 v[{GR}:{GR+3}], v{V16}, s[{R_WS}:{R_WS+3}], s{S_T1} offen sc1")
    a(f"buffer_store_dwordx4 v[{GR}:{GR+3}], v{V16}, s[{R_WS}:{R_WS+3}], s{S_T1} offen offset:1024 sc1")
    a(f"buffer_store_dword v{GR}, v{T3}, s[{R_WS}:{R_WS+3}], s{S_T0} offen sc1")
    a.label(LN)
    a.vmem(f"buffer_load_dwordx4 v[{XR}:{XR+3}], v{V16}, s[{R_Q}:{R_Q+3}], s{S_U1} offen {cfg.ntq}", "x")
    a.vmem(f"buffer_load_dwordx4 v[{XR+4}:{XR+7}], v{V16}, s[{R_Q}:{R_Q+3}], s{S_U1} offen offset:1024 {cfg.ntq}", "x")
    a.vmem(f"buffer_load_dwordx4 v{VKA}, s[{R_K}:{R_K+3}], s{S_U4} offen nt lds", "kv")
    a.vmem(f"buffer_load_dwordx4 v{VKB}, s[{R_K}:{R_K+3}], s{S_U4} offen offset:1024 nt lds", "kv")
    L = a.newlabel("Lhalo"); D = a.newlabel("Lsmd")
    a(f"s_cmp_eq_u32 s{w}, 3\ns_cbranch_scc1 {L}")
    a(f"s_lshl_b32 s{S_T0}, s{S_XCD}, 9\ns_lshl_b32 s{S_T1}, s{S_C}, 8\ns_cmp_eq_u32 s{w}, 0\ns_cselect_b64 s[{S_T2}:{S_T3}], s[{P_SH}:{P_SH+1}], s[{P_B1}:{P_B1+1}]\ns_cselect_b32 s{S_T0}, s{S_T0}, s{S_T1}")
    a(f"s_lshl_b32 s{S_T1}, s{S_C2}, 7\ns_cmp_eq_u32 s{w}, 2\ns_cselect_b64 s[{S_T2}:{S_T3}], s[{P_B2}:{P_B2+1}], s[{S_T2}:{S_T3}]\ns_cselect_b32 s{S_T0}, s{S_T1}, s{S_T0}")
    a(f"v_add_u32 v{VTA}, s{S_T0}, v{V16}\ns_lshr_b32 s{S_T0}, 32, s{w}\ns_lshl_b32 s{S_T1}, s{S_T0}, 5\ns_sub_u32 m0, {L_TAP+1024}, s{S_T1}\ns_bfm_b64 exec, s{S_T0}, 0")
    a(f"global_load_lds_dwordx4 v{VTA}, s[{S_T2}:{S_T3}]\ns_branch {D}")
    a.label(L)
    a(f"s_sub_u32 s{S_T0}, s{S_U4}, {56*1024}\ns_cselect_b32 s{S_T0}, 0, s{S_T0}\ns_cselect_b32 s{S_T1}, 0x80000010, 16")
    a(f"v_xor_b32 v{VHALO}, s{S_T1}, v{VKA}\ns_mov_b32 m0, {L_KST}\ns_lshl_b64 exec, -1, 40")
    a(f"buffer_load_dwordx4 v{VHALO}, s[{R_K}:{R_K+3}], s{S_T0} offen nt lds")
    a.label(D)
    a.vm.append("kv")
    a(f"s_add_u32 m0, s{S_B}, {L_VST}\ns_mov_b64 exec, -1")
    a.vmem(f"buffer_load_dwordx4 v{VKA}, s[{R_V}:{R_V+3}], s{S_U4} offen nt lds", "kv")
    a.vmem(f"buffer_load_dwordx4 v{VKB}, s[{R_V}:{R_V+3}], s{S_U4} offen offset:1024 nt lds", "kv")
    a("s_barrier")
    a("s_branch L_M2")
    k.split = len(a.lines)
    a(".p2align 6"); a.label("L_M2")
    stamp(0)
    a(f"s_and_b32 s{S_TH}, s{w}, 1\ns_lshr_b32 s{S_FH}, s{w}, 1")
    a(f"s_lshl_b32 s{S_T0}, s{S_XCD}, 5\ns_add_u32 s{S_T0}, s{S_T0}, s{S_J}\ns_lshl_b32 s{S_T0}, s{S_T0}, 2\ns_load_dword s{S_PV}, s[{P_D}:{P_D+1}], s{S_T0}")
    a(f"s_lshl_b32 s{S_T0}, s{w}, 7\ns_add_u32 s{S_T0}, s{S_T0}, {L_TAP}\nv_lshl_add_u32 v{VTA}, v{T0}, 4, s{S_T0}")
    a(f"v_xor_b32 v{T3}, 7, v{T2}\nv_lshlrev_b32 v{T3}, 4, v{T3}\nv_lshl_add_u32 v{PST}, v{T0}, 13, v{T3}")
    LN = a.newlabel("Lnolead")
    a(f"s_cmp_lg_u32 s{S_U2}, 0\ns_cbranch_scc1 {LN}")
    a(f"s_waitcnt vmcnt({len(a.vm)})\ns_lshl_b32 s{S_T0}, s2, 2\ns_mov_b32 s{S_ONE}, 1\ns_atomic_add s{S_ONE}, s[{P_DBG}:{P_DBG+1}], s{S_T0}")
    a.label(LN)
    srd(a, R_OUT, P_OUT, 2 << 20)
    a(f"v_and_b32 v{T2}, 15, v0\nv_lshrrev_b32 v{T3}, 1, v{T2}\nv_xor_b32 v{T3}, v{T3}, v{T1}\nv_lshlrev_b32 v{T3}, 4, v{T3}\nv_lshl_add_u32 v{T3}, v{T2}, 7, v{T3}")
    a(f"s_lshl_b32 s{S_T0}, s{S_TH}, 6\nv_xor_b32 v{T3}, s{S_T0}, v{T3}")
    a(f"s_lshl_b32 s{S_T0}, s{S_TH}, 13\nv_add_u32 v{QA}, s{S_T0}, v{T3}\nv_xor_b32 v{QA+1}, 64, v{QA}\nv_lshlrev_b32 v{VST}, 3, v{T2}")
    a(f"v_bfe_u32 v{T2}, v0, 2, 3")
    a(f"v_bfe_u32 v{T3}, v0, 2, 2\nv_lshl_add_u32 v{T3}, v{T1}, 3, v{T3}\nv_lshlrev_b32 v{T3}, 8, v{T3}\nv_and_b32 v{T0}, 3, v0\nv_lshl_add_u32 v{T3}, v{T0}, 3, v{T3}")
    a(f"v_add_u32 v{T3}, {L_W}, v{T3}")
    a(f"s_lshl_b32 s{S_T1}, s{S_FH}, 2")
    for i in range(4):
        a(f"v_xor_b32 v{T0}, s{S_T1}, v{T2}\ns_add_u32 s{S_T1}, s{S_T1}, 1")
        a(f"v_lshl_add_u32 v{WA+i}, v{T0}, 5, v{T3}")
    a(f"s_lshl_b32 s{S_T0}, s{S_TH}, 13\ns_xor_b32 s{S_T1}, s{S_T0}, 8192")
    for i in range(4): a(f"v_add_u32 v{WA2+i}, s{S_T1}, v{WA+i}\nv_add_u32 v{WA+i}, s{S_T0}, v{WA+i}")
    a(f"v_bfe_u32 v{T0}, v0, 2, 2\nv_mov_b32 v{T3}, 0x3f803f80")
    for i in range(4):
        a(f"v_cmp_eq_u32 vcc, {i}, v{T0}\ns_nop 1")
        for r in range(4): a(f"v_cndmask_b32 v{CS+4*i+r}, 0, v{T3}, vcc")
    a(f"s_lshl_b32 s{S_T0}, s{w}, 8\ns_add_u32 s{S_T0}, s{S_T0}, {L_CS}\nv_and_b32 v{VCR}, 48, v0\nv_lshl_add_u32 v{VCW}, v{T0}, 6, v{VCR}\nv_add_u32 v{VCW}, s{S_T0}, v{VCW}")
    a(f"s_lshl_b32 s{S_T0}, s{S_FH}, 9\ns_add_u32 s{S_T0}, s{S_T0}, {L_CS}\nv_add_u32 v{VCR}, s{S_T0}, v{VCR}")
    a(f"s_lshl_b32 s{S_U3}, s{S_R}, 10\ns_lshl_b32 s{S_T0}, s{S_TH}, 9\ns_add_u32 s{S_U3}, s{S_U3}, s{S_T0}\ns_add_u32 s{S_U3}, s{S_U3}, {WS_STATS}")
    a(f"s_mul_i32 s{S_T0}, s{S_FH}, {CH_STRIDE}\ns_lshl_b32 s{S_T1}, s{S_TH}, 8\ns_add_u32 s{S_T0}, s{S_T0}, s{S_T1}")
    a(f"s_add_u32 s{S_T1}, s{S_T0}, {L_CT+U_OFF+448}\ns_add_u32 s{S_T0}, s{S_T0}, {L_CT+128-56}")
    a(f"v_and_b32 v{T0}, 1, v0\nv_bfe_u32 v{T2}, v0, 1, 3")
    a(f"v_mul_u32_u24 v{CA}, {H_STRIDE}, v{T0}\nv_lshl_add_u32 v{CA}, v{T2}, 3, v{CA}\nv_lshl_add_u32 v{CA}, v{T1}, 4, v{CA}\nv_add_u32 v{CA}, s{S_T0}, v{CA}")
    a(f"v_mul_u32_u24 v{CB}, {U_STRIDE}, v{T0}\nv_lshl_add_u32 v{CB}, v{T1}, 4, v{CB}\nv_add_u32 v{CB}, s{S_T1}, v{CB}\nv_lshlrev_b32 v{T3}, 6, v{T2}\nv_sub_u32 v{CB}, v{CB}, v{T3}")
    a(f"v_xor_b32 v{AD+1}, 1, v{T0}\nv_lshlrev_b32 v{AD+1}, 4, v{AD+1}")
    a(f"v_lshlrev_b32 v{AD+3}, 1, v{T2}\nv_lshl_add_u32 v{AD+3}, v{T1}, 2, v{AD+3}")
    a(f"s_lshl_b32 s{S_T0}, s{w}, 13\ns_add_u32 s{S_T0}, s{S_T0}, {L_CT}\nv_add_u32 v{EXW}, s{S_T0}, v{V16}")
    a(f"s_add_u32 s{S_T0}, s{S_B}, {L_CT}\nv_add_u32 v{EXR}, s{S_T0}, v{V16}")
    a(f"v_bfe_u32 v{T0}, v0, 2, 2\nv_and_b32 v{T3}, 3, v0\nv_lshlrev_b32 v{T0}, 8, v{T0}\nv_lshl_add_u32 v{T0}, v{T1}, 6, v{T0}\nv_lshl_add_u32 v{YST}, v{T3}, 4, v{T0}")
    a(f"s_lshl_b32 s{S_T0}, s{S_XCD}, 5\ns_add_u32 s{S_T0}, s{S_T0}, s{S_J}\ns_lshl_b32 s{S_T0}, s{S_T0}, 13\ns_add_u32 s{S_T0}, s{S_T0}, s{S_B}\ns_add_u32 s{S_T0}, s{S_T0}, {WS_Y}\nv_add_u32 v{YST}, s{S_T0}, v{YST}")
    a(f"s_lshl_b32 s{S_T1}, s{w}, 1\nv_and_b32 v{T0}, 15, v0\nv_xor_b32 v{T0}, s{S_T1}, v{T0}\nv_lshlrev_b32 v{T0}, 4, v{T0}\nv_lshl_add_u32 v{YS0}, v{T1}, 13, v{T0}\nv_xor_b32 v{YS1}, 16, v{YS0}")
    a(f"s_lshl_b32 s{S_T1}, s{S_C2}, 18\ns_lshl_b32 s{S_T2}, s{S_R2}, 8\ns_add_u32 s{S_T1}, s{S_T1}, s{S_T2}\ns_lshl_b32 s{S_T2}, s{w}, 16\ns_add_u32 s{S_T1}, s{S_T1}, s{S_T2}\ns_add_u32 s{S_T1}, s{S_T1}, {WS_Y}")
    a(f"s_add_u32 s{S_T2}, s{S_T1}, {4*8192-1024}\nv_add_u32 v{YS0}, s{S_T1}, v{YS0}\nv_add_u32 v{YS1}, s{S_T2}, v{YS1}")
    RHO, OCT, TOFF = ACC, ACC+1, ACC+2
    a(f"v_lshrrev_b32 v{RHO}, 3, v0\nv_and_b32 v{OCT}, 7, v0")
    a(f"v_and_b32 v{TOFF}, 1, v{RHO}\nv_bfe_u32 v{T0}, v{RHO}, 1, 1\nv_lshl_add_u32 v{TOFF}, v{T0}, 2, v{TOFF}\nv_lshrrev_b32 v{T2}, 2, v{RHO}\nv_lshl_add_u32 v{TOFF}, v{T2}, 1, v{TOFF}")
    a(f"s_lshl_b32 s{S_T1}, s{S_R2}, 6\ns_lshl3_add_u32 s{S_T1}, s{w}, s{S_T1}\nv_add_u32 v{T3}, s{S_T1}, v{TOFF}")
    a(f"s_lshl_b32 s{S_T2}, s{S_C2}, 7\nv_lshl_add_u32 v{VB2}, v{OCT}, 4, s{S_T2}\nv_lshl_add_u32 v{VXO}, v{T3}, 10, v{VB2}\nv_lshlrev_b32 v{VB2}, 4, v{OCT}\nv_add_u32 v{VB2}, {L_B2}, v{VB2}\nv_lshlrev_b32 v{VSA}, 3, v{T3}\nv_add_u32 v{VSA}, {WS_STATS}, v{VSA}")
    a(f"s_lshl_b32 s{S_T0}, s{w}, 2\ns_or_b32 s{S_T0}, s{S_T0}, 1\nv_xor_b32 v{T0}, s{S_T0}, v{T2}\nv_xor_b32 v{T0}, v{T0}, v{OCT}\nv_lshlrev_b32 v{T0}, 4, v{T0}")
    a(f"v_lshl_add_u32 v{T0}, v{OCT}, 10, v{T0}\nv_and_b32 v{T2}, 3, v{RHO}\nv_lshl_add_u32 v{T0}, v{T2}, 2, v{T0}")
    a(f"v_xor_b32 v{YA1}, 32, v{T0}\nv_add_u32 v{YA0}, {L_YST}, v{T0}\nv_add_u32 v{YA1}, {L_YST}, v{YA1}")
    a(f"v_and_b32 v{T0}, 3, v{TOFF}\nv_lshlrev_b32 v{T0}, 8, v{T0}\nv_lshrrev_b32 v{T2}, 2, v{TOFF}\nv_lshl_add_u32 v{T0}, v{T2}, 7, v{T0}\nv_and_b32 v{T2}, 3, v{OCT}\nv_lshl_add_u32 v{T0}, v{T2}, 5, v{T0}")
    a(f"s_lshl_b32 s{S_T0}, s{S_FH}, 13\ns_lshl_b32 s{S_T1}, s{S_TH}, 10\ns_add_u32 s{S_T0}, s{S_T0}, s{S_T1}")
    a(f"s_lshl_b32 s{S_T1}, s{w}, 13\ns_add_u32 s{S_T1}, s{S_T1}, {4*8192+16}")
    a(f"v_mov_b32 v{PA0}, s{S_T0}\nv_mov_b32 v{T2}, s{S_T1}\nv_cmp_lt_u32 vcc, 3, v{OCT}\nv_mov_b32 v{T3}, 16384\nv_mov_b32 v{PA1}, 32768")
    a(f"v_cndmask_b32 v{PA0}, v{PA0}, v{T2}, vcc\nv_cndmask_b32 v{T3}, v{T3}, v{PA1}, vcc\nv_add_u32 v{PA0}, v{T0}, v{PA0}\nv_add_u32 v{PA1}, v{PA0}, v{T3}")
    a(f"s_lshl_b32 s{S_T0}, s{w}, 1\nv_lshrrev_b32 v{PV}, 5, v0\nv_add_u32 v{PV}, s{S_T0}, v{PV}")
    a(f"v_bfe_u32 v{T2}, v0, 3, 2\nv_lshlrev_b32 v{T2}, 2, v{T2}\nv_lshl_add_u32 v{T2}, v{OCT}, 10, v{T2}")
    a(f"v_add_u32 v{T3}, 7, v{OCT}\nv_and_b32 v{T3}, 7, v{T3}\nv_xor_b32 v{T3}, v{PV}, v{T3}\nv_lshl_add_u32 v{PH}, v{T3}, 4, v{T2}\nv_add_u32 v{PH}, {L_KST}, v{PH}")
    a(f"v_xor_b32 v{T3}, v{PV}, v{OCT}\nv_lshl_add_u32 v{PK}, v{T3}, 4, v{T2}")
    a(f"v_add_u32 v{PV}, {L_VST}, v{PK}\nv_add_u32 v{PK}, {L_KST+1024}, v{PK}")
    a(f"s_lshl_b32 s{S_T0}, s{S_FH}, 7\ns_add_u32 s{S_T0}, s{S_T0}, {L_B1}\nv_lshl_add_u32 v{DV}, v{T1}, 3, s{S_T0}")
    a.wait(vm="x")
    for n in range(2):
        for m in range(4):
            a(f"v_lshlrev_b32 v{XF+8*n+2*m}, 16, v{XR+4*n+m}\nv_and_b32 v{XF+8*n+2*m+1}, 0xffff0000, v{XR+4*n+m}")
    SM = XR
    def reduce2():
        for dpp in ("row_shr:1 row_mask:0xf bank_mask:0xf bound_ctrl:0", "row_shr:2 row_mask:0xf bank_mask:0xf bound_ctrl:0", "row_shr:4 row_mask:0xf bank_mask:0xf bound_ctrl:0",
                    "row_shr:8 row_mask:0xf bank_mask:0xf bound_ctrl:0", "row_bcast:15 row_mask:0xa bank_mask:0xf", "row_bcast:31 row_mask:0xc bank_mask:0xf"):
            a("s_nop 0")
            for n in range(2): a(f"v_add_f32_dpp v{SM+n}, v{SM+n}, v{SM+n} {dpp}")
    for n in range(2): a(f"v_add_f32 v{SM+n}, v{XF+8*n}, v{XF+8*n+1}")
    for m in range(2, 8):
        for n in range(2): a(f"v_add_f32 v{SM+n}, v{SM+n}, v{XF+8*n+m}")
    reduce2()
    for n in range(2): a(f"v_mul_f32 v{SM+2+n}, {f32(1/512)}, v{SM+n}")
    a(f"v_readlane_b32 s{S_T0}, v{SM+2}, 63\nv_readlane_b32 s{S_T1}, v{SM+3}, 63\ns_nop 0")
    for n in range(2):
        for m in range(8): a(f"v_subrev_f32 v{XF+8*n+m}, s{S_T0+n}, v{XF+8*n+m}")
    for n in range(2): a(f"v_mul_f32 v{SM+n}, v{XF+8*n}, v{XF+8*n}")
    for m in range(1, 8):
        for n in range(2): a(f"v_fmac_f32 v{SM+n}, v{XF+8*n+m}, v{XF+8*n+m}")
    reduce2()
    a(f"v_mov_b32 v{T1}, {f32(1e-5)}")
    for n in range(2): a(f"v_fmamk_f32 v{SM+n}, v{SM+n}, {f32(1/512)}, v{T1}")
    for n in range(2): a(f"v_rsq_f32 v{SM+n}, v{SM+n}")
    for n in range(2): a(f"v_or_b32 v{GR+2*n}, 1, v{SM+2+n}")
    for n in range(2): a(f"v_or_b32 v{GR+2*n+1}, 1, v{SM+n}")
    a(f"s_lshl_b32 s{S_U0}, s{S_U0}, 3\ns_add_u32 s{S_U0}, s{S_U0}, {WS_STATS}")
    stamp(14)
    KR, VR, KF, TF, VF, OUT, PA = 16, 28, 36, 60, 144, 228, 128
    def urstore(e): a.vmem(f"buffer_store_dwordx4 v[{OUT+4*e}:{OUT+4*e+3}], v{PST}, s[{R_WS}:{R_WS+3}], s{(S_U4, S_U5)[e]} offen sc1", "ur")
    a.wait(vm="kv")
    k.lds_arrive(5, T0, T1)
    a(f"s_lshl_b32 s{S_T2}, s{S_XCD}, 18\ns_lshl_b32 s{S_T3}, s{w}, 16\ns_add_u32 s{S_T2}, s{S_T2}, s{S_T3}")
    a(f"s_lshl_b32 s{S_T3}, s{S_J}, 7\ns_sub_u32 s{S_T2}, s{S_T2}, s{S_T3}\ns_add_u32 s{S_U4}, s{S_T2}, {WS_UR + 2*1984}\ns_add_u32 s{S_U5}, s{S_U4}, 4096")
    k.lds_wait(5, T0, T1, setaddr=False)
    stamp(15)
    a.lds(f"ds_read_b128 v[{TAPS}:{TAPS+3}], v{VTA}", "k")
    a.lds(f"ds_read_b32 v{KR+1}, v{PH} offset:{5*128}", "k")
    a.lds(f"ds_read2_b32 v[{KR+2}:{KR+3}], v{PH} offset0:{6*32} offset1:{7*32}", "k")
    for i in range(4): a.lds(f"ds_read2_b32 v[{KR+4+2*i}:{KR+5+2*i}], v{PK} offset0:{64*i} offset1:{64*i+32}", "k")
    for i in range(4): a.lds(f"ds_read2_b32 v[{VR+2*i}:{VR+1+2*i}], v{PV} offset0:{64*i} offset1:{64*i+32}", "v")
    for i in range(2): a.lds(f"ds_read2_b64 v[{B1R+4*i}:{B1R+4*i+3}], v{DV} offset0:{8*i} offset1:{8*i+4}", "b1")
    a.wait(lg="k")
    for m in range(4): a(f"v_lshlrev_b32 v{TF+4*(m&1)+(m>>1)}, 16, v{TAPS+m}\nv_and_b32 v{TF+4*(m&1)+2+(m>>1)}, 0xffff0000, v{TAPS+m}")
    for i in range(1, 12): a(f"v_lshlrev_b32 v{KF+2*i}, 16, v{KR+i}\nv_and_b32 v{KF+2*i+1}, 0xffff0000, v{KR+i}")
    a.wait(lg="v")
    for t in range(8): a(f"v_lshlrev_b32 v{VF+2*t}, 16, v{VR+t}\nv_and_b32 v{VF+2*t+1}, 0xffff0000, v{VR+t}")
    a(".p2align 3")
    for t in range(8): a(f"v_pk_mul_f32 v[{PA+2*t}:{PA+2*t+1}], v[{KF+2*(1+t)}:{KF+2*(1+t)+1}], v[{TF+6}:{TF+7}]")
    for tau in (2, 1, 0):
        for t in range(8): a(f"v_pk_fma_f32 v[{PA+2*t}:{PA+2*t+1}], v[{KF+2*(4+t-tau)}:{KF+2*(4+t-tau)+1}], v[{TF+2*tau}:{TF+2*tau+1}], v[{PA+2*t}:{PA+2*t+1}]")
    for t in range(8): a(f"v_pk_mul_f32 v[{PA+2*t}:{PA+2*t+1}], v[{PA+2*t}:{PA+2*t+1}], v[{VF+2*t}:{VF+2*t+1}]")
    for e in range(2):
        for m in range(4): a(f"v_cvt_pk_bf16_f32 v{OUT+4*e+m}, v{PA+2*(7-2*m)+e}, v{PA+2*(6-2*m)+e}")
        if cfg.urst < 0: urstore(e)
    a.wait(lg="b1")
    for i in range(8): a(f"v_lshlrev_b32 v{B1F+2*i}, 16, v{B1R+i}\nv_and_b32 v{B1F+2*i+1}, 0xffff0000, v{B1R+i}")
    for i in range(16): a(f"v_mul_f32 v{B1F+i}, {f32(LAM)}, v{B1F+i}")
    a(f"s_lshl_b32 s{S_T0}, s{S_FH}, 4\ns_lshr_b32 s{S_PV}, s{S_PV}, s{S_T0}\ns_and_b32 s{S_PV}, s{S_PV}, 0xffff\nv_mov_b32 v{DV}, s{S_PV}")
    a(f"v_lshlrev_b32 v{DV}, v{AD+1}, v{DV}\ns_sub_u32 s{S_T2}, s{S_TH}, 1\nv_and_b32 v{DV}, s{S_T2}, v{DV}")
    a(f"v_cmp_eq_u32 vcc, 14, v{AD+3}\nv_mov_b32 v{AD+1}, 0\ns_nop 0\nv_cndmask_b32 v{AD}, 0, v{DV}, vcc")
    a(f"v_cmp_eq_u32 vcc, 12, v{AD+3}\nv_mov_b32 v{AD+3}, 0\ns_nop 0\nv_cndmask_b32 v{AD+2}, 0, v{DV}, vcc")
    S_H0, S_H1, S_INC, S_YP, S_YC = R_X0, R_X0+1, R_X0+2, R_X0+3, 17
    a(f"s_lshl1_add_u32 s{S_T0}, s{S_R}, s{S_TH}\ns_lshl1_add_u32 s{S_T2}, s{S_C}, s{S_FH}")
    a(f"s_mul_i32 s{S_T1}, s{S_T0}, {224*1024}\ns_lshl_b32 s{S_T3}, s{S_T2}, 12\ns_add_u32 s{S_T1}, s{S_T1}, s{S_T3}\ns_add_u32 s{S_H0}, s{S_T1}, {WS_H}\ns_add_u32 s{S_H1}, s{S_H0}, {112*1024}")
    a(f"s_mul_i32 s{S_T1}, s{S_T2}, 37\ns_lshr_b32 s{S_T1}, s{S_T1}, 8\ns_lshl2_add_u32 s{S_T0}, s{S_T0}, s{S_T1}\ns_add_u32 s{S_T0}, s{S_T0}, {CNT_H}\ns_lshl_b32 s{S_PUB}, s{S_T0}, 8")
    a(f"s_cmp_lg_u32 s{S_CL}, 7\ns_cselect_b32 s{S_INC}, 1, 0")
    a(f"s_lshl2_add_u32 s{S_T0}, s{S_XCD}, s{w}\ns_lshr_b32 s{S_T1}, s{S_J}, 3\ns_lshl2_add_u32 s{S_T0}, s{S_T0}, s{S_T1}\ns_add_u32 s{S_T0}, s{S_T0}, {CNT_Y}\ns_lshl_b32 s{S_YP}, s{S_T0}, 8")
    a(f"s_lshr_b32 s{S_T0}, s{S_R2}, 3\ns_lshl2_add_u32 s{S_T0}, s{S_C2}, s{S_T0}\ns_lshl2_add_u32 s{S_T0}, s{S_T0}, s{w}\ns_add_u32 s{S_T0}, s{S_T0}, {CNT_Y}\ns_lshl_b32 s{S_YC}, s{S_T0}, 8")
    KC = T2
    a(f"v_mov_b32 v{KC}, {f32(MU)}\nv_mov_b32 v{KC+1}, {f32(LAM)}\ns_mov_b32 s{S_U1}, 32768")
    def publish():
        a(f"s_mov_b32 exec_lo, 0\ns_mov_b32 exec_hi, 0x80000000")
        a.vmem(f"buffer_store_dwordx4 v[{GR}:{GR+3}], off, s[{R_WS}:{R_WS+3}], s{S_U0} sc1", "pub")
        a(f"s_mov_b64 exec, -1")
    def stats_loads():
        for tau in range(4):
            a(f"buffer_load_dwordx2 v[{STT+2*tau}:{STT+2*tau+1}], v{VST}, s[{R_WS}:{R_WS+3}], s{S_U3} offen offset:{128*tau} sc1")
    a.wait(lg="all")
    stamp(1)
    def rd(i, ks):
        slot = (i % 3) * 16384; b = 16*ks; wa = (WA, WA2)[ks]
        def W(n): return [(f"ds_read_b64_tr_b16 v[{WF+b+4*n+2*h}:{WF+b+4*n+2*h+1}], v{wa+n} offset:{slot+1024*h}", f"W{i}{ks}{n}") for h in range(2)]
        def Q(t): return [(f"ds_read_b128 v[{QF+b+4*t}:{QF+b+4*t+3}], v{QA+ks} offset:{slot+2048*t}", f"Q{i}{ks}{t}")]
        if cfg.x_nolds: return []
        return W(0) + Q(0) + Q(1) + Q(2) + Q(3) + W(1) + W(2) + W(3)
    def mm(i, ks, n, t):
        b = 16*ks
        if t == "cs":
            d = ONES; B = CS + 4*n; first = (i == 0 and n == 0); tags = [f"W{i}{ks}{n}"]
        else:
            d = ACC + 4*(4*n+t); B = QF+b+4*t; first = (i == 0 and ks == 0); tags = [f"W{i}{ks}{n}", f"Q{i}{ks}{t}"]
            if cfg.coarse and n == 0 and t == 0 and (i, ks) != (0, 0): tags.append(f"Q{i}{ks}3")
        a.wait(lg=tags)
        if cfg.x_nomfma: return
        a(f"v_mfma_f32_16x16x32_bf16 v[{d}:{d+3}], v[{WF+b+4*n}:{WF+b+4*n+3}], v[{B}:{B+3}], {'0' if first else v(d,4)}")
    base = [(n, t) for n in range(4) for t in range(4)]
    withcs = sum([base[4*n:4*n+4] + [(n, "cs")] for n in range(4)], [])
    VSY = JUNK
    a(f"v_mov_b32 v{VSY}, {L_SYNC}")
    def ur_signal(): a.wait(vm="ur"); a(f"s_sub_u32 s{S_T0}, s{S_YP}, {CNT_Y*256}"); k.signal(S_T0)
    a("s_barrier")
    stamp(2)
    a(f"s_cmp_eq_u32 s{S_CL}, 7\ns_cbranch_scc1 L_Mh")
    for ins, tag in rd(0, 0): a.lds(ins, tag)
    def stats_check():
        L = a.newlabel("Lst"); B = a.newlabel("Lstb")
        chk = (f"v_min3_u32 v{T0}, v{STT}, v{STT+1}, v{STT+2}\nv_min3_u32 v{T1}, v{STT+3}, v{STT+4}, v{STT+5}", f"v_min3_u32 v{T0}, v{T0}, v{STT+6}, v{STT+7}\nv_min_u32 v{T0}, v{T0}, v{T1}", f"v_cmp_eq_u32 vcc, 0, v{T0}")
        n0 = len(a.lines); stats_loads(); ld = "\n".join(a.lines[n0:]); del a.lines[n0:]
        k.ool.append(f"{L}:\n{ld}\ns_add_u32 s{S_SPIN}, s{S_SPIN}, 1\ns_waitcnt vmcnt(0)\n" + "\n".join(chk) + f"\ns_cmp_gt_u32 s{S_SPIN}, {SPIN_MAX}\ns_cbranch_scc1 {B}\ns_cbranch_vccnz {L}\ns_branch {B}")
        return (["s_waitcnt vmcnt(0)\n" + chk[0], chk[1], chk[2] + f"\ns_mov_b32 s{S_SPIN}, 0\ns_cbranch_vccnz {L}\n{B}:"] +
                [f"v_mul_f32 v{STT+4*q+1}, v{KC+1}, v{STT+4*q+1}\nv_mul_f32 v{STT+4*q+3}, v{KC+1}, v{STT+4*q+3}" for q in range(2)] +
                [f"v_mul_f32 v{STT+4*q}, v{STT+4*q}, v{STT+4*q+1}\nv_mul_f32 v{STT+4*q+2}, v{STT+4*q+2}, v{STT+4*q+3}" for q in range(2)])
    for i in range(8):
        pend = rd(i, 1)
        lastA = base[:4] + [(n, "cs") for n in range(4)] + base[4:]
        for q, (n, t) in enumerate(base if i < 7 else lastA):
            if i == 7 and q % 4 == 0: k.lstamp("g1end")
            mm(i, 0, n, t)
            if pend: a.lds(*pend.pop(0))
            elif i == 7 and q == 13:
                a(f"s_mov_b64 exec, s[{S_T2}:{S_T3}]")
                a.lds(f"ds_write_b128 v{VCW}, v[{ONES}:{ONES+3}]")
                a("s_mov_b64 exec, -1")
            elif i == 7 and q == 14:
                a(f"v_mov_b32 v{T1}, 1\ns_mov_b64 exec, 1"); a.lds(f"ds_add_u32 v{VSY}, v{T1} offset:16"); a("s_mov_b64 exec, -1")
        if i < 7:
            pend = rd(i+1, 0)
            for q, (n, t) in enumerate(withcs):
                mm(i, 1, n, t)
                if q == cfg.bq:
                    a.wait(lg="all")
                    a("s_barrier")
                    if i == cfg.urseg: ur_signal()
                    if i == cfg.urst: urstore(0); urstore(1)
                    if i == 0: publish()
                    if i == cfg.stseg: stats_loads()
                    if i == 6: k.lstamp("g1end")
                    if i == 6: a(f"s_mov_b32 s{S_T2}, 0x11111111\ns_mov_b32 s{S_T3}, s{S_T2}")
                if q >= cfg.bq + (0 if cfg.rdnow else 1) and pend: a.lds(*pend.pop(0))
        else:
            side = stats_check()
            pend = [(f"ds_read_b128 v[{(CS, CSP)[h]+4*n2}:{(CS, CSP)[h]+4*n2+3}], v{VCR} offset:{64*n2+256*h}", f"csp{n2}") for n2 in range(4) for h in range(2)]
            for q, (n, t) in enumerate(base):
                if q % 3 == 0: k.lstamp("g1end")
                mm(i, 1, n, t)
                if q == 0: k.lds_peek(4, VSY, GR, "pk4")
                if q == 5: k.lds_check(4, VSY, GR, "pk4")
                if q >= 5 and pend: a.lds(*pend.pop(0))
                if side and q != 5: a(side.pop(0))
        assert not pend
    a.vm = []
    if cfg.xprio: a("s_setprio 2")
    stamp(3)
    for m in range(0, 16, 2):
        if m % 8 == 0: a.wait(lg=f"csp{m//4+1}"); a(".p2align 3")
        a(f"v_pk_add_f32 v[{CS+m}:{CS+m+1}], v[{CS+m}:{CS+m+1}], v[{CSP+m}:{CSP+m+1}]")
    CACC, FAB = 16, ((96, 128), (48, 160))
    def reads(cc):
        FA, FB = FAB[cc & 1]; r = []
        for n in range(8):
            r.append((f"ds_read_b128 v[{FB+4*n}:{FB+4*n+3}], v{CB} offset:{3584-512*n+64*cc}", f"B{cc}_{n}"))
            for hf in range(2): r.append((f"ds_read_b64 v[{FA+4*n+2*hf}:{FA+4*n+2*hf+1}], v{CA} offset:{512*n+64*cc+8*hf}", f"A{cc}_{n}"))
        return r
    pend = reads(0)
    hq = []
    units = [(n, p) for n in range(4) for p in range(2)]
    for u, (n, p) in enumerate(units):
        k.lstamp("gelu")
        if u == 7: k.lds_peek(0, VSY, GR, "pk0")
        E = CSP + 8*(u & 1); O = 228 + 4*(u & 3)
        prs = [(ACC + 4*(4*n+2*p+tl) + 2*hh, 2*p+tl, 2*hh, E + 4*tl + 2*hh) for tl in range(2) for hh in range(2)]
        for z, tau, hh, e in prs: a(f"v_pk_fma_f32 v[{e}:{e+1}], v[{CS+4*n+hh}:{CS+4*n+hh+1}], v[{STT+2*tau}:{STT+2*tau+1}], v[{B1F+4*n+hh}:{B1F+4*n+hh+1}] op_sel_hi:[1,0,1] neg_lo:[0,1,0] neg_hi:[0,1,0]")
        for z, tau, hh, e in prs: a(f"v_pk_fma_f32 v[{z}:{z+1}], v[{z}:{z+1}], v[{STT+2*tau}:{STT+2*tau+1}], v[{e}:{e+1}] op_sel:[0,1,0]")
        for z, tau, hh, e in prs: a(f"v_pk_fma_f32 v[{e}:{e+1}], v[{z}:{z+1}], v[{z}:{z+1}], v[{KC}:{KC+1}] op_sel_hi:[1,1,0]")
        for z, tau, hh, e in prs: a(f"v_pk_mul_f32 v[{e}:{e+1}], v[{e}:{e+1}], v[{z}:{z+1}]")
        for m in range(8): a(f"v_exp_f32 v{E+m}, v{E+m}")
        for z, tau, hh, e in prs: a(f"v_pk_fma_f32 v[{e}:{e+1}], v[{e}:{e+1}], v[{KC}:{KC+1}], v[{KC}:{KC+1}] op_sel:[0,1,1]")
        if u == 7 and cfg.earlyrd: k.lds_check(0, VSY, GR, "pk0")
        for m in range(8):
            a(f"v_rcp_f32 v{E+m}, v{E+m}")
            if u == 7 and m < cfg.earlyrd: a.lds(*pend.pop(0))
        for z, tau, hh, e in prs: a(f"v_pk_mul_f32 v[{z}:{z+1}], v[{z}:{z+1}], v[{e}:{e+1}]")
        for q in (0, 2, 1, 3): a(f"v_cvt_pk_bf16_f32 v{O+q}, v{prs[q][0]}, v{prs[q][0]+1}")
        flush = u in cfg.hgroups
        a(f"v_permlane16_swap_b32 v{O}, v{O+2}\ns_nop 0\nv_permlane16_swap_b32 v{O+1}, v{O+3}\ns_nop 0")
        so = (S_H0, S_H1)[p]
        hq.append((f"buffer_store_dwordx4 v[{O}:{O+3}], v{V16}, s[{R_WS}:{R_WS+3}], s{so} offen offset:{1024*n} sc1", "h" if u > 3 else "ha"))
        if flush:
            while hq: a.vmem(*hq.pop(0))
    k.lstamp("gelu")
    stamp(5)
    if cfg.xprio: a("s_setprio 0")
    assert cfg.earlyrd
    n0 = len(a.lines); sv = (list(a.vm), list(a.lg)); a.vm = []; a.lg = []
    a.label("L_Mh")
    a("s_barrier")
    urstore(0); urstore(1); publish()
    a(f"v_mov_b32 v{T1}, 1\ns_mov_b64 exec, 1\nds_add_u32 v{VSY}, v{T1} offset:16\ns_mov_b64 exec, -1")
    ur_signal()
    k.lds_wait(0, VSY, GR, setaddr=False, sleep=2)
    for ins, tag in reads(0)[:cfg.earlyrd]: a(ins)
    a("s_branch L_Mj")
    k.ool.append("\n".join(a.lines[n0:])); del a.lines[n0:]
    a.vm, a.lg = sv
    a.label("L_Mj")
    stamp(6)
    while len(pend) > 15: a.lds(*pend.pop(0))
    cnt = [0]
    def tick():
        if cnt[0] == cfg.asigpos: a.wait(vm="ha"); a(f"s_atomic_add s{S_INC}, s[{P_WS}:{P_WS+1}], s{S_PUB}")
        if cnt[0] == cfg.hsigpos: a.wait(vm="h"); a(f"s_lshl_b32 s{S_ONE}, s{S_INC}, 8\ns_atomic_add s{S_ONE}, s[{P_WS}:{P_WS+1}], s{S_PUB}")
        if cnt[0] % 14 == 0 or cnt[0] == 152: k.lstamp("conv")
        cnt[0] += 1
    tick()
    wq = []
    for cc in range(4):
        FA, FB = FAB[cc & 1]
        nxt = reads(cc+1) if cc < 3 else []
        for T in range(8):
            for an in ([-1] if cc == 0 else []) + list(range(T+1)):
                d = CACC + 4*T
                if an < 0:
                    a.wait(lg=f"B0_{T}")
                    a(f"v_mfma_f32_16x16x32_bf16 v[{d}:{d+3}], v[{AD}:{AD+3}], v[{FB+4*T}:{FB+4*T+3}], 0")
                else:
                    e = T - an
                    a.wait(lg=[f"A{cc}_{an}", f"B{cc}_{e}"])
                    a(f"v_mfma_f32_16x16x32_bf16 v[{d}:{d+3}], v[{FA+4*an}:{FA+4*an+3}], v[{FB+4*e}:{FB+4*e+3}], v[{d}:{d+3}]")
                if pend: a.lds(*pend.pop(0))
                elif nxt:
                    a.lds(*nxt.pop(0))
                    if cc == 2 and not nxt:
                        a(f"v_mov_b32 v{T1}, 1\ns_mov_b64 exec, 1"); a.lds(f"ds_add_u32 v{VSY}, v{T1} offset:4"); a("s_mov_b64 exec, -1")
                tick()
                if cc == 3:
                    if (T, an) == (1, 0): k.lds_peek(1, VSY, T0, "pk1")
                    if (T, an) == (3, 2): k.lds_check(1, VSY, T0, "pk1")
                    if an == T: wq.append((cnt[0] + 8, T))
                    if wq and wq[0][0] <= cnt[0] and (T, an) > (3, 2):
                        T2_ = wq.pop(0)[1]
                        a.lds(f"ds_write_b128 v{EXW}, v[{CACC+4*T2_}:{CACC+4*T2_+3}] offset:{1024*T2_}")
        assert not pend and not nxt
    stamp(7)
    assert [t for _, t in wq] == [7]
    a("s_nop 6")
    a.lds(f"ds_write_b128 v{EXW}, v[{CACC+28}:{CACC+31}] offset:{1024*7}")
    a(f"s_mov_b64 exec, 1"); a.lds(f"ds_add_u32 v{VSY}, v{T1} offset:8"); a("s_mov_b64 exec, -1")
    k.lds_wait(2, VSY, T0, setaddr=False)
    FA = 48
    for tt in range(2):
        for src in range(4):
            a.lds(f"ds_read_b128 v[{FA+16*tt+4*src}:{FA+16*tt+4*src+3}], v{EXR} offset:{8192*src+1024*tt}", f"e{tt}")
    for tt in range(2):
        a.wait(lg=f"e{tt}")
        b = FA + 16*tt
        for r in range(4): a(f"v_add_f32 v{b+r}, v{b+r}, v{b+4+r}\nv_add_f32 v{b+8+r}, v{b+8+r}, v{b+12+r}")
        for r in range(4): a(f"v_cvt_pk_bf16_f32 v{b+4+r}, v{b+r}, v{b+8+r}")
        a.vmem(f"buffer_store_dwordx4 v[{b+4}:{b+7}], v{YST}, s[{R_WS}:{R_WS+3}], 0 offen{' offset:1024' if tt else ''} sc1", "y")
    stamp(8)
    XR2, ST2, B2R = 16, 24, 28
    a.vmem(f"buffer_load_dwordx4 v[{XR2}:{XR2+3}], v{VXO}, s[{R_Q}:{R_Q+3}], 0 offen", "x")
    a.vmem(f"buffer_load_dwordx4 v[{XR2+4}:{XR2+7}], v{VXO}, s[{R_Q}:{R_Q+3}], s{S_U1} offen", "x")
    a.vmem(f"buffer_load_dwordx2 v[{ST2}:{ST2+1}], v{VSA}, s[{R_WS}:{R_WS+3}], 0 offen sc1", "x")
    a.vmem(f"buffer_load_dwordx2 v[{ST2+2}:{ST2+3}], v{VSA}, s[{R_WS}:{R_WS+3}], 0 offen offset:256 sc1", "x")
    a.lds(f"ds_read_b128 v[{B2R}:{B2R+3}], v{VB2}", "b2")
    a(f"s_add_u32 m0, s{S_B}, {L_YST}")
    a.wait(vm="y", lg="b2")
    k.signal(S_YP)
    a.wait(vm="x")
    L = a.newlabel("Ls2"); B = a.newlabel("Ls2b")
    chk = f"v_min3_u32 v{T0}, v{ST2}, v{ST2+1}, v{ST2+2}\nv_min_u32 v{T0}, v{T0}, v{ST2+3}\nv_cmp_eq_u32 vcc, 0, v{T0}"
    a(f"{chk}\ns_mov_b32 s{S_SPIN}, 0\ns_cbranch_vccnz {L}"); a.label(B)
    k.ool.append(f"{L}:\nbuffer_load_dwordx2 v[{ST2}:{ST2+1}], v{VSA}, s[{R_WS}:{R_WS+3}], 0 offen sc1\nbuffer_load_dwordx2 v[{ST2+2}:{ST2+3}], v{VSA}, s[{R_WS}:{R_WS+3}], 0 offen offset:256 sc1\n"
                 f"s_add_u32 s{S_SPIN}, s{S_SPIN}, 1\ns_waitcnt vmcnt(0)\n{chk}\ns_cmp_gt_u32 s{S_SPIN}, {SPIN_MAX}\ns_cbranch_scc1 {B}\ns_cbranch_vccnz {L}\ns_branch {B}")
    XF2, PP, B2F, YR = 80, 96, 32, 40
    for n in range(2):
        for m in range(4): a(f"v_lshlrev_b32 v{XF2+8*n+2*m}, 16, v{XR2+4*n+m}\nv_and_b32 v{XF2+8*n+2*m+1}, 0xffff0000, v{XR2+4*n+m}")
        for m in range(8): a(f"v_sub_f32 v{PP+8*n+m}, v{XF2+8*n+m}, v{ST2+2*n}")
        for m in range(8): a(f"v_mul_f32 v{PP+8*n+m}, v{PP+8*n+m}, v{ST2+2*n+1}")
    for m in range(4): a(f"v_lshlrev_b32 v{B2F+2*m}, 16, v{B2R+m}\nv_and_b32 v{B2F+2*m+1}, 0xffff0000, v{B2R+m}")
    stamp(9)
    k.spoll(S_YC, 8)
    stamp(10)
    a.vmem(f"buffer_load_dwordx4 v{YS0}, s[{R_WS}:{R_WS+3}], 0 offen sc1 lds", "ys")
    a.vmem(f"buffer_load_dwordx4 v{YS1}, s[{R_WS}:{R_WS+3}], 0 offen offset:1024 sc1 lds", "ys")
    a(f"v_mov_b32 v{T2}, {f32(-1.4426950408889634)}")
    RD, EE = 112, 176
    S_ARR, S_YRD = S_U2, S_U3
    def pk(op, d, x0, x1, x2=None, mod=""): a(f"{op} v[{d}:{d+1}], {x0}, {x1}" + (f", {x2}" if x2 else "") + mod)
    def preads(n):
        for kq in range(4):
            for e in range(2):
                a.lds(f"ds_read_b128 v[{RD+32*n+8*kq+4*e}:{RD+32*n+8*kq+4*e+3}], v{(PA0, PA1)[n]} offset:{2048*kq+16*e}", f"p{n}_{kq}")
    yrd = "\n".join(f"ds_read2st64_b32 v[{YR+4*n+2*q}:{YR+4*n+2*q+1}], v{ya} offset0:{2*q} offset1:{2*q+1}" for n, ya in enumerate((YA0, YA1)) for q in range(2))
    arr3 = f"s_waitcnt vmcnt(0)\ns_mov_b64 exec, 1\nds_add_u32 v{VSY}, v{T1} offset:12\ns_mov_b64 exec, -1\ns_mov_b32 s{S_ARR}, 1"
    L = a.newlabel("Lf"); N = a.newlabel("Lfn"); D = a.newlabel("Lfd")
    a(f"s_mov_b32 s{S_ARR}, 0\ns_mov_b32 s{S_SPIN}, 0")
    a.label(L)
    a(f"s_getreg_b32 s{S_T0}, hwreg(HW_REG_IB_STS, 0, 4)\ns_or_b32 s{S_T0}, s{S_T0}, s{S_ARR}\ns_cbranch_scc1 {N}\n{arr3}")
    a.label(N)
    a(f"ds_read_b32 v{T0}, v{VSY} offset:24\ns_add_u32 s{S_SPIN}, s{S_SPIN}, 1\ns_waitcnt lgkmcnt(0)")
    a(f"v_cmp_ne_u32 vcc, 4, v{T0}\ns_cmp_gt_u32 s{S_SPIN}, {SPIN_MAX*8}\ns_cbranch_scc1 {D}")
    if cfg.fsleep: a(f"s_cbranch_vccz {D}\ns_sleep {cfg.fsleep}\ns_branch {L}")
    else: a(f"s_cbranch_vccnz {L}")
    a.label(D); a.lg = []
    stamp(12)
    preads(0)
    k.lds_peek(3, VSY, T3+0, "pk3")
    for n in range(2):
        b = RD + 32*n
        a.wait(lg=f"p{n}_1"); a(".p2align 3")
        for m in range(0, 8, 2): pk("v_pk_add_f32", b+m, v(b+m, 2), v(B2F+m, 2))
        for m in range(0, 8, 2): pk("v_pk_add_f32", b+m, v(b+m, 2), v(b+8+m, 2))
        a.wait(lg=f"p{n}_3"); a(".p2align 3")
        for m in range(0, 8, 2): pk("v_pk_add_f32", b+16+m, v(b+16+m, 2), v(b+24+m, 2))
        if n == 0: k.lds_peek(7, VSY, T0, "pk7")
        for m in range(0, 8, 2): pk("v_pk_add_f32", b+m, v(b+m, 2), v(b+16+m, 2))
        for m in range(0, 8, 2): pk("v_pk_mul_f32", EE+m, v(b+m, 2), v(T2, 2), mod=" op_sel_hi:[1,0]")
        for m in range(8): a(f"v_exp_f32 v{EE+m}, v{EE+m}")
        if n == 0:
            Y = a.newlabel("Lny")
            a.wait(lg="pk7")
            a(f"v_cmp_ne_u32 vcc, 4, v{T3}\ns_mov_b32 s{S_YRD}, 0\ns_cbranch_vccnz {Y}\n{yrd}\ns_mov_b32 s{S_YRD}, 1")
            a.label(Y)
            k.lds_check(7, VSY, T0, "pk7"); preads(1); a(".p2align 3")
        for m in range(0, 8, 2): pk("v_pk_mul_f32", b+m, v(b+m, 2), v(PP+8*n+m, 2))
        for m in range(0, 8, 2): pk("v_pk_add_f32", EE+m, v(EE+m, 2), "1.0", mod=" op_sel_hi:[1,0]")
        for m in range(8): a(f"v_rcp_f32 v{EE+m}, v{EE+m}")
        for m in range(0, 8, 2): pk("v_pk_mul_f32", b+m, v(b+m, 2), v(EE+m, 2))
    L = a.newlabel("Lys"); B = a.newlabel("Lysb"); N = a.newlabel("Lysn")
    a(f"s_cmp_eq_u32 s{S_YRD}, 0\ns_cbranch_scc1 {L}"); a.label(B)
    k.ool.append(f"{L}:\ns_mov_b32 s{S_SPIN}, 0\ns_cmp_lg_u32 s{S_ARR}, 0\ns_cbranch_scc1 {N}\n{arr3}\n{N}:\nds_read_b32 v{T0}, v{VSY} offset:12\ns_add_u32 s{S_SPIN}, s{S_SPIN}, 1\ns_waitcnt lgkmcnt(0)\n"
                 f"v_cmp_ne_u32 vcc, 4, v{T0}\ns_cmp_gt_u32 s{S_SPIN}, {SPIN_MAX*8}\ns_cbranch_scc1 {B}\ns_cbranch_vccnz {N}\n{yrd}\ns_waitcnt lgkmcnt(0)\ns_branch {B}")
    stamp(11)
    for n in range(2):
        b = RD + 32*n
        for m in range(4): a(f"v_lshlrev_b32 v{EE+2*m}, 16, v{YR+4*n+m}\nv_and_b32 v{EE+2*m+1}, 0xffff0000, v{YR+4*n+m}")
        for m in range(0, 8, 2): pk("v_pk_fma_f32", b+m, v(b+m, 2), v(EE+m, 2), v(XF2+8*n+m, 2))
        for m in range(4): a(f"v_cvt_pk_bf16_f32 v{b+8+m}, v{b+2*m}, v{b+2*m+1}")
        a.vmem(f"buffer_store_dwordx4 v[{b+8}:{b+11}], v{VXO}, s[{R_OUT}:{R_OUT+3}], {'s%d' % S_U1 if n else '0'} offen {cfg.out_flags}")
    stamp(13)
    if cfg.diag_pad or cfg.diag_amp:
        if cfg.diag_amp: a(f"s_sub_u32 s{S_T2}, s{S_ST}, s{S_EX}\ns_mul_i32 s{S_T2}, s{S_T2}, {cfg.diag_amp[1]}\ns_min_u32 s{S_T2}, s{S_T2}, 200000")
        else: a(f"s_mov_b32 s{S_T2}, {cfg.diag_pad}")
        a.label("L_pad")
        a(f"s_memrealtime s[{S_T0}:{S_T1}]\ns_waitcnt lgkmcnt(0)\ns_sub_u32 s{S_T0}, s{S_T0}, s{S_EX}\ns_cmp_lt_u32 s{S_T0}, s{S_T2}\ns_cbranch_scc1 L_pad")
    k.flush_stamps()
    a("s_endpgm")
    for o in k.ool: a(o)

Cfg.g2_nomfma = False; Cfg.g2_hot = False; Cfg.g2_noload = False; Cfg.hflag = 'sc1'; Cfg.seg7 = 4; Cfg.nearly = 3; Cfg.binit = 0; Cfg.cap = 9; Cfg.la = 5; Cfg.x_nohst = False; Cfg.spf = None; Cfg.spfw = True; Cfg.n0 = 8; Cfg.n1 = 8; Cfg.cap0 = 16; Cfg.capseg = 0; Cfg.ssmf = ''; Cfg.cap2 = 9; Cfg.nl = 5; Cfg.fsleep = 1; Cfg.dynsig = None; Cfg.urst = 0; Cfg.x_nop2 = False; Cfg.psleep = 0; Cfg.hsplit = True; Cfg.asigpos = 0; Cfg.apeek = 3; Cfg.bpeek = 8; Cfg.earlyrd = 8; Cfg.diag2 = None; Cfg.wsoff = 0; Cfg.lst = None; Cfg.hgroups = tuple(range(8)); Cfg.htouch = 1; Cfg.uarr = 8; Cfg.uarr_d = 5; Cfg.w2x = False; Cfg.bq = 4; Cfg.rdnow = False; Cfg.coarse = False
HEADER = open("recurrent_scan__ssm_conv_h3__dense_activation_gelu__prompt.s.ref").read().split("; @launch")[0]
def full(cfg):
    kp = K(cfg); prologue(kp)
    km = K(cfg); km.role = 'm'; km.a.nlabel = 1000; gen_m(km)
    kx = K(cfg); kx.role = 'x'; gen_x(kx)
    errs = check(kp.a.lines + km.a.lines) + check(kp.a.lines + kx.a.lines)
    a = Asm()
    a.lines = kp.a.lines + km.a.lines[:km.split] + ["L_X:"] + kx.a.lines + km.a.lines[km.split:] + ["L_end:", "s_endpgm", "L_code_end:"]
    for e in errs: print(e, file=sys.stderr)
    assert not errs
    t = HEADER + f"; @launch grid=(256,1,1) block=(512,1,1) lds={LDS_BYTES}\n"
    t += f'.amdgcn_target "amdgcn-amd-amdhsa--gfx950"\n.text\n.globl {NAME}\n.p2align 8\n.type {NAME},@function\n'
    t += a.text()
    t += f'''.section .rodata,"a"
.p2align 6
.amdhsa_kernel {NAME}
  .amdhsa_next_free_vgpr 256
  .amdhsa_next_free_sgpr 102
  .amdhsa_accum_offset 256
  .amdhsa_group_segment_fixed_size 0
  .amdhsa_kernarg_size 112
  .amdhsa_user_sgpr_count 2
  .amdhsa_user_sgpr_kernarg_segment_ptr 1
  .amdhsa_system_sgpr_workgroup_id_x 1
  .amdhsa_float_denorm_mode_32 3
.end_amdhsa_kernel
'''
    return t
if __name__ == "__main__":
    cfg = Cfg()
    for kv in sys.argv[2:]:
        kk, val = kv.split("=", 1); assert hasattr(cfg, kk), kk; setattr(cfg, kk, eval(val))
    open(sys.argv[1], "w").write(full(cfg))
```

```python
import sys, struct
from asmlib import Asm, v, s, check

NAME = "recurrent_scan__ssm_conv_h3__dense_activation_gelu__prompt_kernel"
def f32(x): return "0x%08x" % struct.unpack("<I", struct.pack("<f", x))[0]

WS_CNT, WS_STATS, WS_STAMP, WS_UR, WS_Y, WS_H = 0, 0x20000, 0x40000, 0x100000, 0x300000, 0x500000
WS_SIZE = 0x500000 + 64*112*1024
CNT_UR, CNT_H, CNT_Y = 0, 128, 256
L_Q, L_W, L_KST = 0, 49152, 98304
L_VST = L_KST + 9*1024
L_CT = 115712; CH_STRIDE = 17600; H_STRIDE = 4224; U_OFF = 8448; U_STRIDE = 4576
L_MISC = L_CT + 2*CH_STRIDE
L_YST = L_MISC
L_CS = L_YST + 8192
L_SYNC = L_CS + 1024
L_TAP = L_SYNC + 64; L_B1 = L_TAP + 512; L_B2 = L_B1 + 256
L_GR = L_B2 + 128; L_ST = L_GR + 64
LDS_BYTES = L_ST + 1024
SPIN_MAX = 1 << 17

P_Q, P_K, P_V, P_SH, P_SSM, P_D, P_BX, P_W1, P_B1, P_W2, P_B2, P_OUT, P_DBG, P_WS = range(4, 32, 2)
S_WV, S_XCD, S_J, S_R, S_C, S_KC0, S_R2, S_C2, S_OFF, S_WAVE = range(32, 42)
S_A, S_B, S_T0, S_T1, S_T2, S_T3 = range(42, 48)
R_Q, R_K, R_V, R_W1, R_WS, R_DBG, R_W2, R_SSM, R_X0, R_OUT = range(48, 88, 4)
S_U0, S_U1, S_U2, S_U3, S_U4, S_U5, S_SPIN, S_PUB = range(88, 96)
S_EX = 96; S_ST = 100
S_ONE, S_PV = 3, 16
S_C16, S_CL = S_OFF, S_A

class Cfg:
    stamps = False
    kvpos = 2; g1stag = "twox"; g2map = 2; g2stag = "none"; ntq = ""; ntw2 = ""
    markseg = 0; ssmseg = 6; stseg = 5; urseg = 2; w2touch = 3
    urpos = -1
    hsigpos = 68
    xprio = 1
    code_pf = True
    diag_pad = 0; diag_amp = None; out_flags = "sc1"
    x_nomfma = False; x_nolds = False; x_nodma = False; segstamps = True

def srd(a, R, P, size):
    a(f"s_mov_b64 s[{R}:{R+1}], s[{P}:{P+1}]\ns_mov_b32 s{R+2}, {size}\ns_mov_b32 s{R+3}, 0x20000")

class K:
    def __init__(self, cfg): self.a = Asm(); self.cfg = cfg; self.ool = []; self.nls = 0
    def stamp(self, i):
        a, cfg = self.a, self.cfg
        if cfg.diag2 and self.role == cfg.diag2[0] and i in cfg.diag2[1:3]:
            a(f"s_memrealtime s[{S_ST}:{S_ST+1}]\ns_waitcnt lgkmcnt(0)"); a.lg = []
            a(f"s_mov_b32 s{S_EX+1}, s{S_ST}" if i == cfg.diag2[1] else f"s_sub_u32 s{S_EX+1}, s{S_ST}, s{S_EX+1}")
        if cfg.diag_amp and cfg.diag_amp[0] == i:
            a(f"s_memrealtime s[{S_ST}:{S_ST+1}]\ns_waitcnt lgkmcnt(0)"); a.lg = []
        if cfg.stamps == "min" and i == 0:
            a("v_writelane_b32 v255, s86, 23"); return
        if cfg.stamps == "min" and not (i == 13 and self.role == "m"): return
        if cfg.stamps:
            a(f"s_memrealtime s[{S_ST}:{S_ST+1}]\ns_memtime s[{S_EX}:{S_EX+1}]\ns_waitcnt lgkmcnt(0)\nv_writelane_b32 v255, s{S_ST}, {i}\nv_writelane_b32 v255, s{S_EX}, {32+i}")
            if i == 0: a("v_writelane_b32 v255, s86, 23")
            a.lg = []
    LS = [52, 54, 56, 58, 60, 62, 68, 70, 72, 74, 76, 78]
    def lstamp(self, grp):
        if self.cfg.stamps and self.cfg.lst == grp:
            j = self.nls; self.nls += 1
            self.a(f"s_memtime s[{self.LS[j]}:{self.LS[j]+1}]")
    def flush_stamps(self):
        a = self.a; cfg = self.cfg
        if self.nls:
            a("s_waitcnt lgkmcnt(0)")
            for j in range(self.nls): a(f"v_writelane_b32 v255, s{self.LS[j]}, {(24+j) if j < 8 else (48+j)}")
        if cfg.diag2 and self.role == cfg.diag2[0]:
            a(f"s_mul_i32 s{S_T2}, s{S_EX+1}, {cfg.diag2[3]}\ns_add_u32 s{S_T2}, s{S_T2}, 2000\ns_min_u32 s{S_T2}, s{S_T2}, 200000")
            if cfg.diag2[4] is not None: a(f"s_lshl2_add_u32 s{S_T0}, s2, s{S_WV}\ns_cmp_eq_u32 s{S_T0}, {cfg.diag2[4]}\ns_cselect_b32 s{S_T2}, s{S_T2}, 0")
            a.label("L_pad2")
            a(f"s_memrealtime s[{S_T0}:{S_T1}]\ns_waitcnt lgkmcnt(0)\ns_sub_u32 s{S_T0}, s{S_T0}, s{S_EX}\ns_cmp_lt_u32 s{S_T0}, s{S_T2}\ns_cbranch_scc1 L_pad2")
        if self.cfg.stamps:
            a(f"s_lshl_b32 s{S_T0}, s2, 3\ns_add_u32 s{S_T0}, s{S_T0}, s{S_WAVE}\ns_lshl_b32 s{S_T0}, s{S_T0}, 8\ns_add_u32 s{S_T0}, s{S_T0}, {WS_STAMP}")
            a(f"v_lshlrev_b32 v254, 2, v0\ns_mov_b64 exec, 0x802000\nbuffer_store_dword v255, v254, s[{R_WS}:{R_WS+3}], s{S_T0} offen sc1" if self.cfg.stamps == "min" else f"v_lshlrev_b32 v254, 2, v0\nbuffer_store_dword v255, v254, s[{R_WS}:{R_WS+3}], s{S_T0} offen")
    def vpoll(self, vaddr, vdata, R, expect):
        a = self.a; L = a.newlabel("Lpoll"); D = a.newlabel("Lpolld")
        a(f"s_mov_b32 s{S_SPIN}, 0")
        a.label(L)
        a(f"buffer_load_dword v{vdata}, v{vaddr}, s[{R}:{R+3}], 0 offen sc1\ns_waitcnt vmcnt(0)")
        a(f"v_cmp_ne_u32 vcc, {expect}, v{vdata}")
        a(f"s_add_u32 s{S_SPIN}, s{S_SPIN}, 1\ns_cmp_gt_u32 s{S_SPIN}, {SPIN_MAX}\ns_cbranch_scc1 {D}\ns_cbranch_vccnz {L}")
        a.label(D)
    def spoll(self, off_sgpr, expect):
        a = self.a; L = a.newlabel("Lsp"); D = a.newlabel("Lspd")
        a(f"s_mov_b32 s{S_SPIN}, 0")
        a.label(L)
        a(f"s_load_dword s{S_PV}, s[{P_WS}:{P_WS+1}], s{off_sgpr} glc\ns_add_u32 s{S_SPIN}, s{S_SPIN}, 1\ns_waitcnt lgkmcnt(0)")
        a(f"s_cmp_eq_u32 s{S_PV}, {expect}\ns_cbranch_scc1 {D}")
        if self.cfg.psleep: a(f"s_sleep {self.cfg.psleep}")
        a(f"s_cmp_gt_u32 s{S_SPIN}, {SPIN_MAX}\ns_cbranch_scc0 {L}")
        a.label(D); a.lg = []
    def signal(self, cnt, inc=1): self.a(f"s_movk_i32 s{S_ONE}, {inc}\ns_atomic_add s{S_ONE}, s[{P_WS}:{P_WS+1}], s{cnt}")
    def lds_arrive(self, word, vtmp, vone):
        a = self.a
        a(f"v_mov_b32 v{vtmp}, {L_SYNC}\nv_mov_b32 v{vone}, 1\ns_mov_b64 exec, 1")
        a.lds(f"ds_add_u32 v{vtmp}, v{vone} offset:{4*word}")
        a("s_mov_b64 exec, -1")
    def lds_wait(self, word, vtmp, vone, setaddr=True, sleep=0):
        a = self.a; L = a.newlabel("Lsy"); D = a.newlabel("Lsyd")
        if setaddr: a(f"v_mov_b32 v{vtmp}, {L_SYNC}")
        a(f"s_mov_b32 s{S_SPIN}, 0")
        a.label(L)
        a(f"ds_read_b32 v{vone}, v{vtmp} offset:{4*word}\ns_add_u32 s{S_SPIN}, s{S_SPIN}, 1\ns_waitcnt lgkmcnt(0)")
        a(f"v_cmp_ne_u32 vcc, 4, v{vone}\ns_cmp_gt_u32 s{S_SPIN}, {SPIN_MAX*8}\ns_cbranch_scc1 {D}")
        if sleep: a(f"s_cbranch_vccz {D}\ns_sleep {sleep}\ns_branch {L}")
        else: a(f"s_cbranch_vccnz {L}")
        a.label(D); a.lg = []
    def lds_peek(self, word, vaddr, vdst, tag): self.a.lds(f"ds_read_b32 v{vdst}, v{vaddr} offset:{4*word}", tag)
    def lds_check(self, word, vaddr, vdst, tag):
        a = self.a; L = a.newlabel("Lck"); B = a.newlabel("Lckb"); S = a.newlabel("Lcks")
        a.wait(lg=tag)
        a(f"v_cmp_ne_u32 vcc, 4, v{vdst}\ns_mov_b32 s{S_SPIN}, 0\ns_cbranch_vccnz {L}"); a.label(B)
        self.ool.append(f"{L}:\nds_read_b32 v{vdst}, v{vaddr} offset:{4*word}\ns_add_u32 s{S_SPIN}, s{S_SPIN}, 1\ns_waitcnt lgkmcnt(0)\nv_cmp_ne_u32 vcc, 4, v{vdst}\n"
                        f"s_cmp_gt_u32 s{S_SPIN}, {SPIN_MAX*8}\ns_cbranch_scc1 {B}\ns_cbranch_vccnz {L}\ns_branch {B}")
    def speek(self, off): self.a(f"s_load_dword s{S_PV}, s[{P_WS}:{P_WS+1}], s{off} glc")
    def scheck(self, off, mask, expect):
        a = self.a; L = a.newlabel("Lsc"); B = a.newlabel("Lscb")
        m = f"s_and_b32 s{S_PV}, s{S_PV}, {mask}\n" if mask else ""
        a(f"s_mov_b32 s{S_SPIN}, 0\ns_waitcnt lgkmcnt(0)\n{m}s_cmp_lg_u32 s{S_PV}, {expect}\ns_cbranch_scc1 {L}"); a.label(B); a.lg = []
        self.ool.append(f"{L}:\ns_load_dword s{S_PV}, s[{P_WS}:{P_WS+1}], s{off} glc\ns_add_u32 s{S_SPIN}, s{S_SPIN}, 1\ns_cmp_gt_u32 s{S_SPIN}, {SPIN_MAX}\ns_waitcnt lgkmcnt(0)\ns_cbranch_scc1 {B}\n"
                        f"{m}s_cmp_lg_u32 s{S_PV}, {expect}\ns_cbranch_scc1 {L}\ns_branch {B}")
    def lds_sync(self, word, vtmp, vone):
        self.a.wait(lg="all"); self.lds_arrive(word, vtmp, vone); self.lds_wait(word, vtmp, vone, setaddr=False)

def prologue(k):
    a, cfg = k.a, k.cfg
    a.label(NAME)
    if cfg.stamps: a("s_memrealtime s[86:87]")
    a("s_cmp_ge_u32 s2, 256\ns_cbranch_scc1 L_end")
    a("s_load_dwordx16 s[4:19], s[0:1], 0\ns_load_dwordx8 s[20:27], s[0:1], 64\ns_load_dwordx4 s[28:31], s[0:1], 96")
    if cfg.code_pf:
        a(f"s_getpc_b64 s[{S_T0}:{S_T1}]")
        a.label("L_pc")
        a(f"s_lshr_b32 s{S_T2}, s2, 3\ns_lshl_b32 s{S_T2}, s{S_T2}, 10\nv_lshl_add_u32 v2, v0, 1, s{S_T2}\nv_min_u32 v2, L_code_end-L_pc-4, v2")
        a(f"v_mov_b32 v3, s{S_T1}\nv_add_co_u32 v2, vcc, s{S_T0}, v2\ns_mov_b64 exec, 1\ns_nop 0\nv_addc_co_u32 v3, vcc, 0, v3, vcc")
        a(f"global_load_dword v254, v[2:3], off\ns_mov_b64 exec, -1")
    if cfg.stamps: a("v_mov_b32 v255, 0")
    if cfg.diag_pad or cfg.diag_amp or cfg.diag2: a(f"s_memrealtime s[{S_EX}:{S_EX+1}]")
    a("v_lshrrev_b32 v1, 6, v0\nv_and_b32 v0, 63, v0")
    a(f"v_readfirstlane_b32 s{S_WAVE}, v1")
    a(f"s_and_b32 s{S_XCD}, s2, 7\ns_lshr_b32 s{S_J}, s2, 3")
    a(f"s_lshr_b32 s{S_T0}, s{S_XCD}, 1\ns_and_b32 s{S_T1}, s{S_XCD}, 1")
    a(f"s_and_b32 s{S_T2}, s{S_J}, 3\ns_lshr_b32 s{S_CL}, s{S_J}, 2")
    a(f"s_lshl2_add_u32 s{S_R}, s{S_T0}, s{S_T2}\ns_lshl3_add_u32 s{S_C16}, s{S_T1}, s{S_CL}\ns_sub_u32 s{S_C}, s{S_C16}, s{S_T1}\ns_min_u32 s{S_C}, s{S_C}, 13")
    if cfg.g1stag == "four":
        a(f"s_and_b32 s{S_T0}, s{S_T0}, 1")
        a(f"s_add_u32 s{S_KC0}, s{S_T2}, s{S_CL}\ns_and_b32 s{S_KC0}, s{S_KC0}, 3\ns_lshl1_add_u32 s{S_KC0}, s{S_KC0}, s{S_T0}")
    elif cfg.g1stag == "twox": a(f"s_add_u32 s{S_KC0}, s{S_T2}, s{S_CL}\ns_and_b32 s{S_KC0}, s{S_KC0}, 1\ns_lshl2_add_u32 s{S_KC0}, s{S_KC0}, s{S_T0}")
    elif cfg.g1stag == "two": a(f"s_add_u32 s{S_KC0}, s{S_T2}, s{S_CL}\ns_and_b32 s{S_KC0}, s{S_KC0}, 1\ns_lshl_b32 s{S_KC0}, s{S_KC0}, 2")
    elif cfg.g1stag == "xcd": a(f"s_mov_b32 s{S_KC0}, s{S_XCD}")
    elif cfg.g1stag == "xr": a(f"s_lshl_b32 s{S_KC0}, s{S_T0}, 1")
    else: a(f"s_mov_b32 s{S_KC0}, 0")
    a(f"s_lshl1_add_u32 s{S_T3}, s{S_T2}, s{S_CL}")
    if cfg.g2map == 3: a(f"s_xor_b32 s{S_C2}, s{S_CL}, 4\ns_lshl1_add_u32 s{S_R2}, s{S_R}, s{S_T1}")
    elif cfg.g2map == 4:
        a(f"s_and_b32 s{S_R2}, s{S_CL}, 1\ns_lshr_b32 s{S_C2}, s{S_CL}, 1\ns_xor_b32 s{S_T3}, s{S_R2}, 1\ns_cmp_lt_u32 s{S_CL}, 6\ns_cselect_b32 s{S_T3}, s{S_T1}, s{S_T3}\ns_cselect_b32 s{S_R2}, s{S_R2}, s{S_T1}")
        a(f"s_lshl2_add_u32 s{S_C2}, s{S_T3}, s{S_C2}\ns_lshl1_add_u32 s{S_R2}, s{S_R}, s{S_R2}")
    elif cfg.g2map == 1: a(f"s_and_b32 s{S_C2}, s{S_T3}, 7\ns_lshl1_add_u32 s{S_R2}, s{S_R}, s{S_T1}")
    else: a(f"s_and_b32 s{S_R2}, s{S_CL}, 1\ns_lshl1_add_u32 s{S_R2}, s{S_R}, s{S_R2}\ns_bfe_u32 s{S_C2}, s{S_T3}, 0x20001\ns_lshl2_add_u32 s{S_C2}, s{S_T1}, s{S_C2}")
    a(f"s_mov_b32 s{R_Q+2}, {2<<20}\ns_mov_b32 s{R_Q+3}, 0x20000")
    a(f"s_and_b32 s{S_WV}, s{S_WAVE}, 3\nv_lshlrev_b32 v1, 4, v0\ns_lshl_b32 s{S_B}, s{S_WV}, 11")
    a(f"v_lshrrev_b32 v10, 3, v0\nv_lshrrev_b32 v11, 4, v0\nv_and_b32 v12, 7, v0")
    a(f"s_cmp_ge_u32 s{S_WAVE}, 4\ns_cbranch_scc1 L_X")

def gen_x(k):
    a, cfg, stamp = k.a, k.cfg, k.stamp
    x = S_WV
    a.cap = cfg.cap
    V16, W2A, W2B, TR, HA, HB = 1, 2, 3, 4, 8, 9
    T0, T1, T2, T3 = 10, 11, 12, 13
    VQ, VW, VKA, VKB, VHALO, VTA, PK, PH, PV, PST, VMK, VMD = 14, 18, 22, 23, 24, 25, 26, 27, 28, 29, 30, 31
    TAPS, JUNK = 108, 112
    ACC2, AR, WB = 14, 78, 142
    a(f"v_xor_b32 v{T3}, v{T2}, v{T1}\nv_lshlrev_b32 v{T3}, 4, v{T3}\nv_lshl_add_u32 v{VQ}, v{T0}, 10, v{T3}")
    a(f"s_lshl2_add_u32 s{S_T0}, s{S_R}, s{x}\ns_lshl_b32 s{S_T0}, s{S_T0}, 15\ns_movk_i32 s{S_T2}, {8192-1024}\ns_lshl_b32 s{S_T3}, s{S_T2}, 1")
    a(f"v_add_u32 v{VQ}, s{S_T0}, v{VQ}")
    a(f"v_xor_b32 v{VQ+1}, 64, v{VQ}\nv_add_u32 v{VQ+2}, s{S_T3}, v{VQ}\nv_add_u32 v{VQ+1}, s{S_T2}, v{VQ+1}\nv_add_u32 v{VQ+3}, s{S_T3}, v{VQ+1}")
    d = 4*3584 - 1024
    a(f"v_lshlrev_b32 v{T3}, 5, v{T1}\nv_xor_b32 v{T3}, v{T3}, v{V16}\nv_and_b32 v{T3}, 0xff, v{T3}\nv_xor_b32 v{VW+2}, 0x80, v{T3}")
    a(f"s_lshl_b32 s{S_U1}, s{S_C}, 8\ns_mul_i32 s{S_T1}, s{x}, {16*3584}\ns_add_u32 s{S_T0}, s{S_U1}, s{S_T1}")
    a(f"s_movk_i32 s{S_T1}, 3584\ns_movk_i32 s{S_T2}, {d}\ns_lshl1_add_u32 s{S_T3}, s{S_T2}, s{S_T0}")
    a(f"v_mad_u32_u24 v{VW}, v{T1}, s{S_T1}, v{T3}\nv_mad_u32_u24 v{VW+2}, v{T1}, s{S_T1}, v{VW+2}")
    a(f"v_add_u32 v{VW}, s{S_T0}, v{VW}\nv_add_u32 v{VW+2}, s{S_T3}, v{VW+2}\nv_add_u32 v{VW+1}, s{S_T2}, v{VW}\nv_add_u32 v{VW+3}, s{S_T2}, v{VW+2}")
    a(f"s_lshl_b32 s{S_U1}, s{x}, 12\ns_mov_b32 s{R_W1+2}, {512*3584}\ns_mov_b32 s{R_W1+3}, s{R_Q+3}")
    a("s_waitcnt lgkmcnt(0)")
    a(f"s_mov_b64 s[{R_Q}:{R_Q+1}], s[{P_Q}:{P_Q+1}]\ns_mov_b64 s[{R_W1}:{R_W1+1}], s[{P_W1}:{P_W1+1}]")
    if cfg.wsoff: a(f"s_add_u32 s{P_WS}, s{P_WS}, {cfg.wsoff}\ns_addc_u32 s{P_WS+1}, s{P_WS+1}, 0")
    def chunk_ops(i):
        slot = i % 3
        def mk(kind, n):
            def f():
                if n == 0:
                    if kind == "q":
                        a(f"s_add_u32 s{S_T0}, s{S_KC0}, {i}\ns_and_b32 s{S_T0}, s{S_T0}, 7\ns_lshl_b32 s{S_U3}, s{S_T0}, 7\ns_mul_i32 s{S_U4}, s{S_T0}, {64*3584}")
                    a(f"s_add_u32 m0, s{S_U1}, {(L_Q if kind=='q' else L_W) + slot*16384}\ns_nop 0")
                off = f" offset:{1024*n}" if n else ""
                if kind == "q": a.vmem(f"buffer_load_dwordx4 v{VQ+n}, s[{R_Q}:{R_Q+3}], s{S_U3} offen{off} {cfg.ntq} lds", f"c{i}")
                else: a.vmem(f"buffer_load_dwordx4 v{VW+n}, s[{R_W1}:{R_W1+3}], s{S_U4} offen{off} {cfg.ntq} lds", f"c{i}")
            return f
        return [mk("q", n) for n in range(4)] + [mk("w", n) for n in range(4)]
    def setup_rest():
        stamp(0)
        a(f"v_mov_b32 v{T1}, v{T2}")
        srd(a, R_WS, P_WS, WS_SIZE); srd(a, R_DBG, P_DBG, 256); srd(a, R_W2, P_W2, 1792*1024); srd(a, R_SSM, P_SSM, 2 << 20)
        a(f"s_lshl_b32 s{S_T0}, s{S_XCD}, 6\ns_lshl1_add_u32 s{S_T0}, s{S_J}, s{S_T0}\ns_lshr_b32 s{S_T1}, s{x}, 1\ns_add_u32 s{S_U5}, s{S_T0}, s{S_T1}")
        a(f"s_mul_i32 s{S_T1}, s{S_T1}, {CH_STRIDE}\ns_and_b32 s{S_T2}, s{x}, 1")
        a(f"s_lshl_b32 s{S_T3}, s{S_T2}, 11\ns_add_u32 s{S_H1}, s{S_T1}, s{S_T3}\ns_add_u32 s{S_H1}, s{S_H1}, {L_CT+H_STRIDE+128}")
        a(f"s_mul_i32 s{S_T3}, s{S_T2}, {H_STRIDE}\ns_add_u32 s{S_T3}, s{S_T3}, s{S_T1}\ns_add_u32 s{S_T3}, s{S_T3}, {L_CT+128-512}")
        a(f"s_mul_i32 s{S_T0}, s{S_T2}, {U_STRIDE}\ns_add_u32 s{S_T0}, s{S_T0}, s{S_T1}\ns_add_u32 s{S_T0}, s{S_T0}, {L_CT+U_OFF+4096}")
        Z = JUNK
        a(f"v_mov_b32 v{T2}, s{S_T0}\nv_mov_b32 v{T3}, s{S_T3}\nv_cmp_gt_u32 vcc, 56, v0")
        for i in range(4): a(f"v_mov_b32 v{Z+i}, 0")
        a(f"v_cndmask_b32 v{T3}, v{T3}, v{T2}, vcc\nv_lshl_add_u32 v{T3}, v0, 3, v{T3}\nv_subrev_u32 v{T2}, 4, v{T2}")
        a.lds(f"ds_write_b64 v{T3}, v[{Z}:{Z+1}]")
        a.lds(f"ds_write_b32 v{T2}, v{Z}")
        a(f"v_lshlrev_b32 v{VMK}, 2, v{T1}")
        a(f"v_lshrrev_b32 v{T2}, 2, v0\nv_and_b32 v{T2}, 4, v{T2}\nv_xor_b32 v{T2}, v{T2}, v{T1}\nv_lshlrev_b32 v{T2}, 4, v{T2}\nv_lshl_add_u32 v{W2A}, v{T0}, 10, v{T2}")
        a(f"s_mul_i32 s{S_T0}, s{x}, {448*1024}\ns_lshl_b32 s{S_T1}, s{S_C2}, 7\ns_add_u32 s{S_T0}, s{S_T0}, s{S_T1}")
        a(f"v_add_u32 v{W2A}, s{S_T0}, v{W2A}\nv_add_u32 v{W2B}, {8192-1024}, v{W2A}")
        a(f"v_bfe_u32 v{T2}, v0, 2, 2\nv_lshrrev_b32 v{T3}, 5, v0\nv_lshl_add_u32 v{T3}, v{T3}, 3, v{T2}\nv_lshlrev_b32 v{T3}, 7, v{T3}")
        a(f"v_lshrrev_b32 v{T2}, 1, v{T2}\nv_lshl_add_u32 v{T3}, v{T2}, 6, v{T3}\nv_bfe_u32 v{T2}, v0, 4, 1\nv_lshl_add_u32 v{T3}, v{T2}, 5, v{T3}\nv_and_b32 v{T2}, 3, v0\nv_lshl_add_u32 v{T3}, v{T2}, 3, v{T3}")
        a(f"v_add_u32 v{TR}, s{S_B}, v{T3}\nv_xor_b32 v{TR+1}, 64, v{TR}\nv_add_u32 v{TR+2}, 65536, v{TR}\nv_add_u32 v{TR+3}, 65536, v{TR+1}")
        a(f"s_mul_i32 s{S_T0}, s{S_R2}, {224*1024}\ns_mul_i32 s{S_T1}, s{x}, {28*1024}\ns_add_u32 s{S_T0}, s{S_T0}, s{S_T1}\ns_add_u32 s{S_T0}, s{S_T0}, {WS_H}")
        a(f"v_add_u32 v{HA}, s{S_T0}, v{V16}\nv_add_u32 v{HB}, {112*1024}, v{HA}")
        a(f"s_lshr_b32 s{S_T0}, s{S_J}, 3\ns_lshl2_add_u32 s{S_T0}, s{S_XCD}, s{S_T0}\ns_lshl2_add_u32 s{S_T0}, s{S_T0}, s{x}\ns_lshl_b32 s{S_PUB}, s{S_T0}, 8")
        a(f"s_lshl_b32 s{S_T0}, s{S_U5}, 12\ns_and_b32 s{S_T1}, s{x}, 1\ns_lshl_b32 s{S_T1}, s{S_T1}, 11\ns_add_u32 s{S_U2}, s{S_T0}, s{S_T1}")
        a(f"v_xor_b32 v{T3}, 7, v{T1}\nv_lshlrev_b32 v{T3}, 4, v{T3}\nv_lshl_add_u32 v{PST}, v{T0}, 13, v{T3}")
        a(f"s_lshl2_add_u32 s{S_T2}, s{S_XCD}, s{x}\ns_lshr_b32 s{S_T1}, s{S_J}, 3\ns_lshl2_add_u32 s{S_T0}, s{S_T2}, s{S_T1}\ns_lshl_b32 s{S_US}, s{S_T0}, 8")
        a(f"s_lshl_b32 s{S_T2}, s{S_T2}, 16\ns_lshl_b32 s{S_T3}, s{S_J}, 7\ns_sub_u32 s{S_T2}, s{S_T2}, s{S_T3}\ns_add_u32 s{S_UA}, s{S_T2}, {WS_UR + 2*1984}\ns_add_u32 s{S_UA+1}, s{S_UA}, 4096")
        srd(a, R_K, P_K, 2 << 20); srd(a, R_V, P_V, 2 << 20)
        a(f"s_lshl_b32 s{S_T0}, s{x}, 1\nv_xor_b32 v{T3}, s{S_T0}, v{T1}\nv_lshlrev_b32 v{T3}, 4, v{T3}\nv_lshl_add_u32 v{VKA}, v{T0}, 10, v{T3}")
        a(f"v_xor_b32 v{VKB}, 16, v{VKA}\nv_add_u32 v{VKB}, {8192-1024}, v{VKB}")
        a(f"s_lshl2_add_u32 s{S_KV}, s{S_J}, s{x}\ns_lshl_b32 s{S_KV}, s{S_KV}, 7\ns_add_u32 s{S_KV}, s{S_KV}, s{S_XCD}\ns_lshl_b32 s{S_KV}, s{S_KV}, 7")
        a(f"v_lshrrev_b32 v{PV}, 5, v0\nv_add_u32 v{PV}, s{S_T0}, v{PV}")
        a(f"v_bfe_u32 v{T2}, v0, 3, 2\nv_lshlrev_b32 v{T2}, 2, v{T2}\nv_lshl_add_u32 v{T2}, v{T1}, 10, v{T2}")
        a(f"v_add_u32 v{T3}, 7, v{T1}\nv_and_b32 v{T3}, 7, v{T3}\nv_xor_b32 v{T3}, v{PV}, v{T3}\nv_lshl_add_u32 v{PH}, v{T3}, 4, v{T2}\nv_add_u32 v{PH}, {L_KST}, v{PH}")
        a(f"v_xor_b32 v{T3}, v{PV}, v{T1}\nv_lshl_add_u32 v{PK}, v{T3}, 4, v{T2}")
        a(f"v_add_u32 v{PV}, {L_VST}, v{PK}\nv_add_u32 v{PK}, {L_KST+1024}, v{PK}")
        a(f"s_lshl_b32 s{S_T0}, s{x}, 7\ns_add_u32 s{S_T0}, s{S_T0}, {L_TAP}\nv_lshl_add_u32 v{VTA}, v{T0}, 4, s{S_T0}\nv_add_u32 v{VGR}, {L_GR}, v{V16}\nv_mov_b32 v{VHI}, 0xffff0000")
        a(f"s_lshl_b32 s{S_SB}, s{S_R}, 10\ns_add_u32 s{S_SB}, s{S_SB}, {WS_STATS}")
        a.wait(lg="all")
    S_US, S_UA, S_SB, S_KV = 98, 0, 99, S_U0
    VGR, VHI, GD = 116, 117, 120
    def kv_loads():
        a(f"s_add_u32 m0, s{S_B}, {L_KST+1024}\ns_nop 0")
        a.vmem(f"buffer_load_dwordx4 v{VKA}, s[{R_K}:{R_K+3}], s{S_KV} offen {cfg.kvf} lds", "kv")
        a.vmem(f"buffer_load_dwordx4 v{VKB}, s[{R_K}:{R_K+3}], s{S_KV} offen offset:1024 {cfg.kvf} lds", "kv")
        L = a.newlabel("Lhalo"); D = a.newlabel("Lsmd")
        a(f"s_cmp_eq_u32 s{x}, 3\ns_cbranch_scc1 {L}")
        a(f"s_lshl_b32 s{S_T0}, s{S_XCD}, 9\ns_lshl_b32 s{S_T1}, s{S_C}, 8\ns_cmp_eq_u32 s{x}, 0\ns_cselect_b64 s[{S_T2}:{S_T3}], s[{P_SH}:{P_SH+1}], s[{P_B1}:{P_B1+1}]\ns_cselect_b32 s{S_T0}, s{S_T0}, s{S_T1}")
        a(f"s_lshl_b32 s{S_T1}, s{S_C2}, 7\ns_cmp_eq_u32 s{x}, 2\ns_cselect_b64 s[{S_T2}:{S_T3}], s[{P_B2}:{P_B2+1}], s[{S_T2}:{S_T3}]\ns_cselect_b32 s{S_T0}, s{S_T1}, s{S_T0}")
        a(f"v_add_u32 v{VHALO}, s{S_T0}, v{V16}\ns_lshr_b32 s{S_T0}, 32, s{x}\ns_lshl_b32 s{S_T1}, s{S_T0}, 5\ns_sub_u32 m0, {L_TAP+1024}, s{S_T1}\ns_bfm_b64 exec, s{S_T0}, 0")
        a(f"global_load_lds_dwordx4 v{VHALO}, s[{S_T2}:{S_T3}]\ns_branch {D}")
        a.label(L)
        a(f"s_sub_u32 s{S_T0}, s{S_KV}, {56*1024}\ns_cselect_b32 s{S_T0}, 0, s{S_T0}\ns_cselect_b32 s{S_T1}, 0x80000010, 16")
        a(f"v_xor_b32 v{VHALO}, s{S_T1}, v{VKA}\ns_mov_b32 m0, {L_KST}\ns_lshl_b64 exec, -1, 40")
        a(f"buffer_load_dwordx4 v{VHALO}, s[{R_K}:{R_K+3}], s{S_T0} offen {cfg.kvf} lds")
        a.label(D)
        a.vm.append("kv")
        a(f"s_add_u32 m0, s{S_B}, {L_VST}\ns_mov_b64 exec, -1")
        a.vmem(f"buffer_load_dwordx4 v{VKA}, s[{R_V}:{R_V+3}], s{S_KV} offen {cfg.kvf} lds", "kv")
        a.vmem(f"buffer_load_dwordx4 v{VKB}, s[{R_V}:{R_V+3}], s{S_KV} offen offset:1024 {cfg.kvf} lds", "kv")
    KR, VR, KF, TF, VF, OUT, PA = 32, 44, 56, 80, 88, 92, 100
    prep = []; P = prep.append
    P(("lds", f"ds_read_b128 v[{TAPS}:{TAPS+3}], v{VTA}"))
    P(("lds", f"ds_read_b32 v{KR+1}, v{PH} offset:{5*128}"))
    P(("lds", f"ds_read2_b32 v[{KR+2}:{KR+3}], v{PH} offset0:{6*32} offset1:{7*32}"))
    for i in range(4): P(("lds", f"ds_read2_b32 v[{KR+4+2*i}:{KR+5+2*i}], v{PK} offset0:{64*i} offset1:{64*i+32}"))
    for i in range(4): P(("lds", f"ds_read2_b32 v[{VR+2*i}:{VR+1+2*i}], v{PV} offset0:{64*i} offset1:{64*i+32}"))
    nrd = len(prep)
    P(("waitlg",))
    for m in range(4):
        P(("v", f"v_lshlrev_b32 v{TF+2*m}, 16, v{TAPS+m}")); P(("v", f"v_and_b32 v{TF+2*m+1}, v{VHI}, v{TAPS+m}"))
    for e in range(2):
        for i in range(1, 12): P(("v", f"v_lshlrev_b32 v{KF+i}, 16, v{KR+i}" if e == 0 else f"v_and_b32 v{KF+i}, v{VHI}, v{KR+i}"))
        for t in range(8): P(("v", f"v_mul_f32 v{PA+t}, v{KF+1+t}, v{TF+4*e+3}"))
        for tau in (2, 1, 0):
            for t in range(8): P(("v", f"v_fmac_f32 v{PA+t}, v{KF+4+t-tau}, v{TF+4*e+tau}"))
        for t in range(8):
            P(("v", f"v_lshlrev_b32 v{VF+(t&1)}, 16, v{VR+t}" if e == 0 else f"v_and_b32 v{VF+(t&1)}, v{VHI}, v{VR+t}"))
            P(("v", f"v_mul_f32 v{PA+t}, v{PA+t}, v{VF+(t&1)}"))
        for m in range(4): P(("v", f"v_cvt_pk_bf16_f32 v{OUT+4*e+m}, v{PA+7-2*m}, v{PA+6-2*m}"))
        P(("st", e))
    def emit(op):
        if op[0] == "lds": a.lds(op[1], "pr")
        elif op[0] == "v": a(op[1])
        elif op[0] == "waitlg": a.wait(lg="pr")
        else: a.vmem(f"buffer_store_dwordx4 v[{OUT+4*op[1]}:{OUT+4*op[1]+3}], v{PST}, s[{R_WS}:{R_WS+3}], s{S_UA+op[1]} offen sc1", "ur")
    def g_read(): a("s_mov_b64 exec, 15"); a.lds(f"ds_read_b128 v[{GD}:{GD+3}], v{VGR}", "ud"); a("s_mov_b64 exec, -1")
    def publish():
        L = a.newlabel("Lpb")
        a.wait(lg="ud")
        a(f"s_cmp_lg_u32 s{x}, 0\ns_cbranch_scc1 {L}\ns_lshl_b32 s{S_T0}, s{S_C16}, 6\ns_add_u32 s{S_T0}, s{S_T0}, s{S_SB}\ns_mov_b64 exec, 15")
        a(f"buffer_store_dwordx4 v[{GD}:{GD+3}], v{V16}, s[{R_WS}:{R_WS+3}], s{S_T0} offen sc1\ns_mov_b64 exec, -1")
        a.label(L)
    def stats_dma():
        L = a.newlabel("Lsd")
        a(f"s_cmp_lg_u32 s{x}, 1\ns_cbranch_scc1 {L}\ns_mov_b32 m0, {L_ST}\ns_nop 0")
        a(f"buffer_load_dwordx4 v{V16}, s[{R_WS}:{R_WS+3}], s{S_SB} offen sc1 lds")
        a.label(L)
    S_H1 = 17; S_PW, S_PS = R_K, R_K + 2; S_HO = R_V
    a(f"s_cmp_eq_u32 s{S_CL}, 7\ns_cbranch_scc1 L_Xs")
    a.cap = cfg.cap0
    c1 = chunk_ops(1)
    for f in chunk_ops(0) + c1[:cfg.n1]: f()
    a.label("L_Xs")
    setup_rest()
    def ssm_loads():
        a(f"s_mov_b32 m0, s{S_H1}\ns_lshl_b32 s{S_T0}, s{S_U5}, 12")
        a.vmem(f"buffer_load_dwordx4 v{V16}, s[{R_SSM}:{R_SSM+3}], s{S_U2} offen {cfg.ssmf} lds", "h")
        a.vmem(f"buffer_load_dwordx4 v{V16}, s[{R_SSM}:{R_SSM+3}], s{S_U2} offen offset:1024 {cfg.ssmf} lds", "h")
        a(f"s_add_u32 s{S_T0}, s{S_T0}, 2044\ns_load_dword s{S_U0}, s[{P_SSM}:{P_SSM+1}], s{S_T0}")
    SG = [4*m + n for m in range(7) for n in (0, 1)] + [4*m + n for m in range(7) for n in (2, 3)]
    def w2_dma(i):
        ii = i % 14
        a(f"s_add_u32 m0, s{S_B}, {ii*8192}\ns_mov_b32 s{S_T0}, {SG[i]*16384}")
        a.vmem(f"buffer_load_dwordx4 v{W2A}, s[{R_W2}:{R_W2+3}], s{S_T0} offen {cfg.ntw2} lds", f"w{i}")
        a.vmem(f"buffer_load_dwordx4 v{W2B}, s[{R_W2}:{R_W2+3}], s{S_T0} offen offset:1024 {cfg.ntw2} lds", f"w{i}")
    def ustage():
        L = a.newlabel("Lurok")
        a(f"s_cmp_eq_u32 s{S_PV}, 8\ns_cbranch_scc1 {L}")
        keep = list(a.lg); k.spoll(S_PUB, 8); a.lg = keep
        a.label(L)
        stamp(11)
        L = a.newlabel("Lhs")
        a(f"s_cmp_lg_u32 s{S_CL}, 7\ns_cbranch_scc1 {L}"); stats_dma(); a.label(L)
        a(f"s_xor_b32 s{S_T1}, s{x}, 3\ns_lshl_b32 s{S_T1}, s{S_T1}, 10\ns_and_b32 s{S_T0}, s{S_U5}, 0xfffffffe\ns_lshl_b32 s{S_T0}, s{S_T0}, 12\ns_add_u32 s{S_T0}, s{S_T0}, s{S_T1}\ns_add_u32 s{S_T0}, s{S_T0}, {WS_UR}")
        for ch in range(2):
            for cp in range(2):
                a(f"s_add_u32 m0, s{S_T1}, {L_CT + ch*CH_STRIDE + U_OFF + cp*(U_STRIDE-4)}")
                a(f"s_add_u32 s{S_T0}, s{S_T0}, 4096" if (ch == 1 and cp == 0) else "s_nop 0")
                if not (cfg.x_trim in (True, 'u') and cp): a.vmem(f"buffer_load_dwordx4 v{V16}, s[{R_WS}:{R_WS+3}], s{S_T0} offen sc1 lds", "u")
    MK = R_X0
    early = [12, 13, 4, 5, 10, 11]; late = [0, 1, 6, 7, 2, 3, 8, 9]
    def mark_load():
        L = a.newlabel("Lmk")
        a(f"s_cmp_lg_u32 s{x}, 0\ns_cbranch_scc1 {L}\ns_load_dwordx8 s[{MK}:{MK+7}], s[{P_DBG}:{P_DBG+1}], 0")
        a.label(L)
    def mark_check():
        L = a.newlabel("Lmk")
        a(f"s_cmp_lg_u32 s{x}, 0\ns_cbranch_scc1 {L}\ns_waitcnt lgkmcnt(0)")
        a(f"s_and_b64 s[{MK}:{MK+1}], s[{MK}:{MK+1}], s[{MK+2}:{MK+3}]\ns_and_b64 s[{MK+4}:{MK+5}], s[{MK+4}:{MK+5}], s[{MK+6}:{MK+7}]\ns_and_b64 s[{MK}:{MK+1}], s[{MK}:{MK+1}], s[{MK+4}:{MK+5}]\ns_and_b32 s{MK}, s{MK}, s{MK+1}")
        a(f"s_cbranch_scc1 {L}")
        k.vpoll(VMK, VMD, R_DBG, 1)
        a.label(L)
    a(f"s_cmp_eq_u32 s{S_CL}, 7\ns_cbranch_scc1 L_Xh")
    hn0 = len(a.lines); a.label("L_Xh")
    keep = list(a.vm); a.vm = []; a.cap = None
    ntouch = 2*len(cfg.hwhat)
    def touches():
        a(f"s_and_b32 s{S_T0}, s2, 31\ns_lshl2_add_u32 s{S_T0}, s{S_T0}, s{x}\ns_mul_i32 s{S_T0}, s{S_T0}, {112*128}\ns_add_u32 s{S_T1}, s{S_T0}, {56*128}")
        a(f"v_lshlrev_b32 v{T2}, 7, v0\ns_bfm_b64 exec, 56, 0")
        if "w" in cfg.hwhat: a(f"buffer_load_dword v{JUNK}, v{T2}, s[{R_W2}:{R_W2+3}], s{S_T0} offen\nbuffer_load_dword v{JUNK}, v{T2}, s[{R_W2}:{R_W2+3}], s{S_T1} offen")
        a("s_mov_b64 exec, -1")
        a(f"s_and_b32 s{S_T0}, s{S_J}, 3\ns_lshl2_add_u32 s{S_T0}, s{S_XCD}, s{S_T0}\ns_lshl2_add_u32 s{S_T0}, s{S_T0}, s{x}\ns_lshl_b32 s{S_T0}, s{S_T0}, 14\ns_add_u32 s{S_T1}, s{S_T0}, 8192")
        if "s" in cfg.hwhat: a(f"buffer_load_dword v{JUNK}, v{T2}, s[{R_SSM}:{R_SSM+3}], s{S_T0} offen nt\nbuffer_load_dword v{JUNK}, v{T2}, s[{R_SSM}:{R_SSM+3}], s{S_T1} offen nt")
    kv_loads()
    if cfg.htouch == 0: touches(); a(f"s_waitcnt vmcnt({ntouch})"); a.vm = []
    else: a.wait(vm="all")
    a("s_barrier")
    g_read()
    for op in prep: emit(op)
    mark_load(); mark_check()
    a("s_barrier")
    publish()
    if cfg.htouch == 1: touches()
    a(f"s_waitcnt vmcnt({ntouch})" if cfg.htouch == 1 else "s_waitcnt vmcnt(0)"); a.vm = []
    k.signal(S_US)
    if cfg.htouch == 2: touches()
    if cfg.e0seg <= cfg.ssmseg:
        for q in early[:2]: w2_dma(q)
        ssm_loads()
        for q in early[2:cfg.nearly]: w2_dma(q)
    else:
        ssm_loads()
        for q in early[:cfg.nearly]: w2_dma(q)
    hv = list(a.vm)
    a("s_branch L_Xj")
    k.ool.append("\n".join(a.lines[hn0:])); del a.lines[hn0:]; a.lg = []
    a.vm = keep; a.cap = cfg.cap0
    for f in c1[cfg.n1:]: f()
    stamp(1)
    if cfg.g1prio: a(f"s_setprio {cfg.g1prio}")
    a.wait(vm="c0"); stamp(16); a("s_barrier")
    a.cap = cfg.cap
    sig = [False]; stored = [False]
    def trysig():
        if stored[0] and not sig[0] and "ur" not in a.vm: k.signal(S_US); sig[0] = True
    body = prep[nrd:]; per_seg = -(-len(body) // cfg.nps)
    p0 = cfg.kvpos + cfg.pdelay; carry = []
    for i in range(7):
        if cfg.segstamps or i == 0: stamp(2 + i)
        if i == 0: g_read()
        if i == cfg.mseg - 1: a.wait(lg="all"); mark_load()
        if i == cfg.mseg + 1: publish()
        dm = carry
        if i == cfg.stseg: dm.append(stats_dma)
        if i + 2 == cfg.kvpos: dm.append(kv_loads)
        if i + 2 <= 7: dm += chunk_ops(i + 2)
        if i == cfg.e0seg: dm += [(lambda q=q: w2_dma(q)) for q in early[:2]]
        if i == cfg.ssmseg: dm.append(ssm_loads)
        if i == 6: dm += [(lambda q=q: w2_dma(q)) for q in early[2 if cfg.e0seg < 6 else 0:cfg.nearly]]
        hold = cfg.hold[i] if i < len(cfg.hold) else 0
        dm, carry = dm[:len(dm)-hold], dm[len(dm)-hold:]
        fl = []
        if i == cfg.kvpos: fl += prep[:nrd]
        if p0 <= i < p0 + cfg.nps: fl += body[(i-p0)*per_seg:(i-p0+1)*per_seg]
        per = -(-len(fl) // len(dm))
        for f in dm:
            f(); trysig()
            for op in fl[:per]: emit(op)
            fl = fl[per:]
        if i == p0 + cfg.nps - 1: stored[0] = True
        if i == cfg.kvpos: a.wait(lg="pr")
        if i == cfg.mseg: mark_check()
        a.wait(vm=f"c{i+1}"); trysig()
        a("s_barrier")
    if cfg.g1prio: a("s_setprio 0")
    if not sig[0]: a.wait(vm="ur"); trysig()
    assert cfg.stseg <= 5 and cfg.stseg > cfg.mseg and p0 + cfg.nps - 1 > cfg.mseg and cfg.e0seg > cfg.kvpos and cfg.ssmseg >= cfg.kvpos - 1
    assert a.vm == hv[len(hv)-len(a.vm):], (a.vm, hv)
    a.vm = hv
    a.label("L_Xj")
    if cfg.segstamps: stamp(9)
    a.cap = cfg.cap2
    pos = [0]
    def upoint():
        if pos[0] == max(cfg.upos - 3, 0): k.speek(S_PUB)
        if pos[0] == cfg.upos: a("s_waitcnt lgkmcnt(0)"); a.lg = []; ustage()
        pos[0] += 1
    for q in early[cfg.nearly:] + late[:4]: upoint(); w2_dma(q)
    k.lds_wait(4, T0, T1)
    if cfg.xprio: a(f"s_setprio {cfg.xprio}")
    stamp(10)
    def trs(ii, tag):
        return [(f"ds_read_b64_tr_b16 v[{WB+8*ii+4*dt+2*h}:{WB+8*ii+4*dt+2*h+1}], v{TR+2*(ii>>3)+dt} offset:{(ii&7)*8192+512*h}", tag) for dt in range(2) for h in range(2)]
    HD = 40
    def shift_reads():
        a(f"v_add_u32 v{T0}, s{S_H1}, v{V16}\nv_subrev_u32 v{T1}, 4, v{T0}\nv_subrev_u32 v{T2}, {H_STRIDE}, v{T0}")
        a(f"s_bitcmp1_b32 s{x}, 0\ns_cselect_b32 s{S_U0}, s{S_U0}, 0")
        a.wait(vm="h")
        for n in range(2):
            a.lds(f"ds_read_b128 v[{HD+8*n}:{HD+8*n+3}], v{T0} offset:{1024*n}", "sh")
            a.lds(f"ds_read_b32 v{HD+8*n+4}, v{T1} offset:{1024*n}", "sh")
    def shift_writes():
        a.wait(lg="sh")
        a(f"v_writelane_b32 v{HD+4}, s{S_U0}, 0")
        for n in range(2):
            b = HD + 8*n
            a(f"v_alignbit_b32 v{b+3}, v{b+3}, v{b+2}, 16\nv_alignbit_b32 v{b+2}, v{b+2}, v{b+1}, 16\nv_alignbit_b32 v{b+1}, v{b+1}, v{b}, 16\nv_alignbit_b32 v{b}, v{b}, v{b+4}, 16")
            a.lds(f"ds_write_b128 v{T2}, v[{b}:{b+3}] offset:{1024*n}")
    order = early + late
    seq = late[4:] + [14 + q for q in order]
    filled = 0
    def fill(force=None):
        nonlocal filled
        n = 0
        while filled < 14 and ((n < 2 and f"w{order[filled]}" not in a.vm and order[filled] in issued) or (force is not None and filled <= force)):
            a.wait(vm=f"w{order[filled]}")
            for ins, tag in trs(order[filled], f"f{order[filled]}"): a.lds(ins, tag)
            filled += 1; n += 1
    issued = set(early + late[:4])
    a(f"s_lshl2_add_u32 s{S_T0}, s{S_R2}, s{x}\ns_add_u32 s{S_T0}, s{S_T0}, {CNT_H}\ns_lshl_b32 s{S_US}, s{S_T0}, 8")
    arr = [False]
    HO = [None] + [R_V + n for n in range(4)] + [R_OUT, R_OUT + 1]
    for n in range(1, 7): a(f"s_movk_i32 s{HO[n]}, {4096*n}")
    for n, q in enumerate(seq):
        if n == len(seq) - cfg.apeek: k.speek(S_US)
        upoint()
        if q >= 14:
            fill(force=order.index(q - 14)); a.wait(lg=f"f{q-14}")
        if not (cfg.x_nop2 and q >= 14): w2_dma(q)
        issued.add(q)
        if n == 0: shift_reads()
        elif n == 1: shift_writes()
        else: fill()
        if n >= 1 and not arr[0] and pos[0] > cfg.upos + cfg.uwait:
            a.wait(vm="u"); k.lds_arrive(0, T0, T1); arr[0] = True
    assert arr[0]
    stamp(12)
    if cfg.xprio: a("s_setprio 0")
    k.scheck(S_US, 0xff, 7)
    stamp(13)
    NL = cfg.nl
    hs = [(i, tt) for i in range(28 - NL) for tt in range(2)] + [(i, tt) for tt in range(2) for i in range(28 - NL, 28)]
    def hload(n):
        i, tt = hs[n]; d = AR + 4*(n & 15); i = SG[i]
        if n == 28 - cfg.bpeek: k.speek(S_US)
        if n == 28: k.scheck(S_US, None, 0x707)
        off = f" offset:{1024*(i&3)}" if i & 3 else ""
        a.vmem(f"buffer_load_dwordx4 v[{d}:{d+3}], v{(HA, HB)[tt]}, s[{R_WS}:{R_WS+3}], {'s%d' % HO[i>>2] if i >= 4 else 0} offen{off} sc1", f"a{n}")
    def pwrites(tt):
        return ([("m0", 0)] + [f"ds_write_addtid_b32 v{ACC2+32*tt+r} offset:{(2*tt+(r>>3))*8192+(r&7)*256}" for r in range(16)] +
                [("m0", 32768)] + [f"ds_write_addtid_b32 v{ACC2+32*tt+16+r} offset:{(4*tt+(r>>2))*8192+(r&3)*256+16}" for r in range(16)])
    def pw(q):
        o = q.pop(0)
        if isinstance(o, tuple):
            a(f"s_add_u32 m0, s{S_B}, {o[1]}\ns_nop 0"); o = q.pop(0)
        a.lds(o)
    a.cap = None
    LA = 2*cfg.la
    for n in range(LA): hload(n)
    pend = []; w0 = pwrites(0); tail = 0
    for n, (i, tt) in enumerate(hs):
        ii = i % 14
        for dt in range(2):
            a.wait(vm=f"a{n}", lg=f"g{i}")
            d = ACC2 + 16*(2*tt+dt)
            if not cfg.x_nog2 or i == 0 or n >= 42 or dt == 0: a(f"v_mfma_f32_32x32x16_bf16 v[{d}:{d+15}], v[{AR+4*(n&15)}:{AR+4*(n&15)+3}], v[{WB+8*ii+4*dt}:{WB+8*ii+4*dt+3}], {'0' if i == 0 else v(d,16)}")
            if pend: a.lds(*pend.pop(0))
            if NL and n >= 56 - NL:
                tail += 1
                if tail == 1: a("s_nop 6")
                elif tail == 2: a("s_nop 1"); pw(w0); pw(w0)
                else:
                    for _ in range(3):
                        if w0:
                            pw(w0)
                            if not w0: k.lds_arrive(6, T0, T1)
        if n + LA < 56: hload(n + LA)
        if i < 14 and tt == 1: pend = trs(ii, f"g{i+14}")
    stamp(14)
    if not NL: a("s_nop 7")
    if w0:
        while w0: pw(w0)
        k.lds_arrive(6, T0, T1)
        a("s_nop 3")
    else: a("s_nop 8")
    w1 = pwrites(1)
    while w1: pw(w1)
    a("s_mov_b64 exec, 1"); a.lds(f"ds_add_u32 v{T0}, v{T1} offset:28"); a("s_mov_b64 exec, -1")
    stamp(15)
    k.flush_stamps()
    a("s_endpgm")
    for o in k.ool: a(o)

def gen_m(k):
    a, cfg, stamp = k.a, k.cfg, k.stamp
    w = S_WV
    S_TH, S_FH = 98, 99
    V16, QA, WA, VST = 1, 2, 4, 8
    T0, T1, T2, T3 = 10, 11, 12, 13
    VCW, VCR = 14, 15
    ACC, CS, QF, WF, ONES, B1F, STT, CSP, WA2, GR = 16, 80, 96, 128, 160, 164, 180, 188, 204, 248
    CA, CB, AD, EXW, EXR, YST, VXO, VSA, VB2, YS0, YS1, YA0, YA1, PA0, PA1, DV, JUNK = 208, 209, 210, 214, 215, 216, 217, 218, 219, 220, 221, 222, 223, 224, 225, 226, 227
    XR, XF, B1R = 96, 104, CSP
    LAM = -(2*1.4426950408889634*0.7978845608028654*0.044715) ** (1/3)
    MU = 2*1.4426950408889634*0.7978845608028654 / -LAM
    VKA, VKB, VHALO, VTA, PK, PH, PV, PST, TAPS = 236, 237, 238, 239, 240, 241, 242, 243, 244
    a(f"s_lshl_b32 s{S_U0}, s{S_R}, 7\ns_lshl3_add_u32 s{S_U0}, s{S_C16}, s{S_U0}\ns_lshl1_add_u32 s{S_U0}, s{w}, s{S_U0}")
    a(f"s_lshl_b32 s{S_U1}, s{S_U0}, 10\ns_or_b32 s{S_U2}, s{S_J}, s{w}")
    a(f"s_mov_b32 s{R_WS+2}, {WS_SIZE}\ns_mov_b32 s{R_WS+3}, s{R_Q+3}")
    for i in range(4): a(f"v_mov_b32 v{GR+i}, 0")
    a(f"v_and_b32 v{T3}, 16, v{V16}\nv_add_u32 v{T3}, {L_SYNC}, v{T3}\nds_write_b128 v{T3}, v[{GR}:{GR+3}]")
    a("s_waitcnt lgkmcnt(0)")
    if cfg.wsoff: a(f"s_add_u32 s{P_WS}, s{P_WS}, {cfg.wsoff}\ns_addc_u32 s{P_WS+1}, s{P_WS+1}, 0")
    a(f"s_mov_b64 s[{R_Q}:{R_Q+1}], s[{P_Q}:{P_Q+1}]\ns_mov_b64 s[{R_WS}:{R_WS+1}], s[{P_WS}:{P_WS+1}]")
    LN = a.newlabel("Lnolead")
    a(f"s_cmp_lg_u32 s{S_U2}, 0\ns_cbranch_scc1 {LN}")
    a(f"v_min_u32 v{T3}, 47, v0\nv_lshlrev_b32 v{T3}, 8, v{T3}\ns_mul_i32 s{S_T0}, s2, {48*256}\ns_lshl_b32 s{S_T1}, s2, 11\ns_add_u32 s{S_T1}, s{S_T1}, {WS_STATS}")
    a(f"buffer_store_dwordx4 v[{GR}:{GR+3}], v{V16}, s[{R_WS}:{R_WS+3}], s{S_T1} offen sc1")
    a(f"buffer_store_dwordx4 v[{GR}:{GR+3}], v{V16}, s[{R_WS}:{R_WS+3}], s{S_T1} offen offset:1024 sc1")
    a(f"buffer_store_dword v{GR}, v{T3}, s[{R_WS}:{R_WS+3}], s{S_T0} offen sc1")
    a.label(LN)
    a.vmem(f"buffer_load_dwordx4 v[{XR}:{XR+3}], v{V16}, s[{R_Q}:{R_Q+3}], s{S_U1} offen {cfg.ntq}", "x")
    a.vmem(f"buffer_load_dwordx4 v[{XR+4}:{XR+7}], v{V16}, s[{R_Q}:{R_Q+3}], s{S_U1} offen offset:1024 {cfg.ntq}", "x")
    a(f"s_and_b32 s{S_TH}, s{w}, 1\ns_lshr_b32 s{S_FH}, s{w}, 1")
    a(f"s_lshl_b32 s{S_T0}, s{S_XCD}, 5\ns_add_u32 s{S_T0}, s{S_T0}, s{S_J}\ns_lshl_b32 s{S_T0}, s{S_T0}, 2\ns_load_dword s{S_PV}, s[{P_D}:{P_D+1}], s{S_T0}")
    a(f"v_and_b32 v{T2}, 15, v0\nv_lshrrev_b32 v{T3}, 1, v{T2}\nv_xor_b32 v{T3}, v{T3}, v{T1}\nv_lshlrev_b32 v{T3}, 4, v{T3}\nv_lshl_add_u32 v{T3}, v{T2}, 7, v{T3}")
    a(f"s_lshl_b32 s{S_T0}, s{S_TH}, 6\nv_xor_b32 v{T3}, s{S_T0}, v{T3}")
    a(f"s_lshl_b32 s{S_T0}, s{S_TH}, 13\nv_add_u32 v{QA}, s{S_T0}, v{T3}\nv_xor_b32 v{QA+1}, 64, v{QA}\nv_lshlrev_b32 v{VST}, 3, v{T2}")
    a(f"v_bfe_u32 v{T2}, v0, 2, 3")
    a(f"v_bfe_u32 v{T3}, v0, 2, 2\nv_lshl_add_u32 v{T3}, v{T1}, 3, v{T3}\nv_lshlrev_b32 v{T3}, 8, v{T3}\nv_and_b32 v{T0}, 3, v0\nv_lshl_add_u32 v{T3}, v{T0}, 3, v{T3}")
    a(f"v_add_u32 v{T3}, {L_W}, v{T3}")
    a(f"s_lshl_b32 s{S_T1}, s{S_FH}, 2")
    for i in range(4):
        a(f"v_xor_b32 v{T0}, s{S_T1}, v{T2}\ns_add_u32 s{S_T1}, s{S_T1}, 1")
        a(f"v_lshl_add_u32 v{WA+i}, v{T0}, 5, v{T3}")
    a(f"s_lshl_b32 s{S_T0}, s{S_TH}, 13\ns_xor_b32 s{S_T1}, s{S_T0}, 8192")
    for i in range(4): a(f"v_add_u32 v{WA2+i}, s{S_T1}, v{WA+i}\nv_add_u32 v{WA+i}, s{S_T0}, v{WA+i}")
    a("s_branch L_M2")
    k.split = len(a.lines)
    a(".p2align 6"); a.label("L_M2")
    stamp(0)
    a(f"v_bfe_u32 v{T0}, v0, 2, 2\nv_mov_b32 v{T3}, 0x3f803f80")
    for i in range(4):
        a(f"v_cmp_eq_u32 vcc, {i}, v{T0}\ns_nop 1")
        for r in range(4): a(f"v_cndmask_b32 v{CS+4*i+r}, 0, v{T3}, vcc")
    LN = a.newlabel("Lnolead")
    a(f"s_cmp_lg_u32 s{S_U2}, 0\ns_cbranch_scc1 {LN}")
    a(f"s_waitcnt vmcnt({len(a.vm)})\ns_lshl_b32 s{S_T0}, s2, 2\ns_mov_b32 s{S_ONE}, 1\ns_atomic_add s{S_ONE}, s[{P_DBG}:{P_DBG+1}], s{S_T0}")
    a.label(LN)
    S_H0, S_H1, S_INC, S_YP, S_YC = R_X0, R_X0+1, R_X0+2, R_X0+3, 17
    KC = T2
    def late_setup():
        srd(a, R_OUT, P_OUT, 2 << 20)
        a(f"v_lshrrev_b32 v{T1}, 4, v0\nv_bfe_u32 v{T0}, v0, 2, 2")
        a(f"s_lshl_b32 s{S_T0}, s{w}, 8\ns_add_u32 s{S_T0}, s{S_T0}, {L_CS}\nv_and_b32 v{VCR}, 48, v0\nv_lshl_add_u32 v{VCW}, v{T0}, 6, v{VCR}\nv_add_u32 v{VCW}, s{S_T0}, v{VCW}")
        a(f"s_lshl_b32 s{S_T0}, s{S_FH}, 9\ns_add_u32 s{S_T0}, s{S_T0}, {L_CS}\nv_add_u32 v{VCR}, s{S_T0}, v{VCR}")
        a(f"s_lshl_b32 s{S_U3}, s{S_R}, 10\ns_lshl_b32 s{S_T0}, s{S_TH}, 9\ns_add_u32 s{S_U3}, s{S_U3}, s{S_T0}\ns_add_u32 s{S_U3}, s{S_U3}, {WS_STATS}")
        a(f"s_mul_i32 s{S_T0}, s{S_FH}, {CH_STRIDE}\ns_lshl_b32 s{S_T1}, s{S_TH}, 8\ns_add_u32 s{S_T0}, s{S_T0}, s{S_T1}")
        a(f"s_add_u32 s{S_T1}, s{S_T0}, {L_CT+U_OFF+448}\ns_add_u32 s{S_T0}, s{S_T0}, {L_CT+128-56}")
        a(f"v_and_b32 v{T0}, 1, v0\nv_bfe_u32 v{T2}, v0, 1, 3")
        a(f"v_mul_u32_u24 v{CA}, {H_STRIDE}, v{T0}\nv_lshl_add_u32 v{CA}, v{T2}, 3, v{CA}\nv_lshl_add_u32 v{CA}, v{T1}, 4, v{CA}\nv_add_u32 v{CA}, s{S_T0}, v{CA}")
        a(f"v_mul_u32_u24 v{CB}, {U_STRIDE}, v{T0}\nv_lshl_add_u32 v{CB}, v{T1}, 4, v{CB}\nv_add_u32 v{CB}, s{S_T1}, v{CB}\nv_lshlrev_b32 v{T3}, 6, v{T2}\nv_sub_u32 v{CB}, v{CB}, v{T3}")
        a(f"v_xor_b32 v{AD+1}, 1, v{T0}\nv_lshlrev_b32 v{AD+1}, 4, v{AD+1}")
        a(f"v_lshlrev_b32 v{AD+3}, 1, v{T2}\nv_lshl_add_u32 v{AD+3}, v{T1}, 2, v{AD+3}")
        a(f"s_lshl_b32 s{S_T0}, s{w}, 13\ns_add_u32 s{S_T0}, s{S_T0}, {L_CT}\nv_add_u32 v{EXW}, s{S_T0}, v{V16}")
        a(f"s_add_u32 s{S_T0}, s{S_B}, {L_CT}\nv_add_u32 v{EXR}, s{S_T0}, v{V16}")
        a(f"v_bfe_u32 v{T0}, v0, 2, 2\nv_and_b32 v{T3}, 3, v0\nv_lshlrev_b32 v{T0}, 8, v{T0}\nv_lshl_add_u32 v{T0}, v{T1}, 6, v{T0}\nv_lshl_add_u32 v{YST}, v{T3}, 4, v{T0}")
        a(f"s_lshl_b32 s{S_T0}, s{S_XCD}, 5\ns_add_u32 s{S_T0}, s{S_T0}, s{S_J}\ns_lshl_b32 s{S_T0}, s{S_T0}, 13\ns_add_u32 s{S_T0}, s{S_T0}, s{S_B}\ns_add_u32 s{S_T0}, s{S_T0}, {WS_Y}\nv_add_u32 v{YST}, s{S_T0}, v{YST}")
        a(f"s_lshl_b32 s{S_T1}, s{w}, 1\nv_and_b32 v{T0}, 15, v0\nv_xor_b32 v{T0}, s{S_T1}, v{T0}\nv_lshlrev_b32 v{T0}, 4, v{T0}\nv_lshl_add_u32 v{YS0}, v{T1}, 13, v{T0}\nv_xor_b32 v{YS1}, 16, v{YS0}")
        a(f"s_lshl_b32 s{S_T1}, s{S_C2}, 18\ns_lshl_b32 s{S_T2}, s{S_R2}, 8\ns_add_u32 s{S_T1}, s{S_T1}, s{S_T2}\ns_lshl_b32 s{S_T2}, s{w}, 16\ns_add_u32 s{S_T1}, s{S_T1}, s{S_T2}\ns_add_u32 s{S_T1}, s{S_T1}, {WS_Y}")
        a(f"s_add_u32 s{S_T2}, s{S_T1}, {4*8192-1024}\nv_add_u32 v{YS0}, s{S_T1}, v{YS0}\nv_add_u32 v{YS1}, s{S_T2}, v{YS1}")
        RHO, OCT, TOFF = 236, 237, 238
        a(f"v_lshrrev_b32 v{RHO}, 3, v0\nv_and_b32 v{OCT}, 7, v0")
        a(f"v_and_b32 v{TOFF}, 1, v{RHO}\nv_bfe_u32 v{T0}, v{RHO}, 1, 1\nv_lshl_add_u32 v{TOFF}, v{T0}, 2, v{TOFF}\nv_lshrrev_b32 v{T2}, 2, v{RHO}\nv_lshl_add_u32 v{TOFF}, v{T2}, 1, v{TOFF}")
        a(f"s_lshl_b32 s{S_T1}, s{S_R2}, 6\ns_lshl3_add_u32 s{S_T1}, s{w}, s{S_T1}\nv_add_u32 v{T3}, s{S_T1}, v{TOFF}")
        a(f"s_lshl_b32 s{S_T2}, s{S_C2}, 7\nv_lshl_add_u32 v{VB2}, v{OCT}, 4, s{S_T2}\nv_lshl_add_u32 v{VXO}, v{T3}, 10, v{VB2}\nv_lshlrev_b32 v{VB2}, 4, v{OCT}\nv_add_u32 v{VB2}, {L_B2}, v{VB2}\nv_lshlrev_b32 v{VSA}, 3, v{T3}\nv_add_u32 v{VSA}, {WS_STATS}, v{VSA}")
        a(f"s_lshl_b32 s{S_T0}, s{w}, 2\ns_or_b32 s{S_T0}, s{S_T0}, 1\nv_xor_b32 v{T0}, s{S_T0}, v{T2}\nv_xor_b32 v{T0}, v{T0}, v{OCT}\nv_lshlrev_b32 v{T0}, 4, v{T0}")
        a(f"v_lshl_add_u32 v{T0}, v{OCT}, 10, v{T0}\nv_and_b32 v{T2}, 3, v{RHO}\nv_lshl_add_u32 v{T0}, v{T2}, 2, v{T0}")
        a(f"v_xor_b32 v{YA1}, 32, v{T0}\nv_add_u32 v{YA0}, {L_YST}, v{T0}\nv_add_u32 v{YA1}, {L_YST}, v{YA1}")
        a(f"v_and_b32 v{T0}, 3, v{TOFF}\nv_lshlrev_b32 v{T0}, 8, v{T0}\nv_lshrrev_b32 v{T2}, 2, v{TOFF}\nv_lshl_add_u32 v{T0}, v{T2}, 7, v{T0}\nv_and_b32 v{T2}, 3, v{OCT}\nv_lshl_add_u32 v{T0}, v{T2}, 5, v{T0}")
        a(f"s_lshl_b32 s{S_T0}, s{S_FH}, 13\ns_lshl_b32 s{S_T1}, s{S_TH}, 10\ns_add_u32 s{S_T0}, s{S_T0}, s{S_T1}")
        a(f"s_lshl_b32 s{S_T1}, s{w}, 13\ns_add_u32 s{S_T1}, s{S_T1}, {4*8192+16}")
        a(f"v_mov_b32 v{PA0}, s{S_T0}\nv_mov_b32 v{T2}, s{S_T1}\nv_cmp_lt_u32 vcc, 3, v{OCT}\nv_mov_b32 v{T3}, 16384\nv_mov_b32 v{PA1}, 32768")
        a(f"v_cndmask_b32 v{PA0}, v{PA0}, v{T2}, vcc\nv_cndmask_b32 v{T3}, v{T3}, v{PA1}, vcc\nv_add_u32 v{PA0}, v{T0}, v{PA0}\nv_add_u32 v{PA1}, v{PA0}, v{T3}")
        a(f"s_lshl_b32 s{S_T0}, s{S_FH}, 7\ns_add_u32 s{S_T0}, s{S_T0}, {L_B1}\nv_lshl_add_u32 v{DV}, v{T1}, 3, s{S_T0}")
        a(f"s_lshl1_add_u32 s{S_T0}, s{S_R}, s{S_TH}\ns_lshl1_add_u32 s{S_T2}, s{S_C}, s{S_FH}")
        a(f"s_mul_i32 s{S_T1}, s{S_T0}, {224*1024}\ns_lshl_b32 s{S_T3}, s{S_T2}, 12\ns_add_u32 s{S_T1}, s{S_T1}, s{S_T3}\ns_add_u32 s{S_H0}, s{S_T1}, {WS_H}\ns_add_u32 s{S_H1}, s{S_H0}, {112*1024}")
        a(f"s_mul_i32 s{S_T1}, s{S_T2}, 37\ns_lshr_b32 s{S_T1}, s{S_T1}, 8\ns_lshl2_add_u32 s{S_T0}, s{S_T0}, s{S_T1}\ns_add_u32 s{S_T0}, s{S_T0}, {CNT_H}\ns_lshl_b32 s{S_PUB}, s{S_T0}, 8")
        a(f"s_cmp_lg_u32 s{S_CL}, 7\ns_cselect_b32 s{S_INC}, 1, 0")
        a(f"s_lshl2_add_u32 s{S_T0}, s{S_XCD}, s{w}\ns_lshr_b32 s{S_T1}, s{S_J}, 3\ns_lshl2_add_u32 s{S_T0}, s{S_T0}, s{S_T1}\ns_add_u32 s{S_T0}, s{S_T0}, {CNT_Y}\ns_lshl_b32 s{S_YP}, s{S_T0}, 8")
        a(f"s_lshr_b32 s{S_T0}, s{S_R2}, 3\ns_lshl2_add_u32 s{S_T0}, s{S_C2}, s{S_T0}\ns_lshl2_add_u32 s{S_T0}, s{S_T0}, s{w}\ns_add_u32 s{S_T0}, s{S_T0}, {CNT_Y}\ns_lshl_b32 s{S_YC}, s{S_T0}, 8")
        a(f"v_mov_b32 v{KC}, {f32(MU)}\nv_mov_b32 v{KC+1}, {f32(LAM)}\ns_mov_b32 s{S_U1}, 32768")
        a(f"s_lshl_b32 s{S_T0}, s{S_TH}, 9\ns_add_u32 s{S_T0}, s{S_T0}, {L_ST}\nv_add_u32 v{VST+1}, s{S_T0}, v{VST}")
        a(f"s_lshl_b32 s{S_T0}, s{S_FH}, 4\ns_lshr_b32 s{S_PV}, s{S_PV}, s{S_T0}\ns_and_b32 s{S_PV}, s{S_PV}, 0xffff\nv_mov_b32 v{T0}, s{S_PV}")
        a(f"v_lshlrev_b32 v{T0}, v{AD+1}, v{T0}\ns_sub_u32 s{S_T2}, s{S_TH}, 1\nv_and_b32 v{T0}, s{S_T2}, v{T0}")
        a(f"v_cmp_eq_u32 vcc, 14, v{AD+3}\nv_mov_b32 v{AD+1}, 0\ns_nop 0\nv_cndmask_b32 v{AD}, 0, v{T0}, vcc")
        a(f"v_cmp_eq_u32 vcc, 12, v{AD+3}\nv_mov_b32 v{AD+3}, 0\ns_nop 0\nv_cndmask_b32 v{AD+2}, 0, v{T0}, vcc")
    a.wait(vm="x")
    for n in range(2):
        for m in range(4):
            a(f"v_lshlrev_b32 v{XF+8*n+2*m}, 16, v{XR+4*n+m}\nv_and_b32 v{XF+8*n+2*m+1}, 0xffff0000, v{XR+4*n+m}")
    SM = XR
    def reduce2():
        for dpp in ("row_shr:1 row_mask:0xf bank_mask:0xf bound_ctrl:0", "row_shr:2 row_mask:0xf bank_mask:0xf bound_ctrl:0", "row_shr:4 row_mask:0xf bank_mask:0xf bound_ctrl:0",
                    "row_shr:8 row_mask:0xf bank_mask:0xf bound_ctrl:0", "row_bcast:15 row_mask:0xa bank_mask:0xf", "row_bcast:31 row_mask:0xc bank_mask:0xf"):
            a("s_nop 0")
            for n in range(2): a(f"v_add_f32_dpp v{SM+n}, v{SM+n}, v{SM+n} {dpp}")
    for n in range(2): a(f"v_add_f32 v{SM+n}, v{XF+8*n}, v{XF+8*n+1}")
    for m in range(2, 8):
        for n in range(2): a(f"v_add_f32 v{SM+n}, v{SM+n}, v{XF+8*n+m}")
    reduce2()
    for n in range(2): a(f"v_mul_f32 v{SM+2+n}, {f32(1/512)}, v{SM+n}")
    a(f"v_readlane_b32 s{S_T0}, v{SM+2}, 63\nv_readlane_b32 s{S_T1}, v{SM+3}, 63\ns_nop 0")
    for n in range(2):
        for m in range(8): a(f"v_subrev_f32 v{XF+8*n+m}, s{S_T0+n}, v{XF+8*n+m}")
    for n in range(2): a(f"v_mul_f32 v{SM+n}, v{XF+8*n}, v{XF+8*n}")
    for m in range(1, 8):
        for n in range(2): a(f"v_fmac_f32 v{SM+n}, v{XF+8*n+m}, v{XF+8*n+m}")
    reduce2()
    a(f"v_mov_b32 v{T1}, {f32(1e-5)}")
    for n in range(2): a(f"v_fmamk_f32 v{SM+n}, v{SM+n}, {f32(1/512)}, v{T1}")
    for n in range(2): a(f"v_rsq_f32 v{SM+n}, v{SM+n}")
    for n in range(2): a(f"v_or_b32 v{GR+2*n}, 1, v{SM+2+n}")
    for n in range(2): a(f"v_or_b32 v{GR+2*n+1}, 1, v{SM+n}")
    stamp(14)
    a(f"s_lshl_b32 s{S_T0}, s{w}, 4\ns_add_u32 s{S_T0}, s{S_T0}, {L_GR}\nv_mov_b32 v{T0}, s{S_T0}\ns_lshl_b64 exec, -1, 63")
    a.lds(f"ds_write_b128 v{T0}, v[{GR}:{GR+3}]"); a("s_mov_b64 exec, -1")
    def stats_loads():
        for tau in range(4):
            a(f"buffer_load_dwordx2 v[{STT+2*tau}:{STT+2*tau+1}], v{VST}, s[{R_WS}:{R_WS+3}], s{S_U3} offen offset:{128*tau} sc1")
    a.wait(lg="all")
    stamp(1)
    def rd(i, ks):
        slot = (i % 3) * 16384; b = 16*ks; wa = (WA, WA2)[ks]
        def W(n): return [(f"ds_read_b64_tr_b16 v[{WF+b+4*n+2*h}:{WF+b+4*n+2*h+1}], v{wa+n} offset:{slot+1024*h}", f"W{i}{ks}{n}") for h in range(2)]
        def Q(t): return [(f"ds_read_b128 v[{QF+b+4*t}:{QF+b+4*t+3}], v{QA+ks} offset:{slot+2048*t}", f"Q{i}{ks}{t}")]
        if cfg.x_nolds: return []
        return W(0) + Q(0) + Q(1) + Q(2) + Q(3) + W(1) + W(2) + W(3)
    def mm(i, ks, n, t):
        b = 16*ks
        if t == "cs":
            d = ONES; B = CS + 4*n; first = (i == 0 and n == 0); tags = [f"W{i}{ks}{n}"]
        else:
            d = ACC + 4*(4*n+t); B = QF+b+4*t; first = (i == 0 and ks == 0); tags = [f"W{i}{ks}{n}", f"Q{i}{ks}{t}"]
            if cfg.coarse and n == 0 and t == 0 and (i, ks) != (0, 0): tags.append(f"Q{i}{ks}3")
        a.wait(lg=tags)
        if not cfg.x_nomfma: a(f"v_mfma_f32_16x16x32_bf16 v[{d}:{d+3}], v[{WF+b+4*n}:{WF+b+4*n+3}], v[{B}:{B+3}], {'0' if first else v(d,4)}")
        for _ in range(cfg.bgn + (1 if len(bg) > 1 and bg[0].startswith("s_") and bg[1].startswith("s_") else 0)):
            if bg: a(bg.pop(0))
    bg = []
    if cfg.dseg < 0:
        n0 = len(a.lines); late_setup(); bg = a.lines[n0:]; del a.lines[n0:]
    base = [(n, t) for n in range(4) for t in range(4)]
    withcs = sum([base[4*n:4*n+4] + [(n, "cs")] for n in range(4)], [])
    VSY = JUNK
    a(f"v_mov_b32 v{VSY}, {L_SYNC}")
    a("s_barrier")
    stamp(2)
    a(f"s_cmp_eq_u32 s{S_CL}, 7\ns_cbranch_scc1 L_Mh")
    for ins, tag in rd(0, 0): a.lds(ins, tag)
    def stats_check():
        L = a.newlabel("Lst"); B = a.newlabel("Lstb")
        chk = (f"v_min3_u32 v{T0}, v{STT}, v{STT+1}, v{STT+2}\nv_min3_u32 v{T1}, v{STT+3}, v{STT+4}, v{STT+5}", f"v_min3_u32 v{T0}, v{T0}, v{STT+6}, v{STT+7}\nv_min_u32 v{T0}, v{T0}, v{T1}", f"v_cmp_eq_u32 vcc, 0, v{T0}")
        n0 = len(a.lines); stats_loads(); ld = "\n".join(a.lines[n0:]); del a.lines[n0:]
        k.ool.append(f"{L}:\n{ld}\ns_add_u32 s{S_SPIN}, s{S_SPIN}, 1\ns_waitcnt vmcnt(0)\n" + "\n".join(chk) + f"\ns_cmp_gt_u32 s{S_SPIN}, {SPIN_MAX}\ns_cbranch_scc1 {B}\ns_cbranch_vccnz {L}\ns_branch {B}")
        return ([chk[0], chk[1], chk[2] + f"\ns_mov_b32 s{S_SPIN}, 0\ns_cbranch_vccnz {L}\n{B}:"] +
                [f"v_mul_f32 v{STT+4*q+1}, v{KC+1}, v{STT+4*q+1}\nv_mul_f32 v{STT+4*q+3}, v{KC+1}, v{STT+4*q+3}" for q in range(2)] +
                [f"v_mul_f32 v{STT+4*q}, v{STT+4*q}, v{STT+4*q+1}\nv_mul_f32 v{STT+4*q+2}, v{STT+4*q+2}, v{STT+4*q+3}" for q in range(2)])
    for i in range(8):
        pend = rd(i, 1)
        lastA = base[:4] + [(n, "cs") for n in range(4)] + base[4:]
        for q, (n, t) in enumerate(base if i < 7 else lastA):
            if i == 7 and q % 4 == 0: k.lstamp("g1end")
            mm(i, 0, n, t)
            if i == 4 and q == 12: assert not bg
            if i == 4 and q in (12, 13): a.lds(f"ds_read2_b64 v[{B1R+4*(q-12)}:{B1R+4*(q-12)+3}], v{DV} offset0:{8*(q-12)} offset1:{8*(q-12)+4}", "b1")
            if i == 5: a(f"v_lshlrev_b32 v{B1F+q}, 16, v{B1R+q//2}" if q % 2 == 0 else f"v_and_b32 v{B1F+q}, 0xffff0000, v{B1R+q//2}")
            if i == 6: a(f"v_mul_f32 v{B1F+q}, v{KC+1}, v{B1F+q}")
            if pend: a.lds(*pend.pop(0))
            elif i == 7 and q == 13:
                a(f"s_mov_b64 exec, s[{S_T2}:{S_T3}]")
                a.lds(f"ds_write_b128 v{VCW}, v[{ONES}:{ONES+3}]")
                a("s_mov_b64 exec, -1")
            elif i == 7 and q in (15, 16):
                a.lds(f"ds_read2_b64 v[{STT+4*(q-15)}:{STT+4*(q-15)+3}], v{VST+1} offset0:{32*(q-15)} offset1:{32*(q-15)+16}", "stt")
            elif i == 7 and q == 14:
                a(f"v_mov_b32 v{T1}, 1\ns_mov_b64 exec, 1"); a.lds(f"ds_add_u32 v{VSY}, v{T1} offset:16"); a("s_mov_b64 exec, -1")
        if i < 7:
            pend = rd(i+1, 0)
            for q, (n, t) in enumerate(withcs):
                mm(i, 1, n, t)
                if q == cfg.bq:
                    if i == cfg.dseg: late_setup()
                    a.wait(lg="all")
                    a("s_barrier")
                    if i == 6: k.lstamp("g1end")
                    if i == 6: a(f"s_mov_b32 s{S_T2}, 0x11111111\ns_mov_b32 s{S_T3}, s{S_T2}")
                if q >= cfg.bq + (0 if cfg.rdnow else 1) and pend: a.lds(*pend.pop(0))
        else:
            side = stats_check()
            pend = [(f"ds_read_b128 v[{(CS, CSP)[h]+4*n2}:{(CS, CSP)[h]+4*n2+3}], v{VCR} offset:{64*n2+256*h}", f"csp{n2}") for n2 in range(4) for h in range(2)]
            for q, (n, t) in enumerate(base):
                if q % 3 == 0: k.lstamp("g1end")
                mm(i, 1, n, t)
                if q == 0: k.lds_peek(4, VSY, GR, "pk4")
                if q == 5: k.lds_check(4, VSY, GR, "pk4")
                if q >= 5 and pend: a.lds(*pend.pop(0))
                if q == 1: a.wait(lg="stt")
                if side and q >= 1 and q != 5: a(side.pop(0))
        assert not pend
    a.vm = []
    if cfg.xprio: a("s_setprio 2")
    stamp(3)
    for m in range(0, 16, 2):
        if m % 8 == 0: a.wait(lg=f"csp{m//4+1}"); a(".p2align 3")
        a(f"v_pk_add_f32 v[{CS+m}:{CS+m+1}], v[{CS+m}:{CS+m+1}], v[{CSP+m}:{CSP+m+1}]")
    CACC, FAB = 16, ((96, 128), (48, 160))
    def reads(cc):
        FA, FB = FAB[cc & 1]; r = []
        for n in range(8):
            r.append((f"ds_read_b128 v[{FB+4*n}:{FB+4*n+3}], v{CB} offset:{3584-512*n+64*cc}", f"B{cc}_{n}"))
            for hf in range(2): r.append((f"ds_read_b64 v[{FA+4*n+2*hf}:{FA+4*n+2*hf+1}], v{CA} offset:{512*n+64*cc+8*hf}", f"A{cc}_{n}"))
        return r
    pend = reads(0)
    hq = []
    units = [(n, p) for n in range(4) for p in range(2)]
    for u, (n, p) in enumerate(units):
        k.lstamp("gelu")
        if u == 7: k.lds_peek(0, VSY, GR, "pk0")
        E = CSP + 8*(u & 1); O = 228 + 4*(u & 3)
        prs = [(ACC + 4*(4*n+2*p+tl) + 2*hh, 2*p+tl, 2*hh, E + 4*tl + 2*hh) for tl in range(2) for hh in range(2)]
        for z, tau, hh, e in prs: a(f"v_pk_fma_f32 v[{e}:{e+1}], v[{CS+4*n+hh}:{CS+4*n+hh+1}], v[{STT+2*tau}:{STT+2*tau+1}], v[{B1F+4*n+hh}:{B1F+4*n+hh+1}] op_sel_hi:[1,0,1] neg_lo:[0,1,0] neg_hi:[0,1,0]")
        for z, tau, hh, e in prs: a(f"v_pk_fma_f32 v[{z}:{z+1}], v[{z}:{z+1}], v[{STT+2*tau}:{STT+2*tau+1}], v[{e}:{e+1}] op_sel:[0,1,0]")
        for z, tau, hh, e in prs: a(f"v_pk_fma_f32 v[{e}:{e+1}], v[{z}:{z+1}], v[{z}:{z+1}], v[{KC}:{KC+1}] op_sel_hi:[1,1,0]")
        for z, tau, hh, e in prs: a(f"v_pk_mul_f32 v[{e}:{e+1}], v[{e}:{e+1}], v[{z}:{z+1}]")
        for m in range(0 if cfg.x_nogelu else 8): a(f"v_exp_f32 v{E+m}, v{E+m}")
        for z, tau, hh, e in prs: a(f"v_pk_fma_f32 v[{e}:{e+1}], v[{e}:{e+1}], v[{KC}:{KC+1}], v[{KC}:{KC+1}] op_sel:[0,1,1]")
        if u == 7 and cfg.earlyrd: k.lds_check(0, VSY, GR, "pk0")
        for m in range(8):
            if not cfg.x_nogelu: a(f"v_rcp_f32 v{E+m}, v{E+m}")
            if u == 7 and m < cfg.earlyrd: a.lds(*pend.pop(0))
        for z, tau, hh, e in prs: a(f"v_pk_mul_f32 v[{z}:{z+1}], v[{z}:{z+1}], v[{e}:{e+1}]")
        for q in (0, 2, 1, 3): a(f"v_cvt_pk_bf16_f32 v{O+q}, v{prs[q][0]}, v{prs[q][0]+1}")
        flush = u in cfg.hgroups
        a(f"v_permlane16_swap_b32 v{O}, v{O+2}\ns_nop 0\nv_permlane16_swap_b32 v{O+1}, v{O+3}\ns_nop 0")
        so = (S_H0, S_H1)[p]
        hq.append((f"buffer_store_dwordx4 v[{O}:{O+3}], v{V16}, s[{R_WS}:{R_WS+3}], s{so} offen offset:{1024*n} sc1", "h" if u > 3 else "ha"))
        if flush:
            while hq: a.vmem(*hq.pop(0))
    k.lstamp("gelu")
    stamp(5)
    if cfg.xprio: a("s_setprio 0")
    assert cfg.earlyrd
    n0 = len(a.lines); sv = (list(a.vm), list(a.lg)); a.vm = []; a.lg = []
    a.label("L_Mh")
    late_setup()
    a("s_barrier")
    a(f"v_mov_b32 v{T1}, 1\ns_mov_b64 exec, 1\nds_add_u32 v{VSY}, v{T1} offset:16\ns_mov_b64 exec, -1")
    k.lds_wait(0, VSY, GR, setaddr=False, sleep=2)
    for ins, tag in reads(0)[:cfg.earlyrd]: a(ins)
    a("s_branch L_Mj")
    k.ool.append("\n".join(a.lines[n0:])); del a.lines[n0:]
    a.vm, a.lg = sv
    a.label("L_Mj")
    stamp(6)
    while len(pend) > 15: a.lds(*pend.pop(0))
    cnt = [0]
    def tick():
        if cnt[0] == cfg.asigpos: a.wait(vm="ha"); a(f"s_atomic_add s{S_INC}, s[{P_WS}:{P_WS+1}], s{S_PUB}")
        if cnt[0] == cfg.hsigpos: a.wait(vm="h"); a(f"s_lshl_b32 s{S_ONE}, s{S_INC}, 8\ns_atomic_add s{S_ONE}, s[{P_WS}:{P_WS+1}], s{S_PUB}")
        if cnt[0] % 14 == 0 or cnt[0] == 152: k.lstamp("conv")
        cnt[0] += 1
    tick()
    wq = []
    for cc in range(4):
        FA, FB = FAB[cc & 1]
        nxt = reads(cc+1) if cc < 3 else []
        for T in range(8):
            for an in ([-1] if cc == 0 else []) + list(range(T+1)):
                d = CACC + 4*T
                if an < 0:
                    a.wait(lg=f"B0_{T}")
                    a(f"v_mfma_f32_16x16x32_bf16 v[{d}:{d+3}], v[{AD}:{AD+3}], v[{FB+4*T}:{FB+4*T+3}], 0")
                else:
                    e = T - an
                    a.wait(lg=[f"A{cc}_{an}", f"B{cc}_{e}"])
                    if not cfg.x_noconv or cc == 3: a(f"v_mfma_f32_16x16x32_bf16 v[{d}:{d+3}], v[{FA+4*an}:{FA+4*an+3}], v[{FB+4*e}:{FB+4*e+3}], v[{d}:{d+3}]")
                if pend: a.lds(*pend.pop(0))
                elif nxt:
                    a.lds(*nxt.pop(0))
                    if cc == 2 and not nxt:
                        a(f"v_mov_b32 v{T1}, 1\ns_mov_b64 exec, 1"); a.lds(f"ds_add_u32 v{VSY}, v{T1} offset:4"); a("s_mov_b64 exec, -1")
                tick()
                if cc == 3:
                    if (T, an) == (1, 0): k.lds_peek(1, VSY, T0, "pk1")
                    if (T, an) == (3, 2): k.lds_check(1, VSY, T0, "pk1")
                    if an == T: wq.append((cnt[0] + 8, T))
                    if wq and wq[0][0] <= cnt[0] and (T, an) > (3, 2):
                        T2_ = wq.pop(0)[1]
                        a.lds(f"ds_write_b128 v{EXW}, v[{CACC+4*T2_}:{CACC+4*T2_+3}] offset:{1024*T2_}")
        assert not pend and not nxt
    stamp(7)
    assert [t for _, t in wq] == [7]
    a("s_nop 6")
    a.lds(f"ds_write_b128 v{EXW}, v[{CACC+28}:{CACC+31}] offset:{1024*7}")
    a(f"s_mov_b64 exec, 1"); a.lds(f"ds_add_u32 v{VSY}, v{T1} offset:8"); a("s_mov_b64 exec, -1")
    k.lds_wait(2, VSY, T0, setaddr=False)
    FA = 48
    for tt in range(2):
        for src in range(4):
            a.lds(f"ds_read_b128 v[{FA+16*tt+4*src}:{FA+16*tt+4*src+3}], v{EXR} offset:{8192*src+1024*tt}", f"e{tt}")
    for tt in range(2):
        a.wait(lg=f"e{tt}")
        b = FA + 16*tt
        for r in range(4): a(f"v_add_f32 v{b+r}, v{b+r}, v{b+4+r}\nv_add_f32 v{b+8+r}, v{b+8+r}, v{b+12+r}")
        for r in range(4): a(f"v_cvt_pk_bf16_f32 v{b+4+r}, v{b+r}, v{b+8+r}")
        a.vmem(f"buffer_store_dwordx4 v[{b+4}:{b+7}], v{YST}, s[{R_WS}:{R_WS+3}], 0 offen{' offset:1024' if tt else ''} sc1", "y")
    stamp(8)
    XR2, ST2, B2R = 16, 24, 28
    if cfg.x_trim not in (True, 'x'): a.vmem(f"buffer_load_dwordx4 v[{XR2}:{XR2+3}], v{VXO}, s[{R_Q}:{R_Q+3}], 0 offen", "x")
    if cfg.x_trim not in (True, 'x'): a.vmem(f"buffer_load_dwordx4 v[{XR2+4}:{XR2+7}], v{VXO}, s[{R_Q}:{R_Q+3}], s{S_U1} offen", "x")
    a(f"v_and_b32 v{T0}, 1023, v{VSA}\nv_add_u32 v{T0}, {L_ST}, v{T0}")
    a.lds(f"ds_read2_b64 v[{ST2}:{ST2+3}], v{T0} offset0:0 offset1:32", "b2")
    a.lds(f"ds_read_b128 v[{B2R}:{B2R+3}], v{VB2}", "b2")
    a(f"s_add_u32 m0, s{S_B}, {L_YST}")
    a.wait(vm="y", lg="b2")
    k.signal(S_YP)
    a.wait(vm="x")
    L = a.newlabel("Ls2"); B = a.newlabel("Ls2b")
    chk = f"v_min3_u32 v{T0}, v{ST2}, v{ST2+1}, v{ST2+2}\nv_min_u32 v{T0}, v{T0}, v{ST2+3}\nv_cmp_eq_u32 vcc, 0, v{T0}"
    a(f"{chk}\ns_mov_b32 s{S_SPIN}, 0\ns_cbranch_vccnz {L}"); a.label(B)
    k.ool.append(f"{L}:\nbuffer_load_dwordx2 v[{ST2}:{ST2+1}], v{VSA}, s[{R_WS}:{R_WS+3}], 0 offen sc1\nbuffer_load_dwordx2 v[{ST2+2}:{ST2+3}], v{VSA}, s[{R_WS}:{R_WS+3}], 0 offen offset:256 sc1\n"
                 f"s_add_u32 s{S_SPIN}, s{S_SPIN}, 1\ns_waitcnt vmcnt(0)\n{chk}\ns_cmp_gt_u32 s{S_SPIN}, {SPIN_MAX}\ns_cbranch_scc1 {B}\ns_cbranch_vccnz {L}\ns_branch {B}")
    XF2, PP, B2F, YR = 80, 96, 32, 40
    for n in range(2):
        for m in range(4): a(f"v_lshlrev_b32 v{XF2+8*n+2*m}, 16, v{XR2+4*n+m}\nv_and_b32 v{XF2+8*n+2*m+1}, 0xffff0000, v{XR2+4*n+m}")
        for m in range(8): a(f"v_sub_f32 v{PP+8*n+m}, v{XF2+8*n+m}, v{ST2+2*n}")
        for m in range(8): a(f"v_mul_f32 v{PP+8*n+m}, v{PP+8*n+m}, v{ST2+2*n+1}")
    for m in range(4): a(f"v_lshlrev_b32 v{B2F+2*m}, 16, v{B2R+m}\nv_and_b32 v{B2F+2*m+1}, 0xffff0000, v{B2R+m}")
    stamp(9)
    if not cfg.x_noy: k.spoll(S_YC, 8)
    stamp(10)
    a.vmem(f"buffer_load_dwordx4 v{YS0}, s[{R_WS}:{R_WS+3}], 0 offen sc1 lds", "ys")
    a.vmem(f"buffer_load_dwordx4 v{YS1}, s[{R_WS}:{R_WS+3}], 0 offen offset:1024 sc1 lds", "ys")
    a(f"v_mov_b32 v{T2}, {f32(-1.4426950408889634)}")
    RD, EE = 112, 176
    S_ARR, S_YRD = S_U2, S_U3
    def pk(op, d, x0, x1, x2=None, mod=""): a(f"{op} v[{d}:{d+1}], {x0}, {x1}" + (f", {x2}" if x2 else "") + mod)
    def preads(n):
        for kq in range(4):
            for e in range(2):
                a.lds(f"ds_read_b128 v[{RD+32*n+8*kq+4*e}:{RD+32*n+8*kq+4*e+3}], v{(PA0, PA1)[n]} offset:{2048*kq+16*e}", f"p{n}_{kq}")
    yrd = "\n".join(f"ds_read2st64_b32 v[{YR+4*n+2*q}:{YR+4*n+2*q+1}], v{ya} offset0:{2*q} offset1:{2*q+1}" for n, ya in enumerate((YA0, YA1)) for q in range(2))
    arr3 = f"s_waitcnt vmcnt(0)\ns_mov_b64 exec, 1\nds_add_u32 v{VSY}, v{T1} offset:12\ns_mov_b64 exec, -1\ns_mov_b32 s{S_ARR}, 1"
    yfold = yrd + "\ns_waitcnt lgkmcnt(0)\n" + "\n".join(
        f"v_lshlrev_b32 v{EE}, 16, v{YR+q}\nv_and_b32 v{EE+1}, 0xffff0000, v{YR+q}\nv_mul_f32 v{PP+2*q}, v{PP+2*q}, v{EE}\nv_mul_f32 v{PP+2*q+1}, v{PP+2*q+1}, v{EE+1}" for q in range(8))
    L = a.newlabel("Lf"); N = a.newlabel("Lfn"); N2 = a.newlabel("Lfm"); D = a.newlabel("Lfd"); L2 = a.newlabel("Lfw")
    a(f"s_mov_b32 s{S_ARR}, 0\ns_mov_b32 s{S_YRD}, 0\ns_mov_b32 s{S_SPIN}, 0")
    a.label(L)
    a(f"s_getreg_b32 s{S_T0}, hwreg(HW_REG_IB_STS, 0, 4)\ns_or_b32 s{S_T0}, s{S_T0}, s{S_ARR}\ns_cbranch_scc1 {N}\n{arr3}")
    a.label(N)
    a(f"ds_read2_b32 v[{EE+2}:{EE+3}], v{VSY} offset0:3 offset1:6\ns_add_u32 s{S_SPIN}, s{S_SPIN}, 1\ns_waitcnt lgkmcnt(0)")
    a(f"v_cmp_eq_u32 vcc, 4, v{EE+2}\ns_cmp_gt_u32 s{S_SPIN}, {SPIN_MAX*8}\ns_cbranch_vccnz {N2}\ns_cbranch_scc1 {D}")
    a(f"v_cmp_ne_u32 vcc, 4, v{EE+3}\ns_nop 0\ns_cbranch_vccz {D}\ns_sleep 1\ns_branch {L}")
    a.label(N2)
    a(f"{yfold}\ns_mov_b32 s{S_YRD}, 1")
    k.lds_wait(6, VSY, T0, setaddr=False, sleep=cfg.fsleep)
    a.label(D); a.lg = []
    stamp(12)
    k.lstamp("fin")
    for n in range(2):
        b = RD + 32*n
        P = (n == 1) or cfg.pk0
        def op(name, d, x0, x1, x2=None, c=None):
            if P:
                for m in range(0, 8, 2):
                    if c is None: pk(f"v_pk_{name}_f32", d+m, v(x0+m, 2), v(x1+m, 2), v(x2+m, 2) if x2 is not None else None)
                    else: pk(f"v_pk_{name}_f32", d+m, v(x0+m, 2), c if c == "1.0" else v(c, 2), mod=" op_sel_hi:[1,0]")
            else:
                for m in range(8):
                    if x2 is not None: a(f"v_fma_f32 v{d+m}, v{x0+m}, v{x1+m}, v{x2+m}")
                    elif c is None: a(f"v_{name}_f32 v{d+m}, v{x0+m}, v{x1+m}")
                    else: a(f"v_{name}_f32 v{d+m}, {c if c == '1.0' else 'v%d' % c}, v{x0+m}")
        if n == 1: k.lds_wait(7, VSY, T0, setaddr=False); k.lstamp("fin")
        preads(n)
        a.wait(lg=f"p{n}_0"); a(".p2align 3")
        op("add", b, b, B2F)
        a.wait(lg=f"p{n}_2"); a(".p2align 3")
        op("add", b+8, b+8, b+16)
        a.wait(lg=f"p{n}_3"); a(".p2align 3")
        op("add", b, b, b+24)
        op("add", b, b, b+8)
        k.lstamp("fin")
        op("mul", EE, b, None, c=T2)
        for m in range(8): a(f"v_exp_f32 v{EE+m}, v{EE+m}")
        op("add", EE, EE, None, c="1.0")
        for m in range(8): a(f"v_rcp_f32 v{EE+m}, v{EE+m}")
        op("mul", b, b, EE)
        if n == 0:
            L = a.newlabel("Lys"); B = a.newlabel("Lysb"); N = a.newlabel("Lysn")
            a(f"s_cmp_eq_u32 s{S_YRD}, 0\ns_cbranch_scc1 {L}"); a.label(B)
            k.ool.append(f"{L}:\ns_mov_b32 s{S_SPIN}, 0\ns_cmp_lg_u32 s{S_ARR}, 0\ns_cbranch_scc1 {N}\n{arr3}\n{N}:\nds_read_b32 v{T0}, v{VSY} offset:12\ns_add_u32 s{S_SPIN}, s{S_SPIN}, 1\ns_waitcnt lgkmcnt(0)\n"
                         f"v_cmp_ne_u32 vcc, 4, v{T0}\ns_cmp_gt_u32 s{S_SPIN}, {SPIN_MAX*8}\ns_cbranch_scc1 {B}\ns_cbranch_vccnz {N}\n{yfold}\ns_branch {B}")
        op("fma", b, b, PP+8*n, XF2+8*n)
        for m in range(4): a(f"v_cvt_pk_bf16_f32 v{b+8+m}, v{b+2*m}, v{b+2*m+1}")
        a.vmem(f"buffer_store_dwordx4 v[{b+8}:{b+11}], v{VXO}, s[{R_OUT}:{R_OUT+3}], {'s%d' % S_U1 if n else '0'} offen {cfg.out_flags}")
        if n == 0: k.lstamp("fin"); stamp(11)
    k.lstamp("fin")
    stamp(13)
    if cfg.diag_pad or cfg.diag_amp:
        if cfg.diag_amp: a(f"s_sub_u32 s{S_T2}, s{S_ST}, s{S_EX}\ns_mul_i32 s{S_T2}, s{S_T2}, {cfg.diag_amp[1]}\ns_min_u32 s{S_T2}, s{S_T2}, 200000")
        else: a(f"s_mov_b32 s{S_T2}, {cfg.diag_pad}")
        a.label("L_pad")
        a(f"s_memrealtime s[{S_T0}:{S_T1}]\ns_waitcnt lgkmcnt(0)\ns_sub_u32 s{S_T0}, s{S_T0}, s{S_EX}\ns_cmp_lt_u32 s{S_T0}, s{S_T2}\ns_cbranch_scc1 L_pad")
    k.flush_stamps()
    a("s_endpgm")
    for o in k.ool: a(o)

Cfg.g2_nomfma = False; Cfg.g2_hot = False; Cfg.g2_noload = False; Cfg.hflag = 'sc1'; Cfg.seg7 = 4; Cfg.nearly = 6; Cfg.binit = 0; Cfg.cap = 16; Cfg.la = 5; Cfg.x_nohst = False; Cfg.spf = None; Cfg.spfw = True; Cfg.n0 = 8; Cfg.n1 = 3; Cfg.cap0 = 16; Cfg.capseg = 0; Cfg.ssmf = ''; Cfg.cap2 = 9; Cfg.nl = 13; Cfg.pk0 = True; Cfg.fsleep = 1; Cfg.dynsig = None; Cfg.urst = 0; Cfg.x_nop2 = False; Cfg.psleep = 0; Cfg.hsplit = True; Cfg.asigpos = 0; Cfg.apeek = 3; Cfg.bpeek = 8; Cfg.earlyrd = 8; Cfg.diag2 = None; Cfg.wsoff = 0; Cfg.lst = None; Cfg.hgroups = tuple(range(8)); Cfg.htouch = 1; Cfg.urfirst = False; Cfg.e0seg = 5; Cfg.mseg = 2; Cfg.nps = 2; Cfg.pdelay = 0; Cfg.upos = 0; Cfg.hold = (4,); Cfg.uwait = 3; Cfg.dseg = -1; Cfg.bgn = 1; Cfg.g1prio = 1; Cfg.n2 = 4; Cfg.x_noy = False; Cfg.x_noconv = False; Cfg.x_nogelu = False; Cfg.x_nog2 = False; Cfg.x_trim = False; Cfg.kvf = 'nt'; Cfg.hwhat = 'ws'; Cfg.uarr = 8; Cfg.uarr_d = 5; Cfg.w2x = False; Cfg.bq = 4; Cfg.rdnow = False; Cfg.coarse = False
HEADER = open("recurrent_scan__ssm_conv_h3__dense_activation_gelu__prompt.s.ref").read().split("; @launch")[0]
def full(cfg):
    kp = K(cfg); prologue(kp)
    km = K(cfg); km.role = 'm'; km.a.nlabel = 1000; gen_m(km)
    kx = K(cfg); kx.role = 'x'; gen_x(kx)
    errs = check(kp.a.lines + km.a.lines) + check(kp.a.lines + kx.a.lines)
    a = Asm()
    a.lines = kp.a.lines + km.a.lines[:km.split] + ["L_X:"] + kx.a.lines + km.a.lines[km.split:] + ["L_end:", "s_endpgm", "L_code_end:"]
    for e in errs: print(e, file=sys.stderr)
    assert not errs
    t = HEADER + f"; @launch grid=(256,1,1) block=(512,1,1) lds={LDS_BYTES}\n"
    t += f'.amdgcn_target "amdgcn-amd-amdhsa--gfx950"\n.text\n.globl {NAME}\n.p2align 8\n.type {NAME},@function\n'
    t += a.text()
    t += f'''.section .rodata,"a"
.p2align 6
.amdhsa_kernel {NAME}
  .amdhsa_next_free_vgpr 256
  .amdhsa_next_free_sgpr 102
  .amdhsa_accum_offset 256
  .amdhsa_group_segment_fixed_size 0
  .amdhsa_kernarg_size 112
  .amdhsa_user_sgpr_count 2
  .amdhsa_user_sgpr_kernarg_segment_ptr 1
  .amdhsa_system_sgpr_workgroup_id_x 1
  .amdhsa_float_denorm_mode_32 3
.end_amdhsa_kernel
'''
    return t
if __name__ == "__main__":
    cfg = Cfg()
    for kv in sys.argv[2:]:
        kk, val = kv.split("=", 1); assert hasattr(cfg, kk), kk; setattr(cfg, kk, eval(val))
    open(sys.argv[1], "w").write(full(cfg))
```

```python
import sys, struct
from asmlib import Asm, v, s, check

NAME = "recurrent_scan__ssm_conv_h3__dense_activation_gelu__prompt_kernel"
def f32(x): return "0x%08x" % struct.unpack("<I", struct.pack("<f", x))[0]

WS_CNT, WS_STATS, WS_STAMP, WS_UR, WS_Y, WS_H = 0, 0x20000, 0x40000, 0x100000, 0x300000, 0x500000
WS_SIZE = 0x500000 + 64*112*1024
CNT_UR, CNT_H, CNT_Y = 0, 128, 256
L_Q, L_W, L_KST = 0, 49152, 98304
L_VST = L_KST + 9*1024
L_CT = 115712; CH_STRIDE = 17600; H_STRIDE = 4224; U_OFF = 8448; U_STRIDE = 4576
L_MISC = L_CT + 2*CH_STRIDE
L_YST = L_MISC
L_CS = L_YST + 8192
L_SYNC = L_CS + 1024
L_TAP = L_SYNC + 64; L_B1 = L_TAP + 512; L_B2 = L_B1 + 256
L_GR = L_B2 + 128; L_ST = L_GR + 64
LDS_BYTES = L_ST + 1024
SPIN_MAX = 1 << 17

P_Q, P_K, P_V, P_SH, P_SSM, P_D, P_BX, P_W1, P_B1, P_W2, P_B2, P_OUT, P_DBG, P_WS = range(4, 32, 2)
S_WV, S_XCD, S_J, S_R, S_C, S_KC0, S_R2, S_C2, S_OFF, S_WAVE = range(32, 42)
S_A, S_B, S_T0, S_T1, S_T2, S_T3 = range(42, 48)
R_Q, R_K, R_V, R_W1, R_WS, R_DBG, R_W2, R_SSM, R_X0, R_OUT = range(48, 88, 4)
S_U0, S_U1, S_U2, S_U3, S_U4, S_U5, S_SPIN, S_PUB = range(88, 96)
S_EX = 96; S_ST = 100
S_ONE, S_PV = 3, 16
S_C16, S_CL = S_OFF, S_A

class Cfg:
    stamps = False
    kvpos = 2; g1stag = "xr"; g2map = 2; g2stag = "none"; ntq = ""; ntw2 = ""
    markseg = 0; ssmseg = 6; stseg = 5; urseg = 2; w2touch = 3
    urpos = -1
    hsigpos = 68
    xprio = 1
    code_pf = True
    diag_pad = 0; diag_amp = None; out_flags = "sc1"
    x_nomfma = False; x_nolds = False; x_nodma = False; segstamps = True

def srd(a, R, P, size):
    a(f"s_mov_b64 s[{R}:{R+1}], s[{P}:{P+1}]\ns_mov_b32 s{R+2}, {size}\ns_mov_b32 s{R+3}, 0x20000")

class K:
    def __init__(self, cfg): self.a = Asm(); self.cfg = cfg; self.ool = []; self.nls = 0
    def stamp(self, i):
        a, cfg = self.a, self.cfg
        if cfg.diag2 and self.role == cfg.diag2[0] and i in cfg.diag2[1:3]:
            a(f"s_memrealtime s[{S_ST}:{S_ST+1}]\ns_waitcnt lgkmcnt(0)"); a.lg = []
            a(f"s_mov_b32 s{S_EX+1}, s{S_ST}" if i == cfg.diag2[1] else f"s_sub_u32 s{S_EX+1}, s{S_ST}, s{S_EX+1}")
        if cfg.diag_amp and cfg.diag_amp[0] == i:
            a(f"s_memrealtime s[{S_ST}:{S_ST+1}]\ns_waitcnt lgkmcnt(0)"); a.lg = []
        if cfg.stamps == "min" and i == 0:
            a("v_writelane_b32 v255, s86, 23"); return
        if cfg.stamps == "min" and not (i == 13 and self.role == "m"): return
        if cfg.stamps:
            a(f"s_memrealtime s[{S_ST}:{S_ST+1}]\ns_memtime s[{S_EX}:{S_EX+1}]\ns_waitcnt lgkmcnt(0)\nv_writelane_b32 v255, s{S_ST}, {i}\nv_writelane_b32 v255, s{S_EX}, {32+i}")
            if i == 0: a("v_writelane_b32 v255, s86, 23")
            a.lg = []
    LS = [52, 54, 56, 58, 60, 62, 68, 70, 72, 74, 76, 78]
    def lstamp(self, grp):
        if self.cfg.stamps and self.cfg.lst == grp:
            j = self.nls; self.nls += 1
            self.a(f"s_memtime s[{self.LS[j]}:{self.LS[j]+1}]")
    def flush_stamps(self):
        a = self.a; cfg = self.cfg
        if self.nls:
            a("s_waitcnt lgkmcnt(0)")
            for j in range(self.nls): a(f"v_writelane_b32 v255, s{self.LS[j]}, {(24+j) if j < 8 else (48+j)}")
        if cfg.diag2 and self.role == cfg.diag2[0]:
            a(f"s_mul_i32 s{S_T2}, s{S_EX+1}, {cfg.diag2[3]}\ns_add_u32 s{S_T2}, s{S_T2}, 2000\ns_min_u32 s{S_T2}, s{S_T2}, 200000")
            if cfg.diag2[4] is not None: a(f"s_lshl2_add_u32 s{S_T0}, s2, s{S_WV}\ns_cmp_eq_u32 s{S_T0}, {cfg.diag2[4]}\ns_cselect_b32 s{S_T2}, s{S_T2}, 0")
            a.label("L_pad2")
            a(f"s_memrealtime s[{S_T0}:{S_T1}]\ns_waitcnt lgkmcnt(0)\ns_sub_u32 s{S_T0}, s{S_T0}, s{S_EX}\ns_cmp_lt_u32 s{S_T0}, s{S_T2}\ns_cbranch_scc1 L_pad2")
        if self.cfg.stamps:
            a(f"s_lshl_b32 s{S_T0}, s2, 3\ns_add_u32 s{S_T0}, s{S_T0}, s{S_WAVE}\ns_lshl_b32 s{S_T0}, s{S_T0}, 8\ns_add_u32 s{S_T0}, s{S_T0}, {WS_STAMP}")
            a(f"v_lshlrev_b32 v254, 2, v0\ns_mov_b64 exec, 0x802000\nbuffer_store_dword v255, v254, s[{R_WS}:{R_WS+3}], s{S_T0} offen sc1" if self.cfg.stamps == "min" else f"v_lshlrev_b32 v254, 2, v0\nbuffer_store_dword v255, v254, s[{R_WS}:{R_WS+3}], s{S_T0} offen")
    def vpoll(self, vaddr, vdata, R, expect):
        a = self.a; L = a.newlabel("Lpoll"); D = a.newlabel("Lpolld")
        a(f"s_mov_b32 s{S_SPIN}, 0")
        a.label(L)
        a(f"buffer_load_dword v{vdata}, v{vaddr}, s[{R}:{R+3}], 0 offen sc1\ns_waitcnt vmcnt(0)")
        a(f"v_cmp_ne_u32 vcc, {expect}, v{vdata}")
        a(f"s_add_u32 s{S_SPIN}, s{S_SPIN}, 1\ns_cmp_gt_u32 s{S_SPIN}, {SPIN_MAX}\ns_cbranch_scc1 {D}\ns_cbranch_vccnz {L}")
        a.label(D)
    def spoll(self, off_sgpr, expect):
        a = self.a; L = a.newlabel("Lsp"); D = a.newlabel("Lspd")
        a(f"s_mov_b32 s{S_SPIN}, 0")
        a.label(L)
        a(f"s_load_dword s{S_PV}, s[{P_WS}:{P_WS+1}], s{off_sgpr} glc\ns_add_u32 s{S_SPIN}, s{S_SPIN}, 1\ns_waitcnt lgkmcnt(0)")
        a(f"s_cmp_eq_u32 s{S_PV}, {expect}\ns_cbranch_scc1 {D}")
        if self.cfg.psleep: a(f"s_sleep {self.cfg.psleep}")
        a(f"s_cmp_gt_u32 s{S_SPIN}, {SPIN_MAX}\ns_cbranch_scc0 {L}")
        a.label(D); a.lg = []
    def signal(self, cnt, inc=1): self.a(f"s_movk_i32 s{S_ONE}, {inc}\ns_atomic_add s{S_ONE}, s[{P_WS}:{P_WS+1}], s{cnt}")
    def lds_arrive(self, word, vtmp, vone):
        a = self.a
        a(f"v_mov_b32 v{vtmp}, {L_SYNC}\nv_mov_b32 v{vone}, 1\ns_mov_b64 exec, 1")
        a.lds(f"ds_add_u32 v{vtmp}, v{vone} offset:{4*word}")
        a("s_mov_b64 exec, -1")
    def lds_wait(self, word, vtmp, vone, setaddr=True, sleep=0):
        a = self.a; L = a.newlabel("Lsy"); D = a.newlabel("Lsyd")
        if setaddr: a(f"v_mov_b32 v{vtmp}, {L_SYNC}")
        a(f"s_mov_b32 s{S_SPIN}, 0")
        a.label(L)
        a(f"ds_read_b32 v{vone}, v{vtmp} offset:{4*word}\ns_add_u32 s{S_SPIN}, s{S_SPIN}, 1\ns_waitcnt lgkmcnt(0)")
        a(f"v_cmp_ne_u32 vcc, 4, v{vone}\ns_cmp_gt_u32 s{S_SPIN}, {SPIN_MAX*8}\ns_cbranch_scc1 {D}")
        if sleep: a(f"s_cbranch_vccz {D}\ns_sleep {sleep}\ns_branch {L}")
        else: a(f"s_cbranch_vccnz {L}")
        a.label(D); a.lg = []
    def lds_peek(self, word, vaddr, vdst, tag): self.a.lds(f"ds_read_b32 v{vdst}, v{vaddr} offset:{4*word}", tag)
    def lds_check(self, word, vaddr, vdst, tag):
        a = self.a; L = a.newlabel("Lck"); B = a.newlabel("Lckb"); S = a.newlabel("Lcks")
        a.wait(lg=tag)
        a(f"v_cmp_ne_u32 vcc, 4, v{vdst}\ns_mov_b32 s{S_SPIN}, 0\ns_cbranch_vccnz {L}"); a.label(B)
        self.ool.append(f"{L}:\nds_read_b32 v{vdst}, v{vaddr} offset:{4*word}\ns_add_u32 s{S_SPIN}, s{S_SPIN}, 1\ns_waitcnt lgkmcnt(0)\nv_cmp_ne_u32 vcc, 4, v{vdst}\n"
                        f"s_cmp_gt_u32 s{S_SPIN}, {SPIN_MAX*8}\ns_cbranch_scc1 {B}\ns_cbranch_vccnz {L}\ns_branch {B}")
    def speek(self, off): self.a(f"s_load_dword s{S_PV}, s[{P_WS}:{P_WS+1}], s{off} glc")
    def scheck(self, off, mask, expect):
        a = self.a; L = a.newlabel("Lsc"); B = a.newlabel("Lscb")
        m = f"s_and_b32 s{S_PV}, s{S_PV}, {mask}\n" if mask else ""
        a(f"s_mov_b32 s{S_SPIN}, 0\ns_waitcnt lgkmcnt(0)\n{m}s_cmp_lg_u32 s{S_PV}, {expect}\ns_cbranch_scc1 {L}"); a.label(B); a.lg = []
        self.ool.append(f"{L}:\ns_load_dword s{S_PV}, s[{P_WS}:{P_WS+1}], s{off} glc\ns_add_u32 s{S_SPIN}, s{S_SPIN}, 1\ns_cmp_gt_u32 s{S_SPIN}, {SPIN_MAX}\ns_waitcnt lgkmcnt(0)\ns_cbranch_scc1 {B}\n"
                        f"{m}s_cmp_lg_u32 s{S_PV}, {expect}\ns_cbranch_scc1 {L}\ns_branch {B}")
    def lds_sync(self, word, vtmp, vone):
        self.a.wait(lg="all"); self.lds_arrive(word, vtmp, vone); self.lds_wait(word, vtmp, vone, setaddr=False)

def prologue(k):
    a, cfg = k.a, k.cfg
    a.label(NAME)
    if cfg.stamps: a("s_memrealtime s[86:87]")
    a("s_cmp_ge_u32 s2, 256\ns_cbranch_scc1 L_end")
    a("s_load_dwordx16 s[4:19], s[0:1], 0\ns_load_dwordx8 s[20:27], s[0:1], 64\ns_load_dwordx4 s[28:31], s[0:1], 96")
    if cfg.code_pf:
        a(f"s_getpc_b64 s[{S_T0}:{S_T1}]")
        a.label("L_pc")
        a(f"s_lshr_b32 s{S_T2}, s2, 3\ns_lshl_b32 s{S_T2}, s{S_T2}, 10\nv_lshl_add_u32 v2, v0, 1, s{S_T2}\nv_min_u32 v2, L_code_end-L_pc-4, v2")
        a(f"v_mov_b32 v3, s{S_T1}\nv_add_co_u32 v2, vcc, s{S_T0}, v2\ns_mov_b64 exec, 1\ns_nop 0\nv_addc_co_u32 v3, vcc, 0, v3, vcc")
        a(f"global_load_dword v254, v[2:3], off\ns_mov_b64 exec, -1")
    if cfg.stamps: a("v_mov_b32 v255, 0")
    if cfg.diag_pad or cfg.diag_amp or cfg.diag2: a(f"s_memrealtime s[{S_EX}:{S_EX+1}]")
    a("v_lshrrev_b32 v1, 6, v0\nv_and_b32 v0, 63, v0")
    a(f"v_readfirstlane_b32 s{S_WAVE}, v1")
    a(f"s_and_b32 s{S_XCD}, s2, 7\ns_lshr_b32 s{S_J}, s2, 3")
    a(f"s_lshr_b32 s{S_T0}, s{S_XCD}, 1\ns_and_b32 s{S_T1}, s{S_XCD}, 1")
    a(f"s_and_b32 s{S_T2}, s{S_J}, 3\ns_lshr_b32 s{S_CL}, s{S_J}, 2")
    a(f"s_lshl2_add_u32 s{S_R}, s{S_T0}, s{S_T2}\ns_lshl3_add_u32 s{S_C16}, s{S_T1}, s{S_CL}\ns_sub_u32 s{S_C}, s{S_C16}, s{S_T1}\ns_min_u32 s{S_C}, s{S_C}, 13")
    if cfg.g1stag == "four":
        a(f"s_and_b32 s{S_T0}, s{S_T0}, 1")
        a(f"s_add_u32 s{S_KC0}, s{S_T2}, s{S_CL}\ns_and_b32 s{S_KC0}, s{S_KC0}, 3\ns_lshl1_add_u32 s{S_KC0}, s{S_KC0}, s{S_T0}")
    elif cfg.g1stag == "twox": a(f"s_add_u32 s{S_KC0}, s{S_T2}, s{S_CL}\ns_and_b32 s{S_KC0}, s{S_KC0}, 1\ns_lshl2_add_u32 s{S_KC0}, s{S_KC0}, s{S_T0}")
    elif cfg.g1stag == "two": a(f"s_add_u32 s{S_KC0}, s{S_T2}, s{S_CL}\ns_and_b32 s{S_KC0}, s{S_KC0}, 1\ns_lshl_b32 s{S_KC0}, s{S_KC0}, 2")
    elif cfg.g1stag == "xcd": a(f"s_mov_b32 s{S_KC0}, s{S_XCD}")
    elif cfg.g1stag == "xr": a(f"s_lshl_b32 s{S_KC0}, s{S_T0}, 1")
    else: a(f"s_mov_b32 s{S_KC0}, 0")
    a(f"s_lshl1_add_u32 s{S_T3}, s{S_T2}, s{S_CL}")
    if cfg.g2map == 3: a(f"s_xor_b32 s{S_C2}, s{S_CL}, 4\ns_lshl1_add_u32 s{S_R2}, s{S_R}, s{S_T1}")
    elif cfg.g2map == 4:
        a(f"s_and_b32 s{S_R2}, s{S_CL}, 1\ns_lshr_b32 s{S_C2}, s{S_CL}, 1\ns_xor_b32 s{S_T3}, s{S_R2}, 1\ns_cmp_lt_u32 s{S_CL}, 6\ns_cselect_b32 s{S_T3}, s{S_T1}, s{S_T3}\ns_cselect_b32 s{S_R2}, s{S_R2}, s{S_T1}")
        a(f"s_lshl2_add_u32 s{S_C2}, s{S_T3}, s{S_C2}\ns_lshl1_add_u32 s{S_R2}, s{S_R}, s{S_R2}")
    elif cfg.g2map == 1: a(f"s_and_b32 s{S_C2}, s{S_T3}, 7\ns_lshl1_add_u32 s{S_R2}, s{S_R}, s{S_T1}")
    else: a(f"s_and_b32 s{S_R2}, s{S_CL}, 1\ns_lshl1_add_u32 s{S_R2}, s{S_R}, s{S_R2}\ns_bfe_u32 s{S_C2}, s{S_T3}, 0x20001\ns_lshl2_add_u32 s{S_C2}, s{S_T1}, s{S_C2}")
    a(f"s_mov_b32 s{R_Q+2}, {2<<20}\ns_mov_b32 s{R_Q+3}, 0x20000")
    a(f"s_and_b32 s{S_WV}, s{S_WAVE}, 3\nv_lshlrev_b32 v1, 4, v0\ns_lshl_b32 s{S_B}, s{S_WV}, 11")
    a(f"v_lshrrev_b32 v10, 3, v0\nv_lshrrev_b32 v11, 4, v0\nv_and_b32 v12, 7, v0")
    a(f"s_cmp_ge_u32 s{S_WAVE}, 4\ns_cbranch_scc1 L_X")

def gen_x(k):
    a, cfg, stamp = k.a, k.cfg, k.stamp
    x = S_WV
    a.cap = cfg.cap
    V16, W2A, W2B, TR, HA, TRH = 1, 2, 3, 4, 8, 138
    T0, T1, T2, T3 = 10, 11, 12, 13
    VQ, VW, VKA, VKB, VHALO, VTA, PK, PH, PV, PST, VMK, VMD = 14, 18, 22, 23, 24, 25, 26, 27, 28, 29, 30, 31
    TAPS, JUNK = 108, 112
    ACC2, AR, WB = 14, 78, 142
    a(f"v_xor_b32 v{T3}, v{T2}, v{T1}\nv_lshlrev_b32 v{T3}, 4, v{T3}\nv_lshl_add_u32 v{VQ}, v{T0}, 10, v{T3}")
    a(f"s_lshl2_add_u32 s{S_T0}, s{S_R}, s{x}\ns_lshl_b32 s{S_T0}, s{S_T0}, 15\ns_movk_i32 s{S_T2}, {8192-1024}\ns_lshl_b32 s{S_T3}, s{S_T2}, 1")
    a(f"v_add_u32 v{VQ}, s{S_T0}, v{VQ}")
    a(f"v_xor_b32 v{VQ+1}, 64, v{VQ}\nv_add_u32 v{VQ+2}, s{S_T3}, v{VQ}\nv_add_u32 v{VQ+1}, s{S_T2}, v{VQ+1}\nv_add_u32 v{VQ+3}, s{S_T3}, v{VQ+1}")
    d = 4*3584 - 1024
    a(f"v_lshlrev_b32 v{T3}, 5, v{T1}\nv_xor_b32 v{T3}, v{T3}, v{V16}\nv_and_b32 v{T3}, 0xff, v{T3}\nv_xor_b32 v{VW+2}, 0x80, v{T3}")
    a(f"s_lshl_b32 s{S_U1}, s{S_C}, 8\ns_mul_i32 s{S_T1}, s{x}, {16*3584}\ns_add_u32 s{S_T0}, s{S_U1}, s{S_T1}")
    a(f"s_movk_i32 s{S_T1}, 3584\ns_movk_i32 s{S_T2}, {d}\ns_lshl1_add_u32 s{S_T3}, s{S_T2}, s{S_T0}")
    a(f"v_mad_u32_u24 v{VW}, v{T1}, s{S_T1}, v{T3}\nv_mad_u32_u24 v{VW+2}, v{T1}, s{S_T1}, v{VW+2}")
    a(f"v_add_u32 v{VW}, s{S_T0}, v{VW}\nv_add_u32 v{VW+2}, s{S_T3}, v{VW+2}\nv_add_u32 v{VW+1}, s{S_T2}, v{VW}\nv_add_u32 v{VW+3}, s{S_T2}, v{VW+2}")
    a(f"s_lshl_b32 s{S_U1}, s{x}, 12\ns_mov_b32 s{R_W1+2}, {512*3584}\ns_mov_b32 s{R_W1+3}, s{R_Q+3}")
    a("s_waitcnt lgkmcnt(0)")
    a(f"s_mov_b64 s[{R_Q}:{R_Q+1}], s[{P_Q}:{P_Q+1}]\ns_mov_b64 s[{R_W1}:{R_W1+1}], s[{P_W1}:{P_W1+1}]")
    if cfg.wsoff: a(f"s_add_u32 s{P_WS}, s{P_WS}, {cfg.wsoff}\ns_addc_u32 s{P_WS+1}, s{P_WS+1}, 0")
    def chunk_ops(i):
        slot = i % 3
        def mk(kind, n):
            def f():
                if n == 0:
                    if kind == "q":
                        a(f"s_add_u32 s{S_T0}, s{S_KC0}, {i}\ns_and_b32 s{S_T0}, s{S_T0}, 7\ns_lshl_b32 s{S_U3}, s{S_T0}, 7\ns_mul_i32 s{S_U4}, s{S_T0}, {64*3584}")
                    a(f"s_add_u32 m0, s{S_U1}, {(L_Q if kind=='q' else L_W) + slot*16384}\ns_nop 0")
                off = f" offset:{1024*n}" if n else ""
                if kind == "q": a.vmem(f"buffer_load_dwordx4 v{VQ+n}, s[{R_Q}:{R_Q+3}], s{S_U3} offen{off} {cfg.ntq} lds", f"c{i}")
                else: a.vmem(f"buffer_load_dwordx4 v{VW+n}, s[{R_W1}:{R_W1+3}], s{S_U4} offen{off} {cfg.ntq} lds", f"c{i}")
            return f
        return [mk("q", n) for n in range(4)] + [mk("w", n) for n in range(4)]
    def setup_rest():
        stamp(0)
        a(f"v_mov_b32 v{T1}, v{T2}")
        srd(a, R_WS, P_WS, WS_SIZE); srd(a, R_DBG, P_DBG, 256); srd(a, R_W2, P_W2, 1792*1024); srd(a, R_SSM, P_SSM, 2 << 20)
        a(f"s_lshl_b32 s{S_T0}, s{S_XCD}, 6\ns_lshl1_add_u32 s{S_T0}, s{S_J}, s{S_T0}\ns_lshr_b32 s{S_T1}, s{x}, 1\ns_add_u32 s{S_U5}, s{S_T0}, s{S_T1}")
        a(f"s_mul_i32 s{S_T1}, s{S_T1}, {CH_STRIDE}\ns_and_b32 s{S_T2}, s{x}, 1")
        a(f"s_lshl_b32 s{S_T3}, s{S_T2}, 11\ns_add_u32 s{S_H1}, s{S_T1}, s{S_T3}\ns_add_u32 s{S_H1}, s{S_H1}, {L_CT+H_STRIDE+128}")
        a(f"s_mul_i32 s{S_T3}, s{S_T2}, {H_STRIDE}\ns_add_u32 s{S_T3}, s{S_T3}, s{S_T1}\ns_add_u32 s{S_T3}, s{S_T3}, {L_CT+128-512}")
        a(f"s_mul_i32 s{S_T0}, s{S_T2}, {U_STRIDE}\ns_add_u32 s{S_T0}, s{S_T0}, s{S_T1}\ns_add_u32 s{S_T0}, s{S_T0}, {L_CT+U_OFF+4096}")
        Z = JUNK
        a(f"v_mov_b32 v{T2}, s{S_T0}\nv_mov_b32 v{T3}, s{S_T3}\nv_cmp_gt_u32 vcc, 56, v0")
        for i in range(4): a(f"v_mov_b32 v{Z+i}, 0")
        a(f"v_cndmask_b32 v{T3}, v{T3}, v{T2}, vcc\nv_lshl_add_u32 v{T3}, v0, 3, v{T3}\nv_subrev_u32 v{T2}, 4, v{T2}")
        a.lds(f"ds_write_b64 v{T3}, v[{Z}:{Z+1}]")
        a.lds(f"ds_write_b32 v{T2}, v{Z}")
        a(f"v_lshlrev_b32 v{VMK}, 2, v{T1}")
        a(f"v_and_b32 v{T2}, 6, v{T0}\nv_xor_b32 v{T2}, v{T2}, v{T1}\nv_lshlrev_b32 v{T2}, 4, v{T2}\nv_lshl_add_u32 v{W2A}, v{T0}, 10, v{T2}")
        a(f"s_mul_i32 s{S_T0}, s{x}, {448*1024}\ns_lshl_b32 s{S_T1}, s{S_C2}, 7\ns_add_u32 s{S_T0}, s{S_T0}, s{S_T1}")
        a(f"v_add_u32 v{W2A}, s{S_T0}, v{W2A}\nv_add_u32 v{W2B}, {8192-1024}, v{W2A}")
        a(f"v_lshrrev_b32 v{T3}, 2, v0\nv_lshlrev_b32 v{T3}, 7, v{T3}\nv_and_b32 v{T2}, 3, v{T0}\nv_lshl_add_u32 v{T3}, v{T2}, 5, v{T3}\nv_and_b32 v{T2}, 3, v0\nv_lshl_add_u32 v{T3}, v{T2}, 3, v{T3}")
        a(f"v_add_u32 v{TR}, s{S_B}, v{T3}\nv_xor_b32 v{TR+1}, 32, v{TR}\nv_xor_b32 v{TR+2}, 64, v{TR}\nv_xor_b32 v{TR+3}, 0x60, v{TR}")
        for dt in range(4): a(f"v_add_u32 v{TRH+dt}, 65536, v{TR+dt}")
        a(f"s_mul_i32 s{S_T0}, s{S_R2}, {224*1024}\ns_mul_i32 s{S_T1}, s{x}, {56*1024}\ns_add_u32 s{S_T0}, s{S_T0}, s{S_T1}\ns_add_u32 s{S_T0}, s{S_T0}, {WS_H}")
        a(f"v_add_u32 v{HA}, s{S_T0}, v{V16}")
        a(f"s_lshr_b32 s{S_T0}, s{S_J}, 3\ns_lshl2_add_u32 s{S_T0}, s{S_XCD}, s{S_T0}\ns_lshl2_add_u32 s{S_T0}, s{S_T0}, s{x}\ns_lshl_b32 s{S_PUB}, s{S_T0}, 8")
        a(f"s_lshl_b32 s{S_T0}, s{S_U5}, 12\ns_and_b32 s{S_T1}, s{x}, 1\ns_lshl_b32 s{S_T1}, s{S_T1}, 11\ns_add_u32 s{S_U2}, s{S_T0}, s{S_T1}")
        a(f"v_xor_b32 v{T3}, 7, v{T1}\nv_lshlrev_b32 v{T3}, 4, v{T3}\nv_lshl_add_u32 v{PST}, v{T0}, 13, v{T3}")
        a(f"s_lshl2_add_u32 s{S_T2}, s{S_XCD}, s{x}\ns_lshr_b32 s{S_T1}, s{S_J}, 3\ns_lshl2_add_u32 s{S_T0}, s{S_T2}, s{S_T1}\ns_lshl_b32 s{S_US}, s{S_T0}, 8")
        a(f"s_lshl_b32 s{S_T2}, s{S_T2}, 16\ns_lshl_b32 s{S_T3}, s{S_J}, 7\ns_sub_u32 s{S_T2}, s{S_T2}, s{S_T3}\ns_add_u32 s{S_UA}, s{S_T2}, {WS_UR + 2*1984}\ns_add_u32 s{S_UA+1}, s{S_UA}, 4096")
        srd(a, R_K, P_K, 2 << 20); srd(a, R_V, P_V, 2 << 20)
        a(f"s_lshl_b32 s{S_T0}, s{x}, 1\nv_xor_b32 v{T3}, s{S_T0}, v{T1}\nv_lshlrev_b32 v{T3}, 4, v{T3}\nv_lshl_add_u32 v{VKA}, v{T0}, 10, v{T3}")
        a(f"v_xor_b32 v{VKB}, 16, v{VKA}\nv_add_u32 v{VKB}, {8192-1024}, v{VKB}")
        a(f"s_lshl2_add_u32 s{S_KV}, s{S_J}, s{x}\ns_lshl_b32 s{S_KV}, s{S_KV}, 7\ns_add_u32 s{S_KV}, s{S_KV}, s{S_XCD}\ns_lshl_b32 s{S_KV}, s{S_KV}, 7")
        a(f"v_lshrrev_b32 v{PV}, 5, v0\nv_add_u32 v{PV}, s{S_T0}, v{PV}")
        a(f"v_bfe_u32 v{T2}, v0, 3, 2\nv_lshlrev_b32 v{T2}, 2, v{T2}\nv_lshl_add_u32 v{T2}, v{T1}, 10, v{T2}")
        a(f"v_add_u32 v{T3}, 7, v{T1}\nv_and_b32 v{T3}, 7, v{T3}\nv_xor_b32 v{T3}, v{PV}, v{T3}\nv_lshl_add_u32 v{PH}, v{T3}, 4, v{T2}\nv_add_u32 v{PH}, {L_KST}, v{PH}")
        a(f"v_xor_b32 v{T3}, v{PV}, v{T1}\nv_lshl_add_u32 v{PK}, v{T3}, 4, v{T2}")
        a(f"v_add_u32 v{PV}, {L_VST}, v{PK}\nv_add_u32 v{PK}, {L_KST+1024}, v{PK}")
        a(f"s_lshl_b32 s{S_T0}, s{x}, 7\ns_add_u32 s{S_T0}, s{S_T0}, {L_TAP}\nv_lshl_add_u32 v{VTA}, v{T0}, 4, s{S_T0}\nv_add_u32 v{VGR}, {L_GR}, v{V16}\nv_mov_b32 v{VHI}, 0xffff0000")
        a(f"s_lshl_b32 s{S_SB}, s{S_R}, 10\ns_add_u32 s{S_SB}, s{S_SB}, {WS_STATS}")
        a.wait(lg="all")
    S_US, S_UA, S_SB, S_KV = 98, 0, 99, S_U0
    VGR, VHI, GD = 116, 117, 120
    def kv_loads():
        a(f"s_add_u32 m0, s{S_B}, {L_KST+1024}\ns_nop 0")
        a.vmem(f"buffer_load_dwordx4 v{VKA}, s[{R_K}:{R_K+3}], s{S_KV} offen {cfg.kvf} lds", "kv")
        a.vmem(f"buffer_load_dwordx4 v{VKB}, s[{R_K}:{R_K+3}], s{S_KV} offen offset:1024 {cfg.kvf} lds", "kv")
        L = a.newlabel("Lhalo"); D = a.newlabel("Lsmd")
        a(f"s_cmp_eq_u32 s{x}, 3\ns_cbranch_scc1 {L}")
        a(f"s_lshl_b32 s{S_T0}, s{S_XCD}, 9\ns_lshl_b32 s{S_T1}, s{S_C}, 8\ns_cmp_eq_u32 s{x}, 0\ns_cselect_b64 s[{S_T2}:{S_T3}], s[{P_SH}:{P_SH+1}], s[{P_B1}:{P_B1+1}]\ns_cselect_b32 s{S_T0}, s{S_T0}, s{S_T1}")
        a(f"s_lshl_b32 s{S_T1}, s{S_C2}, 7\ns_cmp_eq_u32 s{x}, 2\ns_cselect_b64 s[{S_T2}:{S_T3}], s[{P_B2}:{P_B2+1}], s[{S_T2}:{S_T3}]\ns_cselect_b32 s{S_T0}, s{S_T1}, s{S_T0}")
        a(f"v_add_u32 v{VHALO}, s{S_T0}, v{V16}\ns_lshr_b32 s{S_T0}, 32, s{x}\ns_lshl_b32 s{S_T1}, s{S_T0}, 5\ns_sub_u32 m0, {L_TAP+1024}, s{S_T1}\ns_bfm_b64 exec, s{S_T0}, 0")
        a(f"global_load_lds_dwordx4 v{VHALO}, s[{S_T2}:{S_T3}]\ns_branch {D}")
        a.label(L)
        a(f"s_sub_u32 s{S_T0}, s{S_KV}, {56*1024}\ns_cselect_b32 s{S_T0}, 0, s{S_T0}\ns_cselect_b32 s{S_T1}, 0x80000010, 16")
        a(f"v_xor_b32 v{VHALO}, s{S_T1}, v{VKA}\ns_mov_b32 m0, {L_KST}\ns_lshl_b64 exec, -1, 40")
        a(f"buffer_load_dwordx4 v{VHALO}, s[{R_K}:{R_K+3}], s{S_T0} offen {cfg.kvf} lds")
        a.label(D)
        a.vm.append("kv")
        a(f"s_add_u32 m0, s{S_B}, {L_VST}\ns_mov_b64 exec, -1")
        a.vmem(f"buffer_load_dwordx4 v{VKA}, s[{R_V}:{R_V+3}], s{S_KV} offen {cfg.kvf} lds", "kv")
        a.vmem(f"buffer_load_dwordx4 v{VKB}, s[{R_V}:{R_V+3}], s{S_KV} offen offset:1024 {cfg.kvf} lds", "kv")
    KR, VR, KF, TF, VF, OUT, PA = 32, 44, 56, 80, 88, 92, 100
    prep = []; P = prep.append
    P(("lds", f"ds_read_b128 v[{TAPS}:{TAPS+3}], v{VTA}"))
    P(("lds", f"ds_read_b32 v{KR+1}, v{PH} offset:{5*128}"))
    P(("lds", f"ds_read2_b32 v[{KR+2}:{KR+3}], v{PH} offset0:{6*32} offset1:{7*32}"))
    for i in range(4): P(("lds", f"ds_read2_b32 v[{KR+4+2*i}:{KR+5+2*i}], v{PK} offset0:{64*i} offset1:{64*i+32}"))
    for i in range(4): P(("lds", f"ds_read2_b32 v[{VR+2*i}:{VR+1+2*i}], v{PV} offset0:{64*i} offset1:{64*i+32}"))
    nrd = len(prep)
    P(("waitlg",))
    for m in range(4):
        P(("v", f"v_lshlrev_b32 v{TF+2*m}, 16, v{TAPS+m}")); P(("v", f"v_and_b32 v{TF+2*m+1}, v{VHI}, v{TAPS+m}"))
    for e in range(2):
        for i in range(1, 12): P(("v", f"v_lshlrev_b32 v{KF+i}, 16, v{KR+i}" if e == 0 else f"v_and_b32 v{KF+i}, v{VHI}, v{KR+i}"))
        for t in range(8): P(("v", f"v_mul_f32 v{PA+t}, v{KF+1+t}, v{TF+4*e+3}"))
        for tau in (2, 1, 0):
            for t in range(8): P(("v", f"v_fmac_f32 v{PA+t}, v{KF+4+t-tau}, v{TF+4*e+tau}"))
        for t in range(8):
            P(("v", f"v_lshlrev_b32 v{VF+(t&1)}, 16, v{VR+t}" if e == 0 else f"v_and_b32 v{VF+(t&1)}, v{VHI}, v{VR+t}"))
            P(("v", f"v_mul_f32 v{PA+t}, v{PA+t}, v{VF+(t&1)}"))
        for m in range(4): P(("v", f"v_cvt_pk_bf16_f32 v{OUT+4*e+m}, v{PA+7-2*m}, v{PA+6-2*m}"))
        P(("st", e))
    def emit(op):
        if op[0] == "lds": a.lds(op[1], "pr")
        elif op[0] == "v": a(op[1])
        elif op[0] == "waitlg": a.wait(lg="pr")
        else: a.vmem(f"buffer_store_dwordx4 v[{OUT+4*op[1]}:{OUT+4*op[1]+3}], v{PST}, s[{R_WS}:{R_WS+3}], s{S_UA+op[1]} offen sc1", "ur")
    def g_read(): a("s_mov_b64 exec, 15"); a.lds(f"ds_read_b128 v[{GD}:{GD+3}], v{VGR}", "ud"); a("s_mov_b64 exec, -1")
    def publish():
        L = a.newlabel("Lpb")
        a.wait(lg="ud")
        a(f"s_cmp_lg_u32 s{x}, 0\ns_cbranch_scc1 {L}\ns_lshl_b32 s{S_T0}, s{S_C16}, 6\ns_add_u32 s{S_T0}, s{S_T0}, s{S_SB}\ns_mov_b64 exec, 15")
        a(f"buffer_store_dwordx4 v[{GD}:{GD+3}], v{V16}, s[{R_WS}:{R_WS+3}], s{S_T0} offen sc1\ns_mov_b64 exec, -1")
        a.label(L)
    def stats_dma():
        L = a.newlabel("Lsd")
        a(f"s_cmp_lg_u32 s{x}, 1\ns_cbranch_scc1 {L}\ns_mov_b32 m0, {L_ST}\ns_nop 0")
        a(f"buffer_load_dwordx4 v{V16}, s[{R_WS}:{R_WS+3}], s{S_SB} offen sc1 lds")
        a.label(L)
    S_H1 = 17; S_PW, S_PS = R_K, R_K + 2; S_HO = R_V
    a(f"s_cmp_eq_u32 s{S_CL}, 7\ns_cbranch_scc1 L_Xs")
    a.cap = cfg.cap0
    c1 = chunk_ops(1)
    for f in chunk_ops(0) + c1[:cfg.n1]: f()
    a.label("L_Xs")
    setup_rest()
    def ssm_loads():
        a(f"s_mov_b32 m0, s{S_H1}\ns_lshl_b32 s{S_T0}, s{S_U5}, 12")
        a.vmem(f"buffer_load_dwordx4 v{V16}, s[{R_SSM}:{R_SSM+3}], s{S_U2} offen {cfg.ssmf} lds", "h")
        a.vmem(f"buffer_load_dwordx4 v{V16}, s[{R_SSM}:{R_SSM+3}], s{S_U2} offen offset:1024 {cfg.ssmf} lds", "h")
        a(f"s_add_u32 s{S_T0}, s{S_T0}, 2044\ns_load_dword s{S_U0}, s[{P_SSM}:{P_SSM+1}], s{S_T0}")
    SG = [4*m + n for m in range(7) for n in (0, 1)] + [4*m + n for m in range(7) for n in (2, 3)]
    def w2_dma(i):
        ii = i % 14
        a(f"s_add_u32 m0, s{S_B}, {ii*8192}\ns_mov_b32 s{S_T0}, {SG[i]*16384}")
        a.vmem(f"buffer_load_dwordx4 v{W2A}, s[{R_W2}:{R_W2+3}], s{S_T0} offen {cfg.ntw2} lds", f"w{i}")
        a.vmem(f"buffer_load_dwordx4 v{W2B}, s[{R_W2}:{R_W2+3}], s{S_T0} offen offset:1024 {cfg.ntw2} lds", f"w{i}")
    def ustage():
        L = a.newlabel("Lurok")
        a(f"s_cmp_eq_u32 s{S_PV}, 8\ns_cbranch_scc1 {L}")
        keep = list(a.lg); k.spoll(S_PUB, 8); a.lg = keep
        a.label(L)
        stamp(11)
        L = a.newlabel("Lhs")
        a(f"s_cmp_lg_u32 s{S_CL}, 7\ns_cbranch_scc1 {L}"); stats_dma(); a.label(L)
        a(f"s_xor_b32 s{S_T1}, s{x}, 3\ns_lshl_b32 s{S_T1}, s{S_T1}, 10\ns_and_b32 s{S_T0}, s{S_U5}, 0xfffffffe\ns_lshl_b32 s{S_T0}, s{S_T0}, 12\ns_add_u32 s{S_T0}, s{S_T0}, s{S_T1}\ns_add_u32 s{S_T0}, s{S_T0}, {WS_UR}")
        for ch in range(2):
            for cp in range(1 if cfg.ucopy else 2):
                a(f"s_add_u32 m0, s{S_T1}, {L_CT + ch*CH_STRIDE + U_OFF + cp*(U_STRIDE-4)}")
                a(f"s_add_u32 s{S_T0}, s{S_T0}, 4096" if (ch == 1 and cp == 0) else "s_nop 0")
                a.vmem(f"buffer_load_dwordx4 v{V16}, s[{R_WS}:{R_WS+3}], s{S_T0} offen sc1 lds", "u")
        if cfg.ucopy:
            a(f"s_add_u32 s{S_T1}, s{S_T1}, {L_CT + U_OFF}\nv_add_u32 v{UA}, s{S_T1}, v{V16}\nv_add_u32 v{UA+1}, {U_STRIDE-4}, v{UA}\nv_add_u32 v{UA+2}, {CH_STRIDE}, v{UA+1}")
    UA, UD = 60, 64
    def ucopy_reads():
        a.wait(vm="u")
        for ch in range(2): a.lds(f"ds_read_b128 v[{UD+4*ch}:{UD+4*ch+3}], v{UA} offset:{ch*CH_STRIDE}", "uc")
    def ucopy_writes():
        a.wait(lg="uc")
        for ch in range(2):
            for q in range(2): a.lds(f"ds_write2_b32 v{UA+1+ch}, v{UD+4*ch+2*q}, v{UD+4*ch+2*q+1} offset0:{2*q} offset1:{2*q+1}")
    MK = R_X0
    early = [12, 13, 4, 5, 10, 11]; late = [0, 1, 6, 7, 2, 3, 8, 9]
    def mark_load():
        L = a.newlabel("Lmk")
        a(f"s_cmp_lg_u32 s{x}, 0\ns_cbranch_scc1 {L}\ns_load_dwordx8 s[{MK}:{MK+7}], s[{P_DBG}:{P_DBG+1}], 0")
        a.label(L)
    def mark_check():
        L = a.newlabel("Lmk")
        a(f"s_cmp_lg_u32 s{x}, 0\ns_cbranch_scc1 {L}\ns_waitcnt lgkmcnt(0)")
        a(f"s_and_b64 s[{MK}:{MK+1}], s[{MK}:{MK+1}], s[{MK+2}:{MK+3}]\ns_and_b64 s[{MK+4}:{MK+5}], s[{MK+4}:{MK+5}], s[{MK+6}:{MK+7}]\ns_and_b64 s[{MK}:{MK+1}], s[{MK}:{MK+1}], s[{MK+4}:{MK+5}]\ns_and_b32 s{MK}, s{MK}, s{MK+1}")
        a(f"s_cbranch_scc1 {L}")
        k.vpoll(VMK, VMD, R_DBG, 1)
        a.label(L)
    a(f"s_cmp_eq_u32 s{S_CL}, 7\ns_cbranch_scc1 L_Xh")
    hn0 = len(a.lines); a.label("L_Xh")
    keep = list(a.vm); a.vm = []; a.cap = None
    ntouch = 2*len(cfg.hwhat)
    def touches():
        a(f"s_and_b32 s{S_T0}, s2, 31\ns_lshl2_add_u32 s{S_T0}, s{S_T0}, s{x}\ns_mul_i32 s{S_T0}, s{S_T0}, {112*128}\ns_add_u32 s{S_T1}, s{S_T0}, {56*128}")
        a(f"v_lshlrev_b32 v{T2}, 7, v0\ns_bfm_b64 exec, 56, 0")
        if "w" in cfg.hwhat: a(f"buffer_load_dword v{JUNK}, v{T2}, s[{R_W2}:{R_W2+3}], s{S_T0} offen\nbuffer_load_dword v{JUNK}, v{T2}, s[{R_W2}:{R_W2+3}], s{S_T1} offen")
        a("s_mov_b64 exec, -1")
        a(f"s_and_b32 s{S_T0}, s{S_J}, 3\ns_lshl2_add_u32 s{S_T0}, s{S_XCD}, s{S_T0}\ns_lshl2_add_u32 s{S_T0}, s{S_T0}, s{x}\ns_lshl_b32 s{S_T0}, s{S_T0}, 14\ns_add_u32 s{S_T1}, s{S_T0}, 8192")
        if "s" in cfg.hwhat: a(f"buffer_load_dword v{JUNK}, v{T2}, s[{R_SSM}:{R_SSM+3}], s{S_T0} offen nt\nbuffer_load_dword v{JUNK}, v{T2}, s[{R_SSM}:{R_SSM+3}], s{S_T1} offen nt")
    kv_loads()
    if cfg.htouch == 0: touches(); a(f"s_waitcnt vmcnt({ntouch})"); a.vm = []
    else: a.wait(vm="all")
    a("s_barrier")
    g_read()
    for op in prep: emit(op)
    mark_load(); mark_check()
    a("s_barrier")
    publish()
    if cfg.htouch == 1: touches()
    a(f"s_waitcnt vmcnt({ntouch})" if cfg.htouch == 1 else "s_waitcnt vmcnt(0)"); a.vm = []
    k.signal(S_US)
    if cfg.htouch == 2: touches()
    if cfg.e0seg <= cfg.ssmseg:
        for q in early[:2]: w2_dma(q)
        ssm_loads()
        for q in early[2:cfg.nearly]: w2_dma(q)
    else:
        ssm_loads()
        for q in early[:cfg.nearly]: w2_dma(q)
    hv = list(a.vm)
    a("s_branch L_Xj")
    k.ool.append("\n".join(a.lines[hn0:])); del a.lines[hn0:]; a.lg = []
    a.vm = keep; a.cap = cfg.cap0
    if cfg.kvpos == 1:
        assert cfg.n1 in (0, 4); kv_loads()
    for f in c1[cfg.n1:8-cfg.hold0]: f()
    stamp(1)
    if cfg.g1prio: a(f"s_setprio {cfg.g1prio}")
    a.wait(vm="c0"); stamp(16); a("s_barrier")
    a.cap = cfg.cap
    sig = [False]; stored = [False]
    def trysig():
        if stored[0] and not sig[0] and "ur" not in a.vm: k.signal(S_US); sig[0] = True
    body = prep[nrd:]; per_seg = -(-len(body) // cfg.nps)
    p0 = cfg.kvpos + cfg.pdelay; carry = c1[8-cfg.hold0:]
    for i in range(7):
        if cfg.segstamps or i == 0: stamp(2 + i)
        if i == 0: g_read()
        if i == cfg.mseg - 1: a.wait(lg="all"); mark_load()
        if i == cfg.mseg + 1: publish()
        dm = carry
        if i == cfg.stseg: dm.append(stats_dma)
        if i + 2 == cfg.kvpos: dm.append(kv_loads)
        if i + 2 <= 7: dm += chunk_ops(i + 2)
        if i == cfg.e0seg: dm += [(lambda q=q: w2_dma(q)) for q in early[:2]]
        if i == cfg.ssmseg: dm.append(ssm_loads)
        if i == 6: dm += [(lambda q=q: w2_dma(q)) for q in early[2 if cfg.e0seg < 6 else 0:cfg.nearly]]
        hold = cfg.hold[i] if i < len(cfg.hold) else 0
        dm, carry = dm[:len(dm)-hold], dm[len(dm)-hold:]
        fl = []
        if i == cfg.kvpos: fl += prep[:nrd]
        if p0 <= i < p0 + cfg.nps: fl += body[(i-p0)*per_seg:(i-p0+1)*per_seg]
        per = -(-len(fl) // len(dm))
        for f in dm:
            f(); trysig()
            for op in fl[:per]: emit(op)
            fl = fl[per:]
        if i == p0 + cfg.nps - 1: stored[0] = True
        if i == cfg.kvpos: a.wait(lg="pr")
        if i == cfg.mseg: mark_check()
        a.wait(vm=f"c{i+1}"); trysig()
        a("s_barrier")
    if cfg.g1prio: a("s_setprio 0")
    if not sig[0]: a.wait(vm="ur"); trysig()
    assert cfg.stseg <= 5 and cfg.stseg > cfg.mseg and p0 + cfg.nps - 1 > cfg.mseg and cfg.e0seg > cfg.kvpos and cfg.ssmseg >= cfg.kvpos - 1
    assert a.vm == hv[len(hv)-len(a.vm):], (a.vm, hv)
    a.vm = hv
    a.label("L_Xj")
    if cfg.segstamps: stamp(9)
    a.cap = cfg.cap2
    pos = [0]
    def upoint():
        if pos[0] == max(cfg.upos - 3, 0): k.speek(S_PUB)
        if pos[0] == cfg.upos: a("s_waitcnt lgkmcnt(0)"); a.lg = []; ustage()
        pos[0] += 1
    for q in early[cfg.nearly:] + late[:4]: upoint(); w2_dma(q)
    k.lds_wait(4, T0, T1)
    if cfg.xprio: a(f"s_setprio {cfg.xprio}")
    stamp(10)
    def trs(ii, tag):
        return [(f"ds_read_b64_tr_b16 v[{WB+16*(ii>>1)+4*dt+2*(ii&1)}:{WB+16*(ii>>1)+4*dt+2*(ii&1)+1}], v{(TR, TRH)[ii>>3]+dt} offset:{(ii&7)*8192}", tag) for dt in range(4)]
    HD = 40
    def shift_reads():
        a(f"v_add_u32 v{T0}, s{S_H1}, v{V16}\nv_subrev_u32 v{T1}, 4, v{T0}\nv_subrev_u32 v{T2}, {H_STRIDE}, v{T0}")
        a(f"s_bitcmp1_b32 s{x}, 0\ns_cselect_b32 s{S_U0}, s{S_U0}, 0")
        a.wait(vm="h")
        for n in range(2):
            a.lds(f"ds_read_b128 v[{HD+8*n}:{HD+8*n+3}], v{T0} offset:{1024*n}", "sh")
            a.lds(f"ds_read_b32 v{HD+8*n+4}, v{T1} offset:{1024*n}", "sh")
    def shift_writes():
        a.wait(lg="sh")
        a(f"v_writelane_b32 v{HD+4}, s{S_U0}, 0")
        for n in range(2):
            b = HD + 8*n
            a(f"v_alignbit_b32 v{b+3}, v{b+3}, v{b+2}, 16\nv_alignbit_b32 v{b+2}, v{b+2}, v{b+1}, 16\nv_alignbit_b32 v{b+1}, v{b+1}, v{b}, 16\nv_alignbit_b32 v{b}, v{b}, v{b+4}, 16")
            a.lds(f"ds_write_b128 v{T2}, v[{b}:{b+3}] offset:{1024*n}")
    order = early + late
    seq = late[4:] + [14 + q for q in order]
    filled = 0
    def fill(force=None):
        nonlocal filled
        n = 0
        while filled < 14 and ((n < 2 and f"w{order[filled]}" not in a.vm and order[filled] in issued) or (force is not None and filled <= force)):
            a.wait(vm=f"w{order[filled]}")
            for ins, tag in trs(order[filled], f"f{order[filled]}"): a.lds(ins, tag)
            filled += 1; n += 1
    issued = set(early + late[:4])
    a(f"s_lshl2_add_u32 s{S_T0}, s{S_R2}, s{x}\ns_add_u32 s{S_T0}, s{S_T0}, {CNT_H}\ns_lshl_b32 s{S_US}, s{S_T0}, 8")
    arr = [False]; ucr = [False]
    for n, q in enumerate(seq):
        if n == len(seq) - cfg.apeek: k.speek(S_US)
        upoint()
        if q >= 14:
            fill(force=order.index(q - 14)); a.wait(lg=f"f{q-14}")
        if not (cfg.x_nop2 and q >= 14): w2_dma(q)
        issued.add(q)
        if n == 0: shift_reads()
        elif n == 1: shift_writes()
        else: fill()
        if n >= (0 if cfg.ucopy else 1) and not arr[0] and pos[0] > cfg.upos + cfg.uwait:
            if cfg.ucopy and not ucr[0]: ucopy_reads(); ucr[0] = True
            else:
                if cfg.ucopy: ucopy_writes()
                a.wait(vm="u"); k.lds_arrive(0, T0, T1); arr[0] = True
    assert arr[0]
    stamp(12)
    if cfg.xprio: a("s_setprio 0")
    k.scheck(S_US, 0xff, 7)
    stamp(13)
    NP = cfg.np; RING = 15
    units = [(p, tau) for p in range(7 - NP) for tau in range(4)] + [(p, tau) for hf in range(2) for p in range(7 - NP, 7) for tau in (2*hf, 2*hf+1)]
    hs = [(2*p + e, tau) for p, tau in units for e in range(2)]
    nb = min(n for n, (i, tau) in enumerate(hs) if i >= 7)
    cur = [None, None]
    def hload(n):
        i, tau = hs[n]; d = AR + 4*(n % RING); blk = 2*(i % 7) + i // 7
        if n == nb - cfg.bpeek: k.speek(S_US)
        if n == nb: k.scheck(S_US, None, 0x707)
        if cur[i & 1] != blk: a(f"s_mov_b32 s{R_V+(i&1)}, {4096*blk}"); cur[i & 1] = blk
        off = f" offset:{1024*tau}" if tau else ""
        a.vmem(f"buffer_load_dwordx4 v[{d}:{d+3}], v{HA}, s[{R_WS}:{R_WS+3}], s{R_V+(i&1)} offen{off} sc1", f"a{n}")
    def pwrites(hf):
        q = [("m0", 7*8192*hf)]
        for tl in range(2):
            for dt in range(4):
                base = 1024*tl if dt == 0 else (1 + 3*tl + dt - 1)*8192 + (0, 16, 128, 144)[dt]
                q += [f"ds_write_addtid_b32 v{ACC2+16*(2*hf+tl)+4*dt+r} offset:{base+256*r}" for r in range(4)]
        return q
    def pw(q):
        o = q.pop(0)
        if isinstance(o, tuple):
            a(f"s_add_u32 m0, s{S_B}, {o[1]}\ns_nop 0"); o = q.pop(0)
        a.lds(o)
    a.cap = None
    LA = cfg.lah
    assert LA <= RING - 2
    for n in range(LA): hload(n)
    pend = []; w0 = pwrites(0)
    for u, (p, tau) in enumerate(units):
        for dt in range(4):
            for e in range(2):
                n = 2*u + e; i = 2*p + e; wb = WB + 16*(i % 7) + 4*dt
                assert not any(t == f"g{i}" for _, t in pend)
                a.wait(vm=f"a{n}", lg=f"g{i}")
                d = ACC2 + 16*tau + 4*dt
                a(f"v_mfma_f32_16x16x32_bf16 v[{d}:{d+3}], v[{AR+4*(n%RING)}:{AR+4*(n%RING)+3}], v[{wb}:{wb+3}], {'0' if i == 0 else v(d,4)}")
                if pend: a.lds(*pend.pop(0))
                elif u >= 28 - 2*NP and NP and w0:
                    pw(w0)
                    if not w0: k.lds_arrive(6, T0, T1)
                if e == 1 and dt in cfg.ldt and 2*u + cfg.ldt.index(dt) + LA < 56: hload(2*u + cfg.ldt.index(dt) + LA)
        if tau == 3:
            for i in (2*p, 2*p+1):
                if i < 7: pend += trs(2*i, f"g{i+7}") + trs(2*i+1, f"g{i+7}")
    stamp(14)
    if w0:
        while w0: pw(w0)
        k.lds_arrive(6, T0, T1)
    w1 = pwrites(1)
    while w1: pw(w1)
    a("s_mov_b64 exec, 1"); a.lds(f"ds_add_u32 v{T0}, v{T1} offset:28"); a("s_mov_b64 exec, -1")
    stamp(15)
    k.flush_stamps()
    a("s_endpgm")
    for o in k.ool: a(o)

def gen_m(k):
    a, cfg, stamp = k.a, k.cfg, k.stamp
    w = S_WV
    S_TH, S_FH = 98, 99
    V16, QA, WA, VST = 1, 2, 4, 8
    T0, T1, T2, T3 = 10, 11, 12, 13
    VCW, VCR = 14, 15
    ACC, CS, QF, WF, ONES, B1F, STT, CSP, WA2, GR = 16, 80, 96, 128, 160, 164, 180, 188, 204, 248
    CA, CB, AD, EXW, EXR, YST, VXO, VSA, VB2, YS0, YS1, YA0, YA1, PA0, PA1, DV, JUNK = 208, 209, 210, 214, 215, 216, 217, 218, 219, 220, 221, 222, 223, 224, 225, 226, 227
    XR, XF, B1R = 96, 104, CSP
    LAM = -(2*1.4426950408889634*0.7978845608028654*0.044715) ** (1/3)
    MU = 2*1.4426950408889634*0.7978845608028654 / -LAM
    VKA, VKB, VHALO, VTA, PK, PH, PV, PST, TAPS = 236, 237, 238, 239, 240, 241, 242, 243, 244
    a(f"s_lshl_b32 s{S_U0}, s{S_R}, 7\ns_lshl3_add_u32 s{S_U0}, s{S_C16}, s{S_U0}\ns_lshl1_add_u32 s{S_U0}, s{w}, s{S_U0}")
    a(f"s_lshl_b32 s{S_U1}, s{S_U0}, 10\ns_or_b32 s{S_U2}, s{S_J}, s{w}")
    a(f"s_mov_b32 s{R_WS+2}, {WS_SIZE}\ns_mov_b32 s{R_WS+3}, s{R_Q+3}")
    for i in range(4): a(f"v_mov_b32 v{GR+i}, 0")
    a(f"v_and_b32 v{T3}, 16, v{V16}\nv_add_u32 v{T3}, {L_SYNC}, v{T3}\nds_write_b128 v{T3}, v[{GR}:{GR+3}]")
    a("s_waitcnt lgkmcnt(0)")
    if cfg.wsoff: a(f"s_add_u32 s{P_WS}, s{P_WS}, {cfg.wsoff}\ns_addc_u32 s{P_WS+1}, s{P_WS+1}, 0")
    a(f"s_mov_b64 s[{R_Q}:{R_Q+1}], s[{P_Q}:{P_Q+1}]\ns_mov_b64 s[{R_WS}:{R_WS+1}], s[{P_WS}:{P_WS+1}]")
    LN = a.newlabel("Lnolead")
    a(f"s_cmp_lg_u32 s{S_U2}, 0\ns_cbranch_scc1 {LN}")
    a(f"v_min_u32 v{T3}, 47, v0\nv_lshlrev_b32 v{T3}, 8, v{T3}\ns_mul_i32 s{S_T0}, s2, {48*256}\ns_lshl_b32 s{S_T1}, s2, 11\ns_add_u32 s{S_T1}, s{S_T1}, {WS_STATS}")
    a(f"buffer_store_dwordx4 v[{GR}:{GR+3}], v{V16}, s[{R_WS}:{R_WS+3}], s{S_T1} offen sc1")
    a(f"buffer_store_dwordx4 v[{GR}:{GR+3}], v{V16}, s[{R_WS}:{R_WS+3}], s{S_T1} offen offset:1024 sc1")
    a(f"buffer_store_dword v{GR}, v{T3}, s[{R_WS}:{R_WS+3}], s{S_T0} offen sc1")
    a.label(LN)
    a.vmem(f"buffer_load_dwordx4 v[{XR}:{XR+3}], v{V16}, s[{R_Q}:{R_Q+3}], s{S_U1} offen {cfg.ntq}", "x")
    a.vmem(f"buffer_load_dwordx4 v[{XR+4}:{XR+7}], v{V16}, s[{R_Q}:{R_Q+3}], s{S_U1} offen offset:1024 {cfg.ntq}", "x")
    a(f"s_and_b32 s{S_TH}, s{w}, 1\ns_lshr_b32 s{S_FH}, s{w}, 1")
    a(f"s_lshl_b32 s{S_T0}, s{S_XCD}, 5\ns_add_u32 s{S_T0}, s{S_T0}, s{S_J}\ns_lshl_b32 s{S_T0}, s{S_T0}, 2\ns_load_dword s{S_PV}, s[{P_D}:{P_D+1}], s{S_T0}")
    a(f"v_and_b32 v{T2}, 15, v0\nv_lshrrev_b32 v{T3}, 1, v{T2}\nv_xor_b32 v{T3}, v{T3}, v{T1}\nv_lshlrev_b32 v{T3}, 4, v{T3}\nv_lshl_add_u32 v{T3}, v{T2}, 7, v{T3}")
    a(f"s_lshl_b32 s{S_T0}, s{S_TH}, 6\nv_xor_b32 v{T3}, s{S_T0}, v{T3}")
    a(f"s_lshl_b32 s{S_T0}, s{S_TH}, 13\nv_add_u32 v{QA}, s{S_T0}, v{T3}\nv_xor_b32 v{QA+1}, 64, v{QA}\nv_lshlrev_b32 v{VST}, 3, v{T2}")
    a(f"v_bfe_u32 v{T2}, v0, 2, 3")
    a(f"v_bfe_u32 v{T3}, v0, 2, 2\nv_lshl_add_u32 v{T3}, v{T1}, 3, v{T3}\nv_lshlrev_b32 v{T3}, 8, v{T3}\nv_and_b32 v{T0}, 3, v0\nv_lshl_add_u32 v{T3}, v{T0}, 3, v{T3}")
    a(f"v_add_u32 v{T3}, {L_W}, v{T3}")
    a(f"s_lshl_b32 s{S_T1}, s{S_FH}, 2")
    for i in range(4):
        a(f"v_xor_b32 v{T0}, s{S_T1}, v{T2}\ns_add_u32 s{S_T1}, s{S_T1}, 1")
        a(f"v_lshl_add_u32 v{WA+i}, v{T0}, 5, v{T3}")
    a(f"s_lshl_b32 s{S_T0}, s{S_TH}, 13\ns_xor_b32 s{S_T1}, s{S_T0}, 8192")
    for i in range(4): a(f"v_add_u32 v{WA2+i}, s{S_T1}, v{WA+i}\nv_add_u32 v{WA+i}, s{S_T0}, v{WA+i}")
    a("s_branch L_M2")
    k.split = len(a.lines)
    a(".p2align 6"); a.label("L_M2")
    stamp(0)
    a(f"v_bfe_u32 v{T0}, v0, 2, 2\nv_mov_b32 v{T3}, 0x3f803f80")
    for i in range(4):
        a(f"v_cmp_eq_u32 vcc, {i}, v{T0}\ns_nop 1")
        for r in range(4): a(f"v_cndmask_b32 v{CS+4*i+r}, 0, v{T3}, vcc")
    LN = a.newlabel("Lnolead")
    a(f"s_cmp_lg_u32 s{S_U2}, 0\ns_cbranch_scc1 {LN}")
    a(f"s_waitcnt vmcnt({len(a.vm)})\ns_lshl_b32 s{S_T0}, s2, 2\ns_mov_b32 s{S_ONE}, 1\ns_atomic_add s{S_ONE}, s[{P_DBG}:{P_DBG+1}], s{S_T0}")
    a.label(LN)
    S_H0, S_H1, S_INC, S_YP, S_YC = R_X0, R_X0+1, R_X0+2, R_X0+3, 17
    KC = T2
    def late_setup():
        srd(a, R_OUT, P_OUT, 2 << 20)
        a(f"v_lshrrev_b32 v{T1}, 4, v0\nv_bfe_u32 v{T0}, v0, 2, 2")
        a(f"s_lshl_b32 s{S_T0}, s{w}, 8\ns_add_u32 s{S_T0}, s{S_T0}, {L_CS}\nv_and_b32 v{VCR}, 48, v0\nv_lshl_add_u32 v{VCW}, v{T0}, 6, v{VCR}\nv_add_u32 v{VCW}, s{S_T0}, v{VCW}")
        a(f"s_lshl_b32 s{S_T0}, s{S_FH}, 9\ns_add_u32 s{S_T0}, s{S_T0}, {L_CS}\nv_add_u32 v{VCR}, s{S_T0}, v{VCR}")
        a(f"s_lshl_b32 s{S_U3}, s{S_R}, 10\ns_lshl_b32 s{S_T0}, s{S_TH}, 9\ns_add_u32 s{S_U3}, s{S_U3}, s{S_T0}\ns_add_u32 s{S_U3}, s{S_U3}, {WS_STATS}")
        a(f"s_mul_i32 s{S_T0}, s{S_FH}, {CH_STRIDE}\ns_lshl_b32 s{S_T1}, s{S_TH}, 8\ns_add_u32 s{S_T0}, s{S_T0}, s{S_T1}")
        a(f"s_add_u32 s{S_T1}, s{S_T0}, {L_CT+U_OFF+448}\ns_add_u32 s{S_T0}, s{S_T0}, {L_CT+128-56}")
        a(f"v_and_b32 v{T0}, 1, v0\nv_bfe_u32 v{T2}, v0, 1, 3")
        a(f"v_mul_u32_u24 v{CA}, {H_STRIDE}, v{T0}\nv_lshl_add_u32 v{CA}, v{T2}, 3, v{CA}\nv_lshl_add_u32 v{CA}, v{T1}, 4, v{CA}\nv_add_u32 v{CA}, s{S_T0}, v{CA}")
        a(f"v_mul_u32_u24 v{CB}, {U_STRIDE}, v{T0}\nv_lshl_add_u32 v{CB}, v{T1}, 4, v{CB}\nv_add_u32 v{CB}, s{S_T1}, v{CB}\nv_lshlrev_b32 v{T3}, 6, v{T2}\nv_sub_u32 v{CB}, v{CB}, v{T3}")
        a(f"v_xor_b32 v{AD+1}, 1, v{T0}\nv_lshlrev_b32 v{AD+1}, 4, v{AD+1}")
        a(f"v_lshlrev_b32 v{AD+3}, 1, v{T2}\nv_lshl_add_u32 v{AD+3}, v{T1}, 2, v{AD+3}")
        a(f"s_lshl_b32 s{S_T0}, s{w}, 13\ns_add_u32 s{S_T0}, s{S_T0}, {L_CT}\nv_add_u32 v{EXW}, s{S_T0}, v{V16}")
        a(f"s_add_u32 s{S_T0}, s{S_B}, {L_CT}\nv_add_u32 v{EXR}, s{S_T0}, v{V16}")
        a(f"v_bfe_u32 v{T0}, v0, 2, 2\nv_and_b32 v{T3}, 3, v0\nv_lshlrev_b32 v{T0}, 8, v{T0}\nv_lshl_add_u32 v{T0}, v{T1}, 6, v{T0}\nv_lshl_add_u32 v{YST}, v{T3}, 4, v{T0}")
        a(f"s_lshl_b32 s{S_T0}, s{S_XCD}, 5\ns_add_u32 s{S_T0}, s{S_T0}, s{S_J}\ns_lshl_b32 s{S_T0}, s{S_T0}, 13\ns_add_u32 s{S_T0}, s{S_T0}, s{S_B}\ns_add_u32 s{S_T0}, s{S_T0}, {WS_Y}\nv_add_u32 v{YST}, s{S_T0}, v{YST}")
        a(f"s_lshl_b32 s{S_T1}, s{w}, 1\nv_and_b32 v{T0}, 15, v0\nv_xor_b32 v{T0}, s{S_T1}, v{T0}\nv_lshlrev_b32 v{T0}, 4, v{T0}\nv_lshl_add_u32 v{YS0}, v{T1}, 13, v{T0}\nv_xor_b32 v{YS1}, 16, v{YS0}")
        a(f"s_lshl_b32 s{S_T1}, s{S_C2}, 18\ns_lshl_b32 s{S_T2}, s{S_R2}, 8\ns_add_u32 s{S_T1}, s{S_T1}, s{S_T2}\ns_lshl_b32 s{S_T2}, s{w}, 16\ns_add_u32 s{S_T1}, s{S_T1}, s{S_T2}\ns_add_u32 s{S_T1}, s{S_T1}, {WS_Y}")
        a(f"s_add_u32 s{S_T2}, s{S_T1}, {4*8192-1024}\nv_add_u32 v{YS0}, s{S_T1}, v{YS0}\nv_add_u32 v{YS1}, s{S_T2}, v{YS1}")
        RHO, OCT, TOFF = 236, 237, 238
        a(f"v_lshrrev_b32 v{RHO}, 3, v0\nv_and_b32 v{OCT}, 7, v0")
        a(f"v_and_b32 v{TOFF}, 1, v{RHO}\nv_bfe_u32 v{T0}, v{RHO}, 1, 1\nv_lshl_add_u32 v{TOFF}, v{T0}, 2, v{TOFF}\nv_lshrrev_b32 v{T2}, 2, v{RHO}\nv_lshl_add_u32 v{TOFF}, v{T2}, 1, v{TOFF}")
        a(f"s_lshl_b32 s{S_T1}, s{S_R2}, 6\ns_lshl3_add_u32 s{S_T1}, s{w}, s{S_T1}\nv_add_u32 v{T3}, s{S_T1}, v{TOFF}")
        a(f"s_lshl_b32 s{S_T2}, s{S_C2}, 7\nv_lshl_add_u32 v{VB2}, v{OCT}, 4, s{S_T2}\nv_lshl_add_u32 v{VXO}, v{T3}, 10, v{VB2}\nv_lshlrev_b32 v{VB2}, 4, v{OCT}\nv_add_u32 v{VB2}, {L_B2}, v{VB2}\nv_lshlrev_b32 v{VSA}, 3, v{T3}\nv_add_u32 v{VSA}, {WS_STATS}, v{VSA}")
        a(f"s_lshl_b32 s{S_T0}, s{w}, 2\ns_or_b32 s{S_T0}, s{S_T0}, 1\nv_xor_b32 v{T0}, s{S_T0}, v{T2}\nv_xor_b32 v{T0}, v{T0}, v{OCT}\nv_lshlrev_b32 v{T0}, 4, v{T0}")
        a(f"v_lshl_add_u32 v{T0}, v{OCT}, 10, v{T0}\nv_and_b32 v{T2}, 3, v{RHO}\nv_lshl_add_u32 v{T0}, v{T2}, 2, v{T0}")
        a(f"v_xor_b32 v{YA1}, 32, v{T0}\nv_add_u32 v{YA0}, {L_YST}, v{T0}\nv_add_u32 v{YA1}, {L_YST}, v{YA1}")
        a(f"v_and_b32 v{T0}, 3, v{TOFF}\nv_lshlrev_b32 v{T0}, 8, v{T0}\nv_lshrrev_b32 v{T2}, 2, v{TOFF}\nv_lshl_add_u32 v{T0}, v{T2}, 6, v{T0}\nv_and_b32 v{T2}, 1, v{OCT}\nv_lshl_add_u32 v{T0}, v{T2}, 5, v{T0}")
        a(f"s_lshl_b32 s{S_T0}, s{S_TH}, 7\nv_add_u32 v{T0}, s{S_T0}, v{T0}\nv_bfe_u32 v{T2}, v{OCT}, 1, 1\nv_lshl_add_u32 v{T0}, v{T2}, 4, v{T0}\nv_lshrrev_b32 v{T2}, 2, v{OCT}\nv_lshl_add_u32 v{T0}, v{T2}, 7, v{T0}")
        a(f"v_lshrrev_b32 v{T2}, 1, v{OCT}\nv_lshl_add_u32 v{T0}, v{T2}, 13, v{T0}\ns_lshl_b32 s{S_T0}, s{S_FH}, 10\ns_mul_i32 s{S_T1}, s{S_FH}, {3*8192}")
        a(f"v_mov_b32 v{PA0}, s{S_T0}\nv_mov_b32 v{T3}, s{S_T1}\nv_cmp_lt_u32 vcc, 1, v{OCT}\ns_nop 0\ns_nop 0\nv_cndmask_b32 v{PA0}, v{PA0}, v{T3}, vcc\nv_add_u32 v{PA0}, v{T0}, v{PA0}\nv_add_u32 v{PA1}, {7*8192}, v{PA0}")
        a(f"s_lshl_b32 s{S_T0}, s{S_FH}, 7\ns_add_u32 s{S_T0}, s{S_T0}, {L_B1}\nv_lshl_add_u32 v{DV}, v{T1}, 3, s{S_T0}")
        a(f"s_lshl1_add_u32 s{S_T0}, s{S_R}, s{S_TH}\ns_lshl1_add_u32 s{S_T2}, s{S_C}, s{S_FH}")
        a(f"s_mul_i32 s{S_T1}, s{S_T0}, {224*1024}\ns_lshl_b32 s{S_T3}, s{S_T2}, 13\ns_add_u32 s{S_T1}, s{S_T1}, s{S_T3}\ns_add_u32 s{S_H0}, s{S_T1}, {WS_H}\ns_add_u32 s{S_H1}, s{S_H0}, 4096")
        a(f"s_mul_i32 s{S_T1}, s{S_T2}, 37\ns_lshr_b32 s{S_T1}, s{S_T1}, 8\ns_lshl2_add_u32 s{S_T0}, s{S_T0}, s{S_T1}\ns_add_u32 s{S_T0}, s{S_T0}, {CNT_H}\ns_lshl_b32 s{S_PUB}, s{S_T0}, 8")
        a(f"s_cmp_lg_u32 s{S_CL}, 7\ns_cselect_b32 s{S_INC}, 1, 0")
        a(f"s_lshl2_add_u32 s{S_T0}, s{S_XCD}, s{w}\ns_lshr_b32 s{S_T1}, s{S_J}, 3\ns_lshl2_add_u32 s{S_T0}, s{S_T0}, s{S_T1}\ns_add_u32 s{S_T0}, s{S_T0}, {CNT_Y}\ns_lshl_b32 s{S_YP}, s{S_T0}, 8")
        a(f"s_lshr_b32 s{S_T0}, s{S_R2}, 3\ns_lshl2_add_u32 s{S_T0}, s{S_C2}, s{S_T0}\ns_lshl2_add_u32 s{S_T0}, s{S_T0}, s{w}\ns_add_u32 s{S_T0}, s{S_T0}, {CNT_Y}\ns_lshl_b32 s{S_YC}, s{S_T0}, 8")
        a(f"v_mov_b32 v{KC}, {f32(MU)}\nv_mov_b32 v{KC+1}, {f32(LAM)}\ns_mov_b32 s{S_U1}, 32768")
        a(f"s_lshl_b32 s{S_T0}, s{S_TH}, 9\ns_add_u32 s{S_T0}, s{S_T0}, {L_ST}\nv_add_u32 v{VST+1}, s{S_T0}, v{VST}")
        a(f"s_lshl_b32 s{S_T0}, s{S_FH}, 4\ns_lshr_b32 s{S_PV}, s{S_PV}, s{S_T0}\ns_and_b32 s{S_PV}, s{S_PV}, 0xffff\nv_mov_b32 v{T0}, s{S_PV}")
        a(f"v_lshlrev_b32 v{T0}, v{AD+1}, v{T0}\ns_sub_u32 s{S_T2}, s{S_TH}, 1\nv_and_b32 v{T0}, s{S_T2}, v{T0}")
        a(f"v_cmp_eq_u32 vcc, 14, v{AD+3}\nv_mov_b32 v{AD+1}, 0\ns_nop 0\nv_cndmask_b32 v{AD}, 0, v{T0}, vcc")
        a(f"v_cmp_eq_u32 vcc, 12, v{AD+3}\nv_mov_b32 v{AD+3}, 0\ns_nop 0\nv_cndmask_b32 v{AD+2}, 0, v{T0}, vcc")
    XR2, VXL, S_XI = 240, 9+243, S_U4
    if cfg.xlds:
        a(f"v_lshrrev_b32 v{T0}, 3, v0\nv_and_b32 v{T1}, 1, v{T0}\nv_bfe_u32 v{T2}, v{T0}, 1, 1\nv_lshl_add_u32 v{T1}, v{T2}, 2, v{T1}\nv_lshrrev_b32 v{T2}, 2, v{T0}\nv_lshl_add_u32 v{T1}, v{T2}, 1, v{T1}")
        a(f"s_and_b32 s{S_T0}, s{S_R2}, 1\ns_lshl_b32 s{S_T0}, s{S_T0}, 6\ns_lshl3_add_u32 s{S_T0}, s{w}, s{S_T0}\nv_add_u32 v{T1}, s{S_T0}, v{T1}")
        a(f"v_lshrrev_b32 v{T2}, 1, v{T1}\nv_xor_b32 v{T2}, v{T2}, v0\nv_and_b32 v{T2}, 7, v{T2}\nv_lshlrev_b32 v{T2}, 4, v{T2}\nv_lshl_add_u32 v{VXL}, v{T1}, 7, v{T2}")
        a(f"s_sub_u32 s{S_XI}, s{S_C2}, s{S_KC0}\ns_and_b32 s{S_XI}, s{S_XI}, 7")
    a.wait(vm="x")
    for n in range(2):
        for m in range(4):
            a(f"v_lshlrev_b32 v{XF+8*n+2*m}, 16, v{XR+4*n+m}\nv_and_b32 v{XF+8*n+2*m+1}, 0xffff0000, v{XR+4*n+m}")
    SM = XR
    def reduce2():
        for dpp in ("row_shr:1 row_mask:0xf bank_mask:0xf bound_ctrl:0", "row_shr:2 row_mask:0xf bank_mask:0xf bound_ctrl:0", "row_shr:4 row_mask:0xf bank_mask:0xf bound_ctrl:0",
                    "row_shr:8 row_mask:0xf bank_mask:0xf bound_ctrl:0", "row_bcast:15 row_mask:0xa bank_mask:0xf", "row_bcast:31 row_mask:0xc bank_mask:0xf"):
            a("s_nop 0")
            for n in range(2): a(f"v_add_f32_dpp v{SM+n}, v{SM+n}, v{SM+n} {dpp}")
    for n in range(2): a(f"v_add_f32 v{SM+n}, v{XF+8*n}, v{XF+8*n+1}")
    for m in range(2, 8):
        for n in range(2): a(f"v_add_f32 v{SM+n}, v{SM+n}, v{XF+8*n+m}")
    reduce2()
    for n in range(2): a(f"v_mul_f32 v{SM+2+n}, {f32(1/512)}, v{SM+n}")
    a(f"v_readlane_b32 s{S_T0}, v{SM+2}, 63\nv_readlane_b32 s{S_T1}, v{SM+3}, 63\ns_nop 0")
    for n in range(2):
        for m in range(8): a(f"v_subrev_f32 v{XF+8*n+m}, s{S_T0+n}, v{XF+8*n+m}")
    for n in range(2): a(f"v_mul_f32 v{SM+n}, v{XF+8*n}, v{XF+8*n}")
    for m in range(1, 8):
        for n in range(2): a(f"v_fmac_f32 v{SM+n}, v{XF+8*n+m}, v{XF+8*n+m}")
    reduce2()
    a(f"v_mov_b32 v{T1}, {f32(1e-5)}")
    for n in range(2): a(f"v_fmamk_f32 v{SM+n}, v{SM+n}, {f32(1/512)}, v{T1}")
    for n in range(2): a(f"v_rsq_f32 v{SM+n}, v{SM+n}")
    for n in range(2): a(f"v_or_b32 v{GR+2*n}, 1, v{SM+2+n}")
    for n in range(2): a(f"v_or_b32 v{GR+2*n+1}, 1, v{SM+n}")
    stamp(14)
    a(f"s_lshl_b32 s{S_T0}, s{w}, 4\ns_add_u32 s{S_T0}, s{S_T0}, {L_GR}\nv_mov_b32 v{T0}, s{S_T0}\ns_lshl_b64 exec, -1, 63")
    a.lds(f"ds_write_b128 v{T0}, v[{GR}:{GR+3}]"); a("s_mov_b64 exec, -1")
    def stats_loads():
        for tau in range(4):
            a(f"buffer_load_dwordx2 v[{STT+2*tau}:{STT+2*tau+1}], v{VST}, s[{R_WS}:{R_WS+3}], s{S_U3} offen offset:{128*tau} sc1")
    a.wait(lg="all")
    stamp(1)
    def rd(i, ks):
        slot = (i % 3) * 16384; b = 16*ks; wa = (WA, WA2)[ks]
        def W(n): return [(f"ds_read_b64_tr_b16 v[{WF+b+4*n+2*h}:{WF+b+4*n+2*h+1}], v{wa+n} offset:{slot+1024*h}", f"W{i}{ks}{n}") for h in range(2)]
        def Q(t): return [(f"ds_read_b128 v[{QF+b+4*t}:{QF+b+4*t+3}], v{QA+ks} offset:{slot+2048*t}", f"Q{i}{ks}{t}")]
        if cfg.x_nolds: return []
        return W(0) + Q(0) + Q(1) + Q(2) + Q(3) + W(1) + W(2) + W(3)
    def mm(i, ks, n, t):
        b = 16*ks
        if t == "cs":
            d = ONES; B = CS + 4*n; first = (i == 0 and n == 0); tags = [f"W{i}{ks}{n}"]
        else:
            d = ACC + 4*(4*n+t); B = QF+b+4*t; first = (i == 0 and ks == 0); tags = [f"W{i}{ks}{n}", f"Q{i}{ks}{t}"]
            if cfg.coarse and n == 0 and t == 0 and (i, ks) != (0, 0): tags.append(f"Q{i}{ks}3")
        a.wait(lg=tags)
        if not cfg.x_nomfma: a(f"v_mfma_f32_16x16x32_bf16 v[{d}:{d+3}], v[{WF+b+4*n}:{WF+b+4*n+3}], v[{B}:{B+3}], {'0' if first else v(d,4)}")
        for _ in range(cfg.bgn + (1 if len(bg) > 1 and bg[0].startswith("s_") and bg[1].startswith("s_") else 0)):
            if bg: a(bg.pop(0))
    bg = []
    if cfg.dseg < 0:
        n0 = len(a.lines); late_setup(); bg = a.lines[n0:]; del a.lines[n0:]
        for q in range(len(bg) - 1, 0, -1):
            if bg[q].startswith("s_cselect"): bg[q-1:q+1] = [bg[q-1] + "\n" + bg[q]]
    base = [(n, (t if n % 2 == 0 or not cfg.snake else 3 - t)) for n in range(4) for t in range(4)]
    withcs = sum([base[4*n:4*n+4] + [(n, "cs")] for n in range(4)], [])
    VSY = JUNK
    a(f"v_mov_b32 v{VSY}, {L_SYNC}")
    a("s_barrier")
    stamp(2)
    a(f"s_cmp_eq_u32 s{S_CL}, 7\ns_cbranch_scc1 L_Mh")
    for ins, tag in rd(0, 0): a.lds(ins, tag)
    def stats_check():
        L = a.newlabel("Lst"); B = a.newlabel("Lstb")
        chk = (f"v_min3_u32 v{T0}, v{STT}, v{STT+1}, v{STT+2}\nv_min3_u32 v{T1}, v{STT+3}, v{STT+4}, v{STT+5}", f"v_min3_u32 v{T0}, v{T0}, v{STT+6}, v{STT+7}\nv_min_u32 v{T0}, v{T0}, v{T1}", f"v_cmp_eq_u32 vcc, 0, v{T0}")
        n0 = len(a.lines); stats_loads(); ld = "\n".join(a.lines[n0:]); del a.lines[n0:]
        k.ool.append(f"{L}:\n{ld}\ns_add_u32 s{S_SPIN}, s{S_SPIN}, 1\ns_waitcnt vmcnt(0)\n" + "\n".join(chk) + f"\ns_cmp_gt_u32 s{S_SPIN}, {SPIN_MAX}\ns_cbranch_scc1 {B}\ns_cbranch_vccnz {L}\ns_branch {B}")
        return ([chk[0], chk[1], chk[2] + f"\ns_mov_b32 s{S_SPIN}, 0\ns_cbranch_vccnz {L}\n{B}:"] +
                [f"v_mul_f32 v{STT+4*q+1}, v{KC+1}, v{STT+4*q+1}\nv_mul_f32 v{STT+4*q+3}, v{KC+1}, v{STT+4*q+3}" for q in range(2)] +
                [f"v_mul_f32 v{STT+4*q}, v{STT+4*q}, v{STT+4*q+1}\nv_mul_f32 v{STT+4*q+2}, v{STT+4*q+2}, v{STT+4*q+3}" for q in range(2)])
    for i in range(8):
        pend = rd(i, 1)
        lastA = base[:4] + [(n, "cs") for n in range(4)] + base[4:]
        for q, (n, t) in enumerate(base if i < 7 else lastA):
            if i == 7 and q % 4 == 0: k.lstamp("g1end")
            mm(i, 0, n, t)
            if cfg.xlds and q == (14 if i < 7 else 12):
                sl = (i % 3) * 16384
                a(f"s_cmp_eq_u32 s{S_XI}, {i}\ns_cselect_b64 exec, -1, 0\nds_read_b128 v[{XR2}:{XR2+3}], v{VXL} offset:{sl}\nds_read_b128 v[{XR2+4}:{XR2+7}], v{VXL} offset:{sl+4096}\ns_mov_b64 exec, -1")
            if i == 4 and q == 12: assert not bg
            if i == 4 and q in (12, 13): a.lds(f"ds_read2_b64 v[{B1R+4*(q-12)}:{B1R+4*(q-12)+3}], v{DV} offset0:{8*(q-12)} offset1:{8*(q-12)+4}", "b1")
            if i == 5: a(f"v_lshlrev_b32 v{B1F+q}, 16, v{B1R+q//2}" if q % 2 == 0 else f"v_and_b32 v{B1F+q}, 0xffff0000, v{B1R+q//2}")
            if i == 6: a(f"v_mul_f32 v{B1F+q}, v{KC+1}, v{B1F+q}")
            if pend: a.lds(*pend.pop(0))
            elif i == 7 and q == 13:
                a(f"s_mov_b64 exec, s[{S_T2}:{S_T3}]")
                a.lds(f"ds_write_b128 v{VCW}, v[{ONES}:{ONES+3}]")
                a("s_mov_b64 exec, -1")
            elif i == 7 and q in (15, 16):
                a.lds(f"ds_read2_b64 v[{STT+4*(q-15)}:{STT+4*(q-15)+3}], v{VST+1} offset0:{32*(q-15)} offset1:{32*(q-15)+16}", "stt")
            elif i == 7 and q == 14:
                a(f"v_mov_b32 v{T1}, 1\ns_mov_b64 exec, 1"); a.lds(f"ds_add_u32 v{VSY}, v{T1} offset:16"); a("s_mov_b64 exec, -1")
        if i < 7:
            pend = rd(i+1, 0)
            for q, (n, t) in enumerate(withcs):
                mm(i, 1, n, t)
                if q == cfg.bq:
                    if i == cfg.dseg: late_setup()
                    a.wait(lg="all")
                    a("s_barrier")
                    if i == 6: k.lstamp("g1end")
                    if i == 6: a(f"s_mov_b32 s{S_T2}, 0x11111111\ns_mov_b32 s{S_T3}, s{S_T2}")
                if q >= cfg.bq + (0 if cfg.rdnow else 1) and pend: a.lds(*pend.pop(0))
        else:
            side = stats_check()
            pend = [(f"ds_read_b128 v[{(CS, CSP)[h]+4*n2}:{(CS, CSP)[h]+4*n2+3}], v{VCR} offset:{64*n2+256*h}", f"csp{n2}") for n2 in range(4) for h in range(2)]
            for q, (n, t) in enumerate(base):
                if q % 3 == 0: k.lstamp("g1end")
                mm(i, 1, n, t)
                if q == 0: k.lds_peek(4, VSY, GR, "pk4")
                if q == 5: k.lds_check(4, VSY, GR, "pk4")
                if q >= 5 and pend: a.lds(*pend.pop(0))
                if q == 1: a.wait(lg="stt")
                if side and q >= 1 and q != 5: a(side.pop(0))
        assert not pend
    a.vm = []
    if cfg.xprio: a("s_setprio 2")
    stamp(3)
    for m in range(0, 16, 2):
        if m % 8 == 0: a.wait(lg=f"csp{m//4+1}"); a(".p2align 3")
        a(f"v_pk_add_f32 v[{CS+m}:{CS+m+1}], v[{CS+m}:{CS+m+1}], v[{CSP+m}:{CSP+m+1}]")
    CACC, FAB = 16, ((96, 128), (48, 160))
    def reads(cc):
        FA, FB = FAB[cc & 1]; r = []
        for n in range(8):
            r.append((f"ds_read_b128 v[{FB+4*n}:{FB+4*n+3}], v{CB} offset:{3584-512*n+64*cc}", f"B{cc}_{n}"))
            for hf in range(2): r.append((f"ds_read_b64 v[{FA+4*n+2*hf}:{FA+4*n+2*hf+1}], v{CA} offset:{512*n+64*cc+8*hf}", f"A{cc}_{n}"))
        return r
    pend = reads(0)
    hq = []
    units = [(pp, tau) for pp in range(2) for tau in range(4)]
    for u, (pp, tau_) in enumerate(units):
        k.lstamp("gelu")
        if u == 7: k.lds_peek(0, VSY, GR, "pk0")
        E = CSP + 8*(u & 1); O = 228 + 4*(u & 1)
        prs = [(ACC + 4*(4*(2*pp+tl)+tau_) + 2*hh, tau_, 4*(2*pp+tl) + 2*hh, E + 4*tl + 2*hh) for tl in range(2) for hh in range(2)]
        for z, tau, hh, e in prs: a(f"v_pk_fma_f32 v[{e}:{e+1}], v[{CS+hh}:{CS+hh+1}], v[{STT+2*tau}:{STT+2*tau+1}], v[{B1F+hh}:{B1F+hh+1}] op_sel_hi:[1,0,1] neg_lo:[0,1,0] neg_hi:[0,1,0]")
        for z, tau, hh, e in prs: a(f"v_pk_fma_f32 v[{z}:{z+1}], v[{z}:{z+1}], v[{STT+2*tau}:{STT+2*tau+1}], v[{e}:{e+1}] op_sel:[0,1,0]")
        for z, tau, hh, e in prs: a(f"v_pk_fma_f32 v[{e}:{e+1}], v[{z}:{z+1}], v[{z}:{z+1}], v[{KC}:{KC+1}] op_sel_hi:[1,1,0]")
        for z, tau, hh, e in prs: a(f"v_pk_mul_f32 v[{e}:{e+1}], v[{e}:{e+1}], v[{z}:{z+1}]")
        for m in range(0 if cfg.x_nogelu else 8): a(f"v_exp_f32 v{E+m}, v{E+m}")
        for z, tau, hh, e in prs: a(f"v_pk_fma_f32 v[{e}:{e+1}], v[{e}:{e+1}], v[{KC}:{KC+1}], v[{KC}:{KC+1}] op_sel:[0,1,1]")
        if u == 7 and cfg.earlyrd: k.lds_check(0, VSY, GR, "pk0")
        for m in range(8):
            if not cfg.x_nogelu: a(f"v_rcp_f32 v{E+m}, v{E+m}")
            if u == 7 and m < cfg.earlyrd: a.lds(*pend.pop(0))
        for z, tau, hh, e in prs: a(f"v_pk_mul_f32 v[{z}:{z+1}], v[{z}:{z+1}], v[{e}:{e+1}]")
        for q in range(4): a(f"v_cvt_pk_bf16_f32 v{O+q}, v{prs[q][0]}, v{prs[q][0]+1}")
        flush = u in cfg.hgroups
        so = (S_H0, S_H1)[pp]
        hq.append((f"buffer_store_dwordx4 v[{O}:{O+3}], v{V16}, s[{R_WS}:{R_WS+3}], s{so} offen offset:{1024*tau_} sc1", "h" if u > 3 else "ha"))
        if flush:
            while hq: a.vmem(*hq.pop(0))
    k.lstamp("gelu")
    stamp(5)
    if cfg.xprio: a("s_setprio 0")
    assert cfg.earlyrd
    n0 = len(a.lines); sv = (list(a.vm), list(a.lg)); a.vm = []; a.lg = []
    a.label("L_Mh")
    late_setup()
    def xloads():
        a.vmem(f"buffer_load_dwordx4 v[{XR2}:{XR2+3}], v{VXO}, s[{R_Q}:{R_Q+3}], 0 offen", "x")
        a.vmem(f"buffer_load_dwordx4 v[{XR2+4}:{XR2+7}], v{VXO}, s[{R_Q}:{R_Q+3}], s{S_U1} offen", "x")
    if cfg.xlds: xloads()
    a("s_barrier")
    a(f"v_mov_b32 v{T1}, 1\ns_mov_b64 exec, 1\nds_add_u32 v{VSY}, v{T1} offset:16\ns_mov_b64 exec, -1")
    k.lds_wait(0, VSY, GR, setaddr=False, sleep=2)
    for ins, tag in reads(0)[:cfg.earlyrd]: a(ins)
    a("s_branch L_Mj")
    k.ool.append("\n".join(a.lines[n0:])); del a.lines[n0:]
    a.vm, a.lg = sv
    a.label("L_Mj")
    stamp(6)
    while len(pend) > 15: a.lds(*pend.pop(0))
    cnt = [0]
    def tick():
        if cnt[0] == cfg.asigpos: a.wait(vm="ha"); a(f"s_atomic_add s{S_INC}, s[{P_WS}:{P_WS+1}], s{S_PUB}")
        if cnt[0] == cfg.hsigpos: a.wait(vm="h"); a(f"s_lshl_b32 s{S_ONE}, s{S_INC}, 8\ns_atomic_add s{S_ONE}, s[{P_WS}:{P_WS+1}], s{S_PUB}")
        if cnt[0] % 14 == 0 or cnt[0] == 152: k.lstamp("conv")
        cnt[0] += 1
    tick()
    wq = []
    for cc in range(4):
        FA, FB = FAB[cc & 1]
        nxt = reads(cc+1) if cc < 3 else []
        for T in range(8):
            for an in ([-1] if cc == 0 else []) + list(range(T+1)):
                d = CACC + 4*T
                if an < 0:
                    a.wait(lg=f"B0_{T}")
                    a(f"v_mfma_f32_16x16x32_bf16 v[{d}:{d+3}], v[{AD}:{AD+3}], v[{FB+4*T}:{FB+4*T+3}], 0")
                else:
                    e = T - an
                    a.wait(lg=[f"A{cc}_{an}", f"B{cc}_{e}"])
                    if not cfg.x_noconv or cc == 3: a(f"v_mfma_f32_16x16x32_bf16 v[{d}:{d+3}], v[{FA+4*an}:{FA+4*an+3}], v[{FB+4*e}:{FB+4*e+3}], v[{d}:{d+3}]")
                if pend: a.lds(*pend.pop(0))
                elif nxt:
                    a.lds(*nxt.pop(0))
                    if cc == 2 and not nxt:
                        a(f"v_mov_b32 v{T1}, 1\ns_mov_b64 exec, 1"); a.lds(f"ds_add_u32 v{VSY}, v{T1} offset:4"); a("s_mov_b64 exec, -1")
                tick()
                if cc == 3:
                    if (T, an) == (1, 0): k.lds_peek(1, VSY, T0, "pk1")
                    if (T, an) == (3, 2): k.lds_check(1, VSY, T0, "pk1")
                    if an == T: wq.append((cnt[0] + 8, T))
                    if wq and wq[0][0] <= cnt[0] and (T, an) > (3, 2):
                        T2_ = wq.pop(0)[1]
                        a.lds(f"ds_write_b128 v{EXW}, v[{CACC+4*T2_}:{CACC+4*T2_+3}] offset:{1024*T2_}")
        assert not pend and not nxt
    stamp(7)
    assert [t for _, t in wq] == [7]
    a("s_nop 6")
    a.lds(f"ds_write_b128 v{EXW}, v[{CACC+28}:{CACC+31}] offset:{1024*7}")
    a(f"s_mov_b64 exec, 1"); a.lds(f"ds_add_u32 v{VSY}, v{T1} offset:8"); a("s_mov_b64 exec, -1")
    k.lds_wait(2, VSY, T0, setaddr=False)
    FA = 48
    for tt in range(2):
        for src in range(4):
            a.lds(f"ds_read_b128 v[{FA+16*tt+4*src}:{FA+16*tt+4*src+3}], v{EXR} offset:{8192*src+1024*tt}", f"e{tt}")
    for tt in range(2):
        a.wait(lg=f"e{tt}")
        b = FA + 16*tt
        for r in range(4): a(f"v_add_f32 v{b+r}, v{b+r}, v{b+4+r}\nv_add_f32 v{b+8+r}, v{b+8+r}, v{b+12+r}")
        for r in range(4): a(f"v_cvt_pk_bf16_f32 v{b+4+r}, v{b+r}, v{b+8+r}")
        a.vmem(f"buffer_store_dwordx4 v[{b+4}:{b+7}], v{YST}, s[{R_WS}:{R_WS+3}], 0 offen{' offset:1024' if tt else ''} sc1", "y")
    stamp(8)
    ST2, B2R = 24, 28
    if not cfg.xlds: xloads()
    a(f"v_and_b32 v{T0}, 1023, v{VSA}\nv_add_u32 v{T0}, {L_ST}, v{T0}")
    a.lds(f"ds_read2_b64 v[{ST2}:{ST2+3}], v{T0} offset0:0 offset1:32", "b2")
    a.lds(f"ds_read_b128 v[{B2R}:{B2R+3}], v{VB2}", "b2")
    a(f"s_add_u32 m0, s{S_B}, {L_YST}")
    if not cfg.xlds: a.wait(vm="y"); k.signal(S_YP)
    a.wait(vm="x", lg="b2")
    L = a.newlabel("Ls2"); B = a.newlabel("Ls2b")
    chk = f"v_min3_u32 v{T0}, v{ST2}, v{ST2+1}, v{ST2+2}\nv_min_u32 v{T0}, v{T0}, v{ST2+3}\nv_cmp_eq_u32 vcc, 0, v{T0}"
    a(f"{chk}\ns_mov_b32 s{S_SPIN}, 0\ns_cbranch_vccnz {L}"); a.label(B)
    k.ool.append(f"{L}:\nbuffer_load_dwordx2 v[{ST2}:{ST2+1}], v{VSA}, s[{R_WS}:{R_WS+3}], 0 offen sc1\nbuffer_load_dwordx2 v[{ST2+2}:{ST2+3}], v{VSA}, s[{R_WS}:{R_WS+3}], 0 offen offset:256 sc1\n"
                 f"s_add_u32 s{S_SPIN}, s{S_SPIN}, 1\ns_waitcnt vmcnt(0)\n{chk}\ns_cmp_gt_u32 s{S_SPIN}, {SPIN_MAX}\ns_cbranch_scc1 {B}\ns_cbranch_vccnz {L}\ns_branch {B}")
    XF2, PP, B2F, YR = 80, 96, 32, 40
    for n in range(2):
        for m in range(4): a(f"v_lshlrev_b32 v{XF2+8*n+2*m}, 16, v{XR2+4*n+m}\nv_and_b32 v{XF2+8*n+2*m+1}, 0xffff0000, v{XR2+4*n+m}")
        for m in range(8): a(f"v_sub_f32 v{PP+8*n+m}, v{XF2+8*n+m}, v{ST2+2*n}")
        for m in range(8): a(f"v_mul_f32 v{PP+8*n+m}, v{PP+8*n+m}, v{ST2+2*n+1}")
    for m in range(4): a(f"v_lshlrev_b32 v{B2F+2*m}, 16, v{B2R+m}\nv_and_b32 v{B2F+2*m+1}, 0xffff0000, v{B2R+m}")
    if cfg.xlds: a.wait(vm="y"); k.signal(S_YP)
    stamp(9)
    if not cfg.x_noy: k.spoll(S_YC, 8)
    stamp(10)
    a.vmem(f"buffer_load_dwordx4 v{YS0}, s[{R_WS}:{R_WS+3}], 0 offen sc1 lds", "ys")
    a.vmem(f"buffer_load_dwordx4 v{YS1}, s[{R_WS}:{R_WS+3}], 0 offen offset:1024 sc1 lds", "ys")
    a(f"v_mov_b32 v{T2}, {f32(-1.4426950408889634)}")
    RD, EE = 112, 176
    S_ARR, S_YRD = S_U2, S_U3
    def pk(op, d, x0, x1, x2=None, mod=""): a(f"{op} v[{d}:{d+1}], {x0}, {x1}" + (f", {x2}" if x2 else "") + mod)
    def preads(n):
        for kq in range(4):
            for e in range(2):
                a.lds(f"ds_read_b128 v[{RD+32*n+8*kq+4*e}:{RD+32*n+8*kq+4*e+3}], v{(PA0, PA1)[n]} offset:{2048*kq+16*e}", f"p{n}_{kq}")
    yrd = "\n".join(f"ds_read2st64_b32 v[{YR+4*n+2*q}:{YR+4*n+2*q+1}], v{ya} offset0:{2*q} offset1:{2*q+1}" for n, ya in enumerate((YA0, YA1)) for q in range(2))
    arr3 = f"s_waitcnt vmcnt(0)\ns_mov_b64 exec, 1\nds_add_u32 v{VSY}, v{T1} offset:12\ns_mov_b64 exec, -1\ns_mov_b32 s{S_ARR}, 1"
    yfold = yrd + "\ns_waitcnt lgkmcnt(0)\n" + "\n".join(
        f"v_lshlrev_b32 v{EE}, 16, v{YR+q}\nv_and_b32 v{EE+1}, 0xffff0000, v{YR+q}\nv_mul_f32 v{PP+2*q}, v{PP+2*q}, v{EE}\nv_mul_f32 v{PP+2*q+1}, v{PP+2*q+1}, v{EE+1}" for q in range(8))
    L = a.newlabel("Lf"); N = a.newlabel("Lfn"); N2 = a.newlabel("Lfm"); D = a.newlabel("Lfd"); L2 = a.newlabel("Lfw")
    a(f"s_mov_b32 s{S_ARR}, 0\ns_mov_b32 s{S_YRD}, 0\ns_mov_b32 s{S_SPIN}, 0")
    a.label(L)
    a(f"s_getreg_b32 s{S_T0}, hwreg(HW_REG_IB_STS, 0, 4)\ns_or_b32 s{S_T0}, s{S_T0}, s{S_ARR}\ns_cbranch_scc1 {N}\n{arr3}")
    a.label(N)
    a(f"ds_read2_b32 v[{EE+2}:{EE+3}], v{VSY} offset0:3 offset1:6\ns_add_u32 s{S_SPIN}, s{S_SPIN}, 1\ns_waitcnt lgkmcnt(0)")
    a(f"v_cmp_eq_u32 vcc, 4, v{EE+2}\ns_cmp_gt_u32 s{S_SPIN}, {SPIN_MAX*8}\ns_cbranch_vccnz {N2}\ns_cbranch_scc1 {D}")
    a(f"v_cmp_ne_u32 vcc, 4, v{EE+3}\ns_nop 0\ns_cbranch_vccz {D}\ns_sleep 1\ns_branch {L}")
    a.label(N2)
    a(f"{yfold}\ns_mov_b32 s{S_YRD}, 1")
    k.lds_wait(6, VSY, T0, setaddr=False, sleep=cfg.fsleep)
    a.label(D); a.lg = []
    stamp(12)
    k.lstamp("fin")
    for n in range(2):
        b = RD + 32*n
        P = (n == 1) or cfg.pk0
        def op(name, d, x0, x1, x2=None, c=None):
            if P:
                for m in range(0, 8, 2):
                    if c is None: pk(f"v_pk_{name}_f32", d+m, v(x0+m, 2), v(x1+m, 2), v(x2+m, 2) if x2 is not None else None)
                    else: pk(f"v_pk_{name}_f32", d+m, v(x0+m, 2), c if c == "1.0" else v(c, 2), mod=" op_sel_hi:[1,0]")
            else:
                for m in range(8):
                    if x2 is not None: a(f"v_fma_f32 v{d+m}, v{x0+m}, v{x1+m}, v{x2+m}")
                    elif c is None: a(f"v_{name}_f32 v{d+m}, v{x0+m}, v{x1+m}")
                    else: a(f"v_{name}_f32 v{d+m}, {c if c == '1.0' else 'v%d' % c}, v{x0+m}")
        if n == 1: k.lds_wait(7, VSY, T0, setaddr=False); k.lstamp("fin")
        preads(n)
        a.wait(lg=f"p{n}_0"); a(".p2align 3")
        op("add", b, b, B2F)
        a.wait(lg=f"p{n}_2"); a(".p2align 3")
        op("add", b+8, b+8, b+16)
        a.wait(lg=f"p{n}_3"); a(".p2align 3")
        op("add", b, b, b+24)
        op("add", b, b, b+8)
        k.lstamp("fin")
        op("mul", EE, b, None, c=T2)
        for m in range(8): a(f"v_exp_f32 v{EE+m}, v{EE+m}")
        op("add", EE, EE, None, c="1.0")
        for m in range(8): a(f"v_rcp_f32 v{EE+m}, v{EE+m}")
        op("mul", b, b, EE)
        if n == 0:
            L = a.newlabel("Lys"); B = a.newlabel("Lysb"); N = a.newlabel("Lysn")
            a(f"s_cmp_eq_u32 s{S_YRD}, 0\ns_cbranch_scc1 {L}"); a.label(B)
            k.ool.append(f"{L}:\ns_mov_b32 s{S_SPIN}, 0\ns_cmp_lg_u32 s{S_ARR}, 0\ns_cbranch_scc1 {N}\n{arr3}\n{N}:\nds_read_b32 v{T0}, v{VSY} offset:12\ns_add_u32 s{S_SPIN}, s{S_SPIN}, 1\ns_waitcnt lgkmcnt(0)\n"
                         f"v_cmp_ne_u32 vcc, 4, v{T0}\ns_cmp_gt_u32 s{S_SPIN}, {SPIN_MAX*8}\ns_cbranch_scc1 {B}\ns_cbranch_vccnz {N}\n{yfold}\ns_branch {B}")
        op("fma", b, b, PP+8*n, XF2+8*n)
        for m in range(4): a(f"v_cvt_pk_bf16_f32 v{b+8+m}, v{b+2*m}, v{b+2*m+1}")
        a.vmem(f"buffer_store_dwordx4 v[{b+8}:{b+11}], v{VXO}, s[{R_OUT}:{R_OUT+3}], {'s%d' % S_U1 if n else '0'} offen {cfg.out_flags}")
        if n == 0: k.lstamp("fin"); stamp(11)
    k.lstamp("fin")
    stamp(13)
    if cfg.diag_pad or cfg.diag_amp:
        if cfg.diag_amp: a(f"s_sub_u32 s{S_T2}, s{S_ST}, s{S_EX}\ns_mul_i32 s{S_T2}, s{S_T2}, {cfg.diag_amp[1]}\ns_min_u32 s{S_T2}, s{S_T2}, 200000")
        else: a(f"s_mov_b32 s{S_T2}, {cfg.diag_pad}")
        a.label("L_pad")
        a(f"s_memrealtime s[{S_T0}:{S_T1}]\ns_waitcnt lgkmcnt(0)\ns_sub_u32 s{S_T0}, s{S_T0}, s{S_EX}\ns_cmp_lt_u32 s{S_T0}, s{S_T2}\ns_cbranch_scc1 L_pad")
    k.flush_stamps()
    a("s_endpgm")
    for o in k.ool: a(o)

Cfg.g2_nomfma = False; Cfg.g2_hot = False; Cfg.g2_noload = False; Cfg.hflag = 'sc1'; Cfg.seg7 = 4; Cfg.nearly = 6; Cfg.binit = 0; Cfg.cap = 16; Cfg.la = 5; Cfg.x_nohst = False; Cfg.spf = None; Cfg.spfw = True; Cfg.n0 = 8; Cfg.n1 = 3; Cfg.cap0 = 16; Cfg.capseg = 0; Cfg.ssmf = ''; Cfg.cap2 = 9; Cfg.nl = 13; Cfg.pk0 = True; Cfg.fsleep = 1; Cfg.dynsig = None; Cfg.urst = 0; Cfg.x_nop2 = False; Cfg.psleep = 0; Cfg.hsplit = True; Cfg.asigpos = 0; Cfg.apeek = 3; Cfg.bpeek = 8; Cfg.earlyrd = 8; Cfg.diag2 = None; Cfg.wsoff = 0; Cfg.lst = None; Cfg.hgroups = tuple(range(8)); Cfg.htouch = 1; Cfg.urfirst = False; Cfg.e0seg = 5; Cfg.mseg = 2; Cfg.nps = 2; Cfg.pdelay = 0; Cfg.upos = 0; Cfg.hold = (4,); Cfg.uwait = 3; Cfg.dseg = -1; Cfg.bgn = 1; Cfg.g1prio = 1; Cfg.n2 = 4; Cfg.x_noy = False; Cfg.x_noconv = False; Cfg.x_nogelu = False; Cfg.x_nog2 = False; Cfg.x_trim = False; Cfg.kvf = 'nt'; Cfg.hwhat = 'ws'; Cfg.hold0 = 0; Cfg.np = 3; Cfg.lah = 12; Cfg.ldt = (0, 2); Cfg.snake = True; Cfg.ucopy = True; Cfg.xlds = True; Cfg.uarr = 8; Cfg.uarr_d = 5; Cfg.w2x = False; Cfg.bq = 4; Cfg.rdnow = False; Cfg.coarse = False
HEADER = open("recurrent_scan__ssm_conv_h3__dense_activation_gelu__prompt.s.ref").read().split("; @launch")[0]
def full(cfg):
    kp = K(cfg); prologue(kp)
    km = K(cfg); km.role = 'm'; km.a.nlabel = 1000; gen_m(km)
    kx = K(cfg); kx.role = 'x'; gen_x(kx)
    errs = check(kp.a.lines + km.a.lines) + check(kp.a.lines + kx.a.lines)
    a = Asm()
    a.lines = kp.a.lines + km.a.lines[:km.split] + ["L_X:"] + kx.a.lines + km.a.lines[km.split:] + ["L_end:", "s_endpgm", "L_code_end:"]
    for e in errs: print(e, file=sys.stderr)
    assert not errs
    t = HEADER + f"; @launch grid=(256,1,1) block=(512,1,1) lds={LDS_BYTES}\n"
    t += f'.amdgcn_target "amdgcn-amd-amdhsa--gfx950"\n.text\n.globl {NAME}\n.p2align 8\n.type {NAME},@function\n'
    t += a.text()
    t += f'''.section .rodata,"a"
.p2align 6
.amdhsa_kernel {NAME}
  .amdhsa_next_free_vgpr 256
  .amdhsa_next_free_sgpr 102
  .amdhsa_accum_offset 256
  .amdhsa_group_segment_fixed_size 0
  .amdhsa_kernarg_size 112
  .amdhsa_user_sgpr_count 2
  .amdhsa_user_sgpr_kernarg_segment_ptr 1
  .amdhsa_system_sgpr_workgroup_id_x 1
  .amdhsa_float_denorm_mode_32 3
.end_amdhsa_kernel
'''
    return t
if __name__ == "__main__":
    cfg = Cfg()
    for kv in sys.argv[2:]:
        kk, val = kv.split("=", 1); assert hasattr(cfg, kk), kk; setattr(cfg, kk, eval(val))
    open(sys.argv[1], "w").write(full(cfg))
```

```python
import sys, struct
from asmlib import Asm, v, s, check

NAME = "recurrent_scan__ssm_conv_h3__dense_activation_gelu__prompt_kernel"
def f32(x): return "0x%08x" % struct.unpack("<I", struct.pack("<f", x))[0]

WS_CNT, WS_STATS, WS_STAMP, WS_UR, WS_Y, WS_H = 0, 0x20000, 0x40000, 0x100000, 0x300000, 0x500000
WS_SIZE = 0x500000 + 64*112*1024
CNT_UR, CNT_H, CNT_Y = 0, 128, 256
L_Q, L_W, L_KST = 0, 49152, 98304
L_VST = L_KST + 9*1024
L_CT = 115712; CH_STRIDE = 17600; H_STRIDE = 4224; U_OFF = 8448; U_STRIDE = 4576
L_MISC = L_CT + 2*CH_STRIDE
L_YST = L_MISC
L_CS = L_YST + 8192
L_SYNC = L_CS + 1024
L_TAP = L_SYNC + 64; L_B1 = L_TAP + 512; L_B2 = L_B1 + 256
L_GR = L_B2 + 128; L_ST = L_GR + 64
LDS_BYTES = L_ST + 1024
SPIN_MAX = 1 << 17

P_Q, P_K, P_V, P_SH, P_SSM, P_D, P_BX, P_W1, P_B1, P_W2, P_B2, P_OUT, P_DBG, P_WS = range(4, 32, 2)
S_WV, S_XCD, S_J, S_R, S_C, S_KC0, S_R2, S_C2, S_OFF, S_WAVE = range(32, 42)
S_A, S_B, S_T0, S_T1, S_T2, S_T3 = range(42, 48)
R_Q, R_K, R_V, R_W1, R_WS, R_DBG, R_W2, R_SSM, R_X0, R_OUT = range(48, 88, 4)
S_U0, S_U1, S_U2, S_U3, S_U4, S_U5, S_SPIN, S_PUB = range(88, 96)
S_EX = 96; S_ST = 100
S_ONE, S_PV = 3, 16
S_C16, S_CL = S_OFF, S_A

class Cfg:
    stamps = False
    kvpos = 2; g1stag = "xr"; g2map = 2; g2stag = "none"; ntq = ""; ntw2 = ""
    markseg = 0; ssmseg = 6; stseg = 6; urseg = 2; w2touch = 3
    urpos = -1
    hsigpos = 68
    xprio = 1
    code_pf = True
    diag_pad = 0; diag_amp = None; out_flags = "sc1"
    x_nomfma = False; x_nolds = False; x_nodma = False; segstamps = True

def srd(a, R, P, size):
    a(f"s_mov_b64 s[{R}:{R+1}], s[{P}:{P+1}]\ns_mov_b32 s{R+2}, {size}\ns_mov_b32 s{R+3}, 0x20000")

class K:
    def __init__(self, cfg): self.a = Asm(); self.cfg = cfg; self.ool = []; self.nls = 0
    def stamp(self, i):
        a, cfg = self.a, self.cfg
        if cfg.jitter:
            L = a.newlabel("Ljt"); D = a.newlabel("Ljd")
            a(f"s_memtime s[{S_ST}:{S_ST+1}]\ns_waitcnt lgkmcnt(0)\ns_mul_i32 s{S_ST}, s{S_ST}, 0x9E3779B1\ns_lshr_b32 s{S_ST+1}, s{S_ST}, {32-cfg.jitter[0]}\ns_cmp_lg_u32 s{S_ST+1}, 0\ns_cbranch_scc1 {D}")
            a(f"s_bfe_u32 s{S_ST}, s{S_ST}, {hex((cfg.jitter[1] << 16) | 10)}")
            a.label(L); a(f"s_sleep 4\ns_sub_u32 s{S_ST}, s{S_ST}, 1\ns_cbranch_scc0 {L}"); a.label(D); a.lg = []
        if cfg.diag2 and self.role == cfg.diag2[0] and i in cfg.diag2[1:3]:
            a(f"s_memrealtime s[{S_ST}:{S_ST+1}]\ns_waitcnt lgkmcnt(0)"); a.lg = []
            a(f"s_mov_b32 s{S_EX+1}, s{S_ST}" if i == cfg.diag2[1] else f"s_sub_u32 s{S_EX+1}, s{S_ST}, s{S_EX+1}")
        if cfg.diag_amp and cfg.diag_amp[0] == i:
            a(f"s_memrealtime s[{S_ST}:{S_ST+1}]\ns_waitcnt lgkmcnt(0)"); a.lg = []
        if cfg.stamps == "tail" and i != 0 and (self.role, i) not in (("x", 13), ("x", 14), ("m", 10), ("m", 12), ("m", 13)): return
        if cfg.stamps == "min" and i == 0:
            a("v_writelane_b32 v255, s86, 23"); return
        if cfg.stamps == "min" and not (i == 13 and self.role == "m"): return
        if cfg.stamps:
            a(f"s_memrealtime s[{S_ST}:{S_ST+1}]\ns_memtime s[{S_EX}:{S_EX+1}]\ns_waitcnt lgkmcnt(0)\nv_writelane_b32 v255, s{S_ST}, {i}\nv_writelane_b32 v255, s{S_EX}, {32+i}")
            if i == 0: a("v_writelane_b32 v255, s86, 23")
            a.lg = []
    LS = [52, 54, 56, 58, 60, 62, 68, 70, 72, 74, 76, 78]
    def lstamp(self, grp):
        if self.cfg.stamps and self.cfg.lst == grp:
            j = self.nls; self.nls += 1
            self.a(f"s_memtime s[{self.LS[j]}:{self.LS[j]+1}]")
    def flush_stamps(self):
        a = self.a; cfg = self.cfg
        if self.nls:
            a("s_waitcnt lgkmcnt(0)")
            for j in range(self.nls): a(f"v_writelane_b32 v255, s{self.LS[j]}, {(24+j) if j < 8 else (48+j)}")
        if cfg.diag2 and self.role == cfg.diag2[0]:
            a(f"s_mul_i32 s{S_T2}, s{S_EX+1}, {cfg.diag2[3]}\ns_add_u32 s{S_T2}, s{S_T2}, 2000\ns_min_u32 s{S_T2}, s{S_T2}, 200000")
            if cfg.diag2[4] is not None: a(f"s_lshl2_add_u32 s{S_T0}, s2, s{S_WV}\ns_cmp_eq_u32 s{S_T0}, {cfg.diag2[4]}\ns_cselect_b32 s{S_T2}, s{S_T2}, 0")
            a.label("L_pad2")
            a(f"s_memrealtime s[{S_T0}:{S_T1}]\ns_waitcnt lgkmcnt(0)\ns_sub_u32 s{S_T0}, s{S_T0}, s{S_EX}\ns_cmp_lt_u32 s{S_T0}, s{S_T2}\ns_cbranch_scc1 L_pad2")
        if self.cfg.stamps:
            a(f"s_lshl_b32 s{S_T0}, s2, 3\ns_add_u32 s{S_T0}, s{S_T0}, s{S_WAVE}\ns_lshl_b32 s{S_T0}, s{S_T0}, 8\ns_add_u32 s{S_T0}, s{S_T0}, {WS_STAMP}")
            a(f"v_lshlrev_b32 v254, 2, v0\ns_mov_b64 exec, 0x802000\nbuffer_store_dword v255, v254, s[{R_WS}:{R_WS+3}], s{S_T0} offen sc1" if self.cfg.stamps == "min" and not self.cfg.lst else f"v_lshlrev_b32 v254, 2, v0\nbuffer_store_dword v255, v254, s[{R_WS}:{R_WS+3}], s{S_T0} offen")
    def vpoll(self, vaddr, vdata, R, expect):
        a = self.a; L = a.newlabel("Lpoll"); D = a.newlabel("Lpolld")
        a(f"s_mov_b32 s{S_SPIN}, 0")
        a.label(L)
        a(f"buffer_load_dword v{vdata}, v{vaddr}, s[{R}:{R+3}], 0 offen sc1\ns_waitcnt vmcnt(0)")
        a(f"v_cmp_ne_u32 vcc, {expect}, v{vdata}")
        a(f"s_add_u32 s{S_SPIN}, s{S_SPIN}, 1\ns_cmp_gt_u32 s{S_SPIN}, {SPIN_MAX}\ns_cbranch_scc1 {D}\ns_cbranch_vccnz {L}")
        a.label(D)
    def spoll(self, off_sgpr, expect):
        a = self.a; L = a.newlabel("Lsp"); D = a.newlabel("Lspd")
        a(f"s_mov_b32 s{S_SPIN}, 0")
        a.label(L)
        a(f"s_load_dword s{S_PV}, s[{P_WS}:{P_WS+1}], s{off_sgpr} glc\ns_add_u32 s{S_SPIN}, s{S_SPIN}, 1\ns_waitcnt lgkmcnt(0)")
        a(f"s_cmp_eq_u32 s{S_PV}, {expect}\ns_cbranch_scc1 {D}")
        if self.cfg.psleep: a(f"s_sleep {self.cfg.psleep}")
        a(f"s_cmp_gt_u32 s{S_SPIN}, {SPIN_MAX}\ns_cbranch_scc0 {L}")
        a.label(D); a.lg = []
    def signal(self, cnt, inc=1): self.a(f"s_movk_i32 s{S_ONE}, {inc}\ns_atomic_add s{S_ONE}, s[{P_WS}:{P_WS+1}], s{cnt}")
    def lds_arrive(self, word, vtmp, vone):
        a = self.a
        a(f"v_mov_b32 v{vtmp}, {L_SYNC}\nv_mov_b32 v{vone}, 1\ns_mov_b64 exec, 1")
        a.lds(f"ds_add_u32 v{vtmp}, v{vone} offset:{4*word}")
        a("s_mov_b64 exec, -1")
    def lds_wait(self, word, vtmp, vone, setaddr=True, sleep=0):
        a = self.a; L = a.newlabel("Lsy"); D = a.newlabel("Lsyd")
        if setaddr: a(f"v_mov_b32 v{vtmp}, {L_SYNC}")
        a(f"s_mov_b32 s{S_SPIN}, 0")
        a.label(L)
        a(f"ds_read_b32 v{vone}, v{vtmp} offset:{4*word}\ns_add_u32 s{S_SPIN}, s{S_SPIN}, 1\ns_waitcnt lgkmcnt(0)")
        a(f"v_cmp_ne_u32 vcc, 4, v{vone}\ns_cmp_gt_u32 s{S_SPIN}, {SPIN_MAX*8}\ns_cbranch_scc1 {D}")
        if sleep: a(f"s_cbranch_vccz {D}\ns_sleep {sleep}\ns_branch {L}")
        else: a(f"s_cbranch_vccnz {L}")
        a.label(D); a.lg = []
    def lds_peek(self, word, vaddr, vdst, tag): self.a.lds(f"ds_read_b32 v{vdst}, v{vaddr} offset:{4*word}", tag)
    def lds_check(self, word, vaddr, vdst, tag):
        a = self.a; L = a.newlabel("Lck"); B = a.newlabel("Lckb"); S = a.newlabel("Lcks")
        a.wait(lg=tag)
        a(f"v_cmp_ne_u32 vcc, 4, v{vdst}\ns_mov_b32 s{S_SPIN}, 0\ns_cbranch_vccnz {L}"); a.label(B)
        self.ool.append(f"{L}:\nds_read_b32 v{vdst}, v{vaddr} offset:{4*word}\ns_add_u32 s{S_SPIN}, s{S_SPIN}, 1\ns_waitcnt lgkmcnt(0)\nv_cmp_ne_u32 vcc, 4, v{vdst}\n"
                        f"s_cmp_gt_u32 s{S_SPIN}, {SPIN_MAX*8}\ns_cbranch_scc1 {B}\ns_cbranch_vccnz {L}\ns_branch {B}")
    def speek(self, off): self.a(f"s_load_dword s{S_PV}, s[{P_WS}:{P_WS+1}], s{off} glc")
    def scheck(self, off, mask, expect):
        a = self.a; L = a.newlabel("Lsc"); B = a.newlabel("Lscb")
        m = f"s_and_b32 s{S_PV}, s{S_PV}, {mask}\n" if mask else ""
        a(f"s_mov_b32 s{S_SPIN}, 0\ns_waitcnt lgkmcnt(0)\n{m}s_cmp_lg_u32 s{S_PV}, {expect}\ns_cbranch_scc1 {L}"); a.label(B); a.lg = []
        self.ool.append(f"{L}:\ns_load_dword s{S_PV}, s[{P_WS}:{P_WS+1}], s{off} glc\ns_add_u32 s{S_SPIN}, s{S_SPIN}, 1\ns_cmp_gt_u32 s{S_SPIN}, {SPIN_MAX}\ns_waitcnt lgkmcnt(0)\ns_cbranch_scc1 {B}\n"
                        f"{m}s_cmp_lg_u32 s{S_PV}, {expect}\ns_cbranch_scc1 {L}\ns_branch {B}")
    def lds_sync(self, word, vtmp, vone):
        self.a.wait(lg="all"); self.lds_arrive(word, vtmp, vone); self.lds_wait(word, vtmp, vone, setaddr=False)

def prologue(k):
    a, cfg = k.a, k.cfg
    a.label(NAME)
    if cfg.stamps: a("s_memrealtime s[86:87]")
    a("s_cmp_ge_u32 s2, 256\ns_cbranch_scc1 L_end")
    a("s_load_dwordx16 s[4:19], s[0:1], 0\ns_load_dwordx8 s[20:27], s[0:1], 64\ns_load_dwordx4 s[28:31], s[0:1], 96")
    if cfg.code_pf:
        a(f"s_getpc_b64 s[{S_T0}:{S_T1}]")
        a.label("L_pc")
        a(f"s_lshr_b32 s{S_T2}, s2, 3\ns_lshl_b32 s{S_T2}, s{S_T2}, 10\nv_lshl_add_u32 v2, v0, 1, s{S_T2}\nv_min_u32 v2, L_code_end-L_pc-4, v2")
        a(f"v_mov_b32 v3, s{S_T1}\nv_add_co_u32 v2, vcc, s{S_T0}, v2\ns_mov_b64 exec, 1\ns_nop 0\nv_addc_co_u32 v3, vcc, 0, v3, vcc")
        a(f"global_load_dword v254, v[2:3], off\ns_mov_b64 exec, -1")
    if cfg.stamps: a("v_mov_b32 v255, 0")
    if cfg.diag_pad or cfg.diag_amp or cfg.diag2: a(f"s_memrealtime s[{S_EX}:{S_EX+1}]")
    a("v_lshrrev_b32 v1, 6, v0\nv_and_b32 v0, 63, v0")
    a(f"v_readfirstlane_b32 s{S_WAVE}, v1")
    a(f"s_and_b32 s{S_XCD}, s2, 7\ns_lshr_b32 s{S_J}, s2, 3")
    a(f"s_lshr_b32 s{S_T0}, s{S_XCD}, 1\ns_and_b32 s{S_T1}, s{S_XCD}, 1")
    a(f"s_and_b32 s{S_T2}, s{S_J}, 3\ns_lshr_b32 s{S_CL}, s{S_J}, 2")
    a(f"s_lshl2_add_u32 s{S_R}, s{S_T0}, s{S_T2}\ns_lshl3_add_u32 s{S_C16}, s{S_T1}, s{S_CL}\ns_sub_u32 s{S_C}, s{S_C16}, s{S_T1}\ns_min_u32 s{S_C}, s{S_C}, 13")
    if cfg.g1stag == "four":
        a(f"s_and_b32 s{S_T0}, s{S_T0}, 1")
        a(f"s_add_u32 s{S_KC0}, s{S_T2}, s{S_CL}\ns_and_b32 s{S_KC0}, s{S_KC0}, 3\ns_lshl1_add_u32 s{S_KC0}, s{S_KC0}, s{S_T0}")
    elif cfg.g1stag == "twox": a(f"s_add_u32 s{S_KC0}, s{S_T2}, s{S_CL}\ns_and_b32 s{S_KC0}, s{S_KC0}, 1\ns_lshl2_add_u32 s{S_KC0}, s{S_KC0}, s{S_T0}")
    elif cfg.g1stag == "two": a(f"s_add_u32 s{S_KC0}, s{S_T2}, s{S_CL}\ns_and_b32 s{S_KC0}, s{S_KC0}, 1\ns_lshl_b32 s{S_KC0}, s{S_KC0}, 2")
    elif cfg.g1stag == "xcd": a(f"s_mov_b32 s{S_KC0}, s{S_XCD}")
    elif cfg.g1stag == "xr": a(f"s_lshl_b32 s{S_KC0}, s{S_T0}, 1")
    else: a(f"s_mov_b32 s{S_KC0}, 0")
    a(f"s_lshl1_add_u32 s{S_T3}, s{S_T2}, s{S_CL}")
    if cfg.g2map == 3: a(f"s_xor_b32 s{S_C2}, s{S_CL}, 4\ns_lshl1_add_u32 s{S_R2}, s{S_R}, s{S_T1}")
    elif cfg.g2map == 4:
        a(f"s_and_b32 s{S_R2}, s{S_CL}, 1\ns_lshr_b32 s{S_C2}, s{S_CL}, 1\ns_xor_b32 s{S_T3}, s{S_R2}, 1\ns_cmp_lt_u32 s{S_CL}, 6\ns_cselect_b32 s{S_T3}, s{S_T1}, s{S_T3}\ns_cselect_b32 s{S_R2}, s{S_R2}, s{S_T1}")
        a(f"s_lshl2_add_u32 s{S_C2}, s{S_T3}, s{S_C2}\ns_lshl1_add_u32 s{S_R2}, s{S_R}, s{S_R2}")
    elif cfg.g2map == 1: a(f"s_and_b32 s{S_C2}, s{S_T3}, 7\ns_lshl1_add_u32 s{S_R2}, s{S_R}, s{S_T1}")
    else: a(f"s_and_b32 s{S_R2}, s{S_CL}, 1\ns_lshl1_add_u32 s{S_R2}, s{S_R}, s{S_R2}\ns_bfe_u32 s{S_C2}, s{S_T3}, 0x20001\ns_lshl2_add_u32 s{S_C2}, s{S_T1}, s{S_C2}")
    a(f"s_mov_b32 s{R_Q+2}, {2<<20}\ns_mov_b32 s{R_Q+3}, 0x20000")
    a(f"s_and_b32 s{S_WV}, s{S_WAVE}, 3\nv_lshlrev_b32 v1, 4, v0\ns_lshl_b32 s{S_B}, s{S_WV}, 11")
    a(f"v_lshrrev_b32 v10, 3, v0\nv_lshrrev_b32 v11, 4, v0\nv_and_b32 v12, 7, v0")
    a(f"s_cmp_ge_u32 s{S_WAVE}, 4\ns_cbranch_scc1 L_X")

def gen_x(k):
    a, cfg, stamp = k.a, k.cfg, k.stamp
    x = S_WV
    a.cap = cfg.cap
    V16, W2A, W2B, TR, HA, TRH = 1, 2, 3, 4, 8, 138
    T0, T1, T2, T3 = 10, 11, 12, 13
    VQ, VW, VKA, VKB, VHALO, VTA, PK, PH, PV, PST, VMK, VMD = 14, 18, 22, 23, 24, 25, 26, 27, 28, 29, 30, 31
    TAPS, JUNK = 108, 112
    ACC2, AR, WB = 14, 78, 142
    a(f"v_xor_b32 v{T3}, v{T2}, v{T1}\nv_lshlrev_b32 v{T3}, 4, v{T3}\nv_lshl_add_u32 v{VQ}, v{T0}, 10, v{T3}")
    a(f"s_lshl2_add_u32 s{S_T0}, s{S_R}, s{x}\ns_lshl_b32 s{S_T0}, s{S_T0}, 15\ns_movk_i32 s{S_T2}, {8192-1024}\ns_lshl_b32 s{S_T3}, s{S_T2}, 1")
    a(f"v_add_u32 v{VQ}, s{S_T0}, v{VQ}")
    a(f"v_xor_b32 v{VQ+1}, 64, v{VQ}\nv_add_u32 v{VQ+2}, s{S_T3}, v{VQ}\nv_add_u32 v{VQ+1}, s{S_T2}, v{VQ+1}\nv_add_u32 v{VQ+3}, s{S_T3}, v{VQ+1}")
    d = 4*3584 - 1024
    a(f"v_lshlrev_b32 v{T3}, 5, v{T1}\nv_xor_b32 v{T3}, v{T3}, v{V16}\nv_and_b32 v{T3}, 0xff, v{T3}\nv_xor_b32 v{VW+2}, 0x80, v{T3}")
    a(f"s_lshl_b32 s{S_U1}, s{S_C}, 8\ns_mul_i32 s{S_T1}, s{x}, {16*3584}\ns_add_u32 s{S_T0}, s{S_U1}, s{S_T1}")
    a(f"s_movk_i32 s{S_T1}, 3584\ns_movk_i32 s{S_T2}, {d}\ns_lshl1_add_u32 s{S_T3}, s{S_T2}, s{S_T0}")
    a(f"v_mad_u32_u24 v{VW}, v{T1}, s{S_T1}, v{T3}\nv_mad_u32_u24 v{VW+2}, v{T1}, s{S_T1}, v{VW+2}")
    a(f"v_add_u32 v{VW}, s{S_T0}, v{VW}\nv_add_u32 v{VW+2}, s{S_T3}, v{VW+2}\nv_add_u32 v{VW+1}, s{S_T2}, v{VW}\nv_add_u32 v{VW+3}, s{S_T2}, v{VW+2}")
    a(f"s_lshl_b32 s{S_U1}, s{x}, 12\ns_mov_b32 s{R_W1+2}, {512*3584}\ns_mov_b32 s{R_W1+3}, s{R_Q+3}")
    a("s_waitcnt lgkmcnt(0)")
    a(f"s_mov_b64 s[{R_Q}:{R_Q+1}], s[{P_Q}:{P_Q+1}]\ns_mov_b64 s[{R_W1}:{R_W1+1}], s[{P_W1}:{P_W1+1}]")
    if cfg.wsoff: a(f"s_add_u32 s{P_WS}, s{P_WS}, {cfg.wsoff}\ns_addc_u32 s{P_WS+1}, s{P_WS+1}, 0")
    def chunk_ops(i):
        slot = i % 3
        def mk(kind, n):
            def f():
                if n == 0:
                    if kind == "q":
                        a(f"s_add_u32 s{S_T0}, s{S_KC0}, {i}\ns_and_b32 s{S_T0}, s{S_T0}, 7\ns_lshl_b32 s{S_U3}, s{S_T0}, 7\ns_mul_i32 s{S_U4}, s{S_T0}, {64*3584}")
                    a(f"s_add_u32 m0, s{S_U1}, {(L_Q if kind=='q' else L_W) + slot*16384}\ns_nop 0")
                off = f" offset:{1024*n}" if n else ""
                if kind == "q": a.vmem(f"buffer_load_dwordx4 v{VQ+n}, s[{R_Q}:{R_Q+3}], s{S_U3} offen{off} {cfg.ntq} lds", f"c{i}")
                else: a.vmem(f"buffer_load_dwordx4 v{VW+n}, s[{R_W1}:{R_W1+3}], s{S_U4} offen{off} {cfg.ntq} lds", f"c{i}")
            return f
        return [mk("q", n) for n in range(4)] + [mk("w", n) for n in range(4)]
    def setup_rest():
        stamp(0)
        a(f"v_mov_b32 v{T1}, v{T2}")
        srd(a, R_WS, P_WS, WS_SIZE); srd(a, R_DBG, P_DBG, 256); srd(a, R_W2, P_W2, 1792*1024); srd(a, R_SSM, P_SSM, 2 << 20)
        a(f"s_lshl_b32 s{S_T0}, s{S_XCD}, 6\ns_lshl1_add_u32 s{S_T0}, s{S_J}, s{S_T0}\ns_lshr_b32 s{S_T1}, s{x}, 1\ns_add_u32 s{S_U5}, s{S_T0}, s{S_T1}")
        a(f"s_mul_i32 s{S_T1}, s{S_T1}, {CH_STRIDE}\ns_and_b32 s{S_T2}, s{x}, 1")
        a(f"s_lshl_b32 s{S_T3}, s{S_T2}, 11\ns_add_u32 s{S_H1}, s{S_T1}, s{S_T3}\ns_add_u32 s{S_H1}, s{S_H1}, {L_CT+H_STRIDE+128}")
        a(f"s_mul_i32 s{S_T3}, s{S_T2}, {H_STRIDE}\ns_add_u32 s{S_T3}, s{S_T3}, s{S_T1}\ns_add_u32 s{S_T3}, s{S_T3}, {L_CT+128-512}")
        a(f"s_mul_i32 s{S_T0}, s{S_T2}, {U_STRIDE}\ns_add_u32 s{S_T0}, s{S_T0}, s{S_T1}\ns_add_u32 s{S_T0}, s{S_T0}, {L_CT+U_OFF+4096}")
        Z = JUNK
        a(f"v_mov_b32 v{T2}, s{S_T0}\nv_mov_b32 v{T3}, s{S_T3}\nv_cmp_gt_u32 vcc, 56, v0")
        for i in range(4): a(f"v_mov_b32 v{Z+i}, 0")
        a(f"v_cndmask_b32 v{T3}, v{T3}, v{T2}, vcc\nv_lshl_add_u32 v{T3}, v0, 3, v{T3}\nv_subrev_u32 v{T2}, 4, v{T2}")
        a.lds(f"ds_write_b64 v{T3}, v[{Z}:{Z+1}]")
        a.lds(f"ds_write_b32 v{T2}, v{Z}")
        a(f"v_lshlrev_b32 v{VMK}, 2, v{T1}")
        a(f"v_and_b32 v{T2}, 6, v{T0}\nv_xor_b32 v{T2}, v{T2}, v{T1}\nv_lshlrev_b32 v{T2}, 4, v{T2}\nv_lshl_add_u32 v{W2A}, v{T0}, 10, v{T2}")
        a(f"s_mul_i32 s{S_T0}, s{x}, {448*1024}\ns_lshl_b32 s{S_T1}, s{S_C2}, 7\ns_add_u32 s{S_T0}, s{S_T0}, s{S_T1}")
        a(f"v_add_u32 v{W2A}, s{S_T0}, v{W2A}\nv_add_u32 v{W2B}, {8192-1024}, v{W2A}")
        a(f"v_lshrrev_b32 v{T3}, 2, v0\nv_lshlrev_b32 v{T3}, 7, v{T3}\nv_and_b32 v{T2}, 3, v{T0}\nv_lshl_add_u32 v{T3}, v{T2}, 5, v{T3}\nv_and_b32 v{T2}, 3, v0\nv_lshl_add_u32 v{T3}, v{T2}, 3, v{T3}")
        a(f"v_add_u32 v{TR}, s{S_B}, v{T3}\nv_xor_b32 v{TR+1}, 32, v{TR}\nv_xor_b32 v{TR+2}, 64, v{TR}\nv_xor_b32 v{TR+3}, 0x60, v{TR}")
        for dt in range(4): a(f"v_add_u32 v{TRH+dt}, 65536, v{TR+dt}")
        a(f"s_mul_i32 s{S_T0}, s{S_R2}, {224*1024}\ns_mul_i32 s{S_T1}, s{x}, {56*1024}\ns_add_u32 s{S_T0}, s{S_T0}, s{S_T1}\ns_add_u32 s{S_T0}, s{S_T0}, {WS_H}")
        a(f"v_add_u32 v{HA}, s{S_T0}, v{V16}")
        a(f"s_lshr_b32 s{S_T0}, s{S_J}, 3\ns_lshl2_add_u32 s{S_T0}, s{S_XCD}, s{S_T0}\ns_lshl2_add_u32 s{S_T0}, s{S_T0}, s{x}\ns_lshl_b32 s{S_PUB}, s{S_T0}, 8")
        a(f"s_lshl_b32 s{S_T0}, s{S_U5}, 12\ns_and_b32 s{S_T1}, s{x}, 1\ns_lshl_b32 s{S_T1}, s{S_T1}, 11\ns_add_u32 s{S_U2}, s{S_T0}, s{S_T1}")
        a(f"v_xor_b32 v{T3}, 7, v{T1}\nv_lshlrev_b32 v{T3}, 4, v{T3}\nv_lshl_add_u32 v{PST}, v{T0}, 13, v{T3}")
        a(f"s_lshl2_add_u32 s{S_T2}, s{S_XCD}, s{x}\ns_lshr_b32 s{S_T1}, s{S_J}, 3\ns_lshl2_add_u32 s{S_T0}, s{S_T2}, s{S_T1}\ns_lshl_b32 s{S_US}, s{S_T0}, 8")
        a(f"s_lshl_b32 s{S_T2}, s{S_T2}, 16\ns_lshl_b32 s{S_T3}, s{S_J}, 7\ns_sub_u32 s{S_T2}, s{S_T2}, s{S_T3}\ns_add_u32 s{S_UA}, s{S_T2}, {WS_UR + 2*1984}\ns_add_u32 s{S_UA+1}, s{S_UA}, 4096")
        srd(a, R_K, P_K, 2 << 20); srd(a, R_V, P_V, 2 << 20)
        a(f"s_lshl_b32 s{S_T0}, s{x}, 1\nv_xor_b32 v{T3}, s{S_T0}, v{T1}\nv_lshlrev_b32 v{T3}, 4, v{T3}\nv_lshl_add_u32 v{VKA}, v{T0}, 10, v{T3}")
        a(f"v_xor_b32 v{VKB}, 16, v{VKA}\nv_add_u32 v{VKB}, {8192-1024}, v{VKB}")
        a(f"s_lshl2_add_u32 s{S_KV}, s{S_J}, s{x}\ns_lshl_b32 s{S_KV}, s{S_KV}, 7\ns_add_u32 s{S_KV}, s{S_KV}, s{S_XCD}\ns_lshl_b32 s{S_KV}, s{S_KV}, 7")
        a(f"v_lshrrev_b32 v{PV}, 5, v0\nv_add_u32 v{PV}, s{S_T0}, v{PV}")
        a(f"v_bfe_u32 v{T2}, v0, 3, 2\nv_lshlrev_b32 v{T2}, 2, v{T2}\nv_lshl_add_u32 v{T2}, v{T1}, 10, v{T2}")
        a(f"v_add_u32 v{T3}, 7, v{T1}\nv_and_b32 v{T3}, 7, v{T3}\nv_xor_b32 v{T3}, v{PV}, v{T3}\nv_lshl_add_u32 v{PH}, v{T3}, 4, v{T2}\nv_add_u32 v{PH}, {L_KST}, v{PH}")
        a(f"v_xor_b32 v{T3}, v{PV}, v{T1}\nv_lshl_add_u32 v{PK}, v{T3}, 4, v{T2}")
        a(f"v_add_u32 v{PV}, {L_VST}, v{PK}\nv_add_u32 v{PK}, {L_KST+1024}, v{PK}")
        a(f"s_lshl_b32 s{S_T0}, s{x}, 7\ns_add_u32 s{S_T0}, s{S_T0}, {L_TAP}\nv_lshl_add_u32 v{VTA}, v{T0}, 4, s{S_T0}\nv_add_u32 v{VGR}, {L_GR}, v{V16}\nv_mov_b32 v{VHI}, 0xffff0000")
        a(f"s_lshl_b32 s{S_SB}, s{S_R}, 10\ns_add_u32 s{S_SB}, s{S_SB}, {WS_STATS}")
        a.wait(lg="all")
    S_US, S_UA, S_SB, S_KV = 98, 0, 99, S_U0
    VGR, VHI, GD = 116, 117, 120
    def kv_loads():
        a(f"s_add_u32 m0, s{S_B}, {L_KST+1024}\ns_nop 0")
        a.vmem(f"buffer_load_dwordx4 v{VKA}, s[{R_K}:{R_K+3}], s{S_KV} offen {cfg.kvf} lds", "kv")
        a.vmem(f"buffer_load_dwordx4 v{VKB}, s[{R_K}:{R_K+3}], s{S_KV} offen offset:1024 {cfg.kvf} lds", "kv")
        L = a.newlabel("Lhalo"); D = a.newlabel("Lsmd")
        a(f"s_cmp_eq_u32 s{x}, 3\ns_cbranch_scc1 {L}")
        a(f"s_lshl_b32 s{S_T0}, s{S_XCD}, 9\ns_lshl_b32 s{S_T1}, s{S_C}, 8\ns_cmp_eq_u32 s{x}, 0\ns_cselect_b64 s[{S_T2}:{S_T3}], s[{P_SH}:{P_SH+1}], s[{P_B1}:{P_B1+1}]\ns_cselect_b32 s{S_T0}, s{S_T0}, s{S_T1}")
        a(f"s_lshl_b32 s{S_T1}, s{S_C2}, 7\ns_cmp_eq_u32 s{x}, 2\ns_cselect_b64 s[{S_T2}:{S_T3}], s[{P_B2}:{P_B2+1}], s[{S_T2}:{S_T3}]\ns_cselect_b32 s{S_T0}, s{S_T1}, s{S_T0}")
        a(f"v_add_u32 v{VHALO}, s{S_T0}, v{V16}\ns_lshr_b32 s{S_T0}, 32, s{x}\ns_lshl_b32 s{S_T1}, s{S_T0}, 5\ns_sub_u32 m0, {L_TAP+1024}, s{S_T1}\ns_bfm_b64 exec, s{S_T0}, 0")
        a(f"global_load_lds_dwordx4 v{VHALO}, s[{S_T2}:{S_T3}]\ns_branch {D}")
        a.label(L)
        a(f"s_sub_u32 s{S_T0}, s{S_KV}, {56*1024}\ns_cselect_b32 s{S_T0}, 0, s{S_T0}\ns_cselect_b32 s{S_T1}, 0x80000010, 16")
        a(f"v_xor_b32 v{VHALO}, s{S_T1}, v{VKA}\ns_mov_b32 m0, {L_KST}\ns_lshl_b64 exec, -1, 40")
        a(f"buffer_load_dwordx4 v{VHALO}, s[{R_K}:{R_K+3}], s{S_T0} offen {cfg.kvf} lds")
        a.label(D)
        a.vm.append("kv")
        a(f"s_add_u32 m0, s{S_B}, {L_VST}\ns_mov_b64 exec, -1")
        a.vmem(f"buffer_load_dwordx4 v{VKA}, s[{R_V}:{R_V+3}], s{S_KV} offen {cfg.kvf} lds", "kv")
        a.vmem(f"buffer_load_dwordx4 v{VKB}, s[{R_V}:{R_V+3}], s{S_KV} offen offset:1024 {cfg.kvf} lds", "kv")
    KR, VR, KF, TF, VF, OUT, PA = 32, 44, 56, 80, 88, 92, 100
    prep = []; P = prep.append
    P(("lds", f"ds_read_b128 v[{TAPS}:{TAPS+3}], v{VTA}"))
    P(("lds", f"ds_read_b32 v{KR+1}, v{PH} offset:{5*128}"))
    P(("lds", f"ds_read2_b32 v[{KR+2}:{KR+3}], v{PH} offset0:{6*32} offset1:{7*32}"))
    for i in range(4): P(("lds", f"ds_read2_b32 v[{KR+4+2*i}:{KR+5+2*i}], v{PK} offset0:{64*i} offset1:{64*i+32}"))
    for i in range(4): P(("lds", f"ds_read2_b32 v[{VR+2*i}:{VR+1+2*i}], v{PV} offset0:{64*i} offset1:{64*i+32}"))
    nrd = len(prep)
    P(("waitlg",))
    for m in range(4):
        P(("v", f"v_lshlrev_b32 v{TF+2*m}, 16, v{TAPS+m}")); P(("v", f"v_and_b32 v{TF+2*m+1}, v{VHI}, v{TAPS+m}"))
    for e in range(2):
        for i in range(1, 12): P(("v", f"v_lshlrev_b32 v{KF+i}, 16, v{KR+i}" if e == 0 else f"v_and_b32 v{KF+i}, v{VHI}, v{KR+i}"))
        for t in range(8): P(("v", f"v_mul_f32 v{PA+t}, v{KF+1+t}, v{TF+4*e+3}"))
        for tau in (2, 1, 0):
            for t in range(8): P(("v", f"v_fmac_f32 v{PA+t}, v{KF+4+t-tau}, v{TF+4*e+tau}"))
        for t in range(8):
            P(("v", f"v_lshlrev_b32 v{VF+(t&1)}, 16, v{VR+t}" if e == 0 else f"v_and_b32 v{VF+(t&1)}, v{VHI}, v{VR+t}"))
            P(("v", f"v_mul_f32 v{PA+t}, v{PA+t}, v{VF+(t&1)}"))
        for m in range(4): P(("v", f"v_cvt_pk_bf16_f32 v{OUT+4*e+m}, v{PA+7-2*m}, v{PA+6-2*m}"))
        P(("st", e))
    def emit(op):
        if op[0] == "lds": a.lds(op[1], "pr")
        elif op[0] == "v": a(op[1])
        elif op[0] == "waitlg": a.wait(lg="pr")
        else: a.vmem(f"buffer_store_dwordx4 v[{OUT+4*op[1]}:{OUT+4*op[1]+3}], v{PST}, s[{R_WS}:{R_WS+3}], s{S_UA+op[1]} offen sc1", "ur")
    def g_read(): a("s_mov_b64 exec, 15"); a.lds(f"ds_read_b128 v[{GD}:{GD+3}], v{VGR}", "ud"); a("s_mov_b64 exec, -1")
    def publish():
        L = a.newlabel("Lpb")
        a.wait(lg="ud")
        a(f"s_cmp_lg_u32 s{x}, 0\ns_cbranch_scc1 {L}\ns_lshl_b32 s{S_T0}, s{S_C16}, 6\ns_add_u32 s{S_T0}, s{S_T0}, s{S_SB}\ns_mov_b64 exec, 15")
        a(f"buffer_store_dwordx4 v[{GD}:{GD+3}], v{V16}, s[{R_WS}:{R_WS+3}], s{S_T0} offen sc1\ns_mov_b64 exec, -1")
        a.label(L)
    def stats_dma():
        L = a.newlabel("Lsd")
        a(f"s_cmp_lg_u32 s{x}, 1\ns_cbranch_scc1 {L}\ns_mov_b32 m0, {L_ST}\ns_nop 0")
        a(f"buffer_load_dwordx4 v{V16}, s[{R_WS}:{R_WS+3}], s{S_SB} offen sc1 lds")
        a.label(L)
    S_H1 = 17; S_PW, S_PS = R_K, R_K + 2; S_HO = R_V
    a(f"s_cmp_eq_u32 s{S_CL}, 7\ns_cbranch_scc1 L_Xs")
    a.cap = cfg.cap0
    c1 = chunk_ops(1)
    for f in chunk_ops(0) + c1[:cfg.n1]: f()
    a.label("L_Xs")
    setup_rest()
    def ssm_loads():
        a(f"s_mov_b32 m0, s{S_H1}\ns_lshl_b32 s{S_T0}, s{S_U5}, 12")
        a.vmem(f"buffer_load_dwordx4 v{V16}, s[{R_SSM}:{R_SSM+3}], s{S_U2} offen {cfg.ssmf} lds", "h")
        a.vmem(f"buffer_load_dwordx4 v{V16}, s[{R_SSM}:{R_SSM+3}], s{S_U2} offen offset:1024 {cfg.ssmf} lds", "h")
        a(f"s_add_u32 s{S_T0}, s{S_T0}, 2044\ns_load_dword s{S_U0}, s[{P_SSM}:{P_SSM+1}], s{S_T0}")
    SG = [4*m + n for m in range(7) for n in (0, 1)] + [4*m + n for m in range(7) for n in (2, 3)]
    def w2_dma(i):
        ii = i % 14
        a(f"s_add_u32 m0, s{S_B}, {ii*8192}\ns_mov_b32 s{S_T0}, {SG[i]*16384}")
        a.vmem(f"buffer_load_dwordx4 v{W2A}, s[{R_W2}:{R_W2+3}], s{S_T0} offen {cfg.ntw2} lds", f"w{i}")
        a.vmem(f"buffer_load_dwordx4 v{W2B}, s[{R_W2}:{R_W2+3}], s{S_T0} offen offset:1024 {cfg.ntw2} lds", f"w{i}")
    def ustage():
        L = a.newlabel("Lurok")
        a(f"s_cmp_eq_u32 s{S_PV}, 8\ns_cbranch_scc1 {L}")
        keep = list(a.lg); k.spoll(S_PUB, 8); a.lg = keep
        a.label(L)
        stamp(11)
        L = a.newlabel("Lhs")
        a(f"s_cmp_lg_u32 s{S_CL}, 7\ns_cbranch_scc1 {L}"); stats_dma(); a.label(L)
        a(f"s_xor_b32 s{S_T1}, s{x}, 3\ns_lshl_b32 s{S_T1}, s{S_T1}, 10\ns_and_b32 s{S_T0}, s{S_U5}, 0xfffffffe\ns_lshl_b32 s{S_T0}, s{S_T0}, 12\ns_add_u32 s{S_T0}, s{S_T0}, s{S_T1}\ns_add_u32 s{S_T0}, s{S_T0}, {WS_UR}")
        for ch in range(2):
            for cp in range(1 if cfg.ucopy else 2):
                a(f"s_add_u32 m0, s{S_T1}, {L_CT + ch*CH_STRIDE + U_OFF + cp*(U_STRIDE-4)}")
                a(f"s_add_u32 s{S_T0}, s{S_T0}, 4096" if (ch == 1 and cp == 0) else "s_nop 0")
                a.vmem(f"buffer_load_dwordx4 v{V16}, s[{R_WS}:{R_WS+3}], s{S_T0} offen sc1 lds", "u")
        if cfg.ucopy:
            a(f"s_add_u32 s{S_T1}, s{S_T1}, {L_CT + U_OFF}\nv_add_u32 v{UA}, s{S_T1}, v{V16}\nv_add_u32 v{UA+1}, {U_STRIDE-4}, v{UA}\nv_add_u32 v{UA+2}, {CH_STRIDE}, v{UA+1}")
    UA, UD = 60, 64
    def ucopy_reads():
        a.wait(vm="u")
        for ch in range(2): a.lds(f"ds_read_b128 v[{UD+4*ch}:{UD+4*ch+3}], v{UA} offset:{ch*CH_STRIDE}", "uc")
    def ucopy_writes():
        a.wait(lg="uc")
        for ch in range(2):
            for q in range(2): a.lds(f"ds_write2_b32 v{UA+1+ch}, v{UD+4*ch+2*q}, v{UD+4*ch+2*q+1} offset0:{2*q} offset1:{2*q+1}")
    MK = R_X0
    early = [12, 13, 4, 5, 10, 11]; late = [0, 1, 6, 7, 2, 3, 8, 9]
    def mark_load():
        L = a.newlabel("Lmk")
        a(f"s_cmp_lg_u32 s{x}, 0\ns_cbranch_scc1 {L}\ns_load_dwordx8 s[{MK}:{MK+7}], s[{P_DBG}:{P_DBG+1}], 0")
        a.label(L)
    def mark_check():
        L = a.newlabel("Lmk")
        a(f"s_cmp_lg_u32 s{x}, 0\ns_cbranch_scc1 {L}\ns_waitcnt lgkmcnt(0)")
        a(f"s_and_b64 s[{MK}:{MK+1}], s[{MK}:{MK+1}], s[{MK+2}:{MK+3}]\ns_and_b64 s[{MK+4}:{MK+5}], s[{MK+4}:{MK+5}], s[{MK+6}:{MK+7}]\ns_and_b64 s[{MK}:{MK+1}], s[{MK}:{MK+1}], s[{MK+4}:{MK+5}]\ns_and_b32 s{MK}, s{MK}, s{MK+1}")
        a(f"s_cbranch_scc1 {L}")
        k.vpoll(VMK, VMD, R_DBG, 1)
        a.label(L)
    a(f"s_cmp_eq_u32 s{S_CL}, 7\ns_cbranch_scc1 L_Xh")
    hn0 = len(a.lines); a.label("L_Xh")
    keep = list(a.vm); a.vm = []; a.cap = None
    ntouch = 2*len(cfg.hwhat)
    def touches():
        a(f"s_and_b32 s{S_T0}, s2, 31\ns_lshl2_add_u32 s{S_T0}, s{S_T0}, s{x}\ns_mul_i32 s{S_T0}, s{S_T0}, {112*128}\ns_add_u32 s{S_T1}, s{S_T0}, {56*128}")
        a(f"v_lshlrev_b32 v{T2}, 7, v0\ns_bfm_b64 exec, 56, 0")
        if "w" in cfg.hwhat: a(f"buffer_load_dword v{JUNK}, v{T2}, s[{R_W2}:{R_W2+3}], s{S_T0} offen\nbuffer_load_dword v{JUNK}, v{T2}, s[{R_W2}:{R_W2+3}], s{S_T1} offen")
        a("s_mov_b64 exec, -1")
        a(f"s_and_b32 s{S_T0}, s{S_J}, 3\ns_lshl2_add_u32 s{S_T0}, s{S_XCD}, s{S_T0}\ns_lshl2_add_u32 s{S_T0}, s{S_T0}, s{x}\ns_lshl_b32 s{S_T0}, s{S_T0}, 14\ns_add_u32 s{S_T1}, s{S_T0}, 8192")
        if "s" in cfg.hwhat: a(f"buffer_load_dword v{JUNK}, v{T2}, s[{R_SSM}:{R_SSM+3}], s{S_T0} offen nt\nbuffer_load_dword v{JUNK}, v{T2}, s[{R_SSM}:{R_SSM+3}], s{S_T1} offen nt")
    kv_loads()
    if cfg.htouch == 0: touches(); a(f"s_waitcnt vmcnt({ntouch})"); a.vm = []
    else: a.wait(vm="all")
    a("s_barrier")
    g_read()
    for op in prep: emit(op)
    mark_load(); mark_check()
    a("s_barrier")
    publish()
    if cfg.htouch == 1: touches()
    a(f"s_waitcnt vmcnt({ntouch})" if cfg.htouch == 1 else "s_waitcnt vmcnt(0)"); a.vm = []
    k.signal(S_US)
    if cfg.htouch == 2: touches()
    if cfg.e0seg <= cfg.ssmseg:
        for q in early[:2]: w2_dma(q)
        ssm_loads()
        for q in early[2:cfg.nearly]: w2_dma(q)
    else:
        ssm_loads()
        for q in early[:cfg.nearly]: w2_dma(q)
    if cfg.upos < cfg.upk: k.speek(S_PUB)
    hv = list(a.vm)
    a("s_branch L_Xj")
    k.ool.append("\n".join(a.lines[hn0:])); del a.lines[hn0:]; a.lg = []
    a.vm = keep; a.cap = cfg.cap0
    if cfg.kvpos == 1:
        assert cfg.n1 in (0, 4); kv_loads()
    for f in c1[cfg.n1:8-cfg.hold0]: f()
    stamp(1)
    if cfg.g1prio: a(f"s_setprio {cfg.g1prio}")
    a.wait(vm="c0"); stamp(16); a("s_barrier")
    a.cap = cfg.cap
    sig = [False]; stored = [False]
    def trysig():
        if stored[0] and not sig[0] and "ur" not in a.vm: k.signal(S_US); sig[0] = True
    body = prep[nrd:]; per_seg = -(-len(body) // cfg.nps)
    p0 = cfg.kvpos + cfg.pdelay; carry = c1[8-cfg.hold0:]
    for i in range(7):
        if cfg.segstamps or i == 0: stamp(2 + i)
        if i == 0: g_read()
        if i == cfg.mseg - cfg.mlead: a.wait(lg="all"); mark_load()
        if i == cfg.mseg + 1: publish()
        dm = carry
        if i == cfg.stseg:
            if i == 6: assert not carry and a.vm[-1] is not None; lastbefore = len(a.vm); a.vm[-1] = "c7"
            dm.append(stats_dma)
        if i + 2 == cfg.kvpos: dm.append(kv_loads)
        if i + 2 <= 7: dm += chunk_ops(i + 2)
        if i == cfg.e0seg: dm += [(lambda q=q: w2_dma(q)) for q in early[:2]]
        if i == cfg.ssmseg: dm.append(ssm_loads)
        if i == 6: dm += [(lambda q=q: w2_dma(q)) for q in early[2 if cfg.e0seg < 6 else 0:cfg.nearly]]
        hold = cfg.hold[i] if i < len(cfg.hold) else 0
        dm, carry = dm[:len(dm)-hold], dm[len(dm)-hold:]
        fl = []
        if i == cfg.kvpos: fl += prep[:nrd]
        if p0 <= i < p0 + cfg.nps: fl += body[(i-p0)*per_seg:(i-p0+1)*per_seg]
        per = -(-len(fl) // len(dm))
        for nf, f in enumerate(dm):
            if (i, nf) == cfg.usig: a.wait(vm="ur"); trysig()
            f(); trysig()
            for op in fl[:per]: emit(op)
            fl = fl[per:]
        if i == p0 + cfg.nps - 1: stored[0] = True
        if i == cfg.kvpos: a.wait(lg="pr")
        if i == cfg.mseg: mark_check()
        if i == 6 and cfg.upos < cfg.upk: k.speek(S_PUB)
        a.wait(vm=f"c{i+1}"); trysig()
        a("s_barrier")
    if cfg.g1prio: a("s_setprio 0")
    if not sig[0]: a.wait(vm="ur"); trysig()
    assert cfg.stseg <= 6 and cfg.stseg > cfg.mseg and p0 + cfg.nps - 1 > cfg.mseg and cfg.e0seg > cfg.kvpos and cfg.ssmseg >= cfg.kvpos - 1
    assert a.vm == hv[len(hv)-len(a.vm):], (a.vm, hv)
    a.vm = hv
    a.label("L_Xj")
    if cfg.segstamps: stamp(9)
    a.cap = cfg.cap2
    pos = [0]
    def upoint():
        if pos[0] == cfg.upos - cfg.upk: k.speek(S_PUB)
        if pos[0] == cfg.upos: a("s_waitcnt lgkmcnt(0)"); a.lg = []; ustage()
        pos[0] += 1
    for q in early[cfg.nearly:] + late[:4]: upoint(); w2_dma(q)
    k.lds_wait(4, T0, T1)
    if cfg.xprio: a(f"s_setprio {cfg.xprio}")
    stamp(10)
    def trs(ii, tag):
        return [(f"ds_read_b64_tr_b16 v[{WB+16*(ii>>1)+4*dt+2*(ii&1)}:{WB+16*(ii>>1)+4*dt+2*(ii&1)+1}], v{(TR, TRH)[ii>>3]+dt} offset:{(ii&7)*8192}", tag) for dt in range(4)]
    HD = 40
    def shift_reads():
        a(f"v_add_u32 v{T0}, s{S_H1}, v{V16}\nv_subrev_u32 v{T1}, 4, v{T0}\nv_subrev_u32 v{T2}, {H_STRIDE}, v{T0}")
        a(f"s_bitcmp1_b32 s{x}, 0\ns_cselect_b32 s{S_U0}, s{S_U0}, 0")
        a.wait(vm="h")
        for n in range(2):
            a.lds(f"ds_read_b128 v[{HD+8*n}:{HD+8*n+3}], v{T0} offset:{1024*n}", "sh")
            a.lds(f"ds_read_b32 v{HD+8*n+4}, v{T1} offset:{1024*n}", "sh")
    def shift_writes():
        a.wait(lg="sh")
        a(f"v_writelane_b32 v{HD+4}, s{S_U0}, 0")
        for n in range(2):
            b = HD + 8*n
            a(f"v_alignbit_b32 v{b+3}, v{b+3}, v{b+2}, 16\nv_alignbit_b32 v{b+2}, v{b+2}, v{b+1}, 16\nv_alignbit_b32 v{b+1}, v{b+1}, v{b}, 16\nv_alignbit_b32 v{b}, v{b}, v{b+4}, 16")
            a.lds(f"ds_write_b128 v{T2}, v[{b}:{b+3}] offset:{1024*n}")
    order = early + late
    seq = late[4:] + [14 + q for q in order]
    filled = 0
    def fill(force=None):
        nonlocal filled
        n = 0
        while filled < 14 and ((n < 2 and f"w{order[filled]}" not in a.vm and order[filled] in issued) or (force is not None and filled <= force)):
            a.wait(vm=f"w{order[filled]}")
            for ins, tag in trs(order[filled], f"f{order[filled]}"): a.lds(ins, tag)
            filled += 1; n += 1
    issued = set(early + late[:4])
    a(f"s_lshl2_add_u32 s{S_T0}, s{S_R2}, s{x}\ns_add_u32 s{S_T0}, s{S_T0}, {CNT_H}\ns_lshl_b32 s{S_US}, s{S_T0}, 8")
    arr = [False]; ucr = [False]
    for n, q in enumerate(seq):
        if n == len(seq) - cfg.apeek: k.speek(S_US)
        upoint()
        if q >= 14:
            fill(force=order.index(q - 14)); a.wait(lg=f"f{q-14}")
        if not (cfg.x_nop2 and q >= 14): w2_dma(q)
        issued.add(q)
        if n == 0: shift_reads()
        elif n == 1: shift_writes()
        else: fill()
        if n >= (0 if cfg.ucopy else 1) and not arr[0] and pos[0] > cfg.upos + cfg.uwait:
            if cfg.ucopy and not ucr[0]: ucopy_reads(); ucr[0] = True
            else:
                if cfg.ucopy: ucopy_writes()
                a.wait(vm="u"); k.lds_arrive(0, T0, T1); arr[0] = True
    assert arr[0]
    stamp(12)
    if cfg.xprio and not cfg.g2p: a("s_setprio 0")
    k.scheck(S_US, 0xff, 7)
    stamp(13)
    NP = cfg.np; RING = 15
    units = [(p, tau) for p in range(7 - NP) for tau in range(4)] + [(p, tau) for tau in range(4) for p in range(7 - NP, 7)]
    hs = [(2*p + e, tau) for p, tau in units for e in range(2)]
    nb = min(n for n, (i, tau) in enumerate(hs) if i >= 7)
    cur = [None, None]
    def hload(n):
        i, tau = hs[n]; d = AR + 4*(n % RING); blk = 2*(i % 7) + i // 7
        if n == nb - cfg.bpeek: k.speek(S_US)
        if n == nb: k.scheck(S_US, None, 0x707)
        if cur[i & 1] != blk: a(f"s_mov_b32 s{R_V+(i&1)}, {4096*blk}"); cur[i & 1] = blk
        off = f" offset:{1024*tau}" if tau else ""
        a.vmem(f"buffer_load_dwordx4 v[{d}:{d+3}], v{HA}, s[{R_WS}:{R_WS+3}], s{R_V+(i&1)} offen{off} sc1", f"a{n}")
    def pwrites(hf):
        q = [("m0", 7*8192*hf)]
        for tl in range(2):
            for dt in range(4):
                base = 1024*tl if dt == 0 else (1 + 3*tl + dt - 1)*8192 + (0, 16, 128, 144)[dt]
                q += [f"ds_write_addtid_b32 v{ACC2+16*(2*hf+tl)+4*dt+r} offset:{base+256*r}" for r in range(4)]
        return q
    def pw(q):
        o = q.pop(0)
        if isinstance(o, tuple):
            a(f"s_add_u32 m0, s{S_B}, {o[1]}\ns_nop 0"); o = q.pop(0)
        a.lds(o)
    a.cap = None
    LA = cfg.lah
    assert LA <= RING - 2
    for n in range(LA): hload(n)
    pend = []; wq = pwrites(0) + pwrites(1); nw = [0]; hold = [0]
    assert NP == 3
    for u, (p, tau) in enumerate(units):
        for dt in range(4):
            for e in range(2):
                n = 2*u + e; i = 2*p + e; wb = WB + 16*(i % 7) + 4*dt
                assert not any(t == f"g{i}" for _, t in pend)
                a.wait(vm=f"a{n}", lg=f"g{i}")
                d = ACC2 + 16*tau + 4*dt
                a(f"v_mfma_f32_16x16x32_bf16 v[{d}:{d+3}], v[{AR+4*(n%RING)}:{AR+4*(n%RING)+3}], v[{wb}:{wb+3}], {'0' if i == 0 else v(d,4)}")
                if pend: a.lds(*pend.pop(0))
                elif u >= 28 - 4*NP and nw[0] < 16*tau and (p, dt) > (7 - NP, 0):
                    pw(wq); nw[0] += 1
                    if nw[0] == 32: k.lds_arrive(6, T0, T1)
                if cfg.g2p and (u, dt, e) == (cfg.g2p, 0, 0): a("s_setprio 0")
                if cfg.tprio and (u, dt, e) == (28 - 4*NP, 0, 0): a(f"s_setprio {cfg.tprio}")
                if e == 1 and dt in cfg.ldt and 2*u + cfg.ldt.index(dt) + LA < 56: hload(2*u + cfg.ldt.index(dt) + LA)
        if tau == 3:
            for i in (2*p, 2*p+1):
                if i < 7: pend += trs(2*i, f"g{i+7}") + trs(2*i+1, f"g{i+7}")
    stamp(14)
    assert nw[0] == 48
    a("s_nop 1")
    while wq: pw(wq)
    a("s_mov_b64 exec, 1"); a.lds(f"ds_add_u32 v{T0}, v{T1} offset:28"); a("s_mov_b64 exec, -1")
    stamp(15)
    k.flush_stamps()
    a("s_endpgm")
    for o in k.ool: a(o)

def gen_m(k):
    a, cfg, stamp = k.a, k.cfg, k.stamp
    w = S_WV
    S_TH, S_FH = 98, 99
    V16, QA, WA, VST = 1, 2, 4, 8
    T0, T1, T2, T3 = 10, 11, 12, 13
    VCW, VCR = 14, 15
    ACC, CS, QF, WF, ONES, B1F, STT, CSP, WA2, GR = 16, 80, 96, 128, 160, 164, 180, 188, 204, 248
    CA, CB, AD, EXW, EXR, YST, VXO, VSA, VB2, YS0, YS1, YA0, YA1, PA0, PA1, DV, JUNK = 208, 209, 210, 214, 215, 216, 217, 218, 219, 220, 221, 222, 223, 224, 225, 226, 227
    XR, XF, B1R = 96, 104, CSP
    LAM = -(2*1.4426950408889634*0.7978845608028654*0.044715) ** (1/3)
    MU = 2*1.4426950408889634*0.7978845608028654 / -LAM
    VKA, VKB, VHALO, VTA, PK, PH, PV, PST, TAPS = 236, 237, 238, 239, 240, 241, 242, 243, 244
    a(f"s_lshl_b32 s{S_U0}, s{S_R}, 7\ns_lshl3_add_u32 s{S_U0}, s{S_C16}, s{S_U0}\ns_lshl1_add_u32 s{S_U0}, s{w}, s{S_U0}")
    a(f"s_lshl_b32 s{S_U1}, s{S_U0}, 10\ns_or_b32 s{S_U2}, s{S_J}, s{w}")
    a(f"s_mov_b32 s{R_WS+2}, {WS_SIZE}\ns_mov_b32 s{R_WS+3}, s{R_Q+3}")
    for i in range(4): a(f"v_mov_b32 v{GR+i}, 0")
    a(f"v_and_b32 v{T3}, 16, v{V16}\nv_add_u32 v{T3}, {L_SYNC}, v{T3}\nds_write_b128 v{T3}, v[{GR}:{GR+3}]")
    a("s_waitcnt lgkmcnt(0)")
    if cfg.wsoff: a(f"s_add_u32 s{P_WS}, s{P_WS}, {cfg.wsoff}\ns_addc_u32 s{P_WS+1}, s{P_WS+1}, 0")
    a(f"s_mov_b64 s[{R_Q}:{R_Q+1}], s[{P_Q}:{P_Q+1}]\ns_mov_b64 s[{R_WS}:{R_WS+1}], s[{P_WS}:{P_WS+1}]")
    LN = a.newlabel("Lnolead")
    a(f"s_cmp_lg_u32 s{S_U2}, 0\ns_cbranch_scc1 {LN}")
    a(f"v_min_u32 v{T3}, 47, v0\nv_lshlrev_b32 v{T3}, 8, v{T3}\ns_mul_i32 s{S_T0}, s2, {48*256}\ns_lshl_b32 s{S_T1}, s2, 11\ns_add_u32 s{S_T1}, s{S_T1}, {WS_STATS}")
    a(f"buffer_store_dwordx4 v[{GR}:{GR+3}], v{V16}, s[{R_WS}:{R_WS+3}], s{S_T1} offen sc1")
    a(f"buffer_store_dwordx4 v[{GR}:{GR+3}], v{V16}, s[{R_WS}:{R_WS+3}], s{S_T1} offen offset:1024 sc1")
    a(f"buffer_store_dword v{GR}, v{T3}, s[{R_WS}:{R_WS+3}], s{S_T0} offen sc1")
    a.label(LN)
    a.vmem(f"buffer_load_dwordx4 v[{XR}:{XR+3}], v{V16}, s[{R_Q}:{R_Q+3}], s{S_U1} offen {cfg.ntq}", "x")
    a.vmem(f"buffer_load_dwordx4 v[{XR+4}:{XR+7}], v{V16}, s[{R_Q}:{R_Q+3}], s{S_U1} offen offset:1024 {cfg.ntq}", "x")
    a(f"s_and_b32 s{S_TH}, s{w}, 1\ns_lshr_b32 s{S_FH}, s{w}, 1")
    a(f"s_lshl_b32 s{S_T0}, s{S_XCD}, 5\ns_add_u32 s{S_T0}, s{S_T0}, s{S_J}\ns_lshl_b32 s{S_T0}, s{S_T0}, 2\ns_load_dword s{S_PV}, s[{P_D}:{P_D+1}], s{S_T0}")
    a(f"v_and_b32 v{T2}, 15, v0\nv_lshrrev_b32 v{T3}, 1, v{T2}\nv_xor_b32 v{T3}, v{T3}, v{T1}\nv_lshlrev_b32 v{T3}, 4, v{T3}\nv_lshl_add_u32 v{T3}, v{T2}, 7, v{T3}")
    a(f"s_lshl_b32 s{S_T0}, s{S_TH}, 6\nv_xor_b32 v{T3}, s{S_T0}, v{T3}")
    a(f"s_lshl_b32 s{S_T0}, s{S_TH}, 13\nv_add_u32 v{QA}, s{S_T0}, v{T3}\nv_xor_b32 v{QA+1}, 64, v{QA}\nv_lshlrev_b32 v{VST}, 3, v{T2}")
    a(f"v_bfe_u32 v{T2}, v0, 2, 3")
    a(f"v_bfe_u32 v{T3}, v0, 2, 2\nv_lshl_add_u32 v{T3}, v{T1}, 3, v{T3}\nv_lshlrev_b32 v{T3}, 8, v{T3}\nv_and_b32 v{T0}, 3, v0\nv_lshl_add_u32 v{T3}, v{T0}, 3, v{T3}")
    a(f"v_add_u32 v{T3}, {L_W}, v{T3}")
    a(f"s_lshl_b32 s{S_T1}, s{S_FH}, 2")
    for i in range(4):
        a(f"v_xor_b32 v{T0}, s{S_T1}, v{T2}\ns_add_u32 s{S_T1}, s{S_T1}, 1")
        a(f"v_lshl_add_u32 v{WA+i}, v{T0}, 5, v{T3}")
    a(f"s_lshl_b32 s{S_T0}, s{S_TH}, 13\ns_xor_b32 s{S_T1}, s{S_T0}, 8192")
    for i in range(4): a(f"v_add_u32 v{WA2+i}, s{S_T1}, v{WA+i}\nv_add_u32 v{WA+i}, s{S_T0}, v{WA+i}")
    a("s_branch L_M2")
    k.split = len(a.lines)
    a(".p2align 6"); a.label("L_M2")
    stamp(0)
    a(f"v_bfe_u32 v{T0}, v0, 2, 2\nv_mov_b32 v{T3}, 0x3f803f80")
    for i in range(4):
        a(f"v_cmp_eq_u32 vcc, {i}, v{T0}\ns_nop 1")
        for r in range(4): a(f"v_cndmask_b32 v{CS+4*i+r}, 0, v{T3}, vcc")
    LN = a.newlabel("Lnolead")
    a(f"s_cmp_lg_u32 s{S_U2}, 0\ns_cbranch_scc1 {LN}")
    a(f"s_waitcnt vmcnt({len(a.vm)})\ns_lshl_b32 s{S_T0}, s2, 2\ns_mov_b32 s{S_ONE}, 1\ns_atomic_add s{S_ONE}, s[{P_DBG}:{P_DBG+1}], s{S_T0}")
    a.label(LN)
    S_H0, S_H1, S_INC, S_YP, S_YC = R_X0, R_X0+1, R_X0+2, R_X0+3, 17
    KC = T2
    def late_setup():
        srd(a, R_OUT, P_OUT, 2 << 20)
        a(f"v_lshrrev_b32 v{T1}, 4, v0\nv_bfe_u32 v{T0}, v0, 2, 2")
        a(f"s_lshl_b32 s{S_T0}, s{w}, 8\ns_add_u32 s{S_T0}, s{S_T0}, {L_CS}\nv_and_b32 v{VCR}, 48, v0\nv_lshl_add_u32 v{VCW}, v{T0}, 6, v{VCR}\nv_add_u32 v{VCW}, s{S_T0}, v{VCW}")
        a(f"s_lshl_b32 s{S_T0}, s{S_FH}, 9\ns_add_u32 s{S_T0}, s{S_T0}, {L_CS}\nv_add_u32 v{VCR}, s{S_T0}, v{VCR}")
        a(f"s_lshl_b32 s{S_U3}, s{S_R}, 10\ns_lshl_b32 s{S_T0}, s{S_TH}, 9\ns_add_u32 s{S_U3}, s{S_U3}, s{S_T0}\ns_add_u32 s{S_U3}, s{S_U3}, {WS_STATS}")
        a(f"s_mul_i32 s{S_T0}, s{S_FH}, {CH_STRIDE}\ns_lshl_b32 s{S_T1}, s{S_TH}, 8\ns_add_u32 s{S_T0}, s{S_T0}, s{S_T1}")
        a(f"s_add_u32 s{S_T1}, s{S_T0}, {L_CT+U_OFF+448}\ns_add_u32 s{S_T0}, s{S_T0}, {L_CT+128-56}")
        a(f"v_and_b32 v{T0}, 1, v0\nv_bfe_u32 v{T2}, v0, 1, 3")
        a(f"v_mul_u32_u24 v{CA}, {H_STRIDE}, v{T0}\nv_lshl_add_u32 v{CA}, v{T2}, 3, v{CA}\nv_lshl_add_u32 v{CA}, v{T1}, 4, v{CA}\nv_add_u32 v{CA}, s{S_T0}, v{CA}")
        a(f"v_mul_u32_u24 v{CB}, {U_STRIDE}, v{T0}\nv_lshl_add_u32 v{CB}, v{T1}, 4, v{CB}\nv_add_u32 v{CB}, s{S_T1}, v{CB}\nv_lshlrev_b32 v{T3}, 6, v{T2}\nv_sub_u32 v{CB}, v{CB}, v{T3}")
        a(f"v_xor_b32 v{AD+1}, 1, v{T0}\nv_lshlrev_b32 v{AD+1}, 4, v{AD+1}")
        a(f"v_lshlrev_b32 v{AD+3}, 1, v{T2}\nv_lshl_add_u32 v{AD+3}, v{T1}, 2, v{AD+3}")
        a(f"s_lshl_b32 s{S_T0}, s{w}, 13\ns_add_u32 s{S_T0}, s{S_T0}, {L_CT}\nv_add_u32 v{EXW}, s{S_T0}, v{V16}")
        a(f"s_add_u32 s{S_T0}, s{S_B}, {L_CT}\nv_add_u32 v{EXR}, s{S_T0}, v{V16}")
        a(f"v_bfe_u32 v{T0}, v0, 2, 2\nv_and_b32 v{T3}, 3, v0\nv_lshlrev_b32 v{T0}, 8, v{T0}\nv_lshl_add_u32 v{T0}, v{T1}, 6, v{T0}\nv_lshl_add_u32 v{YST}, v{T3}, 4, v{T0}")
        a(f"s_lshl_b32 s{S_T0}, s{S_XCD}, 5\ns_add_u32 s{S_T0}, s{S_T0}, s{S_J}\ns_lshl_b32 s{S_T0}, s{S_T0}, 13\ns_add_u32 s{S_T0}, s{S_T0}, s{S_B}\ns_add_u32 s{S_T0}, s{S_T0}, {WS_Y}\nv_add_u32 v{YST}, s{S_T0}, v{YST}")
        a(f"s_lshl_b32 s{S_T1}, s{w}, 1\nv_and_b32 v{T0}, 15, v0\nv_xor_b32 v{T0}, s{S_T1}, v{T0}\nv_lshlrev_b32 v{T0}, 4, v{T0}\nv_lshl_add_u32 v{YS0}, v{T1}, 13, v{T0}\nv_xor_b32 v{YS1}, 16, v{YS0}")
        a(f"s_lshl_b32 s{S_T1}, s{S_C2}, 18\ns_lshl_b32 s{S_T2}, s{S_R2}, 8\ns_add_u32 s{S_T1}, s{S_T1}, s{S_T2}\ns_lshl_b32 s{S_T2}, s{w}, 16\ns_add_u32 s{S_T1}, s{S_T1}, s{S_T2}\ns_add_u32 s{S_T1}, s{S_T1}, {WS_Y}")
        a(f"s_add_u32 s{S_T2}, s{S_T1}, {4*8192-1024}\nv_add_u32 v{YS0}, s{S_T1}, v{YS0}\nv_add_u32 v{YS1}, s{S_T2}, v{YS1}")
        RHO, OCT, TOFF = 236, 237, 238
        a(f"v_lshrrev_b32 v{RHO}, 3, v0\nv_and_b32 v{OCT}, 7, v0")
        a(f"v_and_b32 v{TOFF}, 1, v{RHO}\nv_bfe_u32 v{T0}, v{RHO}, 1, 1\nv_lshl_add_u32 v{TOFF}, v{T0}, 2, v{TOFF}\nv_lshrrev_b32 v{T2}, 2, v{RHO}\nv_lshl_add_u32 v{TOFF}, v{T2}, 1, v{TOFF}")
        a(f"s_lshl_b32 s{S_T1}, s{S_R2}, 6\ns_lshl3_add_u32 s{S_T1}, s{w}, s{S_T1}\nv_add_u32 v{T3}, s{S_T1}, v{TOFF}")
        a(f"s_lshl_b32 s{S_T2}, s{S_C2}, 7\nv_lshl_add_u32 v{VB2}, v{OCT}, 4, s{S_T2}\nv_lshl_add_u32 v{VXO}, v{T3}, 10, v{VB2}\nv_lshlrev_b32 v{VB2}, 4, v{OCT}\nv_add_u32 v{VB2}, {L_B2}, v{VB2}\nv_lshlrev_b32 v{VSA}, 3, v{T3}\nv_add_u32 v{VSA}, {WS_STATS}, v{VSA}")
        a(f"s_lshl_b32 s{S_T0}, s{w}, 2\ns_or_b32 s{S_T0}, s{S_T0}, 1\nv_xor_b32 v{T0}, s{S_T0}, v{T2}\nv_xor_b32 v{T0}, v{T0}, v{OCT}\nv_lshlrev_b32 v{T0}, 4, v{T0}")
        a(f"v_lshl_add_u32 v{T0}, v{OCT}, 10, v{T0}\nv_and_b32 v{T2}, 3, v{RHO}\nv_lshl_add_u32 v{T0}, v{T2}, 2, v{T0}")
        a(f"v_xor_b32 v{YA1}, 32, v{T0}\nv_add_u32 v{YA0}, {L_YST}, v{T0}\nv_add_u32 v{YA1}, {L_YST}, v{YA1}")
        a(f"v_and_b32 v{T0}, 3, v{TOFF}\nv_lshlrev_b32 v{T0}, 8, v{T0}\nv_lshrrev_b32 v{T2}, 2, v{TOFF}\nv_lshl_add_u32 v{T0}, v{T2}, 6, v{T0}\nv_and_b32 v{T2}, 1, v{OCT}\nv_lshl_add_u32 v{T0}, v{T2}, 5, v{T0}")
        a(f"s_lshl_b32 s{S_T0}, s{S_TH}, 7\nv_add_u32 v{T0}, s{S_T0}, v{T0}\nv_bfe_u32 v{T2}, v{OCT}, 1, 1\nv_lshl_add_u32 v{T0}, v{T2}, 4, v{T0}\nv_lshrrev_b32 v{T2}, 2, v{OCT}\nv_lshl_add_u32 v{T0}, v{T2}, 7, v{T0}")
        a(f"v_lshrrev_b32 v{T2}, 1, v{OCT}\nv_lshl_add_u32 v{T0}, v{T2}, 13, v{T0}\ns_lshl_b32 s{S_T0}, s{S_FH}, 10\ns_mul_i32 s{S_T1}, s{S_FH}, {3*8192}")
        a(f"v_mov_b32 v{PA0}, s{S_T0}\nv_mov_b32 v{T3}, s{S_T1}\nv_cmp_lt_u32 vcc, 1, v{OCT}\ns_nop 0\ns_nop 0\nv_cndmask_b32 v{PA0}, v{PA0}, v{T3}, vcc\nv_add_u32 v{PA0}, v{T0}, v{PA0}\nv_add_u32 v{PA1}, {7*8192}, v{PA0}")
        a(f"s_lshl_b32 s{S_T0}, s{S_FH}, 7\ns_add_u32 s{S_T0}, s{S_T0}, {L_B1}\nv_lshl_add_u32 v{DV}, v{T1}, 3, s{S_T0}")
        a(f"s_lshl1_add_u32 s{S_T0}, s{S_R}, s{S_TH}\ns_lshl1_add_u32 s{S_T2}, s{S_C}, s{S_FH}")
        a(f"s_mul_i32 s{S_T1}, s{S_T0}, {224*1024}\ns_lshl_b32 s{S_T3}, s{S_T2}, 13\ns_add_u32 s{S_T1}, s{S_T1}, s{S_T3}\ns_add_u32 s{S_H0}, s{S_T1}, {WS_H}\ns_add_u32 s{S_H1}, s{S_H0}, 4096")
        a(f"s_mul_i32 s{S_T1}, s{S_T2}, 37\ns_lshr_b32 s{S_T1}, s{S_T1}, 8\ns_lshl2_add_u32 s{S_T0}, s{S_T0}, s{S_T1}\ns_add_u32 s{S_T0}, s{S_T0}, {CNT_H}\ns_lshl_b32 s{S_PUB}, s{S_T0}, 8")
        a(f"s_cmp_lg_u32 s{S_CL}, 7\ns_cselect_b32 s{S_INC}, 1, 0")
        a(f"s_lshl2_add_u32 s{S_T0}, s{S_XCD}, s{w}\ns_lshr_b32 s{S_T1}, s{S_J}, 3\ns_lshl2_add_u32 s{S_T0}, s{S_T0}, s{S_T1}\ns_add_u32 s{S_T0}, s{S_T0}, {CNT_Y}\ns_lshl_b32 s{S_YP}, s{S_T0}, 8")
        a(f"s_lshr_b32 s{S_T0}, s{S_R2}, 3\ns_lshl2_add_u32 s{S_T0}, s{S_C2}, s{S_T0}\ns_lshl2_add_u32 s{S_T0}, s{S_T0}, s{w}\ns_add_u32 s{S_T0}, s{S_T0}, {CNT_Y}\ns_lshl_b32 s{S_YC}, s{S_T0}, 8")
        a(f"v_mov_b32 v{KC}, {f32(MU)}\nv_mov_b32 v{KC+1}, {f32(LAM)}\ns_mov_b32 s{S_U1}, 32768")
        a(f"s_lshl_b32 s{S_T0}, s{S_TH}, 9\ns_add_u32 s{S_T0}, s{S_T0}, {L_ST}\nv_add_u32 v{VST+1}, s{S_T0}, v{VST}")
        a(f"s_lshl_b32 s{S_T0}, s{S_FH}, 4\ns_lshr_b32 s{S_PV}, s{S_PV}, s{S_T0}\ns_and_b32 s{S_PV}, s{S_PV}, 0xffff\nv_mov_b32 v{T0}, s{S_PV}")
        a(f"v_lshlrev_b32 v{T0}, v{AD+1}, v{T0}\ns_sub_u32 s{S_T2}, s{S_TH}, 1\nv_and_b32 v{T0}, s{S_T2}, v{T0}")
        a(f"v_cmp_eq_u32 vcc, 14, v{AD+3}\nv_mov_b32 v{AD+1}, 0\ns_nop 0\nv_cndmask_b32 v{AD}, 0, v{T0}, vcc")
        a(f"v_cmp_eq_u32 vcc, 12, v{AD+3}\nv_mov_b32 v{AD+3}, 0\ns_nop 0\nv_cndmask_b32 v{AD+2}, 0, v{T0}, vcc")
    XR2, VXL, S_XI = 240, 9+243, S_U4
    if cfg.xlds:
        a(f"v_lshrrev_b32 v{T0}, 3, v0\nv_and_b32 v{T1}, 1, v{T0}\nv_bfe_u32 v{T2}, v{T0}, 1, 1\nv_lshl_add_u32 v{T1}, v{T2}, 2, v{T1}\nv_lshrrev_b32 v{T2}, 2, v{T0}\nv_lshl_add_u32 v{T1}, v{T2}, 1, v{T1}")
        a(f"s_and_b32 s{S_T0}, s{S_R2}, 1\ns_lshl_b32 s{S_T0}, s{S_T0}, 6\ns_lshl3_add_u32 s{S_T0}, s{w}, s{S_T0}\nv_add_u32 v{T1}, s{S_T0}, v{T1}")
        a(f"v_lshrrev_b32 v{T2}, 1, v{T1}\nv_xor_b32 v{T2}, v{T2}, v0\nv_and_b32 v{T2}, 7, v{T2}\nv_lshlrev_b32 v{T2}, 4, v{T2}\nv_lshl_add_u32 v{VXL}, v{T1}, 7, v{T2}")
        a(f"s_sub_u32 s{S_XI}, s{S_C2}, s{S_KC0}\ns_and_b32 s{S_XI}, s{S_XI}, 7")
    a.wait(vm="x")
    for n in range(2):
        for m in range(4):
            a(f"v_lshlrev_b32 v{XF+8*n+2*m}, 16, v{XR+4*n+m}\nv_and_b32 v{XF+8*n+2*m+1}, 0xffff0000, v{XR+4*n+m}")
    SM = XR
    def reduce2():
        for dpp in ("row_shr:1 row_mask:0xf bank_mask:0xf bound_ctrl:0", "row_shr:2 row_mask:0xf bank_mask:0xf bound_ctrl:0", "row_shr:4 row_mask:0xf bank_mask:0xf bound_ctrl:0",
                    "row_shr:8 row_mask:0xf bank_mask:0xf bound_ctrl:0", "row_bcast:15 row_mask:0xa bank_mask:0xf", "row_bcast:31 row_mask:0xc bank_mask:0xf"):
            a("s_nop 0")
            for n in range(2): a(f"v_add_f32_dpp v{SM+n}, v{SM+n}, v{SM+n} {dpp}")
    for n in range(2): a(f"v_add_f32 v{SM+n}, v{XF+8*n}, v{XF+8*n+1}")
    for m in range(2, 8):
        for n in range(2): a(f"v_add_f32 v{SM+n}, v{SM+n}, v{XF+8*n+m}")
    reduce2()
    for n in range(2): a(f"v_mul_f32 v{SM+2+n}, {f32(1/512)}, v{SM+n}")
    a(f"v_readlane_b32 s{S_T0}, v{SM+2}, 63\nv_readlane_b32 s{S_T1}, v{SM+3}, 63\ns_nop 0")
    for n in range(2):
        for m in range(8): a(f"v_subrev_f32 v{XF+8*n+m}, s{S_T0+n}, v{XF+8*n+m}")
    for n in range(2): a(f"v_mul_f32 v{SM+n}, v{XF+8*n}, v{XF+8*n}")
    for m in range(1, 8):
        for n in range(2): a(f"v_fmac_f32 v{SM+n}, v{XF+8*n+m}, v{XF+8*n+m}")
    reduce2()
    a(f"v_mov_b32 v{T1}, {f32(1e-5)}")
    for n in range(2): a(f"v_fmamk_f32 v{SM+n}, v{SM+n}, {f32(1/512)}, v{T1}")
    for n in range(2): a(f"v_rsq_f32 v{SM+n}, v{SM+n}")
    for n in range(2): a(f"v_or_b32 v{GR+2*n}, 1, v{SM+2+n}")
    for n in range(2): a(f"v_or_b32 v{GR+2*n+1}, 1, v{SM+n}")
    stamp(14)
    a(f"s_lshl_b32 s{S_T0}, s{w}, 4\ns_add_u32 s{S_T0}, s{S_T0}, {L_GR}\nv_mov_b32 v{T0}, s{S_T0}\ns_lshl_b64 exec, -1, 63")
    a.lds(f"ds_write_b128 v{T0}, v[{GR}:{GR+3}]"); a("s_mov_b64 exec, -1")
    def stats_loads():
        for tau in range(4):
            a(f"buffer_load_dwordx2 v[{STT+2*tau}:{STT+2*tau+1}], v{VST}, s[{R_WS}:{R_WS+3}], s{S_U3} offen offset:{128*tau} sc1")
    a.wait(lg="all")
    stamp(1)
    def rd(i, ks):
        slot = (i % 3) * 16384; b = 16*ks; wa = (WA, WA2)[ks]
        def W(n): return [(f"ds_read_b64_tr_b16 v[{WF+b+4*n+2*h}:{WF+b+4*n+2*h+1}], v{wa+n} offset:{slot+1024*h}", f"W{i}{ks}{n}") for h in range(2)]
        def Q(t): return [(f"ds_read_b128 v[{QF+b+4*t}:{QF+b+4*t+3}], v{QA+ks} offset:{slot+2048*t}", f"Q{i}{ks}{t}")]
        if cfg.x_nolds: return []
        return W(0) + Q(0) + Q(1) + Q(2) + Q(3) + W(1) + W(2) + W(3)
    def mm(i, ks, n, t):
        b = 16*ks
        if t == "cs":
            d = ONES; B = CS + 4*n; first = (i == 0 and n == 0); tags = [f"W{i}{ks}{n}"]
        else:
            d = ACC + 4*(4*n+t); B = QF+b+4*t; first = (i == 0 and ks == 0); tags = [f"W{i}{ks}{n}", f"Q{i}{ks}{t}"]
            if cfg.coarse and n == 0 and t == 0 and (i, ks) != (0, 0): tags.append(f"Q{i}{ks}3")
        a.wait(lg=tags)
        if not cfg.x_nomfma: a(f"v_mfma_f32_16x16x32_bf16 v[{d}:{d+3}], v[{WF+b+4*n}:{WF+b+4*n+3}], v[{B}:{B+3}], {'0' if first else v(d,4)}")
        for _ in range(cfg.bgn + (1 if len(bg) > 1 and bg[0].startswith("s_") and bg[1].startswith("s_") else 0)):
            if bg: a(bg.pop(0))
    bg = []
    if cfg.dseg < 0:
        n0 = len(a.lines); late_setup(); bg = a.lines[n0:]; del a.lines[n0:]
        for q in range(len(bg) - 1, 0, -1):
            if bg[q].startswith("s_cselect"): bg[q-1:q+1] = [bg[q-1] + "\n" + bg[q]]
    base = [(n, (t if n % 2 == 0 or not cfg.snake else 3 - t)) for n in range(4) for t in range(4)]
    withcs = sum([base[4*n:4*n+4] + [(n, "cs")] for n in range(4)], [])
    VSY = JUNK
    a(f"v_mov_b32 v{VSY}, {L_SYNC}")
    a("s_barrier")
    stamp(2)
    a(f"s_cmp_eq_u32 s{S_CL}, 7\ns_cbranch_scc1 L_Mh")
    for ins, tag in rd(0, 0): a.lds(ins, tag)
    def stats_check():
        L = a.newlabel("Lst"); B = a.newlabel("Lstb")
        chk = (f"v_min3_u32 v{T0}, v{STT}, v{STT+1}, v{STT+2}\nv_min3_u32 v{T1}, v{STT+3}, v{STT+4}, v{STT+5}", f"v_min3_u32 v{T0}, v{T0}, v{STT+6}, v{STT+7}\nv_min_u32 v{T0}, v{T0}, v{T1}", f"v_cmp_eq_u32 vcc, 0, v{T0}")
        n0 = len(a.lines); stats_loads(); ld = "\n".join(a.lines[n0:]); del a.lines[n0:]
        k.ool.append(f"{L}:\n{ld}\ns_add_u32 s{S_SPIN}, s{S_SPIN}, 1\ns_waitcnt vmcnt(0)\n" + "\n".join(chk) + f"\ns_cmp_gt_u32 s{S_SPIN}, {SPIN_MAX}\ns_cbranch_scc1 {B}\ns_cbranch_vccnz {L}\ns_branch {B}")
        return ([chk[0], chk[1], chk[2] + f"\ns_mov_b32 s{S_SPIN}, 0\ns_cbranch_vccnz {L}\n{B}:"] +
                [f"v_mul_f32 v{STT+4*q+1}, v{KC+1}, v{STT+4*q+1}\nv_mul_f32 v{STT+4*q+3}, v{KC+1}, v{STT+4*q+3}" for q in range(2)] +
                [f"v_mul_f32 v{STT+4*q}, v{STT+4*q}, v{STT+4*q+1}\nv_mul_f32 v{STT+4*q+2}, v{STT+4*q+2}, v{STT+4*q+3}" for q in range(2)])
    for i in range(8):
        pend = rd(i, 1)
        lastA = base[:4] + [(n, "cs") for n in range(4)] + base[4:]
        for q, (n, t) in enumerate(base if i < 7 else lastA):
            if i == 7 and q % 4 == 0: k.lstamp("g1end")
            mm(i, 0, n, t)
            if cfg.xlds and q == (14 if i < 7 else 12):
                sl = (i % 3) * 16384
                a(f"s_cmp_eq_u32 s{S_XI}, {i}\ns_cselect_b64 exec, -1, 0\nds_read_b128 v[{XR2}:{XR2+3}], v{VXL} offset:{sl}\nds_read_b128 v[{XR2+4}:{XR2+7}], v{VXL} offset:{sl+4096}\ns_mov_b64 exec, -1")
            if i == 4 and q == 12: assert not bg
            if i == 4 and q in (12, 13): a.lds(f"ds_read2_b64 v[{B1R+4*(q-12)}:{B1R+4*(q-12)+3}], v{DV} offset0:{8*(q-12)} offset1:{8*(q-12)+4}", "b1")
            if i == 5: a(f"v_lshlrev_b32 v{B1F+q}, 16, v{B1R+q//2}" if q % 2 == 0 else f"v_and_b32 v{B1F+q}, 0xffff0000, v{B1R+q//2}")
            if i == 6: a(f"v_mul_f32 v{B1F+q}, v{KC+1}, v{B1F+q}")
            if pend: a.lds(*pend.pop(0))
            elif i == 7 and q == 13:
                a(f"s_mov_b64 exec, s[{S_T2}:{S_T3}]")
                a.lds(f"ds_write_b128 v{VCW}, v[{ONES}:{ONES+3}]")
                a("s_mov_b64 exec, -1")
            elif i == 7 and q in (15, 16):
                a.lds(f"ds_read2_b64 v[{STT+4*(q-15)}:{STT+4*(q-15)+3}], v{VST+1} offset0:{32*(q-15)} offset1:{32*(q-15)+16}", "stt")
            elif i == 7 and q == 14:
                a(f"v_mov_b32 v{T1}, 1\ns_mov_b64 exec, 1"); a.lds(f"ds_add_u32 v{VSY}, v{T1} offset:16"); a("s_mov_b64 exec, -1")
        if i < 7:
            pend = rd(i+1, 0)
            for q, (n, t) in enumerate(withcs):
                mm(i, 1, n, t)
                if q == cfg.bq:
                    if i == cfg.dseg: late_setup()
                    a.wait(lg="all")
                    a("s_barrier")
                    if i == 6: k.lstamp("g1end")
                    if i == 6: a(f"s_mov_b32 s{S_T2}, 0x11111111\ns_mov_b32 s{S_T3}, s{S_T2}")
                if q >= cfg.bq + (0 if cfg.rdnow else 1) and pend: a.lds(*pend.pop(0))
        else:
            side = stats_check()
            pend = [(f"ds_read_b128 v[{(CS, CSP)[h]+4*n2}:{(CS, CSP)[h]+4*n2+3}], v{VCR} offset:{64*n2+256*h}", f"csp{n2}") for n2 in range(4) for h in range(2)]
            for q, (n, t) in enumerate(base):
                if q % 3 == 0: k.lstamp("g1end")
                mm(i, 1, n, t)
                if q == 0: k.lds_peek(4, VSY, GR, "pk4")
                if q == 5: k.lds_check(4, VSY, GR, "pk4")
                if q >= 5 and pend: a.lds(*pend.pop(0))
                if q == 1: a.wait(lg="stt")
                if side and q >= 1 and q != 5: a(side.pop(0))
        assert not pend
    a.vm = []
    if cfg.xprio: a("s_setprio 2")
    stamp(3)
    for m in range(0, 16, 2):
        if m % 8 == 0: a.wait(lg=f"csp{m//4+1}"); a(".p2align 3")
        a(f"v_pk_add_f32 v[{CS+m}:{CS+m+1}], v[{CS+m}:{CS+m+1}], v[{CSP+m}:{CSP+m+1}]")
    CACC, FAB = 16, ((96, 128), (48, 160))
    def reads(cc):
        FA, FB = FAB[cc & 1]; r = []
        for n in range(8):
            r.append((f"ds_read_b128 v[{FB+4*n}:{FB+4*n+3}], v{CB} offset:{3584-512*n+64*cc}", f"B{cc}_{n}"))
            for hf in range(2): r.append((f"ds_read_b64 v[{FA+4*n+2*hf}:{FA+4*n+2*hf+1}], v{CA} offset:{512*n+64*cc+8*hf}", f"A{cc}_{n}"))
        return r
    pend = reads(0)
    hq = []
    units = [(pp, tau) for pp in range(2) for tau in range(4)]
    for u, (pp, tau_) in enumerate(units):
        k.lstamp("gelu")
        if u == 7: k.lds_peek(0, VSY, GR, "pk0")
        E = CSP + 8*(u & 1); O = 228 + 4*(u & 1)
        prs = [(ACC + 4*(4*(2*pp+tl)+tau_) + 2*hh, tau_, 4*(2*pp+tl) + 2*hh, E + 4*tl + 2*hh) for tl in range(2) for hh in range(2)]
        for z, tau, hh, e in prs: a(f"v_pk_fma_f32 v[{e}:{e+1}], v[{CS+hh}:{CS+hh+1}], v[{STT+2*tau}:{STT+2*tau+1}], v[{B1F+hh}:{B1F+hh+1}] op_sel_hi:[1,0,1] neg_lo:[0,1,0] neg_hi:[0,1,0]")
        for z, tau, hh, e in prs: a(f"v_pk_fma_f32 v[{z}:{z+1}], v[{STT+2*tau}:{STT+2*tau+1}], v[{z}:{z+1}], v[{e}:{e+1}] op_sel:[1,0,0]")
        for z, tau, hh, e in prs: a(f"v_pk_fma_f32 v[{e}:{e+1}], v[{z}:{z+1}], v[{z}:{z+1}], v[{KC}:{KC+1}] op_sel_hi:[1,1,0]")
        for z, tau, hh, e in prs: a(f"v_pk_mul_f32 v[{e}:{e+1}], v[{e}:{e+1}], v[{z}:{z+1}]")
        for m in range(0 if cfg.x_nogelu else 8): a(f"v_exp_f32 v{E+m}, v{E+m}")
        for z, tau, hh, e in prs: a(f"v_pk_fma_f32 v[{e}:{e+1}], v[{KC}:{KC+1}], v[{e}:{e+1}], v[{KC}:{KC+1}] op_sel:[1,0,1]")
        if u == 7 and cfg.earlyrd: k.lds_check(0, VSY, GR, "pk0")
        for m in range(8):
            if not cfg.x_nogelu: a(f"v_rcp_f32 v{E+m}, v{E+m}")
            if u == 7 and m < cfg.earlyrd: a.lds(*pend.pop(0))
        for z, tau, hh, e in prs: a(f"v_pk_mul_f32 v[{z}:{z+1}], v[{z}:{z+1}], v[{e}:{e+1}]")
        for q in range(4): a(f"v_cvt_pk_bf16_f32 v{O+q}, v{prs[q][0]}, v{prs[q][0]+1}")
        flush = u in cfg.hgroups
        so = (S_H0, S_H1)[pp]
        hq.append((f"buffer_store_dwordx4 v[{O}:{O+3}], v{V16}, s[{R_WS}:{R_WS+3}], s{so} offen offset:{1024*tau_} sc1", "h" if u > 3 else "ha"))
        if flush:
            while hq: a.vmem(*hq.pop(0))
    k.lstamp("gelu")
    stamp(5)
    if cfg.xprio: a("s_setprio 0")
    assert cfg.earlyrd
    n0 = len(a.lines); sv = (list(a.vm), list(a.lg)); a.vm = []; a.lg = []
    a.label("L_Mh")
    late_setup()
    def xloads():
        a.vmem(f"buffer_load_dwordx4 v[{XR2}:{XR2+3}], v{VXO}, s[{R_Q}:{R_Q+3}], 0 offen", "x")
        a.vmem(f"buffer_load_dwordx4 v[{XR2+4}:{XR2+7}], v{VXO}, s[{R_Q}:{R_Q+3}], s{S_U1} offen", "x")
    if cfg.xlds: xloads()
    a("s_barrier")
    a(f"v_mov_b32 v{T1}, 1\ns_mov_b64 exec, 1\nds_add_u32 v{VSY}, v{T1} offset:16\ns_mov_b64 exec, -1")
    k.lds_wait(0, VSY, GR, setaddr=False, sleep=2)
    for ins, tag in reads(0)[:cfg.earlyrd]: a(ins)
    a("s_branch L_Mj")
    k.ool.append("\n".join(a.lines[n0:])); del a.lines[n0:]
    a.vm, a.lg = sv
    a.label("L_Mj")
    stamp(6)
    while len(pend) > 15: a.lds(*pend.pop(0))
    cnt = [0]
    def tick():
        if cnt[0] == cfg.asigpos: a.wait(vm="ha"); a(f"s_atomic_add s{S_INC}, s[{P_WS}:{P_WS+1}], s{S_PUB}")
        if cnt[0] == cfg.hsigpos: a.wait(vm="h"); a(f"s_lshl_b32 s{S_ONE}, s{S_INC}, 8\ns_atomic_add s{S_ONE}, s[{P_WS}:{P_WS+1}], s{S_PUB}")
        if cnt[0] % 14 == 0 or cnt[0] == 152: k.lstamp("conv")
        cnt[0] += 1
    tick()
    wq = []
    for cc in range(4):
        FA, FB = FAB[cc & 1]
        nxt = reads(cc+1) if cc < 3 else []
        for T in range(8):
            for an in ([-1] if cc == 0 else []) + list(range(T+1)):
                d = CACC + 4*T
                if an < 0:
                    a.wait(lg=f"B0_{T}")
                    a(f"v_mfma_f32_16x16x32_bf16 v[{d}:{d+3}], v[{AD}:{AD+3}], v[{FB+4*T}:{FB+4*T+3}], 0")
                else:
                    e = T - an
                    a.wait(lg=[f"A{cc}_{an}", f"B{cc}_{e}"])
                    if not cfg.x_noconv or cc == 3: a(f"v_mfma_f32_16x16x32_bf16 v[{d}:{d+3}], v[{FA+4*an}:{FA+4*an+3}], v[{FB+4*e}:{FB+4*e+3}], v[{d}:{d+3}]")
                if pend: a.lds(*pend.pop(0))
                elif nxt:
                    a.lds(*nxt.pop(0))
                    if cc == 2 and not nxt:
                        a(f"v_mov_b32 v{T1}, 1\ns_mov_b64 exec, 1"); a.lds(f"ds_add_u32 v{VSY}, v{T1} offset:4"); a("s_mov_b64 exec, -1")
                tick()
                if cc == 3:
                    if (T, an) == (1, 0): k.lds_peek(1, VSY, T0, "pk1")
                    if (T, an) == (3, 2): k.lds_check(1, VSY, T0, "pk1")
                    if an == T: wq.append((cnt[0] + 8, T))
                    if wq and wq[0][0] <= cnt[0] and (T, an) > (3, 2):
                        T2_ = wq.pop(0)[1]
                        a.lds(f"ds_write_b128 v{EXW}, v[{CACC+4*T2_}:{CACC+4*T2_+3}] offset:{1024*T2_}")
        assert not pend and not nxt
    stamp(7)
    assert [t for _, t in wq] == [7]
    a("s_nop 6")
    a.lds(f"ds_write_b128 v{EXW}, v[{CACC+28}:{CACC+31}] offset:{1024*7}")
    a(f"s_mov_b64 exec, 1"); a.lds(f"ds_add_u32 v{VSY}, v{T1} offset:8"); a("s_mov_b64 exec, -1")
    k.lds_wait(2, VSY, T0, setaddr=False)
    FA = 48
    for tt in range(2):
        for src in range(4):
            a.lds(f"ds_read_b128 v[{FA+16*tt+4*src}:{FA+16*tt+4*src+3}], v{EXR} offset:{8192*src+1024*tt}", f"e{tt}")
    for tt in range(2):
        a.wait(lg=f"e{tt}")
        b = FA + 16*tt
        for r in range(4): a(f"v_add_f32 v{b+r}, v{b+r}, v{b+4+r}\nv_add_f32 v{b+8+r}, v{b+8+r}, v{b+12+r}")
        for r in range(4): a(f"v_cvt_pk_bf16_f32 v{b+4+r}, v{b+r}, v{b+8+r}")
        a.vmem(f"buffer_store_dwordx4 v[{b+4}:{b+7}], v{YST}, s[{R_WS}:{R_WS+3}], 0 offen{' offset:1024' if tt else ''} sc1", "y")
    stamp(8)
    ST2, B2R = 24, 28
    if not cfg.xlds: xloads()
    a(f"v_and_b32 v{T0}, 1023, v{VSA}\nv_add_u32 v{T0}, {L_ST}, v{T0}")
    a.lds(f"ds_read2_b64 v[{ST2}:{ST2+3}], v{T0} offset0:0 offset1:32", "b2")
    a.lds(f"ds_read_b128 v[{B2R}:{B2R+3}], v{VB2}", "b2")
    a(f"s_add_u32 m0, s{S_B}, {L_YST}")
    if not cfg.xlds: a.wait(vm="y"); k.signal(S_YP)
    a.wait(vm="x", lg="b2")
    L = a.newlabel("Ls2"); B = a.newlabel("Ls2b")
    chk = f"v_min3_u32 v{T0}, v{ST2}, v{ST2+1}, v{ST2+2}\nv_min_u32 v{T0}, v{T0}, v{ST2+3}\nv_cmp_eq_u32 vcc, 0, v{T0}"
    a(f"{chk}\ns_mov_b32 s{S_SPIN}, 0\ns_cbranch_vccnz {L}"); a.label(B)
    k.ool.append(f"{L}:\nbuffer_load_dwordx2 v[{ST2}:{ST2+1}], v{VSA}, s[{R_WS}:{R_WS+3}], 0 offen sc1\nbuffer_load_dwordx2 v[{ST2+2}:{ST2+3}], v{VSA}, s[{R_WS}:{R_WS+3}], 0 offen offset:256 sc1\n"
                 f"s_add_u32 s{S_SPIN}, s{S_SPIN}, 1\ns_waitcnt vmcnt(0)\n{chk}\ns_cmp_gt_u32 s{S_SPIN}, {SPIN_MAX}\ns_cbranch_scc1 {B}\ns_cbranch_vccnz {L}\ns_branch {B}")
    XF2, PP, B2F, YR = 80, 96, 32, 40
    for n in range(2):
        for m in range(4): a(f"v_lshlrev_b32 v{XF2+8*n+2*m}, 16, v{XR2+4*n+m}\nv_and_b32 v{XF2+8*n+2*m+1}, 0xffff0000, v{XR2+4*n+m}")
        for m in range(8): a(f"v_sub_f32 v{PP+8*n+m}, v{XF2+8*n+m}, v{ST2+2*n}")
        for m in range(8): a(f"v_mul_f32 v{PP+8*n+m}, v{PP+8*n+m}, v{ST2+2*n+1}")
    for m in range(4): a(f"v_lshlrev_b32 v{B2F+2*m}, 16, v{B2R+m}\nv_and_b32 v{B2F+2*m+1}, 0xffff0000, v{B2R+m}")
    if cfg.xlds: a.wait(vm="y"); k.signal(S_YP)
    stamp(9)
    if not cfg.x_noy: k.spoll(S_YC, 8)
    stamp(10)
    a.vmem(f"buffer_load_dwordx4 v{YS0}, s[{R_WS}:{R_WS+3}], 0 offen sc1 lds", "ys")
    a.vmem(f"buffer_load_dwordx4 v{YS1}, s[{R_WS}:{R_WS+3}], 0 offen offset:1024 sc1 lds", "ys")
    a(f"v_mov_b32 v{T2}, {f32(-1.4426950408889634)}")
    RD, EE = 112, 176
    S_ARR, S_YRD = S_U2, S_U3
    def pk(op, d, x0, x1, x2=None, mod=""): a(f"{op} v[{d}:{d+1}], {x0}, {x1}" + (f", {x2}" if x2 else "") + mod)
    def preads(n):
        for kq in range(4):
            for e in range(2):
                a.lds(f"ds_read_b128 v[{RD+32*n+8*kq+4*e}:{RD+32*n+8*kq+4*e+3}], v{(PA0, PA1)[n]} offset:{2048*kq+16*e}", f"p{n}_{kq}")
    yrd = "\n".join(f"ds_read2st64_b32 v[{YR+4*n+2*q}:{YR+4*n+2*q+1}], v{ya} offset0:{2*q} offset1:{2*q+1}" for n, ya in enumerate((YA0, YA1)) for q in range(2))
    arr3 = f"s_waitcnt vmcnt(0)\ns_mov_b64 exec, 1\nds_add_u32 v{VSY}, v{T1} offset:12\ns_mov_b64 exec, -1\ns_mov_b32 s{S_ARR}, 1"
    yfold = yrd + "\ns_waitcnt lgkmcnt(0)\n" + "\n".join(
        f"v_lshlrev_b32 v{EE}, 16, v{YR+q}\nv_and_b32 v{EE+1}, 0xffff0000, v{YR+q}\nv_mul_f32 v{PP+2*q}, v{PP+2*q}, v{EE}\nv_mul_f32 v{PP+2*q+1}, v{PP+2*q+1}, v{EE+1}" for q in range(8))
    L = a.newlabel("Lf"); N = a.newlabel("Lfn"); N2 = a.newlabel("Lfm"); D = a.newlabel("Lfd"); L2 = a.newlabel("Lfw")
    a(f"s_mov_b32 s{S_ARR}, 0\ns_mov_b32 s{S_YRD}, 0\ns_mov_b32 s{S_SPIN}, 0")
    a.label(L)
    a(f"s_getreg_b32 s{S_T0}, hwreg(HW_REG_IB_STS, 0, 4)\ns_or_b32 s{S_T0}, s{S_T0}, s{S_ARR}\ns_cbranch_scc1 {N}\n{arr3}")
    a.label(N)
    a(f"ds_read2_b32 v[{EE+2}:{EE+3}], v{VSY} offset0:3 offset1:6\ns_add_u32 s{S_SPIN}, s{S_SPIN}, 1\ns_waitcnt lgkmcnt(0)")
    a(f"v_cmp_eq_u32 vcc, 4, v{EE+2}\ns_cmp_gt_u32 s{S_SPIN}, {SPIN_MAX*8}\ns_cbranch_vccnz {N2}\ns_cbranch_scc1 {D}")
    a(f"v_cmp_ne_u32 vcc, 4, v{EE+3}\ns_nop 0\ns_cbranch_vccz {D}\ns_sleep 1\ns_branch {L}")
    a.label(N2)
    a(f"{yfold}\ns_mov_b32 s{S_YRD}, 1")
    k.lds_wait(6, VSY, T0, setaddr=False, sleep=cfg.fsleep)
    a.label(D); a.lg = []
    stamp(12)
    k.lstamp("fin")
    def op(name, d, x0, x1, x2=None, c=None):
        for m in range(0, 8, 2):
            if c is None: pk(f"v_pk_{name}_f32", d+m, v(x0+m, 2), v(x1+m, 2), v(x2+m, 2) if x2 is not None else None)
            else: pk(f"v_pk_{name}_f32", d+m, v(x0+m, 2), c if c == "1.0" else v(c, 2), mod=" op_sel_hi:[1,0]")
    def gate_a(n):
        b = RD + 32*n
        a.wait(lg=f"p{n}_0"); a(".p2align 3")
        op("add", b, b, B2F)
        a.wait(lg=f"p{n}_2"); a(".p2align 3")
        op("add", b+8, b+8, b+16)
        a.wait(lg=f"p{n}_3"); a(".p2align 3")
        op("add", b, b, b+24)
        op("add", b, b, b+8)
        op("mul", EE, b, None, c=T2)
    def gate_b(n):
        for m in range(8): a(f"v_exp_f32 v{EE+m}, v{EE+m}")
        op("add", EE, EE, None, c="1.0")
    def gate_c(n):
        b = RD + 32*n
        for m in range(8): a(f"v_rcp_f32 v{EE+m}, v{EE+m}")
        op("mul", b, b, EE)
    def finish(n):
        b = RD + 32*n
        op("fma", b, b, PP+8*n, XF2+8*n)
        for m in range(4): a(f"v_cvt_pk_bf16_f32 v{b+8+m}, v{b+2*m}, v{b+2*m+1}")
        a(f"buffer_store_dwordx4 v[{b+8}:{b+11}], v{VXO}, s[{R_OUT}:{R_OUT+3}], {'s%d' % S_U1 if n else '0'} offen {cfg.out_flags}")
    PKV = EE + 10
    def try_arrive():
        N = a.newlabel("Lta")
        a(f"s_getreg_b32 s{S_T0}, hwreg(HW_REG_IB_STS, 0, 4)\ns_or_b32 s{S_T0}, s{S_T0}, s{S_ARR}\ns_cbranch_scc1 {N}\n{arr3}"); a.label(N)
    fold = lambda n: "\n".join(f"v_lshlrev_b32 v{EE+12+2*(q&1)}, 16, v{YR+q}\nv_and_b32 v{EE+13+2*(q&1)}, 0xffff0000, v{YR+q}\nv_pk_mul_f32 v[{PP+2*q}:{PP+2*q+1}], v[{PP+2*q}:{PP+2*q+1}], v[{EE+12+2*(q&1)}:{EE+13+2*(q&1)}]" for q in range(4*n, 4*n+4))
    preads(0)
    gate_a(0); gate_b(0); gate_c(0)
    S1 = a.newlabel("Ly1"); S2 = a.newlabel("Ly2"); N = a.newlabel("Lyn"); N3 = a.newlabel("Lym")
    a(f"s_cmp_eq_u32 s{S_YRD}, 0\ns_cbranch_scc1 {S1}")
    finish(0)
    a(f"s_branch {N3}")
    a.label(S1)
    try_arrive()
    a.label(N3)
    k.lstamp("fin"); stamp(11)
    k.lds_wait(7, VSY, T0, setaddr=False)
    k.lstamp("fin")
    preads(1)
    a(f"ds_read_b32 v{PKV}, v{VSY} offset:12")
    gate_a(1)
    Y = a.newlabel("Lyq")
    a(f"s_cmp_lg_u32 s{S_YRD}, 0\ns_cbranch_scc1 {Y}\ns_waitcnt lgkmcnt(0)\nv_cmp_ne_u32 vcc, 4, v{PKV}\ns_nop 0\ns_cbranch_vccnz {Y}\n{yrd}\ns_mov_b32 s{S_YRD}, 2")
    a.label(Y)
    gate_b(1); gate_c(1)
    k.lstamp("fin")
    F = a.newlabel("Lyf")
    a(f"s_cmp_eq_u32 s{S_YRD}, 1\ns_cbranch_scc1 {S2}\ns_cmp_eq_u32 s{S_YRD}, 2\ns_cbranch_scc1 {F}")
    a(f"s_cmp_lg_u32 s{S_ARR}, 0\ns_cbranch_scc1 {N}\n{arr3}")
    a.label(N)
    k.lds_wait(3, VSY, T0, setaddr=False)
    a(yrd)
    a.label(F)
    a(f"s_waitcnt lgkmcnt(0)\n{fold(0)}")
    finish(0)
    a(fold(1))
    a.label(S2)
    finish(1)
    k.lstamp("fin")
    stamp(13)
    if cfg.diag_pad or cfg.diag_amp:
        if cfg.diag_amp: a(f"s_sub_u32 s{S_T2}, s{S_ST}, s{S_EX}\ns_mul_i32 s{S_T2}, s{S_T2}, {cfg.diag_amp[1]}\ns_min_u32 s{S_T2}, s{S_T2}, 200000")
        else: a(f"s_mov_b32 s{S_T2}, {cfg.diag_pad}")
        a.label("L_pad")
        a(f"s_memrealtime s[{S_T0}:{S_T1}]\ns_waitcnt lgkmcnt(0)\ns_sub_u32 s{S_T0}, s{S_T0}, s{S_EX}\ns_cmp_lt_u32 s{S_T0}, s{S_T2}\ns_cbranch_scc1 L_pad")
    k.flush_stamps()
    a("s_endpgm")
    for o in k.ool: a(o)

Cfg.g2_nomfma = False; Cfg.g2_hot = False; Cfg.g2_noload = False; Cfg.hflag = 'sc1'; Cfg.seg7 = 4; Cfg.nearly = 6; Cfg.binit = 0; Cfg.cap = 16; Cfg.la = 5; Cfg.x_nohst = False; Cfg.spf = None; Cfg.spfw = True; Cfg.n0 = 8; Cfg.n1 = 3; Cfg.cap0 = 16; Cfg.capseg = 0; Cfg.ssmf = ''; Cfg.cap2 = 9; Cfg.nl = 13; Cfg.pk0 = True; Cfg.fsleep = 1; Cfg.dynsig = None; Cfg.urst = 0; Cfg.x_nop2 = False; Cfg.psleep = 0; Cfg.hsplit = True; Cfg.asigpos = 16; Cfg.apeek = 3; Cfg.bpeek = 8; Cfg.earlyrd = 8; Cfg.diag2 = None; Cfg.wsoff = 0; Cfg.lst = None; Cfg.hgroups = tuple(range(8)); Cfg.htouch = 1; Cfg.urfirst = False; Cfg.e0seg = 5; Cfg.mseg = 1; Cfg.nps = 2; Cfg.pdelay = 0; Cfg.upos = 2; Cfg.hold = (4,); Cfg.uwait = 3; Cfg.dseg = -1; Cfg.bgn = 1; Cfg.g1prio = 1; Cfg.n2 = 4; Cfg.x_noy = False; Cfg.x_noconv = False; Cfg.x_nogelu = False; Cfg.x_nog2 = False; Cfg.x_trim = False; Cfg.kvf = 'nt'; Cfg.hwhat = 'ws'; Cfg.hold0 = 0; Cfg.np = 3; Cfg.lah = 12; Cfg.ldt = (0, 2); Cfg.snake = True; Cfg.ucopy = True; Cfg.xlds = True; Cfg.tprio = 0; Cfg.jitter = None; Cfg.usig = (5,0); Cfg.upk = 2; Cfg.g2p = 0; Cfg.mlead = 0; Cfg.uarr = 8; Cfg.uarr_d = 5; Cfg.w2x = False; Cfg.bq = 4; Cfg.rdnow = False; Cfg.coarse = False
HEADER = open("recurrent_scan__ssm_conv_h3__dense_activation_gelu__prompt.s.ref").read().split("; @launch")[0]
def full(cfg):
    kp = K(cfg); prologue(kp)
    km = K(cfg); km.role = 'm'; km.a.nlabel = 1000; gen_m(km)
    kx = K(cfg); kx.role = 'x'; gen_x(kx)
    errs = check(kp.a.lines + km.a.lines) + check(kp.a.lines + kx.a.lines)
    a = Asm()
    a.lines = kp.a.lines + km.a.lines[:km.split] + ["L_X:"] + kx.a.lines + km.a.lines[km.split:] + ["L_end:", "s_endpgm", "L_code_end:"]
    for e in errs: print(e, file=sys.stderr)
    assert not errs
    t = HEADER + f"; @launch grid=(256,1,1) block=(512,1,1) lds={LDS_BYTES}\n"
    t += f'.amdgcn_target "amdgcn-amd-amdhsa--gfx950"\n.text\n.globl {NAME}\n.p2align 8\n.type {NAME},@function\n'
    t += a.text()
    t += f'''.section .rodata,"a"
.p2align 6
.amdhsa_kernel {NAME}
  .amdhsa_next_free_vgpr 256
  .amdhsa_next_free_sgpr 102
  .amdhsa_accum_offset 256
  .amdhsa_group_segment_fixed_size 0
  .amdhsa_kernarg_size 112
  .amdhsa_user_sgpr_count 2
  .amdhsa_user_sgpr_kernarg_segment_ptr 1
  .amdhsa_system_sgpr_workgroup_id_x 1
  .amdhsa_float_denorm_mode_32 3
.end_amdhsa_kernel
'''
    return t
if __name__ == "__main__":
    cfg = Cfg()
    for kv in sys.argv[2:]:
        kk, val = kv.split("=", 1); assert hasattr(cfg, kk), kk; setattr(cfg, kk, eval(val))
    open(sys.argv[1], "w").write(full(cfg))
```

```python
import sys, struct
from asmlib import Asm, v, s, check

NAME = "recurrent_scan__ssm_conv_h3__dense_activation_gelu__prompt_kernel"
def f32(x): return "0x%08x" % struct.unpack("<I", struct.pack("<f", x))[0]

WS_CNT, WS_STATS, WS_STAMP, WS_UR, WS_Y, WS_H = 0, 0x20000, 0x40000, 0x100000, 0x300000, 0x500000
WS_SIZE = 0x500000 + 64*112*1024
CNT_UR, CNT_H, CNT_Y = 0, 128, 256
L_Q, L_W, L_KST = 0, 49152, 98304
L_VST = L_KST + 9*1024
L_CT = 115712; CH_STRIDE = 17600; H_STRIDE = 4224; U_OFF = 8448; U_STRIDE = 4576
L_MISC = L_CT + 2*CH_STRIDE
L_YST = L_MISC
L_CS = L_YST + 8192
L_SYNC = L_CS + 1024
L_TAP = L_SYNC + 64; L_B1 = L_TAP + 512; L_B2 = L_B1 + 256
L_GR = L_B2 + 128; L_ST = L_GR + 64
LDS_BYTES = L_ST + 1024
SPIN_MAX = 1 << 17

P_Q, P_K, P_V, P_SH, P_SSM, P_D, P_BX, P_W1, P_B1, P_W2, P_B2, P_OUT, P_DBG, P_WS = range(4, 32, 2)
S_WV, S_XCD, S_J, S_R, S_C, S_KC0, S_R2, S_C2, S_OFF, S_WAVE = range(32, 42)
S_A, S_B, S_T0, S_T1, S_T2, S_T3 = range(42, 48)
R_Q, R_K, R_V, R_W1, R_WS, R_DBG, R_W2, R_SSM, R_X0, R_OUT = range(48, 88, 4)
S_U0, S_U1, S_U2, S_U3, S_U4, S_U5, S_SPIN, S_PUB = range(88, 96)
S_EX = 96; S_ST = 100
S_ONE, S_PV = 3, 16
S_C16, S_CL = S_OFF, S_A

class Cfg:
    stamps = False
    kvpos = 2; g1stag = "xr"; g2map = 4; g2stag = "none"; ntq = ""; ntw2 = ""
    markseg = 0; ssmseg = 6; stseg = 6; urseg = 2; w2touch = 3
    urpos = -1
    hsigpos = 68
    xprio = 1
    code_pf = True
    diag_pad = 0; diag_amp = None; out_flags = "sc1"
    x_nomfma = False; x_nolds = False; x_nodma = False; segstamps = True

def srd(a, R, P, size):
    a(f"s_mov_b64 s[{R}:{R+1}], s[{P}:{P+1}]\ns_mov_b32 s{R+2}, {size}\ns_mov_b32 s{R+3}, 0x20000")

class K:
    def __init__(self, cfg): self.a = Asm(); self.cfg = cfg; self.ool = []; self.nls = 0
    def stamp(self, i):
        a, cfg = self.a, self.cfg
        if cfg.jitter:
            L = a.newlabel("Ljt"); D = a.newlabel("Ljd")
            a(f"s_memtime s[{S_ST}:{S_ST+1}]\ns_waitcnt lgkmcnt(0)\ns_mul_i32 s{S_ST}, s{S_ST}, 0x9E3779B1\ns_lshr_b32 s{S_ST+1}, s{S_ST}, {32-cfg.jitter[0]}\ns_cmp_lg_u32 s{S_ST+1}, 0\ns_cbranch_scc1 {D}")
            a(f"s_bfe_u32 s{S_ST}, s{S_ST}, {hex((cfg.jitter[1] << 16) | 10)}")
            a.label(L); a(f"s_sleep 4\ns_sub_u32 s{S_ST}, s{S_ST}, 1\ns_cbranch_scc0 {L}"); a.label(D); a.lg = []
        if cfg.diag2 and self.role == cfg.diag2[0] and i in cfg.diag2[1:3]:
            a(f"s_memrealtime s[{S_ST}:{S_ST+1}]\ns_waitcnt lgkmcnt(0)"); a.lg = []
            a(f"s_mov_b32 s{S_EX+1}, s{S_ST}" if i == cfg.diag2[1] else f"s_sub_u32 s{S_EX+1}, s{S_ST}, s{S_EX+1}")
        if cfg.diag_amp and cfg.diag_amp[0] == i:
            a(f"s_memrealtime s[{S_ST}:{S_ST+1}]\ns_waitcnt lgkmcnt(0)"); a.lg = []
        if cfg.stamps == "tail" and i != 0 and (self.role, i) not in (("x", 13), ("x", 14), ("m", 10), ("m", 12), ("m", 13)): return
        if cfg.stamps == "min" and i == 0:
            a("v_writelane_b32 v255, s86, 23"); return
        if cfg.stamps == "min" and not (i == 13 and self.role == "m"): return
        if cfg.stamps:
            a(f"s_memrealtime s[{S_ST}:{S_ST+1}]\ns_memtime s[{S_EX}:{S_EX+1}]\ns_waitcnt lgkmcnt(0)\nv_writelane_b32 v255, s{S_ST}, {i}\nv_writelane_b32 v255, s{S_EX}, {32+i}")
            if i == 0: a("v_writelane_b32 v255, s86, 23")
            a.lg = []
    LS = [52, 54, 56, 58, 60, 62, 68, 70, 72, 74, 76, 78]
    def lstamp(self, grp):
        if self.cfg.stamps and self.cfg.lst == grp:
            j = self.nls; self.nls += 1
            self.a(f"s_memtime s[{self.LS[j]}:{self.LS[j]+1}]")
    def flush_stamps(self):
        a = self.a; cfg = self.cfg
        if self.nls:
            a("s_waitcnt lgkmcnt(0)")
            for j in range(self.nls): a(f"v_writelane_b32 v255, s{self.LS[j]}, {(24+j) if j < 8 else (48+j)}")
        if cfg.diag2 and self.role == cfg.diag2[0]:
            a(f"s_mul_i32 s{S_T2}, s{S_EX+1}, {cfg.diag2[3]}\ns_add_u32 s{S_T2}, s{S_T2}, 2000\ns_min_u32 s{S_T2}, s{S_T2}, 200000")
            if cfg.diag2[4] is not None: a(f"s_lshl2_add_u32 s{S_T0}, s2, s{S_WV}\ns_cmp_eq_u32 s{S_T0}, {cfg.diag2[4]}\ns_cselect_b32 s{S_T2}, s{S_T2}, 0")
            a.label("L_pad2")
            a(f"s_memrealtime s[{S_T0}:{S_T1}]\ns_waitcnt lgkmcnt(0)\ns_sub_u32 s{S_T0}, s{S_T0}, s{S_EX}\ns_cmp_lt_u32 s{S_T0}, s{S_T2}\ns_cbranch_scc1 L_pad2")
        if self.cfg.stamps:
            a(f"s_lshl_b32 s{S_T0}, s2, 3\ns_add_u32 s{S_T0}, s{S_T0}, s{S_WAVE}\ns_lshl_b32 s{S_T0}, s{S_T0}, 8\ns_add_u32 s{S_T0}, s{S_T0}, {WS_STAMP}")
            a(f"v_lshlrev_b32 v254, 2, v0\ns_mov_b64 exec, 0x802000\nbuffer_store_dword v255, v254, s[{R_WS}:{R_WS+3}], s{S_T0} offen sc1" if self.cfg.stamps == "min" and not self.cfg.lst else f"v_lshlrev_b32 v254, 2, v0\nbuffer_store_dword v255, v254, s[{R_WS}:{R_WS+3}], s{S_T0} offen")
    def vpoll(self, vaddr, vdata, R, expect):
        a = self.a; L = a.newlabel("Lpoll"); D = a.newlabel("Lpolld")
        a(f"s_mov_b32 s{S_SPIN}, 0")
        a.label(L)
        a(f"buffer_load_dword v{vdata}, v{vaddr}, s[{R}:{R+3}], 0 offen sc1\ns_waitcnt vmcnt(0)")
        a(f"v_cmp_ne_u32 vcc, {expect}, v{vdata}")
        a(f"s_add_u32 s{S_SPIN}, s{S_SPIN}, 1\ns_cmp_gt_u32 s{S_SPIN}, {SPIN_MAX}\ns_cbranch_scc1 {D}\ns_cbranch_vccnz {L}")
        a.label(D)
    def spoll(self, off_sgpr, expect):
        a = self.a; L = a.newlabel("Lsp"); D = a.newlabel("Lspd")
        a(f"s_mov_b32 s{S_SPIN}, 0")
        a.label(L)
        a(f"s_load_dword s{S_PV}, s[{P_WS}:{P_WS+1}], s{off_sgpr} glc\ns_add_u32 s{S_SPIN}, s{S_SPIN}, 1\ns_waitcnt lgkmcnt(0)")
        a(f"s_cmp_eq_u32 s{S_PV}, {expect}\ns_cbranch_scc1 {D}")
        if self.cfg.psleep: a(f"s_sleep {self.cfg.psleep}")
        a(f"s_cmp_gt_u32 s{S_SPIN}, {SPIN_MAX}\ns_cbranch_scc0 {L}")
        a.label(D); a.lg = []
    def signal(self, cnt, inc=1): self.a(f"s_movk_i32 s{S_ONE}, {inc}\ns_atomic_add s{S_ONE}, s[{P_WS}:{P_WS+1}], s{cnt}")
    def lds_arrive(self, word, vtmp, vone):
        a = self.a
        a(f"v_mov_b32 v{vtmp}, {L_SYNC}\nv_mov_b32 v{vone}, 1\ns_mov_b64 exec, 1")
        a.lds(f"ds_add_u32 v{vtmp}, v{vone} offset:{4*word}")
        a("s_mov_b64 exec, -1")
    def lds_wait(self, word, vtmp, vone, setaddr=True, sleep=0):
        a = self.a; L = a.newlabel("Lsy"); D = a.newlabel("Lsyd")
        if setaddr: a(f"v_mov_b32 v{vtmp}, {L_SYNC}")
        a(f"s_mov_b32 s{S_SPIN}, 0")
        a.label(L)
        a(f"ds_read_b32 v{vone}, v{vtmp} offset:{4*word}\ns_add_u32 s{S_SPIN}, s{S_SPIN}, 1\ns_waitcnt lgkmcnt(0)")
        a(f"v_cmp_ne_u32 vcc, 4, v{vone}\ns_cmp_gt_u32 s{S_SPIN}, {SPIN_MAX*8}\ns_cbranch_scc1 {D}")
        if sleep: a(f"s_cbranch_vccz {D}\ns_sleep {sleep}\ns_branch {L}")
        else: a(f"s_cbranch_vccnz {L}")
        a.label(D); a.lg = []
    def lds_peek(self, word, vaddr, vdst, tag): self.a.lds(f"ds_read_b32 v{vdst}, v{vaddr} offset:{4*word}", tag)
    def lds_check(self, word, vaddr, vdst, tag):
        a = self.a; L = a.newlabel("Lck"); B = a.newlabel("Lckb"); S = a.newlabel("Lcks")
        a.wait(lg=tag)
        a(f"v_cmp_ne_u32 vcc, 4, v{vdst}\ns_mov_b32 s{S_SPIN}, 0\ns_cbranch_vccnz {L}"); a.label(B)
        self.ool.append(f"{L}:\nds_read_b32 v{vdst}, v{vaddr} offset:{4*word}\ns_add_u32 s{S_SPIN}, s{S_SPIN}, 1\ns_waitcnt lgkmcnt(0)\nv_cmp_ne_u32 vcc, 4, v{vdst}\n"
                        f"s_cmp_gt_u32 s{S_SPIN}, {SPIN_MAX*8}\ns_cbranch_scc1 {B}\ns_cbranch_vccnz {L}\ns_branch {B}")
    def speek(self, off): self.a(f"s_load_dword s{S_PV}, s[{P_WS}:{P_WS+1}], s{off} glc")
    def scheck(self, off, mask, expect):
        a = self.a; L = a.newlabel("Lsc"); B = a.newlabel("Lscb")
        m = f"s_and_b32 s{S_PV}, s{S_PV}, {mask}\n" if mask else ""
        a(f"s_mov_b32 s{S_SPIN}, 0\ns_waitcnt lgkmcnt(0)\n{m}s_cmp_lg_u32 s{S_PV}, {expect}\ns_cbranch_scc1 {L}"); a.label(B); a.lg = []
        self.ool.append(f"{L}:\ns_load_dword s{S_PV}, s[{P_WS}:{P_WS+1}], s{off} glc\ns_add_u32 s{S_SPIN}, s{S_SPIN}, 1\ns_cmp_gt_u32 s{S_SPIN}, {SPIN_MAX}\ns_waitcnt lgkmcnt(0)\ns_cbranch_scc1 {B}\n"
                        f"{m}s_cmp_lg_u32 s{S_PV}, {expect}\ns_cbranch_scc1 {L}\ns_branch {B}")
    def lds_sync(self, word, vtmp, vone):
        self.a.wait(lg="all"); self.lds_arrive(word, vtmp, vone); self.lds_wait(word, vtmp, vone, setaddr=False)

def prologue(k):
    a, cfg = k.a, k.cfg
    a.label(NAME)
    if cfg.stamps: a("s_memrealtime s[86:87]")
    a("s_cmp_ge_u32 s2, 256\ns_cbranch_scc1 L_end")
    a("s_load_dwordx16 s[4:19], s[0:1], 0\ns_load_dwordx8 s[20:27], s[0:1], 64\ns_load_dwordx4 s[28:31], s[0:1], 96")
    if cfg.code_pf:
        a(f"s_getpc_b64 s[{S_T0}:{S_T1}]")
        a.label("L_pc")
        a(f"s_lshr_b32 s{S_T2}, s2, 3\ns_lshl_b32 s{S_T2}, s{S_T2}, 10\nv_lshl_add_u32 v2, v0, 1, s{S_T2}\nv_min_u32 v2, L_code_end-L_pc-4, v2")
        a(f"v_mov_b32 v3, s{S_T1}\nv_add_co_u32 v2, vcc, s{S_T0}, v2\ns_mov_b64 exec, 1\ns_nop 0\nv_addc_co_u32 v3, vcc, 0, v3, vcc")
        a(f"global_load_dword v254, v[2:3], off\ns_mov_b64 exec, -1")
    if cfg.stamps: a("v_mov_b32 v255, 0")
    if cfg.diag_pad or cfg.diag_amp or cfg.diag2: a(f"s_memrealtime s[{S_EX}:{S_EX+1}]")
    a("v_lshrrev_b32 v1, 6, v0\nv_and_b32 v0, 63, v0")
    a(f"v_readfirstlane_b32 s{S_WAVE}, v1")
    a(f"s_and_b32 s{S_XCD}, s2, 7\ns_lshr_b32 s{S_J}, s2, 3")
    a(f"s_lshr_b32 s{S_T0}, s{S_XCD}, 1\ns_and_b32 s{S_T1}, s{S_XCD}, 1")
    a(f"s_and_b32 s{S_T2}, s{S_J}, 3\ns_lshr_b32 s{S_CL}, s{S_J}, 2")
    a(f"s_lshl2_add_u32 s{S_R}, s{S_T0}, s{S_T2}\ns_lshl3_add_u32 s{S_C16}, s{S_T1}, s{S_CL}\ns_sub_u32 s{S_C}, s{S_C16}, s{S_T1}\ns_min_u32 s{S_C}, s{S_C}, 13")
    if cfg.g1stag == "four":
        a(f"s_and_b32 s{S_T0}, s{S_T0}, 1")
        a(f"s_add_u32 s{S_KC0}, s{S_T2}, s{S_CL}\ns_and_b32 s{S_KC0}, s{S_KC0}, 3\ns_lshl1_add_u32 s{S_KC0}, s{S_KC0}, s{S_T0}")
    elif cfg.g1stag == "twox": a(f"s_add_u32 s{S_KC0}, s{S_T2}, s{S_CL}\ns_and_b32 s{S_KC0}, s{S_KC0}, 1\ns_lshl2_add_u32 s{S_KC0}, s{S_KC0}, s{S_T0}")
    elif cfg.g1stag == "two": a(f"s_add_u32 s{S_KC0}, s{S_T2}, s{S_CL}\ns_and_b32 s{S_KC0}, s{S_KC0}, 1\ns_lshl_b32 s{S_KC0}, s{S_KC0}, 2")
    elif cfg.g1stag == "xcd": a(f"s_mov_b32 s{S_KC0}, s{S_XCD}")
    elif cfg.g1stag == "xr": a(f"s_lshl_b32 s{S_KC0}, s{S_T0}, 1")
    else: a(f"s_mov_b32 s{S_KC0}, 0")
    a(f"s_lshl1_add_u32 s{S_T3}, s{S_T2}, s{S_CL}")
    if cfg.g2map == 3: a(f"s_xor_b32 s{S_C2}, s{S_CL}, 4\ns_lshl1_add_u32 s{S_R2}, s{S_R}, s{S_T1}")
    elif cfg.g2map == 4:
        a(f"s_and_b32 s{S_R2}, s{S_CL}, 1\ns_lshr_b32 s{S_C2}, s{S_CL}, 1\ns_xor_b32 s{S_T3}, s{S_R2}, 1\ns_cmp_lt_u32 s{S_CL}, 6\ns_cselect_b32 s{S_T3}, s{S_T1}, s{S_T3}\ns_cselect_b32 s{S_R2}, s{S_R2}, s{S_T1}")
        a(f"s_lshl2_add_u32 s{S_C2}, s{S_T3}, s{S_C2}\ns_lshl1_add_u32 s{S_R2}, s{S_R}, s{S_R2}")
    elif cfg.g2map == 1: a(f"s_and_b32 s{S_C2}, s{S_T3}, 7\ns_lshl1_add_u32 s{S_R2}, s{S_R}, s{S_T1}")
    else: a(f"s_and_b32 s{S_R2}, s{S_CL}, 1\ns_lshl1_add_u32 s{S_R2}, s{S_R}, s{S_R2}\ns_bfe_u32 s{S_C2}, s{S_T3}, 0x20001\ns_lshl2_add_u32 s{S_C2}, s{S_T1}, s{S_C2}")
    a(f"s_mov_b32 s{R_Q+2}, {2<<20}\ns_mov_b32 s{R_Q+3}, 0x20000")
    a(f"s_and_b32 s{S_WV}, s{S_WAVE}, 3\nv_lshlrev_b32 v1, 4, v0\ns_lshl_b32 s{S_B}, s{S_WV}, 11")
    a(f"v_lshrrev_b32 v10, 3, v0\nv_lshrrev_b32 v11, 4, v0\nv_and_b32 v12, 7, v0")
    a(f"s_cmp_ge_u32 s{S_WAVE}, 4\ns_cbranch_scc1 L_X")

def gen_x(k):
    a, cfg, stamp = k.a, k.cfg, k.stamp
    x = S_WV
    a.cap = cfg.cap
    V16, W2A, W2B, TR, HA, TRH = 1, 2, 3, 4, 8, 138
    T0, T1, T2, T3 = 10, 11, 12, 13
    VQ, VW, VKA, VKB, VHALO, VTA, PK, PH, PV, PST, VMK, VMD = 14, 18, 22, 23, 24, 25, 26, 27, 28, 29, 30, 31
    TAPS, JUNK = 108, 112
    ACC2, AR, WB = 14, 78, 142
    a(f"v_xor_b32 v{T3}, v{T2}, v{T1}\nv_lshlrev_b32 v{T3}, 4, v{T3}\nv_lshl_add_u32 v{VQ}, v{T0}, 10, v{T3}")
    a(f"s_lshl2_add_u32 s{S_T0}, s{S_R}, s{x}\ns_lshl_b32 s{S_T0}, s{S_T0}, 15\ns_movk_i32 s{S_T2}, {8192-1024}\ns_lshl_b32 s{S_T3}, s{S_T2}, 1")
    a(f"v_add_u32 v{VQ}, s{S_T0}, v{VQ}")
    a(f"v_xor_b32 v{VQ+1}, 64, v{VQ}\nv_add_u32 v{VQ+2}, s{S_T3}, v{VQ}\nv_add_u32 v{VQ+1}, s{S_T2}, v{VQ+1}\nv_add_u32 v{VQ+3}, s{S_T3}, v{VQ+1}")
    d = 4*3584 - 1024
    a(f"v_lshlrev_b32 v{T3}, 5, v{T1}\nv_xor_b32 v{T3}, v{T3}, v{V16}\nv_and_b32 v{T3}, 0xff, v{T3}\nv_xor_b32 v{VW+2}, 0x80, v{T3}")
    a(f"s_lshl_b32 s{S_U1}, s{S_C}, 8\ns_mul_i32 s{S_T1}, s{x}, {16*3584}\ns_add_u32 s{S_T0}, s{S_U1}, s{S_T1}")
    a(f"s_movk_i32 s{S_T1}, 3584\ns_movk_i32 s{S_T2}, {d}\ns_lshl1_add_u32 s{S_T3}, s{S_T2}, s{S_T0}")
    a(f"v_mad_u32_u24 v{VW}, v{T1}, s{S_T1}, v{T3}\nv_mad_u32_u24 v{VW+2}, v{T1}, s{S_T1}, v{VW+2}")
    a(f"v_add_u32 v{VW}, s{S_T0}, v{VW}\nv_add_u32 v{VW+2}, s{S_T3}, v{VW+2}\nv_add_u32 v{VW+1}, s{S_T2}, v{VW}\nv_add_u32 v{VW+3}, s{S_T2}, v{VW+2}")
    a(f"s_lshl_b32 s{S_U1}, s{x}, 12\ns_mov_b32 s{R_W1+2}, {512*3584}\ns_mov_b32 s{R_W1+3}, s{R_Q+3}")
    a("s_waitcnt lgkmcnt(0)")
    a(f"s_mov_b64 s[{R_Q}:{R_Q+1}], s[{P_Q}:{P_Q+1}]\ns_mov_b64 s[{R_W1}:{R_W1+1}], s[{P_W1}:{P_W1+1}]")
    if cfg.wsoff: a(f"s_add_u32 s{P_WS}, s{P_WS}, {cfg.wsoff}\ns_addc_u32 s{P_WS+1}, s{P_WS+1}, 0")
    def chunk_ops(i):
        slot = i % 3
        def mk(kind, n):
            def f():
                if n == 0:
                    if kind == "q":
                        a(f"s_add_u32 s{S_T0}, s{S_KC0}, {i}\ns_and_b32 s{S_T0}, s{S_T0}, 7\ns_lshl_b32 s{S_U3}, s{S_T0}, 7\ns_mul_i32 s{S_U4}, s{S_T0}, {64*3584}")
                    a(f"s_add_u32 m0, s{S_U1}, {(L_Q if kind=='q' else L_W) + slot*16384}\ns_nop 0")
                off = f" offset:{1024*n}" if n else ""
                if kind == "q": a.vmem(f"buffer_load_dwordx4 v{VQ+n}, s[{R_Q}:{R_Q+3}], s{S_U3} offen{off} {cfg.ntq} lds", f"c{i}")
                else: a.vmem(f"buffer_load_dwordx4 v{VW+n}, s[{R_W1}:{R_W1+3}], s{S_U4} offen{off} {cfg.ntq} lds", f"c{i}")
            return f
        return [mk("q", n) for n in range(4)] + [mk("w", n) for n in range(4)]
    def setup_rest():
        stamp(0)
        a(f"v_mov_b32 v{T1}, v{T2}")
        srd(a, R_WS, P_WS, WS_SIZE); srd(a, R_DBG, P_DBG, 256); srd(a, R_W2, P_W2, 1792*1024); srd(a, R_SSM, P_SSM, 2 << 20)
        a(f"s_lshl_b32 s{S_T0}, s{S_XCD}, 6\ns_lshl1_add_u32 s{S_T0}, s{S_J}, s{S_T0}\ns_lshr_b32 s{S_T1}, s{x}, 1\ns_add_u32 s{S_U5}, s{S_T0}, s{S_T1}")
        a(f"s_mul_i32 s{S_T1}, s{S_T1}, {CH_STRIDE}\ns_and_b32 s{S_T2}, s{x}, 1")
        a(f"s_lshl_b32 s{S_T3}, s{S_T2}, 11\ns_add_u32 s{S_H1}, s{S_T1}, s{S_T3}\ns_add_u32 s{S_H1}, s{S_H1}, {L_CT+H_STRIDE+128}")
        a(f"s_mul_i32 s{S_T3}, s{S_T2}, {H_STRIDE}\ns_add_u32 s{S_T3}, s{S_T3}, s{S_T1}\ns_add_u32 s{S_T3}, s{S_T3}, {L_CT+128-512}")
        a(f"s_mul_i32 s{S_T0}, s{S_T2}, {U_STRIDE}\ns_add_u32 s{S_T0}, s{S_T0}, s{S_T1}\ns_add_u32 s{S_T0}, s{S_T0}, {L_CT+U_OFF+4096}")
        Z = JUNK
        a(f"v_mov_b32 v{T2}, s{S_T0}\nv_mov_b32 v{T3}, s{S_T3}\nv_cmp_gt_u32 vcc, 56, v0")
        for i in range(4): a(f"v_mov_b32 v{Z+i}, 0")
        a(f"v_cndmask_b32 v{T3}, v{T3}, v{T2}, vcc\nv_lshl_add_u32 v{T3}, v0, 3, v{T3}\nv_subrev_u32 v{T2}, 4, v{T2}")
        a.lds(f"ds_write_b64 v{T3}, v[{Z}:{Z+1}]")
        a.lds(f"ds_write_b32 v{T2}, v{Z}")
        a(f"v_lshlrev_b32 v{VMK}, 2, v{T1}")
        a(f"v_and_b32 v{T2}, 6, v{T0}\nv_xor_b32 v{T2}, v{T2}, v{T1}\nv_lshlrev_b32 v{T2}, 4, v{T2}\nv_lshl_add_u32 v{W2A}, v{T0}, 10, v{T2}")
        a(f"s_mul_i32 s{S_T0}, s{x}, {448*1024}\ns_lshl_b32 s{S_T1}, s{S_C2}, 7\ns_add_u32 s{S_T0}, s{S_T0}, s{S_T1}")
        a(f"v_add_u32 v{W2A}, s{S_T0}, v{W2A}\nv_add_u32 v{W2B}, {8192-1024}, v{W2A}")
        a(f"v_lshrrev_b32 v{T3}, 2, v0\nv_lshlrev_b32 v{T3}, 7, v{T3}\nv_and_b32 v{T2}, 3, v{T0}\nv_lshl_add_u32 v{T3}, v{T2}, 5, v{T3}\nv_and_b32 v{T2}, 3, v0\nv_lshl_add_u32 v{T3}, v{T2}, 3, v{T3}")
        a(f"v_add_u32 v{TR}, s{S_B}, v{T3}\nv_xor_b32 v{TR+1}, 32, v{TR}\nv_xor_b32 v{TR+2}, 64, v{TR}\nv_xor_b32 v{TR+3}, 0x60, v{TR}")
        for dt in range(4): a(f"v_add_u32 v{TRH+dt}, 65536, v{TR+dt}")
        a(f"s_mul_i32 s{S_T0}, s{S_R2}, {224*1024}\ns_mul_i32 s{S_T1}, s{x}, {56*1024}\ns_add_u32 s{S_T0}, s{S_T0}, s{S_T1}\ns_add_u32 s{S_T0}, s{S_T0}, {WS_H}")
        a(f"v_add_u32 v{HA}, s{S_T0}, v{V16}")
        a(f"s_lshr_b32 s{S_T0}, s{S_J}, 3\ns_lshl2_add_u32 s{S_T0}, s{S_XCD}, s{S_T0}\ns_lshl2_add_u32 s{S_T0}, s{S_T0}, s{x}\ns_lshl_b32 s{S_PUB}, s{S_T0}, 8")
        a(f"s_lshl_b32 s{S_T0}, s{S_U5}, 12\ns_and_b32 s{S_T1}, s{x}, 1\ns_lshl_b32 s{S_T1}, s{S_T1}, 11\ns_add_u32 s{S_U2}, s{S_T0}, s{S_T1}")
        a(f"v_xor_b32 v{T3}, 7, v{T1}\nv_lshlrev_b32 v{T3}, 4, v{T3}\nv_lshl_add_u32 v{PST}, v{T0}, 13, v{T3}")
        a(f"s_lshl2_add_u32 s{S_T2}, s{S_XCD}, s{x}\ns_lshr_b32 s{S_T1}, s{S_J}, 3\ns_lshl2_add_u32 s{S_T0}, s{S_T2}, s{S_T1}\ns_lshl_b32 s{S_US}, s{S_T0}, 8")
        a(f"s_lshl_b32 s{S_T2}, s{S_T2}, 16\ns_lshl_b32 s{S_T3}, s{S_J}, 7\ns_sub_u32 s{S_T2}, s{S_T2}, s{S_T3}\ns_add_u32 s{S_UA}, s{S_T2}, {WS_UR + 2*1984}\ns_add_u32 s{S_UA+1}, s{S_UA}, 4096")
        srd(a, R_K, P_K, 2 << 20); srd(a, R_V, P_V, 2 << 20)
        a(f"s_lshl_b32 s{S_T0}, s{x}, 1\nv_xor_b32 v{T3}, s{S_T0}, v{T1}\nv_lshlrev_b32 v{T3}, 4, v{T3}\nv_lshl_add_u32 v{VKA}, v{T0}, 10, v{T3}")
        a(f"v_xor_b32 v{VKB}, 16, v{VKA}\nv_add_u32 v{VKB}, {8192-1024}, v{VKB}")
        a(f"s_lshl2_add_u32 s{S_KV}, s{S_J}, s{x}\ns_lshl_b32 s{S_KV}, s{S_KV}, 7\ns_add_u32 s{S_KV}, s{S_KV}, s{S_XCD}\ns_lshl_b32 s{S_KV}, s{S_KV}, 7")
        a(f"v_lshrrev_b32 v{PV}, 5, v0\nv_add_u32 v{PV}, s{S_T0}, v{PV}")
        a(f"v_bfe_u32 v{T2}, v0, 3, 2\nv_lshlrev_b32 v{T2}, 2, v{T2}\nv_lshl_add_u32 v{T2}, v{T1}, 10, v{T2}")
        a(f"v_add_u32 v{T3}, 7, v{T1}\nv_and_b32 v{T3}, 7, v{T3}\nv_xor_b32 v{T3}, v{PV}, v{T3}\nv_lshl_add_u32 v{PH}, v{T3}, 4, v{T2}\nv_add_u32 v{PH}, {L_KST}, v{PH}")
        a(f"v_xor_b32 v{T3}, v{PV}, v{T1}\nv_lshl_add_u32 v{PK}, v{T3}, 4, v{T2}")
        a(f"v_add_u32 v{PV}, {L_VST}, v{PK}\nv_add_u32 v{PK}, {L_KST+1024}, v{PK}")
        a(f"s_lshl_b32 s{S_T0}, s{x}, 7\ns_add_u32 s{S_T0}, s{S_T0}, {L_TAP}\nv_lshl_add_u32 v{VTA}, v{T0}, 4, s{S_T0}\nv_add_u32 v{VGR}, {L_GR}, v{V16}\nv_mov_b32 v{VHI}, 0xffff0000")
        a(f"s_lshl_b32 s{S_SB}, s{S_R}, 10\ns_add_u32 s{S_SB}, s{S_SB}, {WS_STATS}")
        a.wait(lg="all")
    S_US, S_UA, S_SB, S_KV = 98, 0, 99, S_U0
    VGR, VHI, GD = 116, 117, 120
    def kv_loads():
        a(f"s_add_u32 m0, s{S_B}, {L_KST+1024}\ns_nop 0")
        a.vmem(f"buffer_load_dwordx4 v{VKA}, s[{R_K}:{R_K+3}], s{S_KV} offen {cfg.kvf} lds", "kv")
        a.vmem(f"buffer_load_dwordx4 v{VKB}, s[{R_K}:{R_K+3}], s{S_KV} offen offset:1024 {cfg.kvf} lds", "kv")
        L = a.newlabel("Lhalo"); D = a.newlabel("Lsmd")
        a(f"s_cmp_eq_u32 s{x}, 3\ns_cbranch_scc1 {L}")
        a(f"s_lshl_b32 s{S_T0}, s{S_XCD}, 9\ns_lshl_b32 s{S_T1}, s{S_C}, 8\ns_cmp_eq_u32 s{x}, 0\ns_cselect_b64 s[{S_T2}:{S_T3}], s[{P_SH}:{P_SH+1}], s[{P_B1}:{P_B1+1}]\ns_cselect_b32 s{S_T0}, s{S_T0}, s{S_T1}")
        a(f"s_lshl_b32 s{S_T1}, s{S_C2}, 7\ns_cmp_eq_u32 s{x}, 2\ns_cselect_b64 s[{S_T2}:{S_T3}], s[{P_B2}:{P_B2+1}], s[{S_T2}:{S_T3}]\ns_cselect_b32 s{S_T0}, s{S_T1}, s{S_T0}")
        a(f"v_add_u32 v{VHALO}, s{S_T0}, v{V16}\ns_lshr_b32 s{S_T0}, 32, s{x}\ns_lshl_b32 s{S_T1}, s{S_T0}, 5\ns_sub_u32 m0, {L_TAP+1024}, s{S_T1}\ns_bfm_b64 exec, s{S_T0}, 0")
        a(f"global_load_lds_dwordx4 v{VHALO}, s[{S_T2}:{S_T3}]\ns_branch {D}")
        a.label(L)
        a(f"s_sub_u32 s{S_T0}, s{S_KV}, {56*1024}\ns_cselect_b32 s{S_T0}, 0, s{S_T0}\ns_cselect_b32 s{S_T1}, 0x80000010, 16")
        a(f"v_xor_b32 v{VHALO}, s{S_T1}, v{VKA}\ns_mov_b32 m0, {L_KST}\ns_lshl_b64 exec, -1, 40")
        a(f"buffer_load_dwordx4 v{VHALO}, s[{R_K}:{R_K+3}], s{S_T0} offen {cfg.kvf} lds")
        a.label(D)
        a.vm.append("kv")
        a(f"s_add_u32 m0, s{S_B}, {L_VST}\ns_mov_b64 exec, -1")
        a.vmem(f"buffer_load_dwordx4 v{VKA}, s[{R_V}:{R_V+3}], s{S_KV} offen {cfg.kvf} lds", "kv")
        a.vmem(f"buffer_load_dwordx4 v{VKB}, s[{R_V}:{R_V+3}], s{S_KV} offen offset:1024 {cfg.kvf} lds", "kv")
    KR, VR, KF, TF, VF, OUT, PA = 32, 44, 56, 80, 88, 92, 100
    prep = []; P = prep.append
    P(("lds", f"ds_read_b128 v[{TAPS}:{TAPS+3}], v{VTA}"))
    P(("lds", f"ds_read_b32 v{KR+1}, v{PH} offset:{5*128}"))
    P(("lds", f"ds_read2_b32 v[{KR+2}:{KR+3}], v{PH} offset0:{6*32} offset1:{7*32}"))
    for i in range(4): P(("lds", f"ds_read2_b32 v[{KR+4+2*i}:{KR+5+2*i}], v{PK} offset0:{64*i} offset1:{64*i+32}"))
    for i in range(4): P(("lds", f"ds_read2_b32 v[{VR+2*i}:{VR+1+2*i}], v{PV} offset0:{64*i} offset1:{64*i+32}"))
    nrd = len(prep)
    P(("waitlg",))
    for m in range(4):
        P(("v", f"v_lshlrev_b32 v{TF+2*m}, 16, v{TAPS+m}")); P(("v", f"v_and_b32 v{TF+2*m+1}, v{VHI}, v{TAPS+m}"))
    for e in range(2):
        for i in range(1, 12): P(("v", f"v_lshlrev_b32 v{KF+i}, 16, v{KR+i}" if e == 0 else f"v_and_b32 v{KF+i}, v{VHI}, v{KR+i}"))
        for t in range(8): P(("v", f"v_mul_f32 v{PA+t}, v{KF+1+t}, v{TF+4*e+3}"))
        for tau in (2, 1, 0):
            for t in range(8): P(("v", f"v_fmac_f32 v{PA+t}, v{KF+4+t-tau}, v{TF+4*e+tau}"))
        for t in range(8):
            P(("v", f"v_lshlrev_b32 v{VF+(t&1)}, 16, v{VR+t}" if e == 0 else f"v_and_b32 v{VF+(t&1)}, v{VHI}, v{VR+t}"))
            P(("v", f"v_mul_f32 v{PA+t}, v{PA+t}, v{VF+(t&1)}"))
        for m in range(4): P(("v", f"v_cvt_pk_bf16_f32 v{OUT+4*e+m}, v{PA+7-2*m}, v{PA+6-2*m}"))
        P(("st", e))
    def emit(op):
        if op[0] == "lds": a.lds(op[1], "pr")
        elif op[0] == "v": a(op[1])
        elif op[0] == "waitlg": a.wait(lg="pr")
        else: a.vmem(f"buffer_store_dwordx4 v[{OUT+4*op[1]}:{OUT+4*op[1]+3}], v{PST}, s[{R_WS}:{R_WS+3}], s{S_UA+op[1]} offen sc1", "ur")
    def g_read(): a("s_mov_b64 exec, 15"); a.lds(f"ds_read_b128 v[{GD}:{GD+3}], v{VGR}", "ud"); a("s_mov_b64 exec, -1")
    def publish():
        L = a.newlabel("Lpb")
        a.wait(lg="ud")
        a(f"s_cmp_lg_u32 s{x}, 0\ns_cbranch_scc1 {L}\ns_lshl_b32 s{S_T0}, s{S_C16}, 6\ns_add_u32 s{S_T0}, s{S_T0}, s{S_SB}\ns_mov_b64 exec, 15")
        a(f"buffer_store_dwordx4 v[{GD}:{GD+3}], v{V16}, s[{R_WS}:{R_WS+3}], s{S_T0} offen sc1\ns_mov_b64 exec, -1")
        a.label(L)
    def stats_dma():
        L = a.newlabel("Lsd")
        a(f"s_cmp_lg_u32 s{x}, 1\ns_cbranch_scc1 {L}\ns_mov_b32 m0, {L_ST}\ns_nop 0")
        a(f"buffer_load_dwordx4 v{V16}, s[{R_WS}:{R_WS+3}], s{S_SB} offen sc1 lds")
        a.label(L)
    S_H1 = 17; S_PW, S_PS = R_K, R_K + 2; S_HO = R_V
    a(f"s_cmp_eq_u32 s{S_CL}, 7\ns_cbranch_scc1 L_Xs")
    a.cap = cfg.cap0
    c1 = chunk_ops(1)
    for f in chunk_ops(0) + c1[:cfg.n1]: f()
    a.label("L_Xs")
    setup_rest()
    def ssm_loads():
        a(f"s_mov_b32 m0, s{S_H1}\ns_lshl_b32 s{S_T0}, s{S_U5}, 12")
        a.vmem(f"buffer_load_dwordx4 v{V16}, s[{R_SSM}:{R_SSM+3}], s{S_U2} offen {cfg.ssmf} lds", "h")
        a.vmem(f"buffer_load_dwordx4 v{V16}, s[{R_SSM}:{R_SSM+3}], s{S_U2} offen offset:1024 {cfg.ssmf} lds", "h")
        a(f"s_add_u32 s{S_T0}, s{S_T0}, 2044\ns_load_dword s{S_U0}, s[{P_SSM}:{P_SSM+1}], s{S_T0}")
    SG = [4*m + n for m in range(7) for n in (0, 1)] + [4*m + n for m in range(7) for n in (2, 3)]
    def w2_dma(i):
        ii = i % 14
        a(f"s_add_u32 m0, s{S_B}, {ii*8192}\ns_mov_b32 s{S_T0}, {SG[i]*16384}")
        a.vmem(f"buffer_load_dwordx4 v{W2A}, s[{R_W2}:{R_W2+3}], s{S_T0} offen {cfg.ntw2} lds", f"w{i}")
        a.vmem(f"buffer_load_dwordx4 v{W2B}, s[{R_W2}:{R_W2+3}], s{S_T0} offen offset:1024 {cfg.ntw2} lds", f"w{i}")
    def ustage(st=True):
        L = a.newlabel("Lurok")
        a(f"s_cmp_eq_u32 s{S_PV}, 8\ns_cbranch_scc1 {L}")
        keep = list(a.lg); k.spoll(S_PUB, 8); a.lg = keep
        a.label(L)
        if st: stamp(11)
        L = a.newlabel("Lhs")
        a(f"s_cmp_lg_u32 s{S_CL}, 7\ns_cbranch_scc1 {L}"); stats_dma(); a.label(L)
        a(f"s_xor_b32 s{S_T1}, s{x}, 3\ns_lshl_b32 s{S_T1}, s{S_T1}, 10\ns_and_b32 s{S_T0}, s{S_U5}, 0xfffffffe\ns_lshl_b32 s{S_T0}, s{S_T0}, 12\ns_add_u32 s{S_T0}, s{S_T0}, s{S_T1}\ns_add_u32 s{S_T0}, s{S_T0}, {WS_UR}")
        for ch in range(2):
            for cp in range(1 if cfg.ucopy else 2):
                a(f"s_add_u32 m0, s{S_T1}, {L_CT + ch*CH_STRIDE + U_OFF + cp*(U_STRIDE-4)}")
                a(f"s_add_u32 s{S_T0}, s{S_T0}, 4096" if (ch == 1 and cp == 0) else "s_nop 0")
                a.vmem(f"buffer_load_dwordx4 v{V16}, s[{R_WS}:{R_WS+3}], s{S_T0} offen sc1 lds", "u")
        if cfg.ucopy:
            a(f"s_add_u32 s{S_T1}, s{S_T1}, {L_CT + U_OFF}\nv_add_u32 v{UA}, s{S_T1}, v{V16}\nv_add_u32 v{UA+1}, {U_STRIDE-4}, v{UA}\nv_add_u32 v{UA+2}, {CH_STRIDE}, v{UA+1}")
    UA, UD = 60, 64
    def ucopy_reads():
        a.wait(vm="u")
        for ch in range(2): a.lds(f"ds_read_b128 v[{UD+4*ch}:{UD+4*ch+3}], v{UA} offset:{ch*CH_STRIDE}", "uc")
    def ucopy_writes():
        a.wait(lg="uc")
        for ch in range(2):
            for q in range(2): a.lds(f"ds_write2_b32 v{UA+1+ch}, v{UD+4*ch+2*q}, v{UD+4*ch+2*q+1} offset0:{2*q} offset1:{2*q+1}")
    MK = R_X0
    early = [12, 13, 4, 5, 10, 11]; late = [0, 1, 6, 7, 2, 3, 8, 9]
    def trs(ii, tag):
        return [(f"ds_read_b64_tr_b16 v[{WB+16*(ii>>1)+4*dt+2*(ii&1)}:{WB+16*(ii>>1)+4*dt+2*(ii&1)+1}], v{(TR, TRH)[ii>>3]+dt} offset:{(ii&7)*8192}", tag) for dt in range(4)]
    HD = 40
    def shift_reads():
        a(f"v_add_u32 v{T0}, s{S_H1}, v{V16}\nv_subrev_u32 v{T1}, 4, v{T0}\nv_subrev_u32 v{T2}, {H_STRIDE}, v{T0}")
        a(f"s_bitcmp1_b32 s{x}, 0\ns_cselect_b32 s{S_U0}, s{S_U0}, 0")
        a.wait(vm="h")
        for n in range(2):
            a.lds(f"ds_read_b128 v[{HD+8*n}:{HD+8*n+3}], v{T0} offset:{1024*n}", "sh")
            a.lds(f"ds_read_b32 v{HD+8*n+4}, v{T1} offset:{1024*n}", "sh")
    def shift_writes():
        a.wait(lg="sh")
        a(f"v_writelane_b32 v{HD+4}, s{S_U0}, 0")
        for n in range(2):
            b = HD + 8*n
            a(f"v_alignbit_b32 v{b+3}, v{b+3}, v{b+2}, 16\nv_alignbit_b32 v{b+2}, v{b+2}, v{b+1}, 16\nv_alignbit_b32 v{b+1}, v{b+1}, v{b}, 16\nv_alignbit_b32 v{b}, v{b}, v{b+4}, 16")
            a.lds(f"ds_write_b128 v{T2}, v[{b}:{b+3}] offset:{1024*n}")
    def g2_setup(): a(f"s_lshl2_add_u32 s{S_T0}, s{S_R2}, s{x}\ns_add_u32 s{S_T0}, s{S_T0}, {CNT_H}\ns_lshl_b32 s{S_US}, s{S_T0}, 8")
    def mark_load():
        L = a.newlabel("Lmk")
        a(f"s_cmp_lg_u32 s{x}, 0\ns_cbranch_scc1 {L}\ns_load_dwordx8 s[{MK}:{MK+7}], s[{P_DBG}:{P_DBG+1}], 0")
        a.label(L)
    def mark_check():
        L = a.newlabel("Lmk")
        a(f"s_cmp_lg_u32 s{x}, 0\ns_cbranch_scc1 {L}\ns_waitcnt lgkmcnt(0)")
        a(f"s_and_b64 s[{MK}:{MK+1}], s[{MK}:{MK+1}], s[{MK+2}:{MK+3}]\ns_and_b64 s[{MK+4}:{MK+5}], s[{MK+4}:{MK+5}], s[{MK+6}:{MK+7}]\ns_and_b64 s[{MK}:{MK+1}], s[{MK}:{MK+1}], s[{MK+4}:{MK+5}]\ns_and_b32 s{MK}, s{MK}, s{MK+1}")
        a(f"s_cbranch_scc1 {L}")
        k.vpoll(VMK, VMD, R_DBG, 1)
        a.label(L)
    a(f"s_cmp_eq_u32 s{S_CL}, 7\ns_cbranch_scc1 L_Xh")
    hn0 = len(a.lines); a.label("L_Xh")
    keep = list(a.vm); a.vm = []; a.cap = None
    def touches(what):
        n = 0
        for c in what:
            if c == "w":
                a(f"s_and_b32 s{S_T0}, s2, 31\ns_lshl2_add_u32 s{S_T0}, s{S_T0}, s{x}\ns_mul_i32 s{S_T0}, s{S_T0}, {112*128}\ns_add_u32 s{S_T1}, s{S_T0}, {56*128}")
                a(f"v_lshlrev_b32 v{T2}, 7, v0\ns_bfm_b64 exec, 56, 0")
                a(f"buffer_load_dword v{JUNK}, v{T2}, s[{R_W2}:{R_W2+3}], s{S_T0} offen\nbuffer_load_dword v{JUNK}, v{T2}, s[{R_W2}:{R_W2+3}], s{S_T1} offen\ns_mov_b64 exec, -1"); n += 2
            elif c == "s":
                a(f"s_and_b32 s{S_T0}, s{S_J}, 3\ns_lshl2_add_u32 s{S_T0}, s{S_XCD}, s{S_T0}\ns_lshl2_add_u32 s{S_T0}, s{S_T0}, s{x}\ns_lshl_b32 s{S_T0}, s{S_T0}, 14\ns_add_u32 s{S_T1}, s{S_T0}, 8192\nv_lshlrev_b32 v{T2}, 7, v0")
                a(f"buffer_load_dword v{JUNK}, v{T2}, s[{R_SSM}:{R_SSM+3}], s{S_T0} offen nt\nbuffer_load_dword v{JUNK}, v{T2}, s[{R_SSM}:{R_SSM+3}], s{S_T1} offen nt"); n += 2
            elif c == "k":
                a(f"s_and_b32 s{S_T0}, s{S_J}, 3\ns_lshl2_add_u32 s{S_T0}, s{S_T0}, s{x}\ns_mul_i32 s{S_T0}, s{S_T0}, {112*1024}\ns_lshl_b32 s{S_T1}, s{S_XCD}, 7\ns_add_u32 s{S_T0}, s{S_T0}, s{S_T1}\ns_add_u32 s{S_T1}, s{S_T0}, {56*1024}")
                a(f"v_lshlrev_b32 v{T2}, 10, v0\ns_bfm_b64 exec, 56, 0")
                for R in (R_K, R_V): a(f"buffer_load_dword v{JUNK}, v{T2}, s[{R}:{R+3}], s{S_T0} offen nt\nbuffer_load_dword v{JUNK}, v{T2}, s[{R}:{R+3}], s{S_T1} offen nt")
                a("s_mov_b64 exec, -1"); n += 4
        return n
    hpre, h0, h1, h2 = cfg.hwhat
    touches(hpre)
    kv_loads()
    a(f"s_waitcnt vmcnt({touches(h0)})"); a.vm = []
    a("s_barrier")
    g_read()
    for op in prep: emit(op)
    mark_load(); mark_check()
    a("s_barrier")
    publish()
    a(f"s_waitcnt vmcnt({touches(h1)})"); a.vm = []
    k.signal(S_US)
    touches(h2)
    if cfg.hfull:
        a.cap = 12
        def hu():
            k.speek(S_PUB); a("s_waitcnt lgkmcnt(0)"); a.lg = []
            shift_reads(); shift_writes(); ustage(False)
        ssm_loads()
        for q in range(14): w2_dma(q)
        for q in range(15):
            if q < 14:
                a.wait(vm=f"w{q}")
                for ins, tag in trs(q, f"f{q}"): a.lds(ins, tag)
            if q: a.wait(lg=f"f{q-1}"); w2_dma(13 + q)
            if q == cfg.hfull: hu()
            if q == min(cfg.hfull + 3, 14): ucopy_reads(); ucopy_writes(); k.lds_arrive(0, T0, T1)
        g2_setup()
        k.speek(S_US)
        a("s_branch L_Xk")
        a.vm = []; a.lg = []; a.cap = None; hn1 = len(a.lines)
    if cfg.e0seg <= cfg.ssmseg:
        for q in early[:2]: w2_dma(q)
        ssm_loads()
        for q in early[2:cfg.nearly]: w2_dma(q)
    else:
        ssm_loads()
        for q in early[:cfg.nearly]: w2_dma(q)
    if cfg.upos < cfg.upk: k.speek(S_PUB)
    hv = list(a.vm)
    a("s_branch L_Xj")
    if cfg.hfull: del a.lines[hn1:]
    k.ool.append("\n".join(a.lines[hn0:])); del a.lines[hn0:]; a.lg = []
    a.vm = keep; a.cap = cfg.cap0
    if cfg.kvpos == 1:
        assert cfg.n1 in (0, 4); kv_loads()
    for f in c1[cfg.n1:8-cfg.hold0]: f()
    stamp(1)
    if cfg.g1prio: a(f"s_setprio {cfg.g1prio}")
    a.wait(vm="c0"); stamp(16); a("s_barrier")
    a.cap = cfg.cap
    sig = [False]; stored = [False]
    def trysig():
        if stored[0] and not sig[0] and "ur" not in a.vm: k.signal(S_US); sig[0] = True
    body = prep[nrd:]; per_seg = -(-len(body) // cfg.nps)
    p0 = cfg.kvpos + cfg.pdelay; carry = c1[8-cfg.hold0:]
    for i in range(7):
        if cfg.segstamps or i == 0: stamp(2 + i)
        if i == 0: g_read()
        if i == cfg.mseg - cfg.mlead: a.wait(lg="all"); mark_load()
        if i == cfg.mseg + 1: publish()
        dm = carry
        if i == cfg.stseg:
            if i == 6: assert not carry and a.vm[-1] is not None; lastbefore = len(a.vm); a.vm[-1] = "c7"
            dm.append(stats_dma)
        if i + 2 == cfg.kvpos: dm.append(kv_loads)
        if i + 2 <= 7: dm += chunk_ops(i + 2)
        if i == cfg.e0seg: dm += [(lambda q=q: w2_dma(q)) for q in early[:2]]
        if i == cfg.ssmseg: dm.append(ssm_loads)
        if i == 6: dm += [(lambda q=q: w2_dma(q)) for q in early[2 if cfg.e0seg < 6 else 0:cfg.nearly]]
        hold = cfg.hold[i] if i < len(cfg.hold) else 0
        dm, carry = dm[:len(dm)-hold], dm[len(dm)-hold:]
        fl = []
        if i == cfg.kvpos: fl += prep[:nrd]
        if p0 <= i < p0 + cfg.nps: fl += body[(i-p0)*per_seg:(i-p0+1)*per_seg]
        per = -(-len(fl) // len(dm))
        for nf, f in enumerate(dm):
            if (i, nf) == cfg.usig: a.wait(vm="ur"); trysig()
            f(); trysig()
            for op in fl[:per]: emit(op)
            fl = fl[per:]
        if i == p0 + cfg.nps - 1: stored[0] = True
        if i == cfg.kvpos: a.wait(lg="pr")
        if i == cfg.mseg: mark_check()
        if i == 6 and cfg.upos < cfg.upk: k.speek(S_PUB)
        a.wait(vm=f"c{i+1}"); trysig()
        a("s_barrier")
    if cfg.g1prio: a("s_setprio 0")
    if not sig[0]: a.wait(vm="ur"); trysig()
    assert cfg.stseg <= 6 and cfg.stseg > cfg.mseg and p0 + cfg.nps - 1 > cfg.mseg and cfg.e0seg > cfg.kvpos and cfg.ssmseg >= cfg.kvpos - 1
    assert a.vm == hv[len(hv)-len(a.vm):], (a.vm, hv)
    a.vm = hv
    a.label("L_Xj")
    if cfg.segstamps: stamp(9)
    a.cap = cfg.cap2
    pos = [0]
    def upoint():
        if pos[0] == cfg.upos - cfg.upk: k.speek(S_PUB)
        if pos[0] == cfg.upos: a("s_waitcnt lgkmcnt(0)"); a.lg = []; ustage()
        pos[0] += 1
    for q in early[cfg.nearly:] + late[:4]: upoint(); w2_dma(q)
    k.lds_wait(4, T0, T1)
    if cfg.xprio: a(f"s_setprio {cfg.xprio}")
    stamp(10)
    order = early + late
    seq = late[4:] + [14 + q for q in order]
    filled = 0
    def fill(force=None):
        nonlocal filled
        n = 0
        while filled < 14 and ((n < 2 and f"w{order[filled]}" not in a.vm and order[filled] in issued) or (force is not None and filled <= force)):
            a.wait(vm=f"w{order[filled]}")
            for ins, tag in trs(order[filled], f"f{order[filled]}"): a.lds(ins, tag)
            filled += 1; n += 1
    issued = set(early + late[:4])
    g2_setup()
    arr = [False]; ucr = [False]
    for n, q in enumerate(seq):
        if n == len(seq) - cfg.apeek: k.speek(S_US)
        upoint()
        if q >= 14:
            fill(force=order.index(q - 14)); a.wait(lg=f"f{q-14}")
        if not (cfg.x_nop2 and q >= 14): w2_dma(q)
        issued.add(q)
        if n == 0: shift_reads()
        elif n == 1: shift_writes()
        else: fill()
        if n >= (0 if cfg.ucopy else 1) and not arr[0] and pos[0] > cfg.upos + cfg.uwait:
            if cfg.ucopy and not ucr[0]: ucopy_reads(); ucr[0] = True
            else:
                if cfg.ucopy: ucopy_writes()
                a.wait(vm="u"); k.lds_arrive(0, T0, T1); arr[0] = True
    assert arr[0]
    a.label("L_Xk")
    stamp(12)
    if cfg.xprio and not cfg.g2p: a("s_setprio 0")
    k.scheck(S_US, 0xff, 7)
    stamp(13)
    NP = cfg.np; RING = 15
    units = [(p, tau) for p in range(7 - NP) for tau in range(4)] + [(p, tau) for tau in range(4) for p in range(7 - NP, 7)]
    hs = [(2*p + e, tau) for p, tau in units for e in range(2)]
    nb = min(n for n, (i, tau) in enumerate(hs) if i >= 7)
    cur = [None, None]
    def hload(n):
        i, tau = hs[n]; d = AR + 4*(n % RING); blk = 2*(i % 7) + i // 7
        if n == nb - cfg.bpeek: k.speek(S_US)
        if n == nb: k.scheck(S_US, None, 0x707)
        if cur[i & 1] != blk: a(f"s_mov_b32 s{R_V+(i&1)}, {4096*blk}"); cur[i & 1] = blk
        off = f" offset:{1024*tau}" if tau else ""
        a.vmem(f"buffer_load_dwordx4 v[{d}:{d+3}], v{HA}, s[{R_WS}:{R_WS+3}], s{R_V+(i&1)} offen{off} sc1", f"a{n}")
    def pwrites(hf):
        q = [("m0", 7*8192*hf)]
        for tl in range(2):
            for dt in range(4):
                base = 1024*tl if dt == 0 else (1 + 3*tl + dt - 1)*8192 + (0, 16, 128, 144)[dt]
                q += [f"ds_write_addtid_b32 v{ACC2+16*(2*hf+tl)+4*dt+r} offset:{base+256*r}" for r in range(4)]
        return q
    def pw(q):
        o = q.pop(0)
        if isinstance(o, tuple):
            a(f"s_add_u32 m0, s{S_B}, {o[1]}\ns_nop 0"); o = q.pop(0)
        a.lds(o)
    a.cap = None
    LA = cfg.lah
    assert LA <= RING - 2
    for n in range(LA): hload(n)
    pend = []; wq = pwrites(0) + pwrites(1); nw = [0]; hold = [0]
    assert NP == 3
    for u, (p, tau) in enumerate(units):
        for dt in range(4):
            for e in range(2):
                n = 2*u + e; i = 2*p + e; wb = WB + 16*(i % 7) + 4*dt
                assert not any(t == f"g{i}" for _, t in pend)
                a.wait(vm=f"a{n}", lg=f"g{i}")
                d = ACC2 + 16*tau + 4*dt
                a(f"v_mfma_f32_16x16x32_bf16 v[{d}:{d+3}], v[{AR+4*(n%RING)}:{AR+4*(n%RING)+3}], v[{wb}:{wb+3}], {'0' if i == 0 else v(d,4)}")
                if pend: a.lds(*pend.pop(0))
                elif u >= 28 - 4*NP and nw[0] < 16*tau and (p, dt) > (7 - NP, 0):
                    pw(wq); nw[0] += 1
                    if nw[0] == 32: k.lds_arrive(6, T0, T1)
                if cfg.g2p and (u, dt, e) == (cfg.g2p, 0, 0): a("s_setprio 0")
                if cfg.tprio and (u, dt, e) == (28 - 4*NP, 0, 0): a(f"s_setprio {cfg.tprio}")
                if e == 1 and dt in cfg.ldt and 2*u + cfg.ldt.index(dt) + LA < 56: hload(2*u + cfg.ldt.index(dt) + LA)
        if tau == 3:
            for i in (2*p, 2*p+1):
                if i < 7: pend += trs(2*i, f"g{i+7}") + trs(2*i+1, f"g{i+7}")
    stamp(14)
    assert nw[0] == 48
    a("s_nop 1")
    while wq: pw(wq)
    a("s_mov_b64 exec, 1"); a.lds(f"ds_add_u32 v{T0}, v{T1} offset:28"); a("s_mov_b64 exec, -1")
    stamp(15)
    k.flush_stamps()
    a("s_endpgm")
    for o in k.ool: a(o)

def gen_m(k):
    a, cfg, stamp = k.a, k.cfg, k.stamp
    w = S_WV
    S_TH, S_FH = 98, 99
    V16, QA, WA, VST = 1, 2, 4, 8
    T0, T1, T2, T3 = 10, 11, 12, 13
    VCW, VCR = 14, 15
    ACC, CS, QF, WF, ONES, B1F, STT, CSP, WA2, GR = 16, 80, 96, 128, 160, 164, 180, 188, 204, 248
    CA, CB, AD, EXW, EXR, YST, VXO, VSA, VB2, YS0, YS1, YA0, YA1, PA0, PA1, DV, JUNK = 208, 209, 210, 214, 215, 216, 217, 218, 219, 220, 221, 222, 223, 224, 225, 226, 227
    XR, XF, B1R = 96, 104, CSP
    LAM = -(2*1.4426950408889634*0.7978845608028654*0.044715) ** (1/3)
    MU = 2*1.4426950408889634*0.7978845608028654 / -LAM
    VKA, VKB, VHALO, VTA, PK, PH, PV, PST, TAPS = 236, 237, 238, 239, 240, 241, 242, 243, 244
    a(f"s_lshl_b32 s{S_U0}, s{S_R}, 7\ns_lshl3_add_u32 s{S_U0}, s{S_C16}, s{S_U0}\ns_lshl1_add_u32 s{S_U0}, s{w}, s{S_U0}")
    a(f"s_lshl_b32 s{S_U1}, s{S_U0}, 10\ns_or_b32 s{S_U2}, s{S_J}, s{w}")
    a(f"s_mov_b32 s{R_WS+2}, {WS_SIZE}\ns_mov_b32 s{R_WS+3}, s{R_Q+3}")
    for i in range(4): a(f"v_mov_b32 v{GR+i}, 0")
    a(f"v_and_b32 v{T3}, 16, v{V16}\nv_add_u32 v{T3}, {L_SYNC}, v{T3}\nds_write_b128 v{T3}, v[{GR}:{GR+3}]")
    a("s_waitcnt lgkmcnt(0)")
    if cfg.wsoff: a(f"s_add_u32 s{P_WS}, s{P_WS}, {cfg.wsoff}\ns_addc_u32 s{P_WS+1}, s{P_WS+1}, 0")
    a(f"s_mov_b64 s[{R_Q}:{R_Q+1}], s[{P_Q}:{P_Q+1}]\ns_mov_b64 s[{R_WS}:{R_WS+1}], s[{P_WS}:{P_WS+1}]")
    LN = a.newlabel("Lnolead")
    a(f"s_cmp_lg_u32 s{S_U2}, 0\ns_cbranch_scc1 {LN}")
    a(f"v_min_u32 v{T3}, 47, v0\nv_lshlrev_b32 v{T3}, 8, v{T3}\ns_mul_i32 s{S_T0}, s2, {48*256}\ns_lshl_b32 s{S_T1}, s2, 11\ns_add_u32 s{S_T1}, s{S_T1}, {WS_STATS}")
    a(f"buffer_store_dwordx4 v[{GR}:{GR+3}], v{V16}, s[{R_WS}:{R_WS+3}], s{S_T1} offen sc1")
    a(f"buffer_store_dwordx4 v[{GR}:{GR+3}], v{V16}, s[{R_WS}:{R_WS+3}], s{S_T1} offen offset:1024 sc1")
    a(f"buffer_store_dword v{GR}, v{T3}, s[{R_WS}:{R_WS+3}], s{S_T0} offen sc1")
    a.label(LN)
    a.vmem(f"buffer_load_dwordx4 v[{XR}:{XR+3}], v{V16}, s[{R_Q}:{R_Q+3}], s{S_U1} offen {cfg.ntq}", "x")
    a.vmem(f"buffer_load_dwordx4 v[{XR+4}:{XR+7}], v{V16}, s[{R_Q}:{R_Q+3}], s{S_U1} offen offset:1024 {cfg.ntq}", "x")
    a(f"s_and_b32 s{S_TH}, s{w}, 1\ns_lshr_b32 s{S_FH}, s{w}, 1")
    a(f"s_lshl_b32 s{S_T0}, s{S_XCD}, 5\ns_add_u32 s{S_T0}, s{S_T0}, s{S_J}\ns_lshl_b32 s{S_T0}, s{S_T0}, 2\ns_load_dword s{S_PV}, s[{P_D}:{P_D+1}], s{S_T0}")
    a(f"v_and_b32 v{T2}, 15, v0\nv_lshrrev_b32 v{T3}, 1, v{T2}\nv_xor_b32 v{T3}, v{T3}, v{T1}\nv_lshlrev_b32 v{T3}, 4, v{T3}\nv_lshl_add_u32 v{T3}, v{T2}, 7, v{T3}")
    a(f"s_lshl_b32 s{S_T0}, s{S_TH}, 6\nv_xor_b32 v{T3}, s{S_T0}, v{T3}")
    a(f"s_lshl_b32 s{S_T0}, s{S_TH}, 13\nv_add_u32 v{QA}, s{S_T0}, v{T3}\nv_xor_b32 v{QA+1}, 64, v{QA}\nv_lshlrev_b32 v{VST}, 3, v{T2}")
    a(f"v_bfe_u32 v{T2}, v0, 2, 3")
    a(f"v_bfe_u32 v{T3}, v0, 2, 2\nv_lshl_add_u32 v{T3}, v{T1}, 3, v{T3}\nv_lshlrev_b32 v{T3}, 8, v{T3}\nv_and_b32 v{T0}, 3, v0\nv_lshl_add_u32 v{T3}, v{T0}, 3, v{T3}")
    a(f"v_add_u32 v{T3}, {L_W}, v{T3}")
    a(f"s_lshl_b32 s{S_T1}, s{S_FH}, 2")
    for i in range(4):
        a(f"v_xor_b32 v{T0}, s{S_T1}, v{T2}\ns_add_u32 s{S_T1}, s{S_T1}, 1")
        a(f"v_lshl_add_u32 v{WA+i}, v{T0}, 5, v{T3}")
    a(f"s_lshl_b32 s{S_T0}, s{S_TH}, 13\ns_xor_b32 s{S_T1}, s{S_T0}, 8192")
    for i in range(4): a(f"v_add_u32 v{WA2+i}, s{S_T1}, v{WA+i}\nv_add_u32 v{WA+i}, s{S_T0}, v{WA+i}")
    a("s_branch L_M2")
    k.split = len(a.lines)
    a(".p2align 6"); a.label("L_M2")
    stamp(0)
    a(f"v_bfe_u32 v{T0}, v0, 2, 2\nv_mov_b32 v{T3}, 0x3f803f80")
    for i in range(4):
        a(f"v_cmp_eq_u32 vcc, {i}, v{T0}\ns_nop 1")
        for r in range(4): a(f"v_cndmask_b32 v{CS+4*i+r}, 0, v{T3}, vcc")
    LN = a.newlabel("Lnolead")
    a(f"s_cmp_lg_u32 s{S_U2}, 0\ns_cbranch_scc1 {LN}")
    a(f"s_waitcnt vmcnt({len(a.vm)})\ns_lshl_b32 s{S_T0}, s2, 2\ns_mov_b32 s{S_ONE}, 1\ns_atomic_add s{S_ONE}, s[{P_DBG}:{P_DBG+1}], s{S_T0}")
    a.label(LN)
    S_H0, S_H1, S_INC, S_YP, S_YC = R_X0, R_X0+1, R_X0+2, R_X0+3, 17
    KC = T2
    def late_setup():
        srd(a, R_OUT, P_OUT, 2 << 20)
        a(f"v_lshrrev_b32 v{T1}, 4, v0\nv_bfe_u32 v{T0}, v0, 2, 2")
        a(f"s_lshl_b32 s{S_T0}, s{w}, 8\ns_add_u32 s{S_T0}, s{S_T0}, {L_CS}\nv_and_b32 v{VCR}, 48, v0\nv_lshl_add_u32 v{VCW}, v{T0}, 6, v{VCR}\nv_add_u32 v{VCW}, s{S_T0}, v{VCW}")
        a(f"s_lshl_b32 s{S_T0}, s{S_FH}, 9\ns_add_u32 s{S_T0}, s{S_T0}, {L_CS}\nv_add_u32 v{VCR}, s{S_T0}, v{VCR}")
        a(f"s_lshl_b32 s{S_U3}, s{S_R}, 10\ns_lshl_b32 s{S_T0}, s{S_TH}, 9\ns_add_u32 s{S_U3}, s{S_U3}, s{S_T0}\ns_add_u32 s{S_U3}, s{S_U3}, {WS_STATS}")
        a(f"s_mul_i32 s{S_T0}, s{S_FH}, {CH_STRIDE}\ns_lshl_b32 s{S_T1}, s{S_TH}, 8\ns_add_u32 s{S_T0}, s{S_T0}, s{S_T1}")
        a(f"s_add_u32 s{S_T1}, s{S_T0}, {L_CT+U_OFF+448}\ns_add_u32 s{S_T0}, s{S_T0}, {L_CT+128-56}")
        a(f"v_and_b32 v{T0}, 1, v0\nv_bfe_u32 v{T2}, v0, 1, 3")
        a(f"v_mul_u32_u24 v{CA}, {H_STRIDE}, v{T0}\nv_lshl_add_u32 v{CA}, v{T2}, 3, v{CA}\nv_lshl_add_u32 v{CA}, v{T1}, 4, v{CA}\nv_add_u32 v{CA}, s{S_T0}, v{CA}")
        a(f"v_mul_u32_u24 v{CB}, {U_STRIDE}, v{T0}\nv_lshl_add_u32 v{CB}, v{T1}, 4, v{CB}\nv_add_u32 v{CB}, s{S_T1}, v{CB}\nv_lshlrev_b32 v{T3}, 6, v{T2}\nv_sub_u32 v{CB}, v{CB}, v{T3}")
        a(f"v_xor_b32 v{AD+1}, 1, v{T0}\nv_lshlrev_b32 v{AD+1}, 4, v{AD+1}")
        a(f"v_lshlrev_b32 v{AD+3}, 1, v{T2}\nv_lshl_add_u32 v{AD+3}, v{T1}, 2, v{AD+3}")
        a(f"s_lshl_b32 s{S_T0}, s{w}, 13\ns_add_u32 s{S_T0}, s{S_T0}, {L_CT}\nv_add_u32 v{EXW}, s{S_T0}, v{V16}")
        a(f"s_add_u32 s{S_T0}, s{S_B}, {L_CT}\nv_add_u32 v{EXR}, s{S_T0}, v{V16}")
        a(f"v_bfe_u32 v{T0}, v0, 2, 2\nv_and_b32 v{T3}, 3, v0\nv_lshlrev_b32 v{T0}, 8, v{T0}\nv_lshl_add_u32 v{T0}, v{T1}, 6, v{T0}\nv_lshl_add_u32 v{YST}, v{T3}, 4, v{T0}")
        a(f"s_lshl_b32 s{S_T0}, s{S_XCD}, 5\ns_add_u32 s{S_T0}, s{S_T0}, s{S_J}\ns_lshl_b32 s{S_T0}, s{S_T0}, 13\ns_add_u32 s{S_T0}, s{S_T0}, s{S_B}\ns_add_u32 s{S_T0}, s{S_T0}, {WS_Y}\nv_add_u32 v{YST}, s{S_T0}, v{YST}")
        a(f"s_lshl_b32 s{S_T1}, s{w}, 1\nv_and_b32 v{T0}, 15, v0\nv_xor_b32 v{T0}, s{S_T1}, v{T0}\nv_lshlrev_b32 v{T0}, 4, v{T0}\nv_lshl_add_u32 v{YS0}, v{T1}, 13, v{T0}\nv_xor_b32 v{YS1}, 16, v{YS0}")
        a(f"s_lshl_b32 s{S_T1}, s{S_C2}, 18\ns_lshl_b32 s{S_T2}, s{S_R2}, 8\ns_add_u32 s{S_T1}, s{S_T1}, s{S_T2}\ns_lshl_b32 s{S_T2}, s{w}, 16\ns_add_u32 s{S_T1}, s{S_T1}, s{S_T2}\ns_add_u32 s{S_T1}, s{S_T1}, {WS_Y}")
        a(f"s_add_u32 s{S_T2}, s{S_T1}, {4*8192-1024}\nv_add_u32 v{YS0}, s{S_T1}, v{YS0}\nv_add_u32 v{YS1}, s{S_T2}, v{YS1}")
        RHO, OCT, TOFF = 236, 237, 238
        a(f"v_lshrrev_b32 v{RHO}, 3, v0\nv_and_b32 v{OCT}, 7, v0")
        a(f"v_and_b32 v{TOFF}, 1, v{RHO}\nv_bfe_u32 v{T0}, v{RHO}, 1, 1\nv_lshl_add_u32 v{TOFF}, v{T0}, 2, v{TOFF}\nv_lshrrev_b32 v{T2}, 2, v{RHO}\nv_lshl_add_u32 v{TOFF}, v{T2}, 1, v{TOFF}")
        a(f"s_lshl_b32 s{S_T1}, s{S_R2}, 6\ns_lshl3_add_u32 s{S_T1}, s{w}, s{S_T1}\nv_add_u32 v{T3}, s{S_T1}, v{TOFF}")
        a(f"s_lshl_b32 s{S_T2}, s{S_C2}, 7\nv_lshl_add_u32 v{VB2}, v{OCT}, 4, s{S_T2}\nv_lshl_add_u32 v{VXO}, v{T3}, 10, v{VB2}\nv_lshlrev_b32 v{VB2}, 4, v{OCT}\nv_add_u32 v{VB2}, {L_B2}, v{VB2}\nv_lshlrev_b32 v{VSA}, 3, v{T3}\nv_add_u32 v{VSA}, {WS_STATS}, v{VSA}")
        a(f"s_lshl_b32 s{S_T0}, s{w}, 2\ns_or_b32 s{S_T0}, s{S_T0}, 1\nv_xor_b32 v{T0}, s{S_T0}, v{T2}\nv_xor_b32 v{T0}, v{T0}, v{OCT}\nv_lshlrev_b32 v{T0}, 4, v{T0}")
        a(f"v_lshl_add_u32 v{T0}, v{OCT}, 10, v{T0}\nv_and_b32 v{T2}, 3, v{RHO}\nv_lshl_add_u32 v{T0}, v{T2}, 2, v{T0}")
        a(f"v_xor_b32 v{YA1}, 32, v{T0}\nv_add_u32 v{YA0}, {L_YST}, v{T0}\nv_add_u32 v{YA1}, {L_YST}, v{YA1}")
        a(f"v_and_b32 v{T0}, 3, v{TOFF}\nv_lshlrev_b32 v{T0}, 8, v{T0}\nv_lshrrev_b32 v{T2}, 2, v{TOFF}\nv_lshl_add_u32 v{T0}, v{T2}, 6, v{T0}\nv_and_b32 v{T2}, 1, v{OCT}\nv_lshl_add_u32 v{T0}, v{T2}, 5, v{T0}")
        a(f"s_lshl_b32 s{S_T0}, s{S_TH}, 7\nv_add_u32 v{T0}, s{S_T0}, v{T0}\nv_bfe_u32 v{T2}, v{OCT}, 1, 1\nv_lshl_add_u32 v{T0}, v{T2}, 4, v{T0}\nv_lshrrev_b32 v{T2}, 2, v{OCT}\nv_lshl_add_u32 v{T0}, v{T2}, 7, v{T0}")
        a(f"v_lshrrev_b32 v{T2}, 1, v{OCT}\nv_lshl_add_u32 v{T0}, v{T2}, 13, v{T0}\ns_lshl_b32 s{S_T0}, s{S_FH}, 10\ns_mul_i32 s{S_T1}, s{S_FH}, {3*8192}")
        a(f"v_mov_b32 v{PA0}, s{S_T0}\nv_mov_b32 v{T3}, s{S_T1}\nv_cmp_lt_u32 vcc, 1, v{OCT}\ns_nop 0\ns_nop 0\nv_cndmask_b32 v{PA0}, v{PA0}, v{T3}, vcc\nv_add_u32 v{PA0}, v{T0}, v{PA0}\nv_add_u32 v{PA1}, {7*8192}, v{PA0}")
        a(f"s_lshl_b32 s{S_T0}, s{S_FH}, 7\ns_add_u32 s{S_T0}, s{S_T0}, {L_B1}\nv_lshl_add_u32 v{DV}, v{T1}, 3, s{S_T0}")
        a(f"s_lshl1_add_u32 s{S_T0}, s{S_R}, s{S_TH}\ns_lshl1_add_u32 s{S_T2}, s{S_C}, s{S_FH}")
        a(f"s_mul_i32 s{S_T1}, s{S_T0}, {224*1024}\ns_lshl_b32 s{S_T3}, s{S_T2}, 13\ns_add_u32 s{S_T1}, s{S_T1}, s{S_T3}\ns_add_u32 s{S_H0}, s{S_T1}, {WS_H}\ns_add_u32 s{S_H1}, s{S_H0}, 4096")
        a(f"s_mul_i32 s{S_T1}, s{S_T2}, 37\ns_lshr_b32 s{S_T1}, s{S_T1}, 8\ns_lshl2_add_u32 s{S_T0}, s{S_T0}, s{S_T1}\ns_add_u32 s{S_T0}, s{S_T0}, {CNT_H}\ns_lshl_b32 s{S_PUB}, s{S_T0}, 8")
        a(f"s_cmp_lg_u32 s{S_CL}, 7\ns_cselect_b32 s{S_INC}, 1, 0")
        a(f"s_lshl2_add_u32 s{S_T0}, s{S_XCD}, s{w}\ns_lshr_b32 s{S_T1}, s{S_J}, 3\ns_lshl2_add_u32 s{S_T0}, s{S_T0}, s{S_T1}\ns_add_u32 s{S_T0}, s{S_T0}, {CNT_Y}\ns_lshl_b32 s{S_YP}, s{S_T0}, 8")
        a(f"s_lshr_b32 s{S_T0}, s{S_R2}, 3\ns_lshl2_add_u32 s{S_T0}, s{S_C2}, s{S_T0}\ns_lshl2_add_u32 s{S_T0}, s{S_T0}, s{w}\ns_add_u32 s{S_T0}, s{S_T0}, {CNT_Y}\ns_lshl_b32 s{S_YC}, s{S_T0}, 8")
        a(f"v_mov_b32 v{KC}, {f32(MU)}\nv_mov_b32 v{KC+1}, {f32(LAM)}\ns_mov_b32 s{S_U1}, 32768")
        a(f"s_lshl_b32 s{S_T0}, s{S_TH}, 9\ns_add_u32 s{S_T0}, s{S_T0}, {L_ST}\nv_add_u32 v{VST+1}, s{S_T0}, v{VST}")
        a(f"s_lshl_b32 s{S_T0}, s{S_FH}, 4\ns_lshr_b32 s{S_PV}, s{S_PV}, s{S_T0}\ns_and_b32 s{S_PV}, s{S_PV}, 0xffff\nv_mov_b32 v{T0}, s{S_PV}")
        a(f"v_lshlrev_b32 v{T0}, v{AD+1}, v{T0}\ns_sub_u32 s{S_T2}, s{S_TH}, 1\nv_and_b32 v{T0}, s{S_T2}, v{T0}")
        a(f"v_cmp_eq_u32 vcc, 14, v{AD+3}\nv_mov_b32 v{AD+1}, 0\ns_nop 0\nv_cndmask_b32 v{AD}, 0, v{T0}, vcc")
        a(f"v_cmp_eq_u32 vcc, 12, v{AD+3}\nv_mov_b32 v{AD+3}, 0\ns_nop 0\nv_cndmask_b32 v{AD+2}, 0, v{T0}, vcc")
    XR2, VXL, S_XI = 240, 9+243, S_U4
    if cfg.xlds:
        a(f"v_lshrrev_b32 v{T0}, 3, v0\nv_and_b32 v{T1}, 1, v{T0}\nv_bfe_u32 v{T2}, v{T0}, 1, 1\nv_lshl_add_u32 v{T1}, v{T2}, 2, v{T1}\nv_lshrrev_b32 v{T2}, 2, v{T0}\nv_lshl_add_u32 v{T1}, v{T2}, 1, v{T1}")
        a(f"s_and_b32 s{S_T0}, s{S_R2}, 1\ns_lshl_b32 s{S_T0}, s{S_T0}, 6\ns_lshl3_add_u32 s{S_T0}, s{w}, s{S_T0}\nv_add_u32 v{T1}, s{S_T0}, v{T1}")
        a(f"v_lshrrev_b32 v{T2}, 1, v{T1}\nv_xor_b32 v{T2}, v{T2}, v0\nv_and_b32 v{T2}, 7, v{T2}\nv_lshlrev_b32 v{T2}, 4, v{T2}\nv_lshl_add_u32 v{VXL}, v{T1}, 7, v{T2}")
        a(f"s_sub_u32 s{S_XI}, s{S_C2}, s{S_KC0}\ns_and_b32 s{S_XI}, s{S_XI}, 7")
    a.wait(vm="x")
    for n in range(2):
        for m in range(4):
            a(f"v_lshlrev_b32 v{XF+8*n+2*m}, 16, v{XR+4*n+m}\nv_and_b32 v{XF+8*n+2*m+1}, 0xffff0000, v{XR+4*n+m}")
    SM = XR
    def reduce2():
        for dpp in ("row_shr:1 row_mask:0xf bank_mask:0xf bound_ctrl:0", "row_shr:2 row_mask:0xf bank_mask:0xf bound_ctrl:0", "row_shr:4 row_mask:0xf bank_mask:0xf bound_ctrl:0",
                    "row_shr:8 row_mask:0xf bank_mask:0xf bound_ctrl:0", "row_bcast:15 row_mask:0xa bank_mask:0xf", "row_bcast:31 row_mask:0xc bank_mask:0xf"):
            a("s_nop 0")
            for n in range(2): a(f"v_add_f32_dpp v{SM+n}, v{SM+n}, v{SM+n} {dpp}")
    for n in range(2): a(f"v_add_f32 v{SM+n}, v{XF+8*n}, v{XF+8*n+1}")
    for m in range(2, 8):
        for n in range(2): a(f"v_add_f32 v{SM+n}, v{SM+n}, v{XF+8*n+m}")
    reduce2()
    for n in range(2): a(f"v_mul_f32 v{SM+2+n}, {f32(1/512)}, v{SM+n}")
    a(f"v_readlane_b32 s{S_T0}, v{SM+2}, 63\nv_readlane_b32 s{S_T1}, v{SM+3}, 63\ns_nop 0")
    for n in range(2):
        for m in range(8): a(f"v_subrev_f32 v{XF+8*n+m}, s{S_T0+n}, v{XF+8*n+m}")
    for n in range(2): a(f"v_mul_f32 v{SM+n}, v{XF+8*n}, v{XF+8*n}")
    for m in range(1, 8):
        for n in range(2): a(f"v_fmac_f32 v{SM+n}, v{XF+8*n+m}, v{XF+8*n+m}")
    reduce2()
    a(f"v_mov_b32 v{T1}, {f32(1e-5)}")
    for n in range(2): a(f"v_fmamk_f32 v{SM+n}, v{SM+n}, {f32(1/512)}, v{T1}")
    for n in range(2): a(f"v_rsq_f32 v{SM+n}, v{SM+n}")
    for n in range(2): a(f"v_or_b32 v{GR+2*n}, 1, v{SM+2+n}")
    for n in range(2): a(f"v_or_b32 v{GR+2*n+1}, 1, v{SM+n}")
    stamp(14)
    a(f"s_lshl_b32 s{S_T0}, s{w}, 4\ns_add_u32 s{S_T0}, s{S_T0}, {L_GR}\nv_mov_b32 v{T0}, s{S_T0}\ns_lshl_b64 exec, -1, 63")
    a.lds(f"ds_write_b128 v{T0}, v[{GR}:{GR+3}]"); a("s_mov_b64 exec, -1")
    def stats_loads():
        for tau in range(4):
            a(f"buffer_load_dwordx2 v[{STT+2*tau}:{STT+2*tau+1}], v{VST}, s[{R_WS}:{R_WS+3}], s{S_U3} offen offset:{128*tau} sc1")
    a.wait(lg="all")
    stamp(1)
    def rd(i, ks):
        slot = (i % 3) * 16384; b = 16*ks; wa = (WA, WA2)[ks]
        def W(n): return [(f"ds_read_b64_tr_b16 v[{WF+b+4*n+2*h}:{WF+b+4*n+2*h+1}], v{wa+n} offset:{slot+1024*h}", f"W{i}{ks}{n}") for h in range(2)]
        def Q(t): return [(f"ds_read_b128 v[{QF+b+4*t}:{QF+b+4*t+3}], v{QA+ks} offset:{slot+2048*t}", f"Q{i}{ks}{t}")]
        if cfg.x_nolds: return []
        return W(0) + Q(0) + Q(1) + Q(2) + Q(3) + W(1) + W(2) + W(3)
    def mm(i, ks, n, t):
        b = 16*ks
        if t == "cs":
            d = ONES; B = CS + 4*n; first = (i == 0 and n == 0); tags = [f"W{i}{ks}{n}"]
        else:
            d = ACC + 4*(4*n+t); B = QF+b+4*t; first = (i == 0 and ks == 0); tags = [f"W{i}{ks}{n}", f"Q{i}{ks}{t}"]
            if cfg.coarse and n == 0 and t == 0 and (i, ks) != (0, 0): tags.append(f"Q{i}{ks}3")
        a.wait(lg=tags)
        if not cfg.x_nomfma: a(f"v_mfma_f32_16x16x32_bf16 v[{d}:{d+3}], v[{WF+b+4*n}:{WF+b+4*n+3}], v[{B}:{B+3}], {'0' if first else v(d,4)}")
        for _ in range(cfg.bgn + (1 if len(bg) > 1 and bg[0].startswith("s_") and bg[1].startswith("s_") else 0)):
            if bg: a(bg.pop(0))
    bg = []
    if cfg.dseg < 0:
        n0 = len(a.lines); late_setup(); bg = a.lines[n0:]; del a.lines[n0:]
        for q in range(len(bg) - 1, 0, -1):
            if bg[q].startswith("s_cselect"): bg[q-1:q+1] = [bg[q-1] + "\n" + bg[q]]
    base = [(n, (t if n % 2 == 0 or not cfg.snake else 3 - t)) for n in range(4) for t in range(4)]
    withcs = sum([base[4*n:4*n+4] + [(n, "cs")] for n in range(4)], [])
    VSY = JUNK
    a(f"v_mov_b32 v{VSY}, {L_SYNC}")
    a("s_barrier")
    stamp(2)
    a(f"s_cmp_eq_u32 s{S_CL}, 7\ns_cbranch_scc1 L_Mh")
    for ins, tag in rd(0, 0): a.lds(ins, tag)
    def stats_check():
        L = a.newlabel("Lst"); B = a.newlabel("Lstb")
        chk = (f"v_min3_u32 v{T0}, v{STT}, v{STT+1}, v{STT+2}\nv_min3_u32 v{T1}, v{STT+3}, v{STT+4}, v{STT+5}", f"v_min3_u32 v{T0}, v{T0}, v{STT+6}, v{STT+7}\nv_min_u32 v{T0}, v{T0}, v{T1}", f"v_cmp_eq_u32 vcc, 0, v{T0}")
        n0 = len(a.lines); stats_loads(); ld = "\n".join(a.lines[n0:]); del a.lines[n0:]
        k.ool.append(f"{L}:\n{ld}\ns_add_u32 s{S_SPIN}, s{S_SPIN}, 1\ns_waitcnt vmcnt(0)\n" + "\n".join(chk) + f"\ns_cmp_gt_u32 s{S_SPIN}, {SPIN_MAX}\ns_cbranch_scc1 {B}\ns_cbranch_vccnz {L}\ns_branch {B}")
        return ([chk[0], chk[1], chk[2] + f"\ns_mov_b32 s{S_SPIN}, 0\ns_cbranch_vccnz {L}\n{B}:"] +
                [f"v_mul_f32 v{STT+4*q+1}, v{KC+1}, v{STT+4*q+1}\nv_mul_f32 v{STT+4*q+3}, v{KC+1}, v{STT+4*q+3}" for q in range(2)] +
                [f"v_mul_f32 v{STT+4*q}, v{STT+4*q}, v{STT+4*q+1}\nv_mul_f32 v{STT+4*q+2}, v{STT+4*q+2}, v{STT+4*q+3}" for q in range(2)])
    for i in range(8):
        pend = rd(i, 1)
        lastA = base[:4] + [(n, "cs") for n in range(4)] + base[4:]
        for q, (n, t) in enumerate(base if i < 7 else lastA):
            if i == 7 and q % 4 == 0: k.lstamp("g1end")
            mm(i, 0, n, t)
            if cfg.xlds and q == (14 if i < 7 else 12):
                sl = (i % 3) * 16384
                a(f"s_cmp_eq_u32 s{S_XI}, {i}\ns_cselect_b64 exec, -1, 0\nds_read_b128 v[{XR2}:{XR2+3}], v{VXL} offset:{sl}\nds_read_b128 v[{XR2+4}:{XR2+7}], v{VXL} offset:{sl+4096}\ns_mov_b64 exec, -1")
            if i == 4 and q == 12: assert not bg
            if i == 4 and q in (12, 13): a.lds(f"ds_read2_b64 v[{B1R+4*(q-12)}:{B1R+4*(q-12)+3}], v{DV} offset0:{8*(q-12)} offset1:{8*(q-12)+4}", "b1")
            if i == 5: a(f"v_lshlrev_b32 v{B1F+q}, 16, v{B1R+q//2}" if q % 2 == 0 else f"v_and_b32 v{B1F+q}, 0xffff0000, v{B1R+q//2}")
            if i == 6: a(f"v_mul_f32 v{B1F+q}, v{KC+1}, v{B1F+q}")
            if pend: a.lds(*pend.pop(0))
            elif i == 7 and q == 13:
                a(f"s_mov_b64 exec, s[{S_T2}:{S_T3}]")
                a.lds(f"ds_write_b128 v{VCW}, v[{ONES}:{ONES+3}]")
                a("s_mov_b64 exec, -1")
            elif i == 7 and q in (15, 16):
                a.lds(f"ds_read2_b64 v[{STT+4*(q-15)}:{STT+4*(q-15)+3}], v{VST+1} offset0:{32*(q-15)} offset1:{32*(q-15)+16}", "stt")
            elif i == 7 and q == 14:
                a(f"v_mov_b32 v{T1}, 1\ns_mov_b64 exec, 1"); a.lds(f"ds_add_u32 v{VSY}, v{T1} offset:16"); a("s_mov_b64 exec, -1")
        if i < 7:
            pend = rd(i+1, 0)
            for q, (n, t) in enumerate(withcs):
                mm(i, 1, n, t)
                if q == cfg.bq:
                    if i == cfg.dseg: late_setup()
                    a.wait(lg="all")
                    a("s_barrier")
                    if i == 6: k.lstamp("g1end")
                    if i == 6: a(f"s_mov_b32 s{S_T2}, 0x11111111\ns_mov_b32 s{S_T3}, s{S_T2}")
                if q >= cfg.bq + (0 if cfg.rdnow else 1) and pend: a.lds(*pend.pop(0))
        else:
            side = stats_check()
            pend = [(f"ds_read_b128 v[{(CS, CSP)[h]+4*n2}:{(CS, CSP)[h]+4*n2+3}], v{VCR} offset:{64*n2+256*h}", f"csp{n2}") for n2 in range(4) for h in range(2)]
            for q, (n, t) in enumerate(base):
                if q % 3 == 0: k.lstamp("g1end")
                mm(i, 1, n, t)
                if q == 0: k.lds_peek(4, VSY, GR, "pk4")
                if q == 5: k.lds_check(4, VSY, GR, "pk4")
                if q >= 5 and pend: a.lds(*pend.pop(0))
                if q == 1: a.wait(lg="stt")
                if side and q >= 1 and q != 5: a(side.pop(0))
        assert not pend
    a.vm = []
    if cfg.xprio: a("s_setprio 2")
    stamp(3)
    for m in range(0, 16, 2):
        if m % 8 == 0: a.wait(lg=f"csp{m//4+1}"); a(".p2align 3")
        a(f"v_pk_add_f32 v[{CS+m}:{CS+m+1}], v[{CS+m}:{CS+m+1}], v[{CSP+m}:{CSP+m+1}]")
    CACC, FAB = 16, ((96, 128), (48, 160))
    def reads(cc):
        FA, FB = FAB[cc & 1]; r = []
        for n in range(8):
            r.append((f"ds_read_b128 v[{FB+4*n}:{FB+4*n+3}], v{CB} offset:{3584-512*n+64*cc}", f"B{cc}_{n}"))
            for hf in range(2): r.append((f"ds_read_b64 v[{FA+4*n+2*hf}:{FA+4*n+2*hf+1}], v{CA} offset:{512*n+64*cc+8*hf}", f"A{cc}_{n}"))
        return r
    pend = reads(0)
    hq = []
    units = [(pp, tau) for pp in range(2) for tau in range(4)]
    for u, (pp, tau_) in enumerate(units):
        k.lstamp("gelu")
        if u == 7: k.lds_peek(0, VSY, GR, "pk0")
        E = CSP + 8*(u & 1); O = 228 + 4*(u & 1)
        prs = [(ACC + 4*(4*(2*pp+tl)+tau_) + 2*hh, tau_, 4*(2*pp+tl) + 2*hh, E + 4*tl + 2*hh) for tl in range(2) for hh in range(2)]
        for z, tau, hh, e in prs: a(f"v_pk_fma_f32 v[{e}:{e+1}], v[{CS+hh}:{CS+hh+1}], v[{STT+2*tau}:{STT+2*tau+1}], v[{B1F+hh}:{B1F+hh+1}] op_sel_hi:[1,0,1] neg_lo:[0,1,0] neg_hi:[0,1,0]")
        for z, tau, hh, e in prs: a(f"v_pk_fma_f32 v[{z}:{z+1}], v[{STT+2*tau}:{STT+2*tau+1}], v[{z}:{z+1}], v[{e}:{e+1}] op_sel:[1,0,0]")
        for z, tau, hh, e in prs: a(f"v_pk_fma_f32 v[{e}:{e+1}], v[{z}:{z+1}], v[{z}:{z+1}], v[{KC}:{KC+1}] op_sel_hi:[1,1,0]")
        for z, tau, hh, e in prs: a(f"v_pk_mul_f32 v[{e}:{e+1}], v[{e}:{e+1}], v[{z}:{z+1}]")
        for m in range(0 if cfg.x_nogelu else 8): a(f"v_exp_f32 v{E+m}, v{E+m}")
        for z, tau, hh, e in prs: a(f"v_pk_fma_f32 v[{e}:{e+1}], v[{KC}:{KC+1}], v[{e}:{e+1}], v[{KC}:{KC+1}] op_sel:[1,0,1]")
        if u == 7 and cfg.earlyrd: k.lds_check(0, VSY, GR, "pk0")
        for m in range(8):
            if not cfg.x_nogelu: a(f"v_rcp_f32 v{E+m}, v{E+m}")
            if u == 7 and m < cfg.earlyrd: a.lds(*pend.pop(0))
        for z, tau, hh, e in prs: a(f"v_pk_mul_f32 v[{z}:{z+1}], v[{z}:{z+1}], v[{e}:{e+1}]")
        for q in range(4): a(f"v_cvt_pk_bf16_f32 v{O+q}, v{prs[q][0]}, v{prs[q][0]+1}")
        flush = u in cfg.hgroups
        so = (S_H0, S_H1)[pp]
        hq.append((f"buffer_store_dwordx4 v[{O}:{O+3}], v{V16}, s[{R_WS}:{R_WS+3}], s{so} offen offset:{1024*tau_} sc1", "h" if u > 3 else "ha"))
        if flush:
            while hq: a.vmem(*hq.pop(0))
    k.lstamp("gelu")
    stamp(5)
    if cfg.xprio: a("s_setprio 0")
    assert cfg.earlyrd
    n0 = len(a.lines); sv = (list(a.vm), list(a.lg)); a.vm = []; a.lg = []
    a.label("L_Mh")
    late_setup()
    def xloads():
        a.vmem(f"buffer_load_dwordx4 v[{XR2}:{XR2+3}], v{VXO}, s[{R_Q}:{R_Q+3}], 0 offen", "x")
        a.vmem(f"buffer_load_dwordx4 v[{XR2+4}:{XR2+7}], v{VXO}, s[{R_Q}:{R_Q+3}], s{S_U1} offen", "x")
    if cfg.xlds: xloads()
    a("s_barrier")
    a(f"v_mov_b32 v{T1}, 1\ns_mov_b64 exec, 1\nds_add_u32 v{VSY}, v{T1} offset:16\ns_mov_b64 exec, -1")
    k.lds_wait(0, VSY, GR, setaddr=False, sleep=2)
    for ins, tag in reads(0)[:cfg.earlyrd]: a(ins)
    a("s_branch L_Mj")
    k.ool.append("\n".join(a.lines[n0:])); del a.lines[n0:]
    a.vm, a.lg = sv
    a.label("L_Mj")
    stamp(6)
    while len(pend) > 15: a.lds(*pend.pop(0))
    cnt = [0]
    def tick():
        if cnt[0] == cfg.asigpos: a.wait(vm="ha"); a(f"s_atomic_add s{S_INC}, s[{P_WS}:{P_WS+1}], s{S_PUB}")
        if cnt[0] == cfg.hsigpos: a.wait(vm="h"); a(f"s_lshl_b32 s{S_ONE}, s{S_INC}, 8\ns_atomic_add s{S_ONE}, s[{P_WS}:{P_WS+1}], s{S_PUB}")
        if cnt[0] % 14 == 0 or cnt[0] == 152: k.lstamp("conv")
        cnt[0] += 1
    tick()
    wq = []
    for cc in range(4):
        FA, FB = FAB[cc & 1]
        nxt = reads(cc+1) if cc < 3 else []
        for T in range(8):
            for an in ([-1] if cc == 0 else []) + list(range(T+1)):
                d = CACC + 4*T
                if an < 0:
                    a.wait(lg=f"B0_{T}")
                    a(f"v_mfma_f32_16x16x32_bf16 v[{d}:{d+3}], v[{AD}:{AD+3}], v[{FB+4*T}:{FB+4*T+3}], 0")
                else:
                    e = T - an
                    a.wait(lg=[f"A{cc}_{an}", f"B{cc}_{e}"])
                    if not cfg.x_noconv or cc == 3: a(f"v_mfma_f32_16x16x32_bf16 v[{d}:{d+3}], v[{FA+4*an}:{FA+4*an+3}], v[{FB+4*e}:{FB+4*e+3}], v[{d}:{d+3}]")
                if pend: a.lds(*pend.pop(0))
                elif nxt:
                    a.lds(*nxt.pop(0))
                    if cc == 2 and not nxt:
                        a(f"v_mov_b32 v{T1}, 1\ns_mov_b64 exec, 1"); a.lds(f"ds_add_u32 v{VSY}, v{T1} offset:4"); a("s_mov_b64 exec, -1")
                tick()
                if cc == 3:
                    if (T, an) == (1, 0): k.lds_peek(1, VSY, T0, "pk1")
                    if (T, an) == (3, 2): k.lds_check(1, VSY, T0, "pk1")
                    if an == T: wq.append((cnt[0] + 8, T))
                    if wq and wq[0][0] <= cnt[0] and (T, an) > (3, 2):
                        T2_ = wq.pop(0)[1]
                        a.lds(f"ds_write_b128 v{EXW}, v[{CACC+4*T2_}:{CACC+4*T2_+3}] offset:{1024*T2_}")
        assert not pend and not nxt
    stamp(7)
    assert [t for _, t in wq] == [7]
    a("s_nop 6")
    a.lds(f"ds_write_b128 v{EXW}, v[{CACC+28}:{CACC+31}] offset:{1024*7}")
    a(f"s_mov_b64 exec, 1"); a.lds(f"ds_add_u32 v{VSY}, v{T1} offset:8"); a("s_mov_b64 exec, -1")
    k.lds_wait(2, VSY, T0, setaddr=False)
    FA = 48
    for tt in range(2):
        for src in range(4):
            a.lds(f"ds_read_b128 v[{FA+16*tt+4*src}:{FA+16*tt+4*src+3}], v{EXR} offset:{8192*src+1024*tt}", f"e{tt}")
    for tt in range(2):
        a.wait(lg=f"e{tt}")
        b = FA + 16*tt
        for r in range(4): a(f"v_add_f32 v{b+r}, v{b+r}, v{b+4+r}\nv_add_f32 v{b+8+r}, v{b+8+r}, v{b+12+r}")
        for r in range(4): a(f"v_cvt_pk_bf16_f32 v{b+4+r}, v{b+r}, v{b+8+r}")
        a.vmem(f"buffer_store_dwordx4 v[{b+4}:{b+7}], v{YST}, s[{R_WS}:{R_WS+3}], 0 offen{' offset:1024' if tt else ''} sc1", "y")
    stamp(8)
    ST2, B2R = 24, 28
    if not cfg.xlds: xloads()
    a(f"v_and_b32 v{T0}, 1023, v{VSA}\nv_add_u32 v{T0}, {L_ST}, v{T0}")
    a.lds(f"ds_read2_b64 v[{ST2}:{ST2+3}], v{T0} offset0:0 offset1:32", "b2")
    a.lds(f"ds_read_b128 v[{B2R}:{B2R+3}], v{VB2}", "b2")
    a(f"s_add_u32 m0, s{S_B}, {L_YST}")
    if not cfg.xlds: a.wait(vm="y"); k.signal(S_YP)
    a.wait(vm="x", lg="b2")
    L = a.newlabel("Ls2"); B = a.newlabel("Ls2b")
    chk = f"v_min3_u32 v{T0}, v{ST2}, v{ST2+1}, v{ST2+2}\nv_min_u32 v{T0}, v{T0}, v{ST2+3}\nv_cmp_eq_u32 vcc, 0, v{T0}"
    a(f"{chk}\ns_mov_b32 s{S_SPIN}, 0\ns_cbranch_vccnz {L}"); a.label(B)
    k.ool.append(f"{L}:\nbuffer_load_dwordx2 v[{ST2}:{ST2+1}], v{VSA}, s[{R_WS}:{R_WS+3}], 0 offen sc1\nbuffer_load_dwordx2 v[{ST2+2}:{ST2+3}], v{VSA}, s[{R_WS}:{R_WS+3}], 0 offen offset:256 sc1\n"
                 f"s_add_u32 s{S_SPIN}, s{S_SPIN}, 1\ns_waitcnt vmcnt(0)\n{chk}\ns_cmp_gt_u32 s{S_SPIN}, {SPIN_MAX}\ns_cbranch_scc1 {B}\ns_cbranch_vccnz {L}\ns_branch {B}")
    XF2, PP, B2F, YR = 80, 96, 32, 40
    for n in range(2):
        for m in range(4): a(f"v_lshlrev_b32 v{XF2+8*n+2*m}, 16, v{XR2+4*n+m}\nv_and_b32 v{XF2+8*n+2*m+1}, 0xffff0000, v{XR2+4*n+m}")
        for m in range(8): a(f"v_sub_f32 v{PP+8*n+m}, v{XF2+8*n+m}, v{ST2+2*n}")
        for m in range(8): a(f"v_mul_f32 v{PP+8*n+m}, v{PP+8*n+m}, v{ST2+2*n+1}")
    for m in range(4): a(f"v_lshlrev_b32 v{B2F+2*m}, 16, v{B2R+m}\nv_and_b32 v{B2F+2*m+1}, 0xffff0000, v{B2R+m}")
    if cfg.xlds: a.wait(vm="y"); k.signal(S_YP)
    stamp(9)
    if not cfg.x_noy: k.spoll(S_YC, 8)
    stamp(10)
    a.vmem(f"buffer_load_dwordx4 v{YS0}, s[{R_WS}:{R_WS+3}], 0 offen sc1 lds", "ys")
    a.vmem(f"buffer_load_dwordx4 v{YS1}, s[{R_WS}:{R_WS+3}], 0 offen offset:1024 sc1 lds", "ys")
    a(f"v_mov_b32 v{T2}, {f32(-1.4426950408889634)}")
    RD, EE = 112, 176
    S_ARR, S_YRD = S_U2, S_U3
    def pk(op, d, x0, x1, x2=None, mod=""): a(f"{op} v[{d}:{d+1}], {x0}, {x1}" + (f", {x2}" if x2 else "") + mod)
    def preads(n):
        for kq in range(4):
            for e in range(2):
                a.lds(f"ds_read_b128 v[{RD+32*n+8*kq+4*e}:{RD+32*n+8*kq+4*e+3}], v{(PA0, PA1)[n]} offset:{2048*kq+16*e}", f"p{n}_{kq}")
    yrd = "\n".join(f"ds_read2st64_b32 v[{YR+4*n+2*q}:{YR+4*n+2*q+1}], v{ya} offset0:{2*q} offset1:{2*q+1}" for n, ya in enumerate((YA0, YA1)) for q in range(2))
    arr3 = f"s_waitcnt vmcnt(0)\ns_mov_b64 exec, 1\nds_add_u32 v{VSY}, v{T1} offset:12\ns_mov_b64 exec, -1\ns_mov_b32 s{S_ARR}, 1"
    yfold = yrd + "\ns_waitcnt lgkmcnt(0)\n" + "\n".join(
        f"v_lshlrev_b32 v{EE}, 16, v{YR+q}\nv_and_b32 v{EE+1}, 0xffff0000, v{YR+q}\nv_mul_f32 v{PP+2*q}, v{PP+2*q}, v{EE}\nv_mul_f32 v{PP+2*q+1}, v{PP+2*q+1}, v{EE+1}" for q in range(8))
    L = a.newlabel("Lf"); N = a.newlabel("Lfn"); N2 = a.newlabel("Lfm"); D = a.newlabel("Lfd"); L2 = a.newlabel("Lfw")
    a(f"s_mov_b32 s{S_ARR}, 0\ns_mov_b32 s{S_YRD}, 0\ns_mov_b32 s{S_SPIN}, 0")
    a.label(L)
    a(f"s_getreg_b32 s{S_T0}, hwreg(HW_REG_IB_STS, 0, 4)\ns_or_b32 s{S_T0}, s{S_T0}, s{S_ARR}\ns_cbranch_scc1 {N}\n{arr3}")
    a.label(N)
    a(f"ds_read2_b32 v[{EE+2}:{EE+3}], v{VSY} offset0:3 offset1:6\ns_add_u32 s{S_SPIN}, s{S_SPIN}, 1\ns_waitcnt lgkmcnt(0)")
    a(f"v_cmp_eq_u32 vcc, 4, v{EE+2}\ns_cmp_gt_u32 s{S_SPIN}, {SPIN_MAX*8}\ns_cbranch_vccnz {N2}\ns_cbranch_scc1 {D}")
    a(f"v_cmp_ne_u32 vcc, 4, v{EE+3}\ns_nop 0\ns_cbranch_vccz {D}\ns_sleep 1\ns_branch {L}")
    a.label(N2)
    a(f"{yfold}\ns_mov_b32 s{S_YRD}, 1")
    k.lds_wait(6, VSY, T0, setaddr=False, sleep=cfg.fsleep)
    a.label(D); a.lg = []
    stamp(12)
    k.lstamp("fin")
    def op(name, d, x0, x1, x2=None, c=None):
        for m in range(0, 8, 2):
            if c is None: pk(f"v_pk_{name}_f32", d+m, v(x0+m, 2), v(x1+m, 2), v(x2+m, 2) if x2 is not None else None)
            else: pk(f"v_pk_{name}_f32", d+m, v(x0+m, 2), c if c == "1.0" else v(c, 2), mod=" op_sel_hi:[1,0]")
    def gate_a(n):
        b = RD + 32*n
        a.wait(lg=f"p{n}_0"); a(".p2align 3")
        op("add", b, b, B2F)
        a.wait(lg=f"p{n}_2"); a(".p2align 3")
        op("add", b+8, b+8, b+16)
        a.wait(lg=f"p{n}_3"); a(".p2align 3")
        op("add", b, b, b+24)
        op("add", b, b, b+8)
        op("mul", EE, b, None, c=T2)
    def gate_b(n):
        for m in range(8): a(f"v_exp_f32 v{EE+m}, v{EE+m}")
        op("add", EE, EE, None, c="1.0")
    def gate_c(n):
        b = RD + 32*n
        for m in range(8): a(f"v_rcp_f32 v{EE+m}, v{EE+m}")
        op("mul", b, b, EE)
    def finish(n):
        b = RD + 32*n
        op("fma", b, b, PP+8*n, XF2+8*n)
        for m in range(4): a(f"v_cvt_pk_bf16_f32 v{b+8+m}, v{b+2*m}, v{b+2*m+1}")
        a(f"buffer_store_dwordx4 v[{b+8}:{b+11}], v{VXO}, s[{R_OUT}:{R_OUT+3}], {'s%d' % S_U1 if n else '0'} offen {cfg.out_flags}")
    PKV = EE + 10
    def try_arrive():
        N = a.newlabel("Lta")
        a(f"s_getreg_b32 s{S_T0}, hwreg(HW_REG_IB_STS, 0, 4)\ns_or_b32 s{S_T0}, s{S_T0}, s{S_ARR}\ns_cbranch_scc1 {N}\n{arr3}"); a.label(N)
    fold = lambda n: "\n".join(f"v_lshlrev_b32 v{EE+12+2*(q&1)}, 16, v{YR+q}\nv_and_b32 v{EE+13+2*(q&1)}, 0xffff0000, v{YR+q}\nv_pk_mul_f32 v[{PP+2*q}:{PP+2*q+1}], v[{PP+2*q}:{PP+2*q+1}], v[{EE+12+2*(q&1)}:{EE+13+2*(q&1)}]" for q in range(4*n, 4*n+4))
    preads(0)
    gate_a(0); gate_b(0); gate_c(0)
    S1 = a.newlabel("Ly1"); S2 = a.newlabel("Ly2"); N = a.newlabel("Lyn"); N3 = a.newlabel("Lym")
    a(f"s_cmp_eq_u32 s{S_YRD}, 0\ns_cbranch_scc1 {S1}")
    finish(0)
    a(f"s_branch {N3}")
    a.label(S1)
    try_arrive()
    a.label(N3)
    k.lstamp("fin"); stamp(11)
    k.lds_wait(7, VSY, T0, setaddr=False)
    k.lstamp("fin")
    preads(1)
    a(f"ds_read_b32 v{PKV}, v{VSY} offset:12")
    gate_a(1)
    Y = a.newlabel("Lyq")
    a(f"s_cmp_lg_u32 s{S_YRD}, 0\ns_cbranch_scc1 {Y}\ns_waitcnt lgkmcnt(0)\nv_cmp_ne_u32 vcc, 4, v{PKV}\ns_nop 0\ns_cbranch_vccnz {Y}\n{yrd}\ns_mov_b32 s{S_YRD}, 2")
    a.label(Y)
    gate_b(1); gate_c(1)
    k.lstamp("fin")
    F = a.newlabel("Lyf")
    a(f"s_cmp_eq_u32 s{S_YRD}, 1\ns_cbranch_scc1 {S2}\ns_cmp_eq_u32 s{S_YRD}, 2\ns_cbranch_scc1 {F}")
    a(f"s_cmp_lg_u32 s{S_ARR}, 0\ns_cbranch_scc1 {N}\n{arr3}")
    a.label(N)
    k.lds_wait(3, VSY, T0, setaddr=False)
    a(yrd)
    a.label(F)
    a(f"s_waitcnt lgkmcnt(0)\n{fold(0)}")
    finish(0)
    a(fold(1))
    a.label(S2)
    finish(1)
    k.lstamp("fin")
    stamp(13)
    if cfg.diag_pad or cfg.diag_amp:
        if cfg.diag_amp: a(f"s_sub_u32 s{S_T2}, s{S_ST}, s{S_EX}\ns_mul_i32 s{S_T2}, s{S_T2}, {cfg.diag_amp[1]}\ns_min_u32 s{S_T2}, s{S_T2}, 200000")
        else: a(f"s_mov_b32 s{S_T2}, {cfg.diag_pad}")
        a.label("L_pad")
        a(f"s_memrealtime s[{S_T0}:{S_T1}]\ns_waitcnt lgkmcnt(0)\ns_sub_u32 s{S_T0}, s{S_T0}, s{S_EX}\ns_cmp_lt_u32 s{S_T0}, s{S_T2}\ns_cbranch_scc1 L_pad")
    k.flush_stamps()
    a("s_endpgm")
    for o in k.ool: a(o)

Cfg.g2_nomfma = False; Cfg.g2_hot = False; Cfg.g2_noload = False; Cfg.hflag = 'sc1'; Cfg.seg7 = 4; Cfg.nearly = 6; Cfg.binit = 0; Cfg.cap = 16; Cfg.la = 5; Cfg.x_nohst = False; Cfg.spf = None; Cfg.spfw = True; Cfg.n0 = 8; Cfg.n1 = 3; Cfg.cap0 = 16; Cfg.capseg = 0; Cfg.ssmf = ''; Cfg.cap2 = 9; Cfg.nl = 13; Cfg.pk0 = True; Cfg.fsleep = 1; Cfg.dynsig = None; Cfg.urst = 0; Cfg.x_nop2 = False; Cfg.psleep = 0; Cfg.hsplit = True; Cfg.asigpos = 16; Cfg.apeek = 3; Cfg.bpeek = 8; Cfg.earlyrd = 8; Cfg.diag2 = None; Cfg.wsoff = 0; Cfg.lst = None; Cfg.hgroups = tuple(range(8)); Cfg.htouch = 1; Cfg.urfirst = False; Cfg.e0seg = 5; Cfg.mseg = 1; Cfg.nps = 2; Cfg.pdelay = 0; Cfg.upos = 2; Cfg.hold = (4,); Cfg.uwait = 3; Cfg.dseg = -1; Cfg.bgn = 1; Cfg.g1prio = 1; Cfg.n2 = 4; Cfg.x_noy = False; Cfg.x_noconv = False; Cfg.x_nogelu = False; Cfg.x_nog2 = False; Cfg.x_trim = False; Cfg.kvf = 'nt'; Cfg.hwhat = ('', 'ws', '', ''); Cfg.hfull = False; Cfg.hold0 = 0; Cfg.np = 3; Cfg.lah = 12; Cfg.ldt = (0, 2); Cfg.snake = True; Cfg.ucopy = True; Cfg.xlds = True; Cfg.tprio = 0; Cfg.jitter = None; Cfg.usig = (5,0); Cfg.upk = 2; Cfg.g2p = 0; Cfg.mlead = 0; Cfg.uarr = 8; Cfg.uarr_d = 5; Cfg.w2x = False; Cfg.bq = 4; Cfg.rdnow = False; Cfg.coarse = False
HEADER = open("recurrent_scan__ssm_conv_h3__dense_activation_gelu__prompt.s.ref").read().split("; @launch")[0]
def full(cfg):
    kp = K(cfg); prologue(kp)
    km = K(cfg); km.role = 'm'; km.a.nlabel = 1000; gen_m(km)
    kx = K(cfg); kx.role = 'x'; gen_x(kx)
    errs = check(kp.a.lines + km.a.lines) + check(kp.a.lines + kx.a.lines)
    a = Asm()
    a.lines = kp.a.lines + km.a.lines[:km.split] + ["L_X:"] + kx.a.lines + km.a.lines[km.split:] + ["L_end:", "s_endpgm", "L_code_end:"]
    for e in errs: print(e, file=sys.stderr)
    assert not errs
    t = HEADER + f"; @launch grid=(256,1,1) block=(512,1,1) lds={LDS_BYTES}\n"
    t += f'.amdgcn_target "amdgcn-amd-amdhsa--gfx950"\n.text\n.globl {NAME}\n.p2align 8\n.type {NAME},@function\n'
    t += a.text()
    t += f'''.section .rodata,"a"
.p2align 6
.amdhsa_kernel {NAME}
  .amdhsa_next_free_vgpr 256
  .amdhsa_next_free_sgpr 102
  .amdhsa_accum_offset 256
  .amdhsa_group_segment_fixed_size 0
  .amdhsa_kernarg_size 112
  .amdhsa_user_sgpr_count 2
  .amdhsa_user_sgpr_kernarg_segment_ptr 1
  .amdhsa_system_sgpr_workgroup_id_x 1
  .amdhsa_float_denorm_mode_32 3
.end_amdhsa_kernel
'''
    return t
if __name__ == "__main__":
    cfg = Cfg()
    for kv in sys.argv[2:]:
        kk, val = kv.split("=", 1); assert hasattr(cfg, kk), kk; setattr(cfg, kk, eval(val))
    open(sys.argv[1], "w").write(full(cfg))
```

```python
import sys, struct
from asmlib import Asm, v, s, check

NAME = "recurrent_scan__ssm_conv_h3__dense_activation_gelu__prompt_kernel"
def f32(x): return "0x%08x" % struct.unpack("<I", struct.pack("<f", x))[0]

WS_CNT, WS_STATS, WS_STAMP, WS_UR, WS_Y, WS_H = 0, 0x20000, 0x40000, 0x100000, 0x300000, 0x500000
WS_SIZE = 0x500000 + 64*112*1024
CNT_UR, CNT_H, CNT_Y = 0, 128, 256
L_Q, L_W, L_KST = 0, 49152, 98304
L_VST = L_KST + 9*1024
L_CT = 115712; CH_STRIDE = 17600; H_STRIDE = 4224; U_OFF = 8448; U_STRIDE = 4576
L_MISC = L_CT + 2*CH_STRIDE
L_YST = L_MISC
L_CS = L_YST + 8192
L_SYNC = L_CS + 1024
L_TAP = L_SYNC + 64; L_B1 = L_TAP + 512; L_B2 = L_B1 + 256
L_GR = L_B2 + 128; L_ST = L_GR + 64
LDS_BYTES = L_ST + 1024
SPIN_MAX = 1 << 17

P_Q, P_K, P_V, P_SH, P_SSM, P_D, P_BX, P_W1, P_B1, P_W2, P_B2, P_OUT, P_DBG, P_WS = range(4, 32, 2)
S_WV, S_XCD, S_J, S_R, S_C, S_KC0, S_R2, S_C2, S_OFF, S_WAVE = range(32, 42)
S_A, S_B, S_T0, S_T1, S_T2, S_T3 = range(42, 48)
R_Q, R_K, R_V, R_W1, R_WS, R_DBG, R_W2, R_SSM, R_X0, R_OUT = range(48, 88, 4)
S_U0, S_U1, S_U2, S_U3, S_U4, S_U5, S_SPIN, S_PUB = range(88, 96)
S_EX = 96; S_ST = 100
S_ONE, S_PV = 3, 16
S_C16, S_CL = S_OFF, S_A

class Cfg:
    stamps = False
    kvpos = 2; g1stag = "xr"; g2map = 4; g2stag = "none"; ntq = ""; ntw2 = ""
    markseg = 0; ssmseg = 6; stseg = 6; urseg = 2; w2touch = 3
    urpos = -1
    hsigpos = 68
    xprio = 1
    code_pf = True
    diag_pad = 0; diag_amp = None; out_flags = "sc1"
    x_nomfma = False; x_nolds = False; x_nodma = False; segstamps = True

def srd(a, R, P, size):
    a(f"s_mov_b64 s[{R}:{R+1}], s[{P}:{P+1}]\ns_mov_b32 s{R+2}, {size}\ns_mov_b32 s{R+3}, 0x20000")

class K:
    def __init__(self, cfg): self.a = Asm(); self.cfg = cfg; self.ool = []; self.nls = 0
    NOTES = {("x", 0): "X: remaining address setup", ("x", 2): "X: GEMM1 loader loop (LDS ring of 3 K-chunks); k*v preparation interleaved",
             ("x", 9): "X: stream w2 through LDS into registers (first half) and LDS (second half); stage the conv tables",
             ("x", 13): "X: GEMM2, one K quarter per wave, h fragments straight from the workspace", ("x", 14): "X: last partial sums to LDS",
             ("m", 0): "M: row statistics of 2 rows per wave (two-pass mean / variance)", ("m", 2): "M: GEMM1 on raw x (LayerNorm folded into the epilogue; column sums of w1 by extra MFMAs)",
             ("m", 3): "M: LayerNorm fold + bias + tanh-GELU, h fragments to the workspace", ("m", 6): "M: causal long convolution as Toeplitz MFMAs (2 channels per workgroup)",
             ("m", 7): "M: combine class halves, publish y", ("m", 9): "M: wait for y, stage it", ("m", 12): "M: sum the K quarters, SiLU gate, output"}
    def stamp(self, i):
        a, cfg = self.a, self.cfg
        if (self.role, i) in self.NOTES: a.lines.append("; ---- " + self.NOTES[(self.role, i)])
        if cfg.jitter:
            L = a.newlabel("Ljt"); D = a.newlabel("Ljd")
            a(f"s_memtime s[{S_ST}:{S_ST+1}]\ns_waitcnt lgkmcnt(0)\ns_mul_i32 s{S_ST}, s{S_ST}, 0x9E3779B1\ns_lshr_b32 s{S_ST+1}, s{S_ST}, {32-cfg.jitter[0]}\ns_cmp_lg_u32 s{S_ST+1}, 0\ns_cbranch_scc1 {D}")
            a(f"s_bfe_u32 s{S_ST}, s{S_ST}, {hex((cfg.jitter[1] << 16) | 10)}")
            a.label(L); a(f"s_sleep 4\ns_sub_u32 s{S_ST}, s{S_ST}, 1\ns_cbranch_scc0 {L}"); a.label(D); a.lg = []
        if cfg.diag2 and self.role == cfg.diag2[0] and i in cfg.diag2[1:3]:
            a(f"s_memrealtime s[{S_ST}:{S_ST+1}]\ns_waitcnt lgkmcnt(0)"); a.lg = []
            a(f"s_mov_b32 s{S_EX+1}, s{S_ST}" if i == cfg.diag2[1] else f"s_sub_u32 s{S_EX+1}, s{S_ST}, s{S_EX+1}")
        if cfg.diag_amp and cfg.diag_amp[0] == i:
            a(f"s_memrealtime s[{S_ST}:{S_ST+1}]\ns_waitcnt lgkmcnt(0)"); a.lg = []
        if cfg.stamps == "tail" and i != 0 and (self.role, i) not in (("x", 13), ("x", 14), ("m", 10), ("m", 12), ("m", 13)): return
        if cfg.stamps == "min" and i == 0:
            a("v_writelane_b32 v255, s86, 23"); return
        if cfg.stamps == "min" and not (i == 13 and self.role == "m"): return
        if cfg.stamps:
            a(f"s_memrealtime s[{S_ST}:{S_ST+1}]\ns_memtime s[{S_EX}:{S_EX+1}]\ns_waitcnt lgkmcnt(0)\nv_writelane_b32 v255, s{S_ST}, {i}\nv_writelane_b32 v255, s{S_EX}, {32+i}")
            if i == 0: a("v_writelane_b32 v255, s86, 23")
            a.lg = []
    LS = [52, 54, 56, 58, 60, 62, 68, 70, 72, 74, 76, 78]
    def lstamp(self, grp):
        if self.cfg.stamps and self.cfg.lst == grp:
            j = self.nls; self.nls += 1
            self.a(f"s_memtime s[{self.LS[j]}:{self.LS[j]+1}]")
    def flush_stamps(self):
        a = self.a; cfg = self.cfg
        if self.nls:
            a("s_waitcnt lgkmcnt(0)")
            for j in range(self.nls): a(f"v_writelane_b32 v255, s{self.LS[j]}, {(24+j) if j < 8 else (48+j)}")
        if cfg.diag2 and self.role == cfg.diag2[0]:
            a(f"s_mul_i32 s{S_T2}, s{S_EX+1}, {cfg.diag2[3]}\ns_add_u32 s{S_T2}, s{S_T2}, 2000\ns_min_u32 s{S_T2}, s{S_T2}, 200000")
            if cfg.diag2[4] is not None: a(f"s_lshl2_add_u32 s{S_T0}, s2, s{S_WV}\ns_cmp_eq_u32 s{S_T0}, {cfg.diag2[4]}\ns_cselect_b32 s{S_T2}, s{S_T2}, 0")
            a.label("L_pad2")
            a(f"s_memrealtime s[{S_T0}:{S_T1}]\ns_waitcnt lgkmcnt(0)\ns_sub_u32 s{S_T0}, s{S_T0}, s{S_EX}\ns_cmp_lt_u32 s{S_T0}, s{S_T2}\ns_cbranch_scc1 L_pad2")
        if self.cfg.stamps:
            a(f"s_lshl_b32 s{S_T0}, s2, 3\ns_add_u32 s{S_T0}, s{S_T0}, s{S_WAVE}\ns_lshl_b32 s{S_T0}, s{S_T0}, 8\ns_add_u32 s{S_T0}, s{S_T0}, {WS_STAMP}")
            a(f"v_lshlrev_b32 v254, 2, v0\ns_mov_b64 exec, 0x802000\nbuffer_store_dword v255, v254, s[{R_WS}:{R_WS+3}], s{S_T0} offen sc1" if self.cfg.stamps == "min" and not self.cfg.lst else f"v_lshlrev_b32 v254, 2, v0\nbuffer_store_dword v255, v254, s[{R_WS}:{R_WS+3}], s{S_T0} offen")
    def vpoll(self, vaddr, vdata, R, expect):
        a = self.a; L = a.newlabel("Lpoll"); D = a.newlabel("Lpolld")
        a(f"s_mov_b32 s{S_SPIN}, 0")
        a.label(L)
        a(f"buffer_load_dword v{vdata}, v{vaddr}, s[{R}:{R+3}], 0 offen sc1\ns_waitcnt vmcnt(0)")
        a(f"v_cmp_ne_u32 vcc, {expect}, v{vdata}")
        a(f"s_add_u32 s{S_SPIN}, s{S_SPIN}, 1\ns_cmp_gt_u32 s{S_SPIN}, {SPIN_MAX}\ns_cbranch_scc1 {D}\ns_cbranch_vccnz {L}")
        a.label(D)
    def spoll(self, off_sgpr, expect):
        a = self.a; L = a.newlabel("Lsp"); D = a.newlabel("Lspd")
        a(f"s_mov_b32 s{S_SPIN}, 0")
        a.label(L)
        a(f"s_load_dword s{S_PV}, s[{P_WS}:{P_WS+1}], s{off_sgpr} glc\ns_add_u32 s{S_SPIN}, s{S_SPIN}, 1\ns_waitcnt lgkmcnt(0)")
        a(f"s_cmp_eq_u32 s{S_PV}, {expect}\ns_cbranch_scc1 {D}")
        if self.cfg.psleep: a(f"s_sleep {self.cfg.psleep}")
        a(f"s_cmp_gt_u32 s{S_SPIN}, {SPIN_MAX}\ns_cbranch_scc0 {L}")
        a.label(D); a.lg = []
    def signal(self, cnt, inc=1): self.a(f"s_movk_i32 s{S_ONE}, {inc}\ns_atomic_add s{S_ONE}, s[{P_WS}:{P_WS+1}], s{cnt}")
    def lds_arrive(self, word, vtmp, vone):
        a = self.a
        a(f"v_mov_b32 v{vtmp}, {L_SYNC}\nv_mov_b32 v{vone}, 1\ns_mov_b64 exec, 1")
        a.lds(f"ds_add_u32 v{vtmp}, v{vone} offset:{4*word}")
        a("s_mov_b64 exec, -1")
    def lds_wait(self, word, vtmp, vone, setaddr=True, sleep=0):
        a = self.a; L = a.newlabel("Lsy"); D = a.newlabel("Lsyd")
        if setaddr: a(f"v_mov_b32 v{vtmp}, {L_SYNC}")
        a(f"s_mov_b32 s{S_SPIN}, 0")
        a.label(L)
        a(f"ds_read_b32 v{vone}, v{vtmp} offset:{4*word}\ns_add_u32 s{S_SPIN}, s{S_SPIN}, 1\ns_waitcnt lgkmcnt(0)")
        a(f"v_cmp_ne_u32 vcc, 4, v{vone}\ns_cmp_gt_u32 s{S_SPIN}, {SPIN_MAX*8}\ns_cbranch_scc1 {D}")
        if sleep: a(f"s_cbranch_vccz {D}\ns_sleep {sleep}\ns_branch {L}")
        else: a(f"s_cbranch_vccnz {L}")
        a.label(D); a.lg = []
    def lds_peek(self, word, vaddr, vdst, tag): self.a.lds(f"ds_read_b32 v{vdst}, v{vaddr} offset:{4*word}", tag)
    def lds_check(self, word, vaddr, vdst, tag):
        a = self.a; L = a.newlabel("Lck"); B = a.newlabel("Lckb"); S = a.newlabel("Lcks")
        a.wait(lg=tag)
        a(f"v_cmp_ne_u32 vcc, 4, v{vdst}\ns_mov_b32 s{S_SPIN}, 0\ns_cbranch_vccnz {L}"); a.label(B)
        self.ool.append(f"{L}:\nds_read_b32 v{vdst}, v{vaddr} offset:{4*word}\ns_add_u32 s{S_SPIN}, s{S_SPIN}, 1\ns_waitcnt lgkmcnt(0)\nv_cmp_ne_u32 vcc, 4, v{vdst}\n"
                        f"s_cmp_gt_u32 s{S_SPIN}, {SPIN_MAX*8}\ns_cbranch_scc1 {B}\ns_cbranch_vccnz {L}\ns_branch {B}")
    def speek(self, off): self.a(f"s_load_dword s{S_PV}, s[{P_WS}:{P_WS+1}], s{off} glc")
    def scheck(self, off, mask, expect):
        a = self.a; L = a.newlabel("Lsc"); B = a.newlabel("Lscb")
        m = f"s_and_b32 s{S_PV}, s{S_PV}, {mask}\n" if mask else ""
        a(f"s_mov_b32 s{S_SPIN}, 0\ns_waitcnt lgkmcnt(0)\n{m}s_cmp_lg_u32 s{S_PV}, {expect}\ns_cbranch_scc1 {L}"); a.label(B); a.lg = []
        self.ool.append(f"{L}:\ns_load_dword s{S_PV}, s[{P_WS}:{P_WS+1}], s{off} glc\ns_add_u32 s{S_SPIN}, s{S_SPIN}, 1\ns_cmp_gt_u32 s{S_SPIN}, {SPIN_MAX}\ns_waitcnt lgkmcnt(0)\ns_cbranch_scc1 {B}\n"
                        f"{m}s_cmp_lg_u32 s{S_PV}, {expect}\ns_cbranch_scc1 {L}\ns_branch {B}")
    def lds_sync(self, word, vtmp, vone):
        self.a.wait(lg="all"); self.lds_arrive(word, vtmp, vone); self.lds_wait(word, vtmp, vone, setaddr=False)

def prologue(k):
    a, cfg = k.a, k.cfg
    a.label(NAME)
    if cfg.stamps: a("s_memrealtime s[86:87]")
    a("s_cmp_ge_u32 s2, 256\ns_cbranch_scc1 L_end")
    a("s_load_dwordx16 s[4:19], s[0:1], 0\ns_load_dwordx8 s[20:27], s[0:1], 64\ns_load_dwordx4 s[28:31], s[0:1], 96")
    if cfg.code_pf:
        a(f"s_getpc_b64 s[{S_T0}:{S_T1}]")
        a.label("L_pc")
        a(f"s_lshr_b32 s{S_T2}, s2, 3\ns_lshl_b32 s{S_T2}, s{S_T2}, 10\nv_lshl_add_u32 v2, v0, 1, s{S_T2}\nv_min_u32 v2, L_code_end-L_pc-4, v2")
        a(f"v_mov_b32 v3, s{S_T1}\nv_add_co_u32 v2, vcc, s{S_T0}, v2\ns_mov_b64 exec, 1\ns_nop 0\nv_addc_co_u32 v3, vcc, 0, v3, vcc")
        a(f"global_load_dword v254, v[2:3], off\ns_mov_b64 exec, -1")
    if cfg.stamps: a("v_mov_b32 v255, 0")
    if cfg.diag_pad or cfg.diag_amp or cfg.diag2: a(f"s_memrealtime s[{S_EX}:{S_EX+1}]")
    a("v_lshrrev_b32 v1, 6, v0\nv_and_b32 v0, 63, v0")
    a(f"v_readfirstlane_b32 s{S_WAVE}, v1")
    a(f"s_and_b32 s{S_XCD}, s2, 7\ns_lshr_b32 s{S_J}, s2, 3")
    a(f"s_lshr_b32 s{S_T0}, s{S_XCD}, 1\ns_and_b32 s{S_T1}, s{S_XCD}, 1")
    a(f"s_and_b32 s{S_T2}, s{S_J}, 3\ns_lshr_b32 s{S_CL}, s{S_J}, 2")
    a(f"s_lshl2_add_u32 s{S_R}, s{S_T0}, s{S_T2}\ns_lshl3_add_u32 s{S_C16}, s{S_T1}, s{S_CL}\ns_sub_u32 s{S_C}, s{S_C16}, s{S_T1}\ns_min_u32 s{S_C}, s{S_C}, 13")
    if cfg.g1stag == "four":
        a(f"s_and_b32 s{S_T0}, s{S_T0}, 1")
        a(f"s_add_u32 s{S_KC0}, s{S_T2}, s{S_CL}\ns_and_b32 s{S_KC0}, s{S_KC0}, 3\ns_lshl1_add_u32 s{S_KC0}, s{S_KC0}, s{S_T0}")
    elif cfg.g1stag == "twox": a(f"s_add_u32 s{S_KC0}, s{S_T2}, s{S_CL}\ns_and_b32 s{S_KC0}, s{S_KC0}, 1\ns_lshl2_add_u32 s{S_KC0}, s{S_KC0}, s{S_T0}")
    elif cfg.g1stag == "two": a(f"s_add_u32 s{S_KC0}, s{S_T2}, s{S_CL}\ns_and_b32 s{S_KC0}, s{S_KC0}, 1\ns_lshl_b32 s{S_KC0}, s{S_KC0}, 2")
    elif cfg.g1stag == "xcd": a(f"s_mov_b32 s{S_KC0}, s{S_XCD}")
    elif cfg.g1stag == "xr": a(f"s_lshl_b32 s{S_KC0}, s{S_T0}, 1")
    else: a(f"s_mov_b32 s{S_KC0}, 0")
    a(f"s_lshl1_add_u32 s{S_T3}, s{S_T2}, s{S_CL}")
    if cfg.g2map == 3: a(f"s_xor_b32 s{S_C2}, s{S_CL}, 4\ns_lshl1_add_u32 s{S_R2}, s{S_R}, s{S_T1}")
    elif cfg.g2map == 4:
        a(f"s_and_b32 s{S_R2}, s{S_CL}, 1\ns_lshr_b32 s{S_C2}, s{S_CL}, 1\ns_xor_b32 s{S_T3}, s{S_R2}, 1\ns_cmp_lt_u32 s{S_CL}, 6\ns_cselect_b32 s{S_T3}, s{S_T1}, s{S_T3}\ns_cselect_b32 s{S_R2}, s{S_R2}, s{S_T1}")
        a(f"s_lshl2_add_u32 s{S_C2}, s{S_T3}, s{S_C2}\ns_lshl1_add_u32 s{S_R2}, s{S_R}, s{S_R2}")
    elif cfg.g2map == 1: a(f"s_and_b32 s{S_C2}, s{S_T3}, 7\ns_lshl1_add_u32 s{S_R2}, s{S_R}, s{S_T1}")
    else: a(f"s_and_b32 s{S_R2}, s{S_CL}, 1\ns_lshl1_add_u32 s{S_R2}, s{S_R}, s{S_R2}\ns_bfe_u32 s{S_C2}, s{S_T3}, 0x20001\ns_lshl2_add_u32 s{S_C2}, s{S_T1}, s{S_C2}")
    a(f"s_mov_b32 s{R_Q+2}, {2<<20}\ns_mov_b32 s{R_Q+3}, 0x20000")
    a(f"s_and_b32 s{S_WV}, s{S_WAVE}, 3\nv_lshlrev_b32 v1, 4, v0\ns_lshl_b32 s{S_B}, s{S_WV}, 11")
    a(f"v_lshrrev_b32 v10, 3, v0\nv_lshrrev_b32 v11, 4, v0\nv_and_b32 v12, 7, v0")
    a(f"s_cmp_ge_u32 s{S_WAVE}, 4\ns_cbranch_scc1 L_X")

def gen_x(k):
    a, cfg, stamp = k.a, k.cfg, k.stamp
    x = S_WV
    a.cap = cfg.cap
    V16, W2A, W2B, TR, HA, TRH = 1, 2, 3, 4, 8, 138
    T0, T1, T2, T3 = 10, 11, 12, 13
    VQ, VW, VKA, VKB, VHALO, VTA, PK, PH, PV, PST, VMK, VMD = 14, 18, 22, 23, 24, 25, 26, 27, 28, 29, 30, 31
    TAPS, JUNK = 108, 112
    ACC2, AR, WB = 14, 78, 142
    a(f"v_xor_b32 v{T3}, v{T2}, v{T1}\nv_lshlrev_b32 v{T3}, 4, v{T3}\nv_lshl_add_u32 v{VQ}, v{T0}, 10, v{T3}")
    a(f"s_lshl2_add_u32 s{S_T0}, s{S_R}, s{x}\ns_lshl_b32 s{S_T0}, s{S_T0}, 15\ns_movk_i32 s{S_T2}, {8192-1024}\ns_lshl_b32 s{S_T3}, s{S_T2}, 1")
    a(f"v_add_u32 v{VQ}, s{S_T0}, v{VQ}")
    a(f"v_xor_b32 v{VQ+1}, 64, v{VQ}\nv_add_u32 v{VQ+2}, s{S_T3}, v{VQ}\nv_add_u32 v{VQ+1}, s{S_T2}, v{VQ+1}\nv_add_u32 v{VQ+3}, s{S_T3}, v{VQ+1}")
    d = 4*3584 - 1024
    a(f"v_lshlrev_b32 v{T3}, 5, v{T1}\nv_xor_b32 v{T3}, v{T3}, v{V16}\nv_and_b32 v{T3}, 0xff, v{T3}\nv_xor_b32 v{VW+2}, 0x80, v{T3}")
    a(f"s_lshl_b32 s{S_U1}, s{S_C}, 8\ns_mul_i32 s{S_T1}, s{x}, {16*3584}\ns_add_u32 s{S_T0}, s{S_U1}, s{S_T1}")
    a(f"s_movk_i32 s{S_T1}, 3584\ns_movk_i32 s{S_T2}, {d}\ns_lshl1_add_u32 s{S_T3}, s{S_T2}, s{S_T0}")
    a(f"v_mad_u32_u24 v{VW}, v{T1}, s{S_T1}, v{T3}\nv_mad_u32_u24 v{VW+2}, v{T1}, s{S_T1}, v{VW+2}")
    a(f"v_add_u32 v{VW}, s{S_T0}, v{VW}\nv_add_u32 v{VW+2}, s{S_T3}, v{VW+2}\nv_add_u32 v{VW+1}, s{S_T2}, v{VW}\nv_add_u32 v{VW+3}, s{S_T2}, v{VW+2}")
    a(f"s_lshl_b32 s{S_U1}, s{x}, 12\ns_mov_b32 s{R_W1+2}, {512*3584}\ns_mov_b32 s{R_W1+3}, s{R_Q+3}")
    a("s_waitcnt lgkmcnt(0)")
    a(f"s_mov_b64 s[{R_Q}:{R_Q+1}], s[{P_Q}:{P_Q+1}]\ns_mov_b64 s[{R_W1}:{R_W1+1}], s[{P_W1}:{P_W1+1}]")
    if cfg.wsoff: a(f"s_add_u32 s{P_WS}, s{P_WS}, {cfg.wsoff}\ns_addc_u32 s{P_WS+1}, s{P_WS+1}, 0")
    def chunk_ops(i):
        slot = i % 3
        def mk(kind, n):
            def f():
                if n == 0:
                    if kind == "q":
                        a(f"s_add_u32 s{S_T0}, s{S_KC0}, {i}\ns_and_b32 s{S_T0}, s{S_T0}, 7\ns_lshl_b32 s{S_U3}, s{S_T0}, 7\ns_mul_i32 s{S_U4}, s{S_T0}, {64*3584}")
                    a(f"s_add_u32 m0, s{S_U1}, {(L_Q if kind=='q' else L_W) + slot*16384}\ns_nop 0")
                off = f" offset:{1024*n}" if n else ""
                if kind == "q": a.vmem(f"buffer_load_dwordx4 v{VQ+n}, s[{R_Q}:{R_Q+3}], s{S_U3} offen{off} {cfg.ntq} lds", f"c{i}")
                else: a.vmem(f"buffer_load_dwordx4 v{VW+n}, s[{R_W1}:{R_W1+3}], s{S_U4} offen{off} {cfg.ntq} lds", f"c{i}")
            return f
        return [mk("q", n) for n in range(4)] + [mk("w", n) for n in range(4)]
    def setup_rest():
        stamp(0)
        a(f"v_mov_b32 v{T1}, v{T2}")
        srd(a, R_WS, P_WS, WS_SIZE); srd(a, R_DBG, P_DBG, 256); srd(a, R_W2, P_W2, 1792*1024); srd(a, R_SSM, P_SSM, 2 << 20)
        a(f"s_lshl_b32 s{S_T0}, s{S_XCD}, 6\ns_lshl1_add_u32 s{S_T0}, s{S_J}, s{S_T0}\ns_lshr_b32 s{S_T1}, s{x}, 1\ns_add_u32 s{S_U5}, s{S_T0}, s{S_T1}")
        a(f"s_mul_i32 s{S_T1}, s{S_T1}, {CH_STRIDE}\ns_and_b32 s{S_T2}, s{x}, 1")
        a(f"s_lshl_b32 s{S_T3}, s{S_T2}, 11\ns_add_u32 s{S_H1}, s{S_T1}, s{S_T3}\ns_add_u32 s{S_H1}, s{S_H1}, {L_CT+H_STRIDE+128}")
        a(f"s_mul_i32 s{S_T3}, s{S_T2}, {H_STRIDE}\ns_add_u32 s{S_T3}, s{S_T3}, s{S_T1}\ns_add_u32 s{S_T3}, s{S_T3}, {L_CT+128-512}")
        a(f"s_mul_i32 s{S_T0}, s{S_T2}, {U_STRIDE}\ns_add_u32 s{S_T0}, s{S_T0}, s{S_T1}\ns_add_u32 s{S_T0}, s{S_T0}, {L_CT+U_OFF+4096}")
        Z = JUNK
        a(f"v_mov_b32 v{T2}, s{S_T0}\nv_mov_b32 v{T3}, s{S_T3}\nv_cmp_gt_u32 vcc, 56, v0")
        for i in range(4): a(f"v_mov_b32 v{Z+i}, 0")
        a(f"v_cndmask_b32 v{T3}, v{T3}, v{T2}, vcc\nv_lshl_add_u32 v{T3}, v0, 3, v{T3}\nv_subrev_u32 v{T2}, 4, v{T2}")
        a.lds(f"ds_write_b64 v{T3}, v[{Z}:{Z+1}]")
        a.lds(f"ds_write_b32 v{T2}, v{Z}")
        a(f"v_lshlrev_b32 v{VMK}, 2, v{T1}")
        a(f"v_and_b32 v{T2}, 6, v{T0}\nv_xor_b32 v{T2}, v{T2}, v{T1}\nv_lshlrev_b32 v{T2}, 4, v{T2}\nv_lshl_add_u32 v{W2A}, v{T0}, 10, v{T2}")
        a(f"s_mul_i32 s{S_T0}, s{x}, {448*1024}\ns_lshl_b32 s{S_T1}, s{S_C2}, 7\ns_add_u32 s{S_T0}, s{S_T0}, s{S_T1}")
        a(f"v_add_u32 v{W2A}, s{S_T0}, v{W2A}\nv_add_u32 v{W2B}, {8192-1024}, v{W2A}")
        a(f"v_lshrrev_b32 v{T3}, 2, v0\nv_lshlrev_b32 v{T3}, 7, v{T3}\nv_and_b32 v{T2}, 3, v{T0}\nv_lshl_add_u32 v{T3}, v{T2}, 5, v{T3}\nv_and_b32 v{T2}, 3, v0\nv_lshl_add_u32 v{T3}, v{T2}, 3, v{T3}")
        a(f"v_add_u32 v{TR}, s{S_B}, v{T3}\nv_xor_b32 v{TR+1}, 32, v{TR}\nv_xor_b32 v{TR+2}, 64, v{TR}\nv_xor_b32 v{TR+3}, 0x60, v{TR}")
        for dt in range(4): a(f"v_add_u32 v{TRH+dt}, 65536, v{TR+dt}")
        a(f"s_mul_i32 s{S_T0}, s{S_R2}, {224*1024}\ns_mul_i32 s{S_T1}, s{x}, {56*1024}\ns_add_u32 s{S_T0}, s{S_T0}, s{S_T1}\ns_add_u32 s{S_T0}, s{S_T0}, {WS_H}")
        a(f"v_add_u32 v{HA}, s{S_T0}, v{V16}")
        a(f"s_lshr_b32 s{S_T0}, s{S_J}, 3\ns_lshl2_add_u32 s{S_T0}, s{S_XCD}, s{S_T0}\ns_lshl2_add_u32 s{S_T0}, s{S_T0}, s{x}\ns_lshl_b32 s{S_PUB}, s{S_T0}, 8")
        a(f"s_lshl_b32 s{S_T0}, s{S_U5}, 12\ns_and_b32 s{S_T1}, s{x}, 1\ns_lshl_b32 s{S_T1}, s{S_T1}, 11\ns_add_u32 s{S_U2}, s{S_T0}, s{S_T1}")
        a(f"v_xor_b32 v{T3}, 7, v{T1}\nv_lshlrev_b32 v{T3}, 4, v{T3}\nv_lshl_add_u32 v{PST}, v{T0}, 13, v{T3}")
        a(f"s_lshl2_add_u32 s{S_T2}, s{S_XCD}, s{x}\ns_lshr_b32 s{S_T1}, s{S_J}, 3\ns_lshl2_add_u32 s{S_T0}, s{S_T2}, s{S_T1}\ns_lshl_b32 s{S_US}, s{S_T0}, 8")
        a(f"s_lshl_b32 s{S_T2}, s{S_T2}, 16\ns_lshl_b32 s{S_T3}, s{S_J}, 7\ns_sub_u32 s{S_T2}, s{S_T2}, s{S_T3}\ns_add_u32 s{S_UA}, s{S_T2}, {WS_UR + 2*1984}\ns_add_u32 s{S_UA+1}, s{S_UA}, 4096")
        srd(a, R_K, P_K, 2 << 20); srd(a, R_V, P_V, 2 << 20)
        a(f"s_lshl_b32 s{S_T0}, s{x}, 1\nv_xor_b32 v{T3}, s{S_T0}, v{T1}\nv_lshlrev_b32 v{T3}, 4, v{T3}\nv_lshl_add_u32 v{VKA}, v{T0}, 10, v{T3}")
        a(f"v_xor_b32 v{VKB}, 16, v{VKA}\nv_add_u32 v{VKB}, {8192-1024}, v{VKB}")
        a(f"s_lshl2_add_u32 s{S_KV}, s{S_J}, s{x}\ns_lshl_b32 s{S_KV}, s{S_KV}, 7\ns_add_u32 s{S_KV}, s{S_KV}, s{S_XCD}\ns_lshl_b32 s{S_KV}, s{S_KV}, 7")
        a(f"v_lshrrev_b32 v{PV}, 5, v0\nv_add_u32 v{PV}, s{S_T0}, v{PV}")
        a(f"v_bfe_u32 v{T2}, v0, 3, 2\nv_lshlrev_b32 v{T2}, 2, v{T2}\nv_lshl_add_u32 v{T2}, v{T1}, 10, v{T2}")
        a(f"v_add_u32 v{T3}, 7, v{T1}\nv_and_b32 v{T3}, 7, v{T3}\nv_xor_b32 v{T3}, v{PV}, v{T3}\nv_lshl_add_u32 v{PH}, v{T3}, 4, v{T2}\nv_add_u32 v{PH}, {L_KST}, v{PH}")
        a(f"v_xor_b32 v{T3}, v{PV}, v{T1}\nv_lshl_add_u32 v{PK}, v{T3}, 4, v{T2}")
        a(f"v_add_u32 v{PV}, {L_VST}, v{PK}\nv_add_u32 v{PK}, {L_KST+1024}, v{PK}")
        a(f"s_lshl_b32 s{S_T0}, s{x}, 7\ns_add_u32 s{S_T0}, s{S_T0}, {L_TAP}\nv_lshl_add_u32 v{VTA}, v{T0}, 4, s{S_T0}\nv_add_u32 v{VGR}, {L_GR}, v{V16}\nv_mov_b32 v{VHI}, 0xffff0000")
        a(f"s_lshl_b32 s{S_SB}, s{S_R}, 10\ns_add_u32 s{S_SB}, s{S_SB}, {WS_STATS}")
        a.wait(lg="all")
    S_US, S_UA, S_SB, S_KV = 98, 0, 99, S_U0
    VGR, VHI, GD = 116, 117, 120
    def kv_loads():
        a(f"s_add_u32 m0, s{S_B}, {L_KST+1024}\ns_nop 0")
        a.vmem(f"buffer_load_dwordx4 v{VKA}, s[{R_K}:{R_K+3}], s{S_KV} offen {cfg.kvf} lds", "kv")
        a.vmem(f"buffer_load_dwordx4 v{VKB}, s[{R_K}:{R_K+3}], s{S_KV} offen offset:1024 {cfg.kvf} lds", "kv")
        L = a.newlabel("Lhalo"); D = a.newlabel("Lsmd")
        a(f"s_cmp_eq_u32 s{x}, 3\ns_cbranch_scc1 {L}")
        a(f"s_lshl_b32 s{S_T0}, s{S_XCD}, 9\ns_lshl_b32 s{S_T1}, s{S_C}, 8\ns_cmp_eq_u32 s{x}, 0\ns_cselect_b64 s[{S_T2}:{S_T3}], s[{P_SH}:{P_SH+1}], s[{P_B1}:{P_B1+1}]\ns_cselect_b32 s{S_T0}, s{S_T0}, s{S_T1}")
        a(f"s_lshl_b32 s{S_T1}, s{S_C2}, 7\ns_cmp_eq_u32 s{x}, 2\ns_cselect_b64 s[{S_T2}:{S_T3}], s[{P_B2}:{P_B2+1}], s[{S_T2}:{S_T3}]\ns_cselect_b32 s{S_T0}, s{S_T1}, s{S_T0}")
        a(f"v_add_u32 v{VHALO}, s{S_T0}, v{V16}\ns_lshr_b32 s{S_T0}, 32, s{x}\ns_lshl_b32 s{S_T1}, s{S_T0}, 5\ns_sub_u32 m0, {L_TAP+1024}, s{S_T1}\ns_bfm_b64 exec, s{S_T0}, 0")
        a(f"global_load_lds_dwordx4 v{VHALO}, s[{S_T2}:{S_T3}]\ns_branch {D}")
        a.label(L)
        a(f"s_sub_u32 s{S_T0}, s{S_KV}, {56*1024}\ns_cselect_b32 s{S_T0}, 0, s{S_T0}\ns_cselect_b32 s{S_T1}, 0x80000010, 16")
        a(f"v_xor_b32 v{VHALO}, s{S_T1}, v{VKA}\ns_mov_b32 m0, {L_KST}\ns_lshl_b64 exec, -1, 40")
        a(f"buffer_load_dwordx4 v{VHALO}, s[{R_K}:{R_K+3}], s{S_T0} offen {cfg.kvf} lds")
        a.label(D)
        a.vm.append("kv")
        a(f"s_add_u32 m0, s{S_B}, {L_VST}\ns_mov_b64 exec, -1")
        a.vmem(f"buffer_load_dwordx4 v{VKA}, s[{R_V}:{R_V+3}], s{S_KV} offen {cfg.kvf} lds", "kv")
        a.vmem(f"buffer_load_dwordx4 v{VKB}, s[{R_V}:{R_V+3}], s{S_KV} offen offset:1024 {cfg.kvf} lds", "kv")
    KR, VR, KF, TF, VF, OUT, PA = 32, 44, 56, 80, 88, 92, 100
    prep = []; P = prep.append
    P(("lds", f"ds_read_b128 v[{TAPS}:{TAPS+3}], v{VTA}"))
    P(("lds", f"ds_read_b32 v{KR+1}, v{PH} offset:{5*128}"))
    P(("lds", f"ds_read2_b32 v[{KR+2}:{KR+3}], v{PH} offset0:{6*32} offset1:{7*32}"))
    for i in range(4): P(("lds", f"ds_read2_b32 v[{KR+4+2*i}:{KR+5+2*i}], v{PK} offset0:{64*i} offset1:{64*i+32}"))
    for i in range(4): P(("lds", f"ds_read2_b32 v[{VR+2*i}:{VR+1+2*i}], v{PV} offset0:{64*i} offset1:{64*i+32}"))
    nrd = len(prep)
    P(("waitlg",))
    for m in range(4):
        P(("v", f"v_lshlrev_b32 v{TF+2*m}, 16, v{TAPS+m}")); P(("v", f"v_and_b32 v{TF+2*m+1}, v{VHI}, v{TAPS+m}"))
    for e in range(2):
        for i in range(1, 12): P(("v", f"v_lshlrev_b32 v{KF+i}, 16, v{KR+i}" if e == 0 else f"v_and_b32 v{KF+i}, v{VHI}, v{KR+i}"))
        for t in range(8): P(("v", f"v_mul_f32 v{PA+t}, v{KF+1+t}, v{TF+4*e+3}"))
        for tau in (2, 1, 0):
            for t in range(8): P(("v", f"v_fmac_f32 v{PA+t}, v{KF+4+t-tau}, v{TF+4*e+tau}"))
        for t in range(8):
            P(("v", f"v_lshlrev_b32 v{VF+(t&1)}, 16, v{VR+t}" if e == 0 else f"v_and_b32 v{VF+(t&1)}, v{VHI}, v{VR+t}"))
            P(("v", f"v_mul_f32 v{PA+t}, v{PA+t}, v{VF+(t&1)}"))
        for m in range(4): P(("v", f"v_cvt_pk_bf16_f32 v{OUT+4*e+m}, v{PA+7-2*m}, v{PA+6-2*m}"))
        P(("st", e))
    def emit(op):
        if op[0] == "lds": a.lds(op[1], "pr")
        elif op[0] == "v": a(op[1])
        elif op[0] == "waitlg": a.wait(lg="pr")
        else: a.vmem(f"buffer_store_dwordx4 v[{OUT+4*op[1]}:{OUT+4*op[1]+3}], v{PST}, s[{R_WS}:{R_WS+3}], s{S_UA+op[1]} offen sc1", "ur")
    def g_read(): a("s_mov_b64 exec, 15"); a.lds(f"ds_read_b128 v[{GD}:{GD+3}], v{VGR}", "ud"); a("s_mov_b64 exec, -1")
    def publish():
        L = a.newlabel("Lpb")
        a.wait(lg="ud")
        a(f"s_cmp_lg_u32 s{x}, 0\ns_cbranch_scc1 {L}\ns_lshl_b32 s{S_T0}, s{S_C16}, 6\ns_add_u32 s{S_T0}, s{S_T0}, s{S_SB}\ns_mov_b64 exec, 15")
        a(f"buffer_store_dwordx4 v[{GD}:{GD+3}], v{V16}, s[{R_WS}:{R_WS+3}], s{S_T0} offen sc1\ns_mov_b64 exec, -1")
        a.label(L)
    def stats_dma():
        L = a.newlabel("Lsd")
        a(f"s_cmp_lg_u32 s{x}, 1\ns_cbranch_scc1 {L}\ns_mov_b32 m0, {L_ST}\ns_nop 0")
        a(f"buffer_load_dwordx4 v{V16}, s[{R_WS}:{R_WS+3}], s{S_SB} offen sc1 lds")
        a.label(L)
    S_H1 = 17; S_PW, S_PS = R_K, R_K + 2; S_HO = R_V
    a(f"s_cmp_eq_u32 s{S_CL}, 7\ns_cbranch_scc1 L_Xs")
    a.cap = cfg.cap0
    c1 = chunk_ops(1)
    for f in chunk_ops(0) + c1[:cfg.n1]: f()
    a.label("L_Xs")
    setup_rest()
    def ssm_loads():
        a(f"s_mov_b32 m0, s{S_H1}\ns_lshl_b32 s{S_T0}, s{S_U5}, 12")
        a.vmem(f"buffer_load_dwordx4 v{V16}, s[{R_SSM}:{R_SSM+3}], s{S_U2} offen {cfg.ssmf} lds", "h")
        a.vmem(f"buffer_load_dwordx4 v{V16}, s[{R_SSM}:{R_SSM+3}], s{S_U2} offen offset:1024 {cfg.ssmf} lds", "h")
        a(f"s_add_u32 s{S_T0}, s{S_T0}, 2044\ns_load_dword s{S_U0}, s[{P_SSM}:{P_SSM+1}], s{S_T0}")
    SG = [4*m + n for m in range(7) for n in (0, 1)] + [4*m + n for m in range(7) for n in (2, 3)]
    def w2_dma(i):
        ii = i % 14
        a(f"s_add_u32 m0, s{S_B}, {ii*8192}\ns_mov_b32 s{S_T0}, {SG[i]*16384}")
        a.vmem(f"buffer_load_dwordx4 v{W2A}, s[{R_W2}:{R_W2+3}], s{S_T0} offen {cfg.ntw2} lds", f"w{i}")
        a.vmem(f"buffer_load_dwordx4 v{W2B}, s[{R_W2}:{R_W2+3}], s{S_T0} offen offset:1024 {cfg.ntw2} lds", f"w{i}")
    def ustage(st=True):
        L = a.newlabel("Lurok")
        a(f"s_cmp_eq_u32 s{S_PV}, 8\ns_cbranch_scc1 {L}")
        keep = list(a.lg); k.spoll(S_PUB, 8); a.lg = keep
        a.label(L)
        if st: stamp(11)
        L = a.newlabel("Lhs")
        a(f"s_cmp_lg_u32 s{S_CL}, 7\ns_cbranch_scc1 {L}"); stats_dma(); a.label(L)
        a(f"s_xor_b32 s{S_T1}, s{x}, 3\ns_lshl_b32 s{S_T1}, s{S_T1}, 10\ns_and_b32 s{S_T0}, s{S_U5}, 0xfffffffe\ns_lshl_b32 s{S_T0}, s{S_T0}, 12\ns_add_u32 s{S_T0}, s{S_T0}, s{S_T1}\ns_add_u32 s{S_T0}, s{S_T0}, {WS_UR}")
        for ch in range(2):
            for cp in range(1 if cfg.ucopy else 2):
                a(f"s_add_u32 m0, s{S_T1}, {L_CT + ch*CH_STRIDE + U_OFF + cp*(U_STRIDE-4)}")
                a(f"s_add_u32 s{S_T0}, s{S_T0}, 4096" if (ch == 1 and cp == 0) else "s_nop 0")
                a.vmem(f"buffer_load_dwordx4 v{V16}, s[{R_WS}:{R_WS+3}], s{S_T0} offen sc1 lds", "u")
        if cfg.ucopy:
            a(f"s_add_u32 s{S_T1}, s{S_T1}, {L_CT + U_OFF}\nv_add_u32 v{UA}, s{S_T1}, v{V16}\nv_add_u32 v{UA+1}, {U_STRIDE-4}, v{UA}\nv_add_u32 v{UA+2}, {CH_STRIDE}, v{UA+1}")
    UA, UD = 60, 64
    def ucopy_reads():
        a.wait(vm="u")
        for ch in range(2): a.lds(f"ds_read_b128 v[{UD+4*ch}:{UD+4*ch+3}], v{UA} offset:{ch*CH_STRIDE}", "uc")
    def ucopy_writes():
        a.wait(lg="uc")
        for ch in range(2):
            for q in range(2): a.lds(f"ds_write2_b32 v{UA+1+ch}, v{UD+4*ch+2*q}, v{UD+4*ch+2*q+1} offset0:{2*q} offset1:{2*q+1}")
    MK = R_X0
    early = [12, 13, 4, 5, 10, 11]; late = [0, 1, 6, 7, 2, 3, 8, 9]
    def trs(ii, tag):
        return [(f"ds_read_b64_tr_b16 v[{WB+16*(ii>>1)+4*dt+2*(ii&1)}:{WB+16*(ii>>1)+4*dt+2*(ii&1)+1}], v{(TR, TRH)[ii>>3]+dt} offset:{(ii&7)*8192}", tag) for dt in range(4)]
    HD = 40
    def shift_reads():
        a(f"v_add_u32 v{T0}, s{S_H1}, v{V16}\nv_subrev_u32 v{T1}, 4, v{T0}\nv_subrev_u32 v{T2}, {H_STRIDE}, v{T0}")
        a(f"s_bitcmp1_b32 s{x}, 0\ns_cselect_b32 s{S_U0}, s{S_U0}, 0")
        a.wait(vm="h")
        for n in range(2):
            a.lds(f"ds_read_b128 v[{HD+8*n}:{HD+8*n+3}], v{T0} offset:{1024*n}", "sh")
            a.lds(f"ds_read_b32 v{HD+8*n+4}, v{T1} offset:{1024*n}", "sh")
    def shift_writes():
        a.wait(lg="sh")
        a(f"v_writelane_b32 v{HD+4}, s{S_U0}, 0")
        for n in range(2):
            b = HD + 8*n
            a(f"v_alignbit_b32 v{b+3}, v{b+3}, v{b+2}, 16\nv_alignbit_b32 v{b+2}, v{b+2}, v{b+1}, 16\nv_alignbit_b32 v{b+1}, v{b+1}, v{b}, 16\nv_alignbit_b32 v{b}, v{b}, v{b+4}, 16")
            a.lds(f"ds_write_b128 v{T2}, v[{b}:{b+3}] offset:{1024*n}")
    def g2_setup(): a(f"s_lshl2_add_u32 s{S_T0}, s{S_R2}, s{x}\ns_add_u32 s{S_T0}, s{S_T0}, {CNT_H}\ns_lshl_b32 s{S_US}, s{S_T0}, 8")
    def mark_load():
        L = a.newlabel("Lmk")
        a(f"s_cmp_lg_u32 s{x}, 0\ns_cbranch_scc1 {L}\ns_load_dwordx8 s[{MK}:{MK+7}], s[{P_DBG}:{P_DBG+1}], 0")
        a.label(L)
    def mark_check():
        L = a.newlabel("Lmk")
        a(f"s_cmp_lg_u32 s{x}, 0\ns_cbranch_scc1 {L}\ns_waitcnt lgkmcnt(0)")
        a(f"s_and_b64 s[{MK}:{MK+1}], s[{MK}:{MK+1}], s[{MK+2}:{MK+3}]\ns_and_b64 s[{MK+4}:{MK+5}], s[{MK+4}:{MK+5}], s[{MK+6}:{MK+7}]\ns_and_b64 s[{MK}:{MK+1}], s[{MK}:{MK+1}], s[{MK+4}:{MK+5}]\ns_and_b32 s{MK}, s{MK}, s{MK+1}")
        a(f"s_cbranch_scc1 {L}")
        k.vpoll(VMK, VMD, R_DBG, 1)
        a.label(L)
    a(f"s_cmp_eq_u32 s{S_CL}, 7\ns_cbranch_scc1 L_Xh")
    hn0 = len(a.lines); a.label("L_Xh")
    keep = list(a.vm); a.vm = []; a.cap = None
    def touches(what):
        n = 0
        for c in what:
            if c == "w":
                a(f"s_and_b32 s{S_T0}, s2, 31\ns_lshl2_add_u32 s{S_T0}, s{S_T0}, s{x}\ns_mul_i32 s{S_T0}, s{S_T0}, {112*128}\ns_add_u32 s{S_T1}, s{S_T0}, {56*128}")
                a(f"v_lshlrev_b32 v{T2}, 7, v0\ns_bfm_b64 exec, 56, 0")
                a(f"buffer_load_dword v{JUNK}, v{T2}, s[{R_W2}:{R_W2+3}], s{S_T0} offen\nbuffer_load_dword v{JUNK}, v{T2}, s[{R_W2}:{R_W2+3}], s{S_T1} offen\ns_mov_b64 exec, -1"); n += 2
            elif c == "s":
                a(f"s_and_b32 s{S_T0}, s{S_J}, 3\ns_lshl2_add_u32 s{S_T0}, s{S_XCD}, s{S_T0}\ns_lshl2_add_u32 s{S_T0}, s{S_T0}, s{x}\ns_lshl_b32 s{S_T0}, s{S_T0}, 14\ns_add_u32 s{S_T1}, s{S_T0}, 8192\nv_lshlrev_b32 v{T2}, 7, v0")
                a(f"buffer_load_dword v{JUNK}, v{T2}, s[{R_SSM}:{R_SSM+3}], s{S_T0} offen nt\nbuffer_load_dword v{JUNK}, v{T2}, s[{R_SSM}:{R_SSM+3}], s{S_T1} offen nt"); n += 2
            elif c == "k":
                a(f"s_and_b32 s{S_T0}, s{S_J}, 3\ns_lshl2_add_u32 s{S_T0}, s{S_T0}, s{x}\ns_mul_i32 s{S_T0}, s{S_T0}, {112*1024}\ns_lshl_b32 s{S_T1}, s{S_XCD}, 7\ns_add_u32 s{S_T0}, s{S_T0}, s{S_T1}\ns_add_u32 s{S_T1}, s{S_T0}, {56*1024}")
                a(f"v_lshlrev_b32 v{T2}, 10, v0\ns_bfm_b64 exec, 56, 0")
                for R in (R_K, R_V): a(f"buffer_load_dword v{JUNK}, v{T2}, s[{R}:{R+3}], s{S_T0} offen nt\nbuffer_load_dword v{JUNK}, v{T2}, s[{R}:{R+3}], s{S_T1} offen nt")
                a("s_mov_b64 exec, -1"); n += 4
        return n
    hpre, h0, h1, h2 = cfg.hwhat
    touches(hpre)
    kv_loads()
    a(f"s_waitcnt vmcnt({touches(h0)})"); a.vm = []
    a("s_barrier")
    g_read()
    for op in prep: emit(op)
    mark_load(); mark_check()
    a("s_barrier")
    publish()
    a(f"s_waitcnt vmcnt({touches(h1)})"); a.vm = []
    k.signal(S_US)
    touches(h2)
    if cfg.hfull:
        a.cap = 12
        def hu():
            k.speek(S_PUB); a("s_waitcnt lgkmcnt(0)"); a.lg = []
            shift_reads(); shift_writes(); ustage(False)
        ssm_loads()
        for q in range(14): w2_dma(q)
        for q in range(15):
            if q < 14:
                a.wait(vm=f"w{q}")
                for ins, tag in trs(q, f"f{q}"): a.lds(ins, tag)
            if q: a.wait(lg=f"f{q-1}"); w2_dma(13 + q)
            if q == cfg.hfull: hu()
            if q == min(cfg.hfull + 3, 14): ucopy_reads(); ucopy_writes(); k.lds_arrive(0, T0, T1)
        g2_setup()
        k.speek(S_US)
        a("s_branch L_Xk")
        a.vm = []; a.lg = []; a.cap = None; hn1 = len(a.lines)
    if cfg.e0seg <= cfg.ssmseg:
        for q in early[:2]: w2_dma(q)
        ssm_loads()
        for q in early[2:cfg.nearly]: w2_dma(q)
    else:
        ssm_loads()
        for q in early[:cfg.nearly]: w2_dma(q)
    if cfg.upos < cfg.upk: k.speek(S_PUB)
    hv = list(a.vm)
    a("s_branch L_Xj")
    if cfg.hfull: del a.lines[hn1:]
    k.ool.append("\n".join(a.lines[hn0:])); del a.lines[hn0:]; a.lg = []
    a.vm = keep; a.cap = cfg.cap0
    if cfg.kvpos == 1:
        assert cfg.n1 in (0, 4); kv_loads()
    for f in c1[cfg.n1:8-cfg.hold0]: f()
    stamp(1)
    if cfg.g1prio: a(f"s_setprio {cfg.g1prio}")
    a.wait(vm="c0"); stamp(16); a("s_barrier")
    a.cap = cfg.cap
    sig = [False]; stored = [False]
    def trysig():
        if stored[0] and not sig[0] and "ur" not in a.vm: k.signal(S_US); sig[0] = True
    body = prep[nrd:]; per_seg = -(-len(body) // cfg.nps)
    p0 = cfg.kvpos + cfg.pdelay; carry = c1[8-cfg.hold0:]
    for i in range(7):
        if cfg.segstamps or i == 0: stamp(2 + i)
        if i == 0: g_read()
        if i == cfg.mseg - cfg.mlead: a.wait(lg="all"); mark_load()
        if i == cfg.mseg + 1: publish()
        dm = carry
        if i == cfg.stseg:
            if i == 6: assert not carry and a.vm[-1] is not None; lastbefore = len(a.vm); a.vm[-1] = "c7"
            dm.append(stats_dma)
        if i + 2 == cfg.kvpos: dm.append(kv_loads)
        if i + 2 <= 7: dm += chunk_ops(i + 2)
        if i == cfg.e0seg: dm += [(lambda q=q: w2_dma(q)) for q in early[:2]]
        if i == cfg.ssmseg: dm.append(ssm_loads)
        if i == 6: dm += [(lambda q=q: w2_dma(q)) for q in early[2 if cfg.e0seg < 6 else 0:cfg.nearly]]
        hold = cfg.hold[i] if i < len(cfg.hold) else 0
        dm, carry = dm[:len(dm)-hold], dm[len(dm)-hold:]
        fl = []
        if i == cfg.kvpos: fl += prep[:nrd]
        if p0 <= i < p0 + cfg.nps: fl += body[(i-p0)*per_seg:(i-p0+1)*per_seg]
        per = -(-len(fl) // len(dm))
        for nf, f in enumerate(dm):
            if (i, nf) == cfg.usig: a.wait(vm="ur"); trysig()
            f(); trysig()
            for op in fl[:per]: emit(op)
            fl = fl[per:]
        if i == p0 + cfg.nps - 1: stored[0] = True
        if i == cfg.kvpos: a.wait(lg="pr")
        if i == cfg.mseg: mark_check()
        if i == 6 and cfg.upos < cfg.upk: k.speek(S_PUB)
        a.wait(vm=f"c{i+1}"); trysig()
        a("s_barrier")
    if cfg.g1prio: a("s_setprio 0")
    if not sig[0]: a.wait(vm="ur"); trysig()
    assert cfg.stseg <= 6 and cfg.stseg > cfg.mseg and p0 + cfg.nps - 1 > cfg.mseg and cfg.e0seg > cfg.kvpos and cfg.ssmseg >= cfg.kvpos - 1
    assert a.vm == hv[len(hv)-len(a.vm):], (a.vm, hv)
    a.vm = hv
    a.label("L_Xj")
    if cfg.segstamps: stamp(9)
    a.cap = cfg.cap2
    pos = [0]
    def upoint():
        if pos[0] == cfg.upos - cfg.upk: k.speek(S_PUB)
        if pos[0] == cfg.upos: a("s_waitcnt lgkmcnt(0)"); a.lg = []; ustage()
        pos[0] += 1
    for q in early[cfg.nearly:] + late[:4]: upoint(); w2_dma(q)
    k.lds_wait(4, T0, T1)
    if cfg.xprio: a(f"s_setprio {cfg.xprio}")
    stamp(10)
    order = early + late
    seq = late[4:] + [14 + q for q in order]
    filled = 0
    def fill(force=None):
        nonlocal filled
        n = 0
        while filled < 14 and ((n < 2 and f"w{order[filled]}" not in a.vm and order[filled] in issued) or (force is not None and filled <= force)):
            a.wait(vm=f"w{order[filled]}")
            for ins, tag in trs(order[filled], f"f{order[filled]}"): a.lds(ins, tag)
            filled += 1; n += 1
    issued = set(early + late[:4])
    g2_setup()
    arr = [False]; ucr = [False]
    for n, q in enumerate(seq):
        if n == len(seq) - cfg.apeek: k.speek(S_US)
        upoint()
        if q >= 14:
            fill(force=order.index(q - 14)); a.wait(lg=f"f{q-14}")
        if not (cfg.x_nop2 and q >= 14): w2_dma(q)
        issued.add(q)
        if n == 0: shift_reads()
        elif n == 1: shift_writes()
        else: fill()
        if n >= (0 if cfg.ucopy else 1) and not arr[0] and pos[0] > cfg.upos + cfg.uwait:
            if cfg.ucopy and not ucr[0]: ucopy_reads(); ucr[0] = True
            else:
                if cfg.ucopy: ucopy_writes()
                a.wait(vm="u"); k.lds_arrive(0, T0, T1); arr[0] = True
    assert arr[0]
    a.label("L_Xk")
    stamp(12)
    if cfg.xprio and not cfg.g2p: a("s_setprio 0")
    k.scheck(S_US, 0xff, 7)
    stamp(13)
    NP = cfg.np; RING = 15
    units = [(p, tau) for p in range(7 - NP) for tau in range(4)] + [(p, tau) for tau in range(4) for p in range(7 - NP, 7)]
    hs = [(2*p + e, tau) for p, tau in units for e in range(2)]
    nb = min(n for n, (i, tau) in enumerate(hs) if i >= 7)
    cur = [None, None]
    def hload(n):
        i, tau = hs[n]; d = AR + 4*(n % RING); blk = 2*(i % 7) + i // 7
        if n == nb - cfg.bpeek: k.speek(S_US)
        if n == nb: k.scheck(S_US, None, 0x707)
        if cur[i & 1] != blk: a(f"s_mov_b32 s{R_V+(i&1)}, {4096*blk}"); cur[i & 1] = blk
        off = f" offset:{1024*tau}" if tau else ""
        a.vmem(f"buffer_load_dwordx4 v[{d}:{d+3}], v{HA}, s[{R_WS}:{R_WS+3}], s{R_V+(i&1)} offen{off} sc1", f"a{n}")
    def pwrites(hf):
        q = [("m0", 7*8192*hf)]
        for tl in range(2):
            for dt in range(4):
                base = 1024*tl if dt == 0 else (1 + 3*tl + dt - 1)*8192 + (0, 16, 128, 144)[dt]
                q += [f"ds_write_addtid_b32 v{ACC2+16*(2*hf+tl)+4*dt+r} offset:{base+256*r}" for r in range(4)]
        return q
    def pw(q):
        o = q.pop(0)
        if isinstance(o, tuple):
            a(f"s_add_u32 m0, s{S_B}, {o[1]}\ns_nop 0"); o = q.pop(0)
        a.lds(o)
    a.cap = None
    LA = cfg.lah
    assert LA <= RING - 2
    for n in range(LA): hload(n)
    pend = []; wq = pwrites(0) + pwrites(1); nw = [0]; hold = [0]
    assert NP == 3
    for u, (p, tau) in enumerate(units):
        for dt in range(4):
            for e in range(2):
                n = 2*u + e; i = 2*p + e; wb = WB + 16*(i % 7) + 4*dt
                assert not any(t == f"g{i}" for _, t in pend)
                a.wait(vm=f"a{n}", lg=f"g{i}")
                d = ACC2 + 16*tau + 4*dt
                a(f"v_mfma_f32_16x16x32_bf16 v[{d}:{d+3}], v[{AR+4*(n%RING)}:{AR+4*(n%RING)+3}], v[{wb}:{wb+3}], {'0' if i == 0 else v(d,4)}")
                if pend: a.lds(*pend.pop(0))
                elif u >= 28 - 4*NP and nw[0] < 16*tau and (p, dt) > (7 - NP, 0):
                    pw(wq); nw[0] += 1
                    if nw[0] == 32: k.lds_arrive(6, T0, T1)
                if cfg.g2p and (u, dt, e) == (cfg.g2p, 0, 0): a("s_setprio 0")
                if cfg.tprio and (u, dt, e) == (28 - 4*NP, 0, 0): a(f"s_setprio {cfg.tprio}")
                if e == 1 and dt in cfg.ldt and 2*u + cfg.ldt.index(dt) + LA < 56: hload(2*u + cfg.ldt.index(dt) + LA)
        if tau == 3:
            for i in (2*p, 2*p+1):
                if i < 7: pend += trs(2*i, f"g{i+7}") + trs(2*i+1, f"g{i+7}")
    stamp(14)
    assert nw[0] == 48
    a("s_nop 1")
    while wq: pw(wq)
    a("s_mov_b64 exec, 1"); a.lds(f"ds_add_u32 v{T0}, v{T1} offset:28"); a("s_mov_b64 exec, -1")
    stamp(15)
    k.flush_stamps()
    a("s_endpgm")
    for o in k.ool: a(o)

def gen_m(k):
    a, cfg, stamp = k.a, k.cfg, k.stamp
    w = S_WV
    S_TH, S_FH = 98, 99
    V16, QA, WA, VST = 1, 2, 4, 8
    T0, T1, T2, T3 = 10, 11, 12, 13
    VCW, VCR = 14, 15
    ACC, CS, QF, WF, ONES, B1F, STT, CSP, WA2, GR = 16, 80, 96, 128, 160, 164, 180, 188, 204, 248
    CA, CB, AD, EXW, EXR, YST, VXO, VSA, VB2, YS0, YS1, YA0, YA1, PA0, PA1, DV, JUNK = 208, 209, 210, 214, 215, 216, 217, 218, 219, 220, 221, 222, 223, 224, 225, 226, 227
    XR, XF, B1R = 96, 104, CSP
    LAM = -(2*1.4426950408889634*0.7978845608028654*0.044715) ** (1/3)
    MU = 2*1.4426950408889634*0.7978845608028654 / -LAM
    VKA, VKB, VHALO, VTA, PK, PH, PV, PST, TAPS = 236, 237, 238, 239, 240, 241, 242, 243, 244
    a(f"s_lshl_b32 s{S_U0}, s{S_R}, 7\ns_lshl3_add_u32 s{S_U0}, s{S_C16}, s{S_U0}\ns_lshl1_add_u32 s{S_U0}, s{w}, s{S_U0}")
    a(f"s_lshl_b32 s{S_U1}, s{S_U0}, 10\ns_or_b32 s{S_U2}, s{S_J}, s{w}")
    a(f"s_mov_b32 s{R_WS+2}, {WS_SIZE}\ns_mov_b32 s{R_WS+3}, s{R_Q+3}")
    for i in range(4): a(f"v_mov_b32 v{GR+i}, 0")
    a(f"v_and_b32 v{T3}, 16, v{V16}\nv_add_u32 v{T3}, {L_SYNC}, v{T3}\nds_write_b128 v{T3}, v[{GR}:{GR+3}]")
    a("s_waitcnt lgkmcnt(0)")
    if cfg.wsoff: a(f"s_add_u32 s{P_WS}, s{P_WS}, {cfg.wsoff}\ns_addc_u32 s{P_WS+1}, s{P_WS+1}, 0")
    a(f"s_mov_b64 s[{R_Q}:{R_Q+1}], s[{P_Q}:{P_Q+1}]\ns_mov_b64 s[{R_WS}:{R_WS+1}], s[{P_WS}:{P_WS+1}]")
    LN = a.newlabel("Lnolead")
    a(f"s_cmp_lg_u32 s{S_U2}, 0\ns_cbranch_scc1 {LN}")
    a(f"v_min_u32 v{T3}, 47, v0\nv_lshlrev_b32 v{T3}, 8, v{T3}\ns_mul_i32 s{S_T0}, s2, {48*256}\ns_lshl_b32 s{S_T1}, s2, 11\ns_add_u32 s{S_T1}, s{S_T1}, {WS_STATS}")
    a(f"buffer_store_dwordx4 v[{GR}:{GR+3}], v{V16}, s[{R_WS}:{R_WS+3}], s{S_T1} offen sc1")
    a(f"buffer_store_dwordx4 v[{GR}:{GR+3}], v{V16}, s[{R_WS}:{R_WS+3}], s{S_T1} offen offset:1024 sc1")
    a(f"buffer_store_dword v{GR}, v{T3}, s[{R_WS}:{R_WS+3}], s{S_T0} offen sc1")
    a.label(LN)
    a.vmem(f"buffer_load_dwordx4 v[{XR}:{XR+3}], v{V16}, s[{R_Q}:{R_Q+3}], s{S_U1} offen {cfg.ntq}", "x")
    a.vmem(f"buffer_load_dwordx4 v[{XR+4}:{XR+7}], v{V16}, s[{R_Q}:{R_Q+3}], s{S_U1} offen offset:1024 {cfg.ntq}", "x")
    a(f"s_and_b32 s{S_TH}, s{w}, 1\ns_lshr_b32 s{S_FH}, s{w}, 1")
    a(f"s_lshl_b32 s{S_T0}, s{S_XCD}, 5\ns_add_u32 s{S_T0}, s{S_T0}, s{S_J}\ns_lshl_b32 s{S_T0}, s{S_T0}, 2\ns_load_dword s{S_PV}, s[{P_D}:{P_D+1}], s{S_T0}")
    a(f"v_and_b32 v{T2}, 15, v0\nv_lshrrev_b32 v{T3}, 1, v{T2}\nv_xor_b32 v{T3}, v{T3}, v{T1}\nv_lshlrev_b32 v{T3}, 4, v{T3}\nv_lshl_add_u32 v{T3}, v{T2}, 7, v{T3}")
    a(f"s_lshl_b32 s{S_T0}, s{S_TH}, 6\nv_xor_b32 v{T3}, s{S_T0}, v{T3}")
    a(f"s_lshl_b32 s{S_T0}, s{S_TH}, 13\nv_add_u32 v{QA}, s{S_T0}, v{T3}\nv_xor_b32 v{QA+1}, 64, v{QA}\nv_lshlrev_b32 v{VST}, 3, v{T2}")
    a(f"v_bfe_u32 v{T2}, v0, 2, 3")
    a(f"v_bfe_u32 v{T3}, v0, 2, 2\nv_lshl_add_u32 v{T3}, v{T1}, 3, v{T3}\nv_lshlrev_b32 v{T3}, 8, v{T3}\nv_and_b32 v{T0}, 3, v0\nv_lshl_add_u32 v{T3}, v{T0}, 3, v{T3}")
    a(f"v_add_u32 v{T3}, {L_W}, v{T3}")
    a(f"s_lshl_b32 s{S_T1}, s{S_FH}, 2")
    for i in range(4):
        a(f"v_xor_b32 v{T0}, s{S_T1}, v{T2}\ns_add_u32 s{S_T1}, s{S_T1}, 1")
        a(f"v_lshl_add_u32 v{WA+i}, v{T0}, 5, v{T3}")
    a(f"s_lshl_b32 s{S_T0}, s{S_TH}, 13\ns_xor_b32 s{S_T1}, s{S_T0}, 8192")
    for i in range(4): a(f"v_add_u32 v{WA2+i}, s{S_T1}, v{WA+i}\nv_add_u32 v{WA+i}, s{S_T0}, v{WA+i}")
    a("s_branch L_M2")
    k.split = len(a.lines)
    a(f".p2align {12 if cfg.mpage is not None else 6}")
    if cfg.mpage: a(f".fill {cfg.mpage//4}, 4, 0xbf800000")
    a.label("L_M2")
    stamp(0)
    a(f"v_bfe_u32 v{T0}, v0, 2, 2\nv_mov_b32 v{T3}, 0x3f803f80")
    for i in range(4):
        a(f"v_cmp_eq_u32 vcc, {i}, v{T0}\ns_nop 1")
        for r in range(4): a(f"v_cndmask_b32 v{CS+4*i+r}, 0, v{T3}, vcc")
    LN = a.newlabel("Lnolead")
    a(f"s_cmp_lg_u32 s{S_U2}, 0\ns_cbranch_scc1 {LN}")
    a(f"s_waitcnt vmcnt({len(a.vm)})\ns_lshl_b32 s{S_T0}, s2, 2\ns_mov_b32 s{S_ONE}, 1\ns_atomic_add s{S_ONE}, s[{P_DBG}:{P_DBG+1}], s{S_T0}")
    a.label(LN)
    S_H0, S_H1, S_INC, S_YP, S_YC = R_X0, R_X0+1, R_X0+2, R_X0+3, 17
    KC = T2
    def late_setup():
        srd(a, R_OUT, P_OUT, 2 << 20)
        a(f"v_lshrrev_b32 v{T1}, 4, v0\nv_bfe_u32 v{T0}, v0, 2, 2")
        a(f"s_lshl_b32 s{S_T0}, s{w}, 8\ns_add_u32 s{S_T0}, s{S_T0}, {L_CS}\nv_and_b32 v{VCR}, 48, v0\nv_lshl_add_u32 v{VCW}, v{T0}, 6, v{VCR}\nv_add_u32 v{VCW}, s{S_T0}, v{VCW}")
        a(f"s_lshl_b32 s{S_T0}, s{S_FH}, 9\ns_add_u32 s{S_T0}, s{S_T0}, {L_CS}\nv_add_u32 v{VCR}, s{S_T0}, v{VCR}")
        a(f"s_lshl_b32 s{S_U3}, s{S_R}, 10\ns_lshl_b32 s{S_T0}, s{S_TH}, 9\ns_add_u32 s{S_U3}, s{S_U3}, s{S_T0}\ns_add_u32 s{S_U3}, s{S_U3}, {WS_STATS}")
        a(f"s_mul_i32 s{S_T0}, s{S_FH}, {CH_STRIDE}\ns_lshl_b32 s{S_T1}, s{S_TH}, 8\ns_add_u32 s{S_T0}, s{S_T0}, s{S_T1}")
        a(f"s_add_u32 s{S_T1}, s{S_T0}, {L_CT+U_OFF+448}\ns_add_u32 s{S_T0}, s{S_T0}, {L_CT+128-56}")
        a(f"v_and_b32 v{T0}, 1, v0\nv_bfe_u32 v{T2}, v0, 1, 3")
        a(f"v_mul_u32_u24 v{CA}, {H_STRIDE}, v{T0}\nv_lshl_add_u32 v{CA}, v{T2}, 3, v{CA}\nv_lshl_add_u32 v{CA}, v{T1}, 4, v{CA}\nv_add_u32 v{CA}, s{S_T0}, v{CA}")
        a(f"v_mul_u32_u24 v{CB}, {U_STRIDE}, v{T0}\nv_lshl_add_u32 v{CB}, v{T1}, 4, v{CB}\nv_add_u32 v{CB}, s{S_T1}, v{CB}\nv_lshlrev_b32 v{T3}, 6, v{T2}\nv_sub_u32 v{CB}, v{CB}, v{T3}")
        a(f"v_xor_b32 v{AD+1}, 1, v{T0}\nv_lshlrev_b32 v{AD+1}, 4, v{AD+1}")
        a(f"v_lshlrev_b32 v{AD+3}, 1, v{T2}\nv_lshl_add_u32 v{AD+3}, v{T1}, 2, v{AD+3}")
        a(f"s_lshl_b32 s{S_T0}, s{w}, 13\ns_add_u32 s{S_T0}, s{S_T0}, {L_CT}\nv_add_u32 v{EXW}, s{S_T0}, v{V16}")
        a(f"s_add_u32 s{S_T0}, s{S_B}, {L_CT}\nv_add_u32 v{EXR}, s{S_T0}, v{V16}")
        a(f"v_bfe_u32 v{T0}, v0, 2, 2\nv_and_b32 v{T3}, 3, v0\nv_lshlrev_b32 v{T0}, 8, v{T0}\nv_lshl_add_u32 v{T0}, v{T1}, 6, v{T0}\nv_lshl_add_u32 v{YST}, v{T3}, 4, v{T0}")
        a(f"s_lshl_b32 s{S_T0}, s{S_XCD}, 5\ns_add_u32 s{S_T0}, s{S_T0}, s{S_J}\ns_lshl_b32 s{S_T0}, s{S_T0}, 13\ns_add_u32 s{S_T0}, s{S_T0}, s{S_B}\ns_add_u32 s{S_T0}, s{S_T0}, {WS_Y}\nv_add_u32 v{YST}, s{S_T0}, v{YST}")
        a(f"s_lshl_b32 s{S_T1}, s{w}, 1\nv_and_b32 v{T0}, 15, v0\nv_xor_b32 v{T0}, s{S_T1}, v{T0}\nv_lshlrev_b32 v{T0}, 4, v{T0}\nv_lshl_add_u32 v{YS0}, v{T1}, 13, v{T0}\nv_xor_b32 v{YS1}, 16, v{YS0}")
        a(f"s_lshl_b32 s{S_T1}, s{S_C2}, 18\ns_lshl_b32 s{S_T2}, s{S_R2}, 8\ns_add_u32 s{S_T1}, s{S_T1}, s{S_T2}\ns_lshl_b32 s{S_T2}, s{w}, 16\ns_add_u32 s{S_T1}, s{S_T1}, s{S_T2}\ns_add_u32 s{S_T1}, s{S_T1}, {WS_Y}")
        a(f"s_add_u32 s{S_T2}, s{S_T1}, {4*8192-1024}\nv_add_u32 v{YS0}, s{S_T1}, v{YS0}\nv_add_u32 v{YS1}, s{S_T2}, v{YS1}")
        RHO, OCT, TOFF = 236, 237, 238
        a(f"v_lshrrev_b32 v{RHO}, 3, v0\nv_and_b32 v{OCT}, 7, v0")
        a(f"v_and_b32 v{TOFF}, 1, v{RHO}\nv_bfe_u32 v{T0}, v{RHO}, 1, 1\nv_lshl_add_u32 v{TOFF}, v{T0}, 2, v{TOFF}\nv_lshrrev_b32 v{T2}, 2, v{RHO}\nv_lshl_add_u32 v{TOFF}, v{T2}, 1, v{TOFF}")
        a(f"s_lshl_b32 s{S_T1}, s{S_R2}, 6\ns_lshl3_add_u32 s{S_T1}, s{w}, s{S_T1}\nv_add_u32 v{T3}, s{S_T1}, v{TOFF}")
        a(f"s_lshl_b32 s{S_T2}, s{S_C2}, 7\nv_lshl_add_u32 v{VB2}, v{OCT}, 4, s{S_T2}\nv_lshl_add_u32 v{VXO}, v{T3}, 10, v{VB2}\nv_lshlrev_b32 v{VB2}, 4, v{OCT}\nv_add_u32 v{VB2}, {L_B2}, v{VB2}\nv_lshlrev_b32 v{VSA}, 3, v{T3}\nv_add_u32 v{VSA}, {WS_STATS}, v{VSA}")
        a(f"s_lshl_b32 s{S_T0}, s{w}, 2\ns_or_b32 s{S_T0}, s{S_T0}, 1\nv_xor_b32 v{T0}, s{S_T0}, v{T2}\nv_xor_b32 v{T0}, v{T0}, v{OCT}\nv_lshlrev_b32 v{T0}, 4, v{T0}")
        a(f"v_lshl_add_u32 v{T0}, v{OCT}, 10, v{T0}\nv_and_b32 v{T2}, 3, v{RHO}\nv_lshl_add_u32 v{T0}, v{T2}, 2, v{T0}")
        a(f"v_xor_b32 v{YA1}, 32, v{T0}\nv_add_u32 v{YA0}, {L_YST}, v{T0}\nv_add_u32 v{YA1}, {L_YST}, v{YA1}")
        a(f"v_and_b32 v{T0}, 3, v{TOFF}\nv_lshlrev_b32 v{T0}, 8, v{T0}\nv_lshrrev_b32 v{T2}, 2, v{TOFF}\nv_lshl_add_u32 v{T0}, v{T2}, 6, v{T0}\nv_and_b32 v{T2}, 1, v{OCT}\nv_lshl_add_u32 v{T0}, v{T2}, 5, v{T0}")
        a(f"s_lshl_b32 s{S_T0}, s{S_TH}, 7\nv_add_u32 v{T0}, s{S_T0}, v{T0}\nv_bfe_u32 v{T2}, v{OCT}, 1, 1\nv_lshl_add_u32 v{T0}, v{T2}, 4, v{T0}\nv_lshrrev_b32 v{T2}, 2, v{OCT}\nv_lshl_add_u32 v{T0}, v{T2}, 7, v{T0}")
        a(f"v_lshrrev_b32 v{T2}, 1, v{OCT}\nv_lshl_add_u32 v{T0}, v{T2}, 13, v{T0}\ns_lshl_b32 s{S_T0}, s{S_FH}, 10\ns_mul_i32 s{S_T1}, s{S_FH}, {3*8192}")
        a(f"v_mov_b32 v{PA0}, s{S_T0}\nv_mov_b32 v{T3}, s{S_T1}\nv_cmp_lt_u32 vcc, 1, v{OCT}\ns_nop 0\ns_nop 0\nv_cndmask_b32 v{PA0}, v{PA0}, v{T3}, vcc\nv_add_u32 v{PA0}, v{T0}, v{PA0}\nv_add_u32 v{PA1}, {7*8192}, v{PA0}")
        a(f"s_lshl_b32 s{S_T0}, s{S_FH}, 7\ns_add_u32 s{S_T0}, s{S_T0}, {L_B1}\nv_lshl_add_u32 v{DV}, v{T1}, 3, s{S_T0}")
        a(f"s_lshl1_add_u32 s{S_T0}, s{S_R}, s{S_TH}\ns_lshl1_add_u32 s{S_T2}, s{S_C}, s{S_FH}")
        a(f"s_mul_i32 s{S_T1}, s{S_T0}, {224*1024}\ns_lshl_b32 s{S_T3}, s{S_T2}, 13\ns_add_u32 s{S_T1}, s{S_T1}, s{S_T3}\ns_add_u32 s{S_H0}, s{S_T1}, {WS_H}\ns_add_u32 s{S_H1}, s{S_H0}, 4096")
        a(f"s_mul_i32 s{S_T1}, s{S_T2}, 37\ns_lshr_b32 s{S_T1}, s{S_T1}, 8\ns_lshl2_add_u32 s{S_T0}, s{S_T0}, s{S_T1}\ns_add_u32 s{S_T0}, s{S_T0}, {CNT_H}\ns_lshl_b32 s{S_PUB}, s{S_T0}, 8")
        a(f"s_cmp_lg_u32 s{S_CL}, 7\ns_cselect_b32 s{S_INC}, 1, 0")
        a(f"s_lshl2_add_u32 s{S_T0}, s{S_XCD}, s{w}\ns_lshr_b32 s{S_T1}, s{S_J}, 3\ns_lshl2_add_u32 s{S_T0}, s{S_T0}, s{S_T1}\ns_add_u32 s{S_T0}, s{S_T0}, {CNT_Y}\ns_lshl_b32 s{S_YP}, s{S_T0}, 8")
        a(f"s_lshr_b32 s{S_T0}, s{S_R2}, 3\ns_lshl2_add_u32 s{S_T0}, s{S_C2}, s{S_T0}\ns_lshl2_add_u32 s{S_T0}, s{S_T0}, s{w}\ns_add_u32 s{S_T0}, s{S_T0}, {CNT_Y}\ns_lshl_b32 s{S_YC}, s{S_T0}, 8")
        a(f"v_mov_b32 v{KC}, {f32(MU)}\nv_mov_b32 v{KC+1}, {f32(LAM)}\ns_mov_b32 s{S_U1}, 32768")
        a(f"s_lshl_b32 s{S_T0}, s{S_TH}, 9\ns_add_u32 s{S_T0}, s{S_T0}, {L_ST}\nv_add_u32 v{VST+1}, s{S_T0}, v{VST}")
        a(f"s_lshl_b32 s{S_T0}, s{S_FH}, 4\ns_lshr_b32 s{S_PV}, s{S_PV}, s{S_T0}\ns_and_b32 s{S_PV}, s{S_PV}, 0xffff\nv_mov_b32 v{T0}, s{S_PV}")
        a(f"v_lshlrev_b32 v{T0}, v{AD+1}, v{T0}\ns_sub_u32 s{S_T2}, s{S_TH}, 1\nv_and_b32 v{T0}, s{S_T2}, v{T0}")
        a(f"v_cmp_eq_u32 vcc, 14, v{AD+3}\nv_mov_b32 v{AD+1}, 0\ns_nop 0\nv_cndmask_b32 v{AD}, 0, v{T0}, vcc")
        a(f"v_cmp_eq_u32 vcc, 12, v{AD+3}\nv_mov_b32 v{AD+3}, 0\ns_nop 0\nv_cndmask_b32 v{AD+2}, 0, v{T0}, vcc")
    XR2, VXL, S_XI = 240, 9+243, S_U4
    if cfg.xlds:
        a(f"v_lshrrev_b32 v{T0}, 3, v0\nv_and_b32 v{T1}, 1, v{T0}\nv_bfe_u32 v{T2}, v{T0}, 1, 1\nv_lshl_add_u32 v{T1}, v{T2}, 2, v{T1}\nv_lshrrev_b32 v{T2}, 2, v{T0}\nv_lshl_add_u32 v{T1}, v{T2}, 1, v{T1}")
        a(f"s_and_b32 s{S_T0}, s{S_R2}, 1\ns_lshl_b32 s{S_T0}, s{S_T0}, 6\ns_lshl3_add_u32 s{S_T0}, s{w}, s{S_T0}\nv_add_u32 v{T1}, s{S_T0}, v{T1}")
        a(f"v_lshrrev_b32 v{T2}, 1, v{T1}\nv_xor_b32 v{T2}, v{T2}, v0\nv_and_b32 v{T2}, 7, v{T2}\nv_lshlrev_b32 v{T2}, 4, v{T2}\nv_lshl_add_u32 v{VXL}, v{T1}, 7, v{T2}")
        a(f"s_sub_u32 s{S_XI}, s{S_C2}, s{S_KC0}\ns_and_b32 s{S_XI}, s{S_XI}, 7")
    a.wait(vm="x")
    for n in range(2):
        for m in range(4):
            a(f"v_lshlrev_b32 v{XF+8*n+2*m}, 16, v{XR+4*n+m}\nv_and_b32 v{XF+8*n+2*m+1}, 0xffff0000, v{XR+4*n+m}")
    SM = XR
    def reduce2():
        for dpp in ("row_shr:1 row_mask:0xf bank_mask:0xf bound_ctrl:0", "row_shr:2 row_mask:0xf bank_mask:0xf bound_ctrl:0", "row_shr:4 row_mask:0xf bank_mask:0xf bound_ctrl:0",
                    "row_shr:8 row_mask:0xf bank_mask:0xf bound_ctrl:0", "row_bcast:15 row_mask:0xa bank_mask:0xf", "row_bcast:31 row_mask:0xc bank_mask:0xf"):
            a("s_nop 0")
            for n in range(2): a(f"v_add_f32_dpp v{SM+n}, v{SM+n}, v{SM+n} {dpp}")
    for n in range(2): a(f"v_add_f32 v{SM+n}, v{XF+8*n}, v{XF+8*n+1}")
    for m in range(2, 8):
        for n in range(2): a(f"v_add_f32 v{SM+n}, v{SM+n}, v{XF+8*n+m}")
    reduce2()
    for n in range(2): a(f"v_mul_f32 v{SM+2+n}, {f32(1/512)}, v{SM+n}")
    a(f"v_readlane_b32 s{S_T0}, v{SM+2}, 63\nv_readlane_b32 s{S_T1}, v{SM+3}, 63\ns_nop 0")
    for n in range(2):
        for m in range(8): a(f"v_subrev_f32 v{XF+8*n+m}, s{S_T0+n}, v{XF+8*n+m}")
    for n in range(2): a(f"v_mul_f32 v{SM+n}, v{XF+8*n}, v{XF+8*n}")
    for m in range(1, 8):
        for n in range(2): a(f"v_fmac_f32 v{SM+n}, v{XF+8*n+m}, v{XF+8*n+m}")
    reduce2()
    a(f"v_mov_b32 v{T1}, {f32(1e-5)}")
    for n in range(2): a(f"v_fmamk_f32 v{SM+n}, v{SM+n}, {f32(1/512)}, v{T1}")
    for n in range(2): a(f"v_rsq_f32 v{SM+n}, v{SM+n}")
    for n in range(2): a(f"v_or_b32 v{GR+2*n}, 1, v{SM+2+n}")
    for n in range(2): a(f"v_or_b32 v{GR+2*n+1}, 1, v{SM+n}")
    stamp(14)
    a(f"s_lshl_b32 s{S_T0}, s{w}, 4\ns_add_u32 s{S_T0}, s{S_T0}, {L_GR}\nv_mov_b32 v{T0}, s{S_T0}\ns_lshl_b64 exec, -1, 63")
    a.lds(f"ds_write_b128 v{T0}, v[{GR}:{GR+3}]"); a("s_mov_b64 exec, -1")
    def stats_loads():
        for tau in range(4):
            a(f"buffer_load_dwordx2 v[{STT+2*tau}:{STT+2*tau+1}], v{VST}, s[{R_WS}:{R_WS+3}], s{S_U3} offen offset:{128*tau} sc1")
    a.wait(lg="all")
    stamp(1)
    def rd(i, ks):
        slot = (i % 3) * 16384; b = 16*ks; wa = (WA, WA2)[ks]
        def W(n): return [(f"ds_read_b64_tr_b16 v[{WF+b+4*n+2*h}:{WF+b+4*n+2*h+1}], v{wa+n} offset:{slot+1024*h}", f"W{i}{ks}{n}") for h in range(2)]
        def Q(t): return [(f"ds_read_b128 v[{QF+b+4*t}:{QF+b+4*t+3}], v{QA+ks} offset:{slot+2048*t}", f"Q{i}{ks}{t}")]
        if cfg.x_nolds: return []
        return W(0) + Q(0) + Q(1) + Q(2) + Q(3) + W(1) + W(2) + W(3)
    def mm(i, ks, n, t):
        b = 16*ks
        if t == "cs":
            d = ONES; B = CS + 4*n; first = (i == 0 and n == 0); tags = [f"W{i}{ks}{n}"]
        else:
            d = ACC + 4*(4*n+t); B = QF+b+4*t; first = (i == 0 and ks == 0); tags = [f"W{i}{ks}{n}", f"Q{i}{ks}{t}"]
            if cfg.coarse and n == 0 and t == 0 and (i, ks) != (0, 0): tags.append(f"Q{i}{ks}3")
        a.wait(lg=tags)
        if not cfg.x_nomfma: a(f"v_mfma_f32_16x16x32_bf16 v[{d}:{d+3}], v[{WF+b+4*n}:{WF+b+4*n+3}], v[{B}:{B+3}], {'0' if first else v(d,4)}")
        for _ in range(cfg.bgn + (1 if len(bg) > 1 and bg[0].startswith("s_") and bg[1].startswith("s_") else 0)):
            if bg: a(bg.pop(0))
    bg = []
    if cfg.dseg < 0:
        n0 = len(a.lines); late_setup(); bg = a.lines[n0:]; del a.lines[n0:]
        for q in range(len(bg) - 1, 0, -1):
            if bg[q].startswith("s_cselect"): bg[q-1:q+1] = [bg[q-1] + "\n" + bg[q]]
    base = [(n, (t if n % 2 == 0 or not cfg.snake else 3 - t)) for n in range(4) for t in range(4)]
    withcs = sum([base[4*n:4*n+4] + [(n, "cs")] for n in range(4)], [])
    VSY = JUNK
    a(f"v_mov_b32 v{VSY}, {L_SYNC}")
    a("s_barrier")
    stamp(2)
    a(f"s_cmp_eq_u32 s{S_CL}, 7\ns_cbranch_scc1 L_Mh")
    if not cfg.chain:
        for ins, tag in rd(0, 0): a.lds(ins, tag)
    def stats_check():
        L = a.newlabel("Lst"); B = a.newlabel("Lstb")
        chk = (f"v_min3_u32 v{T0}, v{STT}, v{STT+1}, v{STT+2}\nv_min3_u32 v{T1}, v{STT+3}, v{STT+4}, v{STT+5}", f"v_min3_u32 v{T0}, v{T0}, v{STT+6}, v{STT+7}\nv_min_u32 v{T0}, v{T0}, v{T1}", f"v_cmp_eq_u32 vcc, 0, v{T0}")
        n0 = len(a.lines); stats_loads(); ld = "\n".join(a.lines[n0:]); del a.lines[n0:]
        k.ool.append(f"{L}:\n{ld}\ns_add_u32 s{S_SPIN}, s{S_SPIN}, 1\ns_waitcnt vmcnt(0)\n" + "\n".join(chk) + f"\ns_cmp_gt_u32 s{S_SPIN}, {SPIN_MAX}\ns_cbranch_scc1 {B}\ns_cbranch_vccnz {L}\ns_branch {B}")
        return ([chk[0], chk[1], chk[2] + f"\ns_mov_b32 s{S_SPIN}, 0\ns_cbranch_vccnz {L}\n{B}:"] +
                [f"v_mul_f32 v{STT+4*q+1}, v{KC+1}, v{STT+4*q+1}\nv_mul_f32 v{STT+4*q+3}, v{KC+1}, v{STT+4*q+3}" for q in range(2)] +
                [f"v_mul_f32 v{STT+4*q}, v{STT+4*q}, v{STT+4*q+1}\nv_mul_f32 v{STT+4*q+2}, v{STT+4*q+2}, v{STT+4*q+3}" for q in range(2)])
    if cfg.chain:
        pick = lambda i, kind, n: [x for ks in range(2) for x in rd(i, ks) if x[1] == f"{kind}{i}{ks}{n}"]
        for x in pick(0, "W", 0) + sum([pick(0, "Q", t) for t in range(4)], []): a.lds(*x)
        P = lambda n: [(ks, n, t) for t in range(4) for ks in range(2)]
        C = lambda n: [(1, n, "cs")]
        for i in range(8):
            seq = P(0)+C(0)+P(1)+C(1)+P(2)+C(2)+P(3)+C(3) if i < 7 else P(0)+C(0)+C(1)+P(1)[:4]+C(2)+C(3)+P(1)[4:]+P(2)+P(3)
            pend = pick(i, "W", 1) + pick(i, "W", 2) + pick(i, "W", 3)
            if i == 7: side = stats_check()
            for q, (ks, n, t) in enumerate(seq):
                mm(i, ks, n, t)
                if q == 12 and cfg.xlds:
                    sl = (i % 3) * 16384
                    a(f"s_cmp_eq_u32 s{S_XI}, {i}\ns_cselect_b64 exec, -1, 0\nds_read_b128 v[{XR2}:{XR2+3}], v{VXL} offset:{sl}\nds_read_b128 v[{XR2+4}:{XR2+7}], v{VXL} offset:{sl+4096}\ns_mov_b64 exec, -1")
                if i == 4 and q in (14, 15):
                    assert not bg
                    a.lds(f"ds_read2_b64 v[{B1R+4*(q-14)}:{B1R+4*(q-14)+3}], v{DV} offset0:{8*(q-14)} offset1:{8*(q-14)+4}", "b1")
                if i == 5 and q < 16: a(f"v_lshlrev_b32 v{B1F+q}, 16, v{B1R+q//2}" if q % 2 == 0 else f"v_and_b32 v{B1F+q}, 0xffff0000, v{B1R+q//2}")
                if i == 6 and q < 16: a(f"v_mul_f32 v{B1F+q}, v{KC+1}, v{B1F+q}")
                if i < 7:
                    if q == cfg.bq2:
                        a.wait(lg="all"); a("s_barrier")
                        if i == 6: a(f"s_mov_b32 s{S_T2}, 0x11111111\ns_mov_b32 s{S_T3}, s{S_T2}")
                        pend = pick(i+1, "W", 0)
                    elif n == 3 and t != "cs":
                        assert not pend
                        a.lds(*pick(i+1, "Q", t)[ks])
                    elif pend: a.lds(*pend.pop(0))
                else:
                    if q in (13, 14): a.lds(f"ds_read2_b64 v[{STT+4*(q-13)}:{STT+4*(q-13)+3}], v{VST+1} offset0:{32*(q-13)} offset1:{32*(q-13)+16}", "stt")
                    if q == 17: a.wait(lg="stt")
                    if side and q >= 17 and q not in (21, 22): a(side.pop(0))
                    if q == 21:
                        a(f"s_mov_b64 exec, s[{S_T2}:{S_T3}]"); a.lds(f"ds_write_b128 v{VCW}, v[{ONES}:{ONES+3}]"); a("s_mov_b64 exec, -1")
                    if q == 22:
                        a(f"v_mov_b32 v{T1}, 1\ns_mov_b64 exec, 1"); a.lds(f"ds_add_u32 v{VSY}, v{T1} offset:16"); a("s_mov_b64 exec, -1")
                    if q == 24: k.lds_peek(4, VSY, GR, "pk4")
                    if q == 28:
                        k.lds_check(4, VSY, GR, "pk4")
                        pend = [(f"ds_read_b128 v[{(CS, CSP)[h]+4*n2}:{(CS, CSP)[h]+4*n2+3}], v{VCR} offset:{64*n2+256*h}", f"csp{n2}") for n2 in range(4) for h in range(2)]
                    if pend: a.lds(*pend.pop(0))
            assert not pend
    for i in range(0 if cfg.chain else 8):
        pend = rd(i, 1)
        lastA = base[:4] + [(n, "cs") for n in range(4)] + base[4:]
        for q, (n, t) in enumerate(base if i < 7 else lastA):
            if i == 7 and q % 4 == 0: k.lstamp("g1end")
            mm(i, 0, n, t)
            if cfg.xlds and q == (14 if i < 7 else 12):
                sl = (i % 3) * 16384
                a(f"s_cmp_eq_u32 s{S_XI}, {i}\ns_cselect_b64 exec, -1, 0\nds_read_b128 v[{XR2}:{XR2+3}], v{VXL} offset:{sl}\nds_read_b128 v[{XR2+4}:{XR2+7}], v{VXL} offset:{sl+4096}\ns_mov_b64 exec, -1")
            if i == 4 and q == 12: assert not bg
            if i == 4 and q in (12, 13): a.lds(f"ds_read2_b64 v[{B1R+4*(q-12)}:{B1R+4*(q-12)+3}], v{DV} offset0:{8*(q-12)} offset1:{8*(q-12)+4}", "b1")
            if i == 5: a(f"v_lshlrev_b32 v{B1F+q}, 16, v{B1R+q//2}" if q % 2 == 0 else f"v_and_b32 v{B1F+q}, 0xffff0000, v{B1R+q//2}")
            if i == 6: a(f"v_mul_f32 v{B1F+q}, v{KC+1}, v{B1F+q}")
            if pend: a.lds(*pend.pop(0))
            elif i == 7 and q == 13:
                a(f"s_mov_b64 exec, s[{S_T2}:{S_T3}]")
                a.lds(f"ds_write_b128 v{VCW}, v[{ONES}:{ONES+3}]")
                a("s_mov_b64 exec, -1")
            elif i == 7 and q in (15, 16):
                a.lds(f"ds_read2_b64 v[{STT+4*(q-15)}:{STT+4*(q-15)+3}], v{VST+1} offset0:{32*(q-15)} offset1:{32*(q-15)+16}", "stt")
            elif i == 7 and q == 14:
                a(f"v_mov_b32 v{T1}, 1\ns_mov_b64 exec, 1"); a.lds(f"ds_add_u32 v{VSY}, v{T1} offset:16"); a("s_mov_b64 exec, -1")
        if i < 7:
            pend = rd(i+1, 0)
            for q, (n, t) in enumerate(withcs):
                mm(i, 1, n, t)
                bq = cfg.bq if i < 6 else cfg.bql
                if q == bq:
                    if i == cfg.dseg: late_setup()
                    a.wait(lg="all")
                    a("s_barrier")
                    if i == 6: k.lstamp("g1end")
                    if i == 6: a(f"s_mov_b32 s{S_T2}, 0x11111111\ns_mov_b32 s{S_T3}, s{S_T2}")
                    while len(pend) > 19 - q: a.lds(*pend.pop(0))
                if q > bq and pend: a.lds(*pend.pop(0))
        else:
            side = stats_check()
            pend = [(f"ds_read_b128 v[{(CS, CSP)[h]+4*n2}:{(CS, CSP)[h]+4*n2+3}], v{VCR} offset:{64*n2+256*h}", f"csp{n2}") for n2 in range(4) for h in range(2)]
            for q, (n, t) in enumerate(base):
                if q % 3 == 0: k.lstamp("g1end")
                mm(i, 1, n, t)
                if q == 0: k.lds_peek(4, VSY, GR, "pk4")
                if q == 5: k.lds_check(4, VSY, GR, "pk4")
                if q >= 5 and pend: a.lds(*pend.pop(0))
                if q == 1: a.wait(lg="stt")
                if side and q >= 1 and q != 5: a(side.pop(0))
        assert not pend
    a.vm = []
    if cfg.xprio: a("s_setprio 2")
    stamp(3)
    for m in range(0, 16, 2):
        if m % 8 == 0: a.wait(lg=f"csp{m//4+1}"); a(".p2align 3")
        a(f"v_pk_add_f32 v[{CS+m}:{CS+m+1}], v[{CS+m}:{CS+m+1}], v[{CSP+m}:{CSP+m+1}]")
    CACC, FAB = 16, ((96, 128), (48, 160))
    def reads(cc):
        FA, FB = FAB[cc & 1]; r = []
        for n in range(8):
            r.append((f"ds_read_b128 v[{FB+4*n}:{FB+4*n+3}], v{CB} offset:{3584-512*n+64*cc}", f"B{cc}_{n}"))
            for hf in range(2): r.append((f"ds_read_b64 v[{FA+4*n+2*hf}:{FA+4*n+2*hf+1}], v{CA} offset:{512*n+64*cc+8*hf}", f"A{cc}_{n}"))
        return r
    pend = reads(0)
    hq = []
    units = [(pp, tau) for pp in range(2) for tau in range(4)]
    for u, (pp, tau_) in enumerate(units):
        k.lstamp("gelu")
        if u == 7: k.lds_peek(0, VSY, GR, "pk0")
        E = CSP + 8*(u & 1); O = 228 + 4*(u & 1)
        prs = [(ACC + 4*(4*(2*pp+tl)+tau_) + 2*hh, tau_, 4*(2*pp+tl) + 2*hh, E + 4*tl + 2*hh) for tl in range(2) for hh in range(2)]
        for z, tau, hh, e in prs: a(f"v_pk_fma_f32 v[{e}:{e+1}], v[{CS+hh}:{CS+hh+1}], v[{STT+2*tau}:{STT+2*tau+1}], v[{B1F+hh}:{B1F+hh+1}] op_sel_hi:[1,0,1] neg_lo:[0,1,0] neg_hi:[0,1,0]")
        for z, tau, hh, e in prs: a(f"v_pk_fma_f32 v[{z}:{z+1}], v[{STT+2*tau}:{STT+2*tau+1}], v[{z}:{z+1}], v[{e}:{e+1}] op_sel:[1,0,0]")
        for z, tau, hh, e in prs: a(f"v_pk_fma_f32 v[{e}:{e+1}], v[{z}:{z+1}], v[{z}:{z+1}], v[{KC}:{KC+1}] op_sel_hi:[1,1,0]")
        for z, tau, hh, e in prs: a(f"v_pk_mul_f32 v[{e}:{e+1}], v[{e}:{e+1}], v[{z}:{z+1}]")
        for m in range(0 if cfg.x_nogelu else 8): a(f"v_exp_f32 v{E+m}, v{E+m}")
        for z, tau, hh, e in prs: a(f"v_pk_fma_f32 v[{e}:{e+1}], v[{KC}:{KC+1}], v[{e}:{e+1}], v[{KC}:{KC+1}] op_sel:[1,0,1]")
        if u == 7 and cfg.earlyrd: k.lds_check(0, VSY, GR, "pk0")
        for m in range(8):
            if not cfg.x_nogelu: a(f"v_rcp_f32 v{E+m}, v{E+m}")
            if u == 7 and m < cfg.earlyrd: a.lds(*pend.pop(0))
        for z, tau, hh, e in prs: a(f"v_pk_mul_f32 v[{z}:{z+1}], v[{z}:{z+1}], v[{e}:{e+1}]")
        for q in range(4): a(f"v_cvt_pk_bf16_f32 v{O+q}, v{prs[q][0]}, v{prs[q][0]+1}")
        flush = u in cfg.hgroups
        so = (S_H0, S_H1)[pp]
        hq.append((f"buffer_store_dwordx4 v[{O}:{O+3}], v{V16}, s[{R_WS}:{R_WS+3}], s{so} offen offset:{1024*tau_} sc1", "h" if u > 3 else "ha"))
        if flush:
            while hq: a.vmem(*hq.pop(0))
    k.lstamp("gelu")
    stamp(5)
    if cfg.xprio: a("s_setprio 0")
    assert cfg.earlyrd
    n0 = len(a.lines); sv = (list(a.vm), list(a.lg)); a.vm = []; a.lg = []
    a.label("L_Mh")
    late_setup()
    def xloads():
        a.vmem(f"buffer_load_dwordx4 v[{XR2}:{XR2+3}], v{VXO}, s[{R_Q}:{R_Q+3}], 0 offen", "x")
        a.vmem(f"buffer_load_dwordx4 v[{XR2+4}:{XR2+7}], v{VXO}, s[{R_Q}:{R_Q+3}], s{S_U1} offen", "x")
    if cfg.xlds: xloads()
    a("s_barrier")
    a(f"v_mov_b32 v{T1}, 1\ns_mov_b64 exec, 1\nds_add_u32 v{VSY}, v{T1} offset:16\ns_mov_b64 exec, -1")
    k.lds_wait(0, VSY, GR, setaddr=False, sleep=2)
    for ins, tag in reads(0)[:cfg.earlyrd]: a(ins)
    a("s_branch L_Mj")
    k.ool.append("\n".join(a.lines[n0:])); del a.lines[n0:]
    a.vm, a.lg = sv
    a.label("L_Mj")
    stamp(6)
    while len(pend) > 15: a.lds(*pend.pop(0))
    cnt = [0]
    def tick():
        if cnt[0] == cfg.asigpos: a.wait(vm="ha"); a(f"s_atomic_add s{S_INC}, s[{P_WS}:{P_WS+1}], s{S_PUB}")
        if cnt[0] == cfg.hsigpos: a.wait(vm="h"); a(f"s_lshl_b32 s{S_ONE}, s{S_INC}, 8\ns_atomic_add s{S_ONE}, s[{P_WS}:{P_WS+1}], s{S_PUB}")
        if cnt[0] % 14 == 0 or cnt[0] == 152: k.lstamp("conv")
        cnt[0] += 1
    tick()
    wq = []
    for cc in range(4):
        FA, FB = FAB[cc & 1]
        nxt = reads(cc+1) if cc < 3 else []
        for T in range(8):
            for an in ([-1] if cc == 0 else []) + list(range(T+1)):
                d = CACC + 4*T
                if an < 0:
                    a.wait(lg=f"B0_{T}")
                    a(f"v_mfma_f32_16x16x32_bf16 v[{d}:{d+3}], v[{AD}:{AD+3}], v[{FB+4*T}:{FB+4*T+3}], 0")
                else:
                    e = T - an
                    a.wait(lg=[f"A{cc}_{an}", f"B{cc}_{e}"])
                    if not cfg.x_noconv or cc == 3: a(f"v_mfma_f32_16x16x32_bf16 v[{d}:{d+3}], v[{FA+4*an}:{FA+4*an+3}], v[{FB+4*e}:{FB+4*e+3}], v[{d}:{d+3}]")
                if pend: a.lds(*pend.pop(0))
                elif nxt:
                    a.lds(*nxt.pop(0))
                    if cc == 2 and not nxt:
                        a(f"v_mov_b32 v{T1}, 1\ns_mov_b64 exec, 1"); a.lds(f"ds_add_u32 v{VSY}, v{T1} offset:4"); a("s_mov_b64 exec, -1")
                tick()
                if cc == 3:
                    if (T, an) == (1, 0): k.lds_peek(1, VSY, T0, "pk1")
                    if (T, an) == (3, 2): k.lds_check(1, VSY, T0, "pk1")
                    if an == T: wq.append((cnt[0] + 8, T))
                    if wq and wq[0][0] <= cnt[0] and (T, an) > (3, 2):
                        T2_ = wq.pop(0)[1]
                        a.lds(f"ds_write_b128 v{EXW}, v[{CACC+4*T2_}:{CACC+4*T2_+3}] offset:{1024*T2_}")
        assert not pend and not nxt
    stamp(7)
    assert [t for _, t in wq] == [7]
    a("s_nop 6")
    a.lds(f"ds_write_b128 v{EXW}, v[{CACC+28}:{CACC+31}] offset:{1024*7}")
    a(f"s_mov_b64 exec, 1"); a.lds(f"ds_add_u32 v{VSY}, v{T1} offset:8"); a("s_mov_b64 exec, -1")
    k.lds_wait(2, VSY, T0, setaddr=False)
    FA = 48
    for tt in range(2):
        for src in range(4):
            a.lds(f"ds_read_b128 v[{FA+16*tt+4*src}:{FA+16*tt+4*src+3}], v{EXR} offset:{8192*src+1024*tt}", f"e{tt}")
    for tt in range(2):
        a.wait(lg=f"e{tt}")
        b = FA + 16*tt
        for r in range(4): a(f"v_add_f32 v{b+r}, v{b+r}, v{b+4+r}\nv_add_f32 v{b+8+r}, v{b+8+r}, v{b+12+r}")
        for r in range(4): a(f"v_cvt_pk_bf16_f32 v{b+4+r}, v{b+r}, v{b+8+r}")
        a.vmem(f"buffer_store_dwordx4 v[{b+4}:{b+7}], v{YST}, s[{R_WS}:{R_WS+3}], 0 offen{' offset:1024' if tt else ''} sc1", "y")
    stamp(8)
    ST2, B2R = 24, 28
    if not cfg.xlds: xloads()
    a(f"v_and_b32 v{T0}, 1023, v{VSA}\nv_add_u32 v{T0}, {L_ST}, v{T0}")
    a.lds(f"ds_read2_b64 v[{ST2}:{ST2+3}], v{T0} offset0:0 offset1:32", "b2")
    a.lds(f"ds_read_b128 v[{B2R}:{B2R+3}], v{VB2}", "b2")
    a(f"s_add_u32 m0, s{S_B}, {L_YST}")
    if not cfg.xlds: a.wait(vm="y"); k.signal(S_YP)
    a.wait(vm="x", lg="b2")
    L = a.newlabel("Ls2"); B = a.newlabel("Ls2b")
    chk = f"v_min3_u32 v{T0}, v{ST2}, v{ST2+1}, v{ST2+2}\nv_min_u32 v{T0}, v{T0}, v{ST2+3}\nv_cmp_eq_u32 vcc, 0, v{T0}"
    a(f"{chk}\ns_mov_b32 s{S_SPIN}, 0\ns_cbranch_vccnz {L}"); a.label(B)
    k.ool.append(f"{L}:\nbuffer_load_dwordx2 v[{ST2}:{ST2+1}], v{VSA}, s[{R_WS}:{R_WS+3}], 0 offen sc1\nbuffer_load_dwordx2 v[{ST2+2}:{ST2+3}], v{VSA}, s[{R_WS}:{R_WS+3}], 0 offen offset:256 sc1\n"
                 f"s_add_u32 s{S_SPIN}, s{S_SPIN}, 1\ns_waitcnt vmcnt(0)\n{chk}\ns_cmp_gt_u32 s{S_SPIN}, {SPIN_MAX}\ns_cbranch_scc1 {B}\ns_cbranch_vccnz {L}\ns_branch {B}")
    XF2, PP, B2F, YR = 80, 96, 32, 40
    for n in range(2):
        for m in range(4): a(f"v_lshlrev_b32 v{XF2+8*n+2*m}, 16, v{XR2+4*n+m}\nv_and_b32 v{XF2+8*n+2*m+1}, 0xffff0000, v{XR2+4*n+m}")
        for m in range(8): a(f"v_sub_f32 v{PP+8*n+m}, v{XF2+8*n+m}, v{ST2+2*n}")
        for m in range(8): a(f"v_mul_f32 v{PP+8*n+m}, v{PP+8*n+m}, v{ST2+2*n+1}")
    for m in range(4): a(f"v_lshlrev_b32 v{B2F+2*m}, 16, v{B2R+m}\nv_and_b32 v{B2F+2*m+1}, 0xffff0000, v{B2R+m}")
    if cfg.xlds: a.wait(vm="y"); k.signal(S_YP)
    stamp(9)
    if not cfg.x_noy: k.spoll(S_YC, 8)
    stamp(10)
    a.vmem(f"buffer_load_dwordx4 v{YS0}, s[{R_WS}:{R_WS+3}], 0 offen sc1 lds", "ys")
    a.vmem(f"buffer_load_dwordx4 v{YS1}, s[{R_WS}:{R_WS+3}], 0 offen offset:1024 sc1 lds", "ys")
    a(f"v_mov_b32 v{T2}, {f32(-1.4426950408889634)}")
    RD, EE = 112, 176
    S_ARR, S_YRD = S_U2, S_U3
    def pk(op, d, x0, x1, x2=None, mod=""): a(f"{op} v[{d}:{d+1}], {x0}, {x1}" + (f", {x2}" if x2 else "") + mod)
    def preads(n):
        for kq in range(4):
            for e in range(2):
                a.lds(f"ds_read_b128 v[{RD+32*n+8*kq+4*e}:{RD+32*n+8*kq+4*e+3}], v{(PA0, PA1)[n]} offset:{2048*kq+16*e}", f"p{n}_{kq}")
    yrd = "\n".join(f"ds_read2st64_b32 v[{YR+4*n+2*q}:{YR+4*n+2*q+1}], v{ya} offset0:{2*q} offset1:{2*q+1}" for n, ya in enumerate((YA0, YA1)) for q in range(2))
    arr3 = f"s_waitcnt vmcnt(0)\ns_mov_b64 exec, 1\nds_add_u32 v{VSY}, v{T1} offset:12\ns_mov_b64 exec, -1\ns_mov_b32 s{S_ARR}, 1"
    yfold = yrd + "\ns_waitcnt lgkmcnt(0)\n" + "\n".join(
        f"v_lshlrev_b32 v{EE}, 16, v{YR+q}\nv_and_b32 v{EE+1}, 0xffff0000, v{YR+q}\nv_mul_f32 v{PP+2*q}, v{PP+2*q}, v{EE}\nv_mul_f32 v{PP+2*q+1}, v{PP+2*q+1}, v{EE+1}" for q in range(8))
    L = a.newlabel("Lf"); N = a.newlabel("Lfn"); N2 = a.newlabel("Lfm"); D = a.newlabel("Lfd"); L2 = a.newlabel("Lfw")
    a(f"s_mov_b32 s{S_ARR}, 0\ns_mov_b32 s{S_YRD}, 0\ns_mov_b32 s{S_SPIN}, 0")
    a.label(L)
    a(f"s_getreg_b32 s{S_T0}, hwreg(HW_REG_IB_STS, 0, 4)\ns_or_b32 s{S_T0}, s{S_T0}, s{S_ARR}\ns_cbranch_scc1 {N}\n{arr3}")
    a.label(N)
    a(f"ds_read2_b32 v[{EE+2}:{EE+3}], v{VSY} offset0:3 offset1:6\ns_add_u32 s{S_SPIN}, s{S_SPIN}, 1\ns_waitcnt lgkmcnt(0)")
    a(f"v_cmp_eq_u32 vcc, 4, v{EE+2}\ns_cmp_gt_u32 s{S_SPIN}, {SPIN_MAX*8}\ns_cbranch_vccnz {N2}\ns_cbranch_scc1 {D}")
    a(f"v_cmp_ne_u32 vcc, 4, v{EE+3}\ns_nop 0\ns_cbranch_vccz {D}\ns_sleep 1\ns_branch {L}")
    a.label(N2)
    a(f"{yfold}\ns_mov_b32 s{S_YRD}, 1")
    k.lds_wait(6, VSY, T0, setaddr=False, sleep=cfg.fsleep)
    a.label(D); a.lg = []
    stamp(12)
    k.lstamp("fin")
    def op(name, d, x0, x1, x2=None, c=None):
        for m in range(0, 8, 2):
            if c is None: pk(f"v_pk_{name}_f32", d+m, v(x0+m, 2), v(x1+m, 2), v(x2+m, 2) if x2 is not None else None)
            else: pk(f"v_pk_{name}_f32", d+m, v(x0+m, 2), c if c == "1.0" else v(c, 2), mod=" op_sel_hi:[1,0]")
    def gate_a(n):
        b = RD + 32*n
        a.wait(lg=f"p{n}_0"); a(".p2align 3")
        op("add", b, b, B2F)
        a.wait(lg=f"p{n}_2"); a(".p2align 3")
        op("add", b+8, b+8, b+16)
        a.wait(lg=f"p{n}_3"); a(".p2align 3")
        op("add", b, b, b+24)
        op("add", b, b, b+8)
        op("mul", EE, b, None, c=T2)
    def gate_b(n):
        for m in range(8): a(f"v_exp_f32 v{EE+m}, v{EE+m}")
        op("add", EE, EE, None, c="1.0")
    def gate_c(n):
        b = RD + 32*n
        for m in range(8): a(f"v_rcp_f32 v{EE+m}, v{EE+m}")
        op("mul", b, b, EE)
    def finish(n):
        b = RD + 32*n
        op("fma", b, b, PP+8*n, XF2+8*n)
        for m in range(4): a(f"v_cvt_pk_bf16_f32 v{b+8+m}, v{b+2*m}, v{b+2*m+1}")
        a(f"buffer_store_dwordx4 v[{b+8}:{b+11}], v{VXO}, s[{R_OUT}:{R_OUT+3}], {'s%d' % S_U1 if n else '0'} offen {cfg.out_flags}")
    PKV = EE + 10
    def try_arrive():
        N = a.newlabel("Lta")
        a(f"s_getreg_b32 s{S_T0}, hwreg(HW_REG_IB_STS, 0, 4)\ns_or_b32 s{S_T0}, s{S_T0}, s{S_ARR}\ns_cbranch_scc1 {N}\n{arr3}"); a.label(N)
    fold = lambda n: "\n".join(f"v_lshlrev_b32 v{EE+12+2*(q&1)}, 16, v{YR+q}\nv_and_b32 v{EE+13+2*(q&1)}, 0xffff0000, v{YR+q}\nv_pk_mul_f32 v[{PP+2*q}:{PP+2*q+1}], v[{PP+2*q}:{PP+2*q+1}], v[{EE+12+2*(q&1)}:{EE+13+2*(q&1)}]" for q in range(4*n, 4*n+4))
    preads(0)
    gate_a(0); gate_b(0); gate_c(0)
    S1 = a.newlabel("Ly1"); S2 = a.newlabel("Ly2"); N = a.newlabel("Lyn"); N3 = a.newlabel("Lym")
    a(f"s_cmp_eq_u32 s{S_YRD}, 0\ns_cbranch_scc1 {S1}")
    finish(0)
    a(f"s_branch {N3}")
    a.label(S1)
    try_arrive()
    a.label(N3)
    k.lstamp("fin"); stamp(11)
    k.lds_wait(7, VSY, T0, setaddr=False)
    k.lstamp("fin")
    preads(1)
    a(f"ds_read_b32 v{PKV}, v{VSY} offset:12")
    gate_a(1)
    Y = a.newlabel("Lyq")
    a(f"s_cmp_lg_u32 s{S_YRD}, 0\ns_cbranch_scc1 {Y}\ns_waitcnt lgkmcnt(0)\nv_cmp_ne_u32 vcc, 4, v{PKV}\ns_nop 0\ns_cbranch_vccnz {Y}\n{yrd}\ns_mov_b32 s{S_YRD}, 2")
    a.label(Y)
    gate_b(1); gate_c(1)
    k.lstamp("fin")
    F = a.newlabel("Lyf")
    a(f"s_cmp_eq_u32 s{S_YRD}, 1\ns_cbranch_scc1 {S2}\ns_cmp_eq_u32 s{S_YRD}, 2\ns_cbranch_scc1 {F}")
    a(f"s_cmp_lg_u32 s{S_ARR}, 0\ns_cbranch_scc1 {N}\n{arr3}")
    a.label(N)
    k.lds_wait(3, VSY, T0, setaddr=False)
    a(yrd)
    a.label(F)
    a(f"s_waitcnt lgkmcnt(0)\n{fold(0)}")
    finish(0)
    a(fold(1))
    a.label(S2)
    finish(1)
    k.lstamp("fin")
    stamp(13)
    if cfg.diag_pad or cfg.diag_amp:
        if cfg.diag_amp: a(f"s_sub_u32 s{S_T2}, s{S_ST}, s{S_EX}\ns_mul_i32 s{S_T2}, s{S_T2}, {cfg.diag_amp[1]}\ns_min_u32 s{S_T2}, s{S_T2}, 200000")
        else: a(f"s_mov_b32 s{S_T2}, {cfg.diag_pad}")
        a.label("L_pad")
        a(f"s_memrealtime s[{S_T0}:{S_T1}]\ns_waitcnt lgkmcnt(0)\ns_sub_u32 s{S_T0}, s{S_T0}, s{S_EX}\ns_cmp_lt_u32 s{S_T0}, s{S_T2}\ns_cbranch_scc1 L_pad")
    k.flush_stamps()
    a("s_endpgm")
    for o in k.ool: a(o)

Cfg.g2_nomfma = False; Cfg.g2_hot = False; Cfg.g2_noload = False; Cfg.hflag = 'sc1'; Cfg.seg7 = 4; Cfg.nearly = 6; Cfg.binit = 0; Cfg.cap = 16; Cfg.la = 5; Cfg.x_nohst = False; Cfg.spf = None; Cfg.spfw = True; Cfg.n0 = 8; Cfg.n1 = 3; Cfg.cap0 = 16; Cfg.capseg = 0; Cfg.ssmf = ''; Cfg.cap2 = 9; Cfg.nl = 13; Cfg.pk0 = True; Cfg.fsleep = 1; Cfg.dynsig = None; Cfg.urst = 0; Cfg.x_nop2 = False; Cfg.psleep = 0; Cfg.hsplit = True; Cfg.asigpos = 16; Cfg.apeek = 3; Cfg.bpeek = 8; Cfg.earlyrd = 8; Cfg.diag2 = None; Cfg.wsoff = 0; Cfg.lst = None; Cfg.hgroups = tuple(range(8)); Cfg.htouch = 1; Cfg.urfirst = False; Cfg.e0seg = 5; Cfg.mseg = 1; Cfg.nps = 2; Cfg.pdelay = 0; Cfg.upos = 2; Cfg.hold = (2,); Cfg.uwait = 3; Cfg.dseg = -1; Cfg.bgn = 1; Cfg.g1prio = 1; Cfg.n2 = 4; Cfg.x_noy = False; Cfg.x_noconv = False; Cfg.x_nogelu = False; Cfg.x_nog2 = False; Cfg.x_trim = False; Cfg.kvf = 'nt'; Cfg.hwhat = ('', 'ws', '', ''); Cfg.hfull = False; Cfg.hold0 = 0; Cfg.np = 3; Cfg.lah = 12; Cfg.ldt = (0, 2); Cfg.snake = True; Cfg.ucopy = True; Cfg.xlds = True; Cfg.tprio = 0; Cfg.jitter = None; Cfg.usig = (5,0); Cfg.upk = 2; Cfg.g2p = 0; Cfg.mlead = 0; Cfg.chain = False; Cfg.bql = 13; Cfg.bq2 = 21; Cfg.page = True; Cfg.mpage = 0; Cfg.tolog = False; Cfg.uarr = 8; Cfg.uarr_d = 5; Cfg.w2x = False; Cfg.bq = 10; Cfg.rdnow = False; Cfg.coarse = False
HEADER = open("recurrent_scan__ssm_conv_h3__dense_activation_gelu__prompt.s.ref").read().split("; @launch")[0]
def full(cfg):
    kp = K(cfg); prologue(kp)
    km = K(cfg); km.role = 'm'; km.a.nlabel = 1000; gen_m(km)
    kx = K(cfg); kx.role = 'x'; gen_x(kx)
    errs = check(kp.a.lines + km.a.lines) + check(kp.a.lines + kx.a.lines)
    if cfg.tolog:
        import re as _re
        site = [0]
        for kk in (km, kx):
            out = []; L = kk.a.lines; i = 0; shift = 0
            while i < len(L):
                out.append(L[i])
                if _re.match(rf"s_cmp_gt_u32 s{S_SPIN}, \d+", L[i]):
                    lab = f"Lto_{site[0]}"
                    add = [f"s_cbranch_scc0 {lab}", f"s_lshl_b32 s{S_ST}, s2, 16", f"s_lshl_b32 s{S_ST+1}, s{S_WAVE}, 8", f"s_or_b32 s{S_ST}, s{S_ST}, s{S_ST+1}", f"s_or_b32 s{S_ST}, s{S_ST}, 0x80",
                           f"s_atomic_swap s{S_ST}, s[{P_DBG}:{P_DBG+1}], {64 + 4*site[0]}", f"s_mov_b32 s{S_ST+1}, s{S_PV}", f"s_atomic_swap s{S_ST+1}, s[{P_DBG}:{P_DBG+1}], 60", L[i], f"{lab}:"]
                    print("site", site[0], kk.role, L[max(i-4,0):i], file=sys.stderr)
                    out += add; site[0] += 1
                i += 1
            kk.a.lines = out
    a = Asm()
    a.lines = kp.a.lines + km.a.lines[:km.split] + ["L_X:"] + kx.a.lines + km.a.lines[km.split:] + ["L_end:", "s_endpgm", "L_code_end:"]
    for e in errs: print(e, file=sys.stderr)
    assert not errs
    t = HEADER + f"; @launch grid=(256,1,1) block=(512,1,1) lds={LDS_BYTES}\n"
    t += """; One persistent launch, 256 workgroups (one per CU) of 8 waves; generated by gen/gen.py.
;   waves 0-3 (M): row statistics, GEMM1, GELU, long convolution, final gate/output
; Hand-offs between workgroups (row statistics, u = kv transposed, h, y) go through d_ws with write-through stores;
; workgroups 0-7 zero the counters and statistics words and announce that in d_debug before anyone uses them.
"""
    t += f'.amdgcn_target "amdgcn-amd-amdhsa--gfx950"\n.text\n.globl {NAME}\n{".p2align 12" if cfg.page else ""}\n.p2align 8\n.type {NAME},@function\n'
    t += a.text()
    t += f'''.section .rodata,"a"
.p2align 6
.amdhsa_kernel {NAME}
  .amdhsa_next_free_vgpr 256
  .amdhsa_next_free_sgpr 102
  .amdhsa_accum_offset 256
  .amdhsa_group_segment_fixed_size 0
  .amdhsa_kernarg_size 112
  .amdhsa_user_sgpr_count 2
  .amdhsa_user_sgpr_kernarg_segment_ptr 1
  .amdhsa_system_sgpr_workgroup_id_x 1
  .amdhsa_float_denorm_mode_32 3
.end_amdhsa_kernel
'''
    return t
if __name__ == "__main__":
    cfg = Cfg()
    for kv in sys.argv[2:]:
        kk, val = kv.split("=", 1); assert hasattr(cfg, kk), kk; setattr(cfg, kk, eval(val))
    open(sys.argv[1], "w").write(full(cfg))
```

```python
import sys, struct
from asmlib import Asm, v, s, check

NAME = "recurrent_scan__ssm_conv_h3__dense_activation_gelu__prompt_kernel"
def f32(x): return "0x%08x" % struct.unpack("<I", struct.pack("<f", x))[0]

WS_CNT, WS_STATS, WS_STAMP, WS_UR, WS_Y, WS_H = 0, 0x20000, 0x40000, 0x100000, 0x300000, 0x500000
WS_SIZE = 0x500000 + 64*112*1024
CNT_UR, CNT_H, CNT_Y = 0, 128, 256
L_Q, L_W, L_KST = 0, 49152, 98304
L_VST = L_KST + 9*1024
L_CT = 115712; CH_STRIDE = 17600; H_STRIDE = 4224; U_OFF = 8448; U_STRIDE = 4576
L_MISC = L_CT + 2*CH_STRIDE
L_YST = L_MISC
L_CS = L_YST + 8192
L_SYNC = L_CS + 1024
L_TAP = L_SYNC + 64; L_B1 = L_TAP + 512; L_B2 = L_B1 + 256
L_GR = L_B2 + 128; L_ST = L_GR + 64
LDS_BYTES = L_ST + 1024
SPIN_MAX = 1 << 17

P_Q, P_K, P_V, P_SH, P_SSM, P_D, P_BX, P_W1, P_B1, P_W2, P_B2, P_OUT, P_DBG, P_WS = range(4, 32, 2)
S_WV, S_XCD, S_J, S_R, S_C, S_KC0, S_R2, S_C2, S_OFF, S_WAVE = range(32, 42)
S_A, S_B, S_T0, S_T1, S_T2, S_T3 = range(42, 48)
R_Q, R_K, R_V, R_W1, R_WS, R_DBG, R_W2, R_SSM, R_X0, R_OUT = range(48, 88, 4)
S_U0, S_U1, S_U2, S_U3, S_U4, S_U5, S_SPIN, S_PUB = range(88, 96)
S_EX = 96; S_ST = 100
S_ONE, S_PV = 3, 16
S_C16, S_CL = S_OFF, S_A

class Cfg:
    stamps = False
    kvpos = 2; g1stag = "xr"; g2map = 4; g2stag = "none"; ntq = ""; ntw2 = ""
    markseg = 0; ssmseg = 6; stseg = 6; urseg = 2; w2touch = 3
    urpos = -1
    hsigpos = 68
    xprio = 1
    code_pf = True
    diag_pad = 0; diag_amp = None; out_flags = "sc1"
    x_nomfma = False; x_nolds = False; x_nodma = False; segstamps = True

def srd(a, R, P, size):
    a(f"s_mov_b64 s[{R}:{R+1}], s[{P}:{P+1}]\ns_mov_b32 s{R+2}, {size}\ns_mov_b32 s{R+3}, 0x20000")

class K:
    def __init__(self, cfg): self.a = Asm(); self.cfg = cfg; self.ool = []; self.nls = 0
    NOTES = {("x", 0): "X: remaining address setup", ("x", 2): "X: GEMM1 loader loop (LDS ring of 3 K-chunks); k*v preparation interleaved",
             ("x", 9): "X: stream w2 through LDS into registers (first half) and LDS (second half); stage the conv tables",
             ("x", 13): "X: GEMM2, one K quarter per wave, h fragments straight from the workspace", ("x", 14): "X: last partial sums to LDS",
             ("m", 0): "M: row statistics of 2 rows per wave (two-pass mean / variance)", ("m", 2): "M: GEMM1 on raw x (LayerNorm folded into the epilogue; column sums of w1 by extra MFMAs)",
             ("m", 3): "M: LayerNorm fold + bias + tanh-GELU, h fragments to the workspace", ("m", 6): "M: causal long convolution as Toeplitz MFMAs (2 channels per workgroup)",
             ("m", 7): "M: combine class halves, publish y", ("m", 9): "M: wait for y, stage it", ("m", 12): "M: sum the K quarters, SiLU gate, output"}
    def stamp(self, i):
        a, cfg = self.a, self.cfg
        if (self.role, i) in self.NOTES: a.lines.append("; ---- " + self.NOTES[(self.role, i)])
        if cfg.jitter:
            L = a.newlabel("Ljt"); D = a.newlabel("Ljd")
            a(f"s_memtime s[{S_ST}:{S_ST+1}]\ns_waitcnt lgkmcnt(0)\ns_mul_i32 s{S_ST}, s{S_ST}, 0x9E3779B1\ns_lshr_b32 s{S_ST+1}, s{S_ST}, {32-cfg.jitter[0]}\ns_cmp_lg_u32 s{S_ST+1}, 0\ns_cbranch_scc1 {D}")
            a(f"s_bfe_u32 s{S_ST}, s{S_ST}, {hex((cfg.jitter[1] << 16) | 10)}")
            a.label(L); a(f"s_sleep 4\ns_sub_u32 s{S_ST}, s{S_ST}, 1\ns_cbranch_scc0 {L}"); a.label(D); a.lg = []
        if cfg.diag2 and self.role == cfg.diag2[0] and i in cfg.diag2[1:3]:
            a(f"s_memrealtime s[{S_ST}:{S_ST+1}]\ns_waitcnt lgkmcnt(0)"); a.lg = []
            a(f"s_mov_b32 s{S_EX+1}, s{S_ST}" if i == cfg.diag2[1] else f"s_sub_u32 s{S_EX+1}, s{S_ST}, s{S_EX+1}")
        if cfg.diag_amp and cfg.diag_amp[0] == i:
            a(f"s_memrealtime s[{S_ST}:{S_ST+1}]\ns_waitcnt lgkmcnt(0)"); a.lg = []
        if cfg.stamps == "tail" and i != 0 and (self.role, i) not in (("x", 13), ("x", 14), ("m", 10), ("m", 12), ("m", 13)): return
        if cfg.stamps == "min" and i == 0:
            a("v_writelane_b32 v255, s86, 23"); return
        if cfg.stamps == "min" and not (i == 13 and self.role == "m"): return
        if cfg.stamps:
            a(f"s_memrealtime s[{S_ST}:{S_ST+1}]\ns_memtime s[{S_EX}:{S_EX+1}]\ns_waitcnt lgkmcnt(0)\nv_writelane_b32 v255, s{S_ST}, {i}\nv_writelane_b32 v255, s{S_EX}, {32+i}")
            if i == 0: a("v_writelane_b32 v255, s86, 23")
            a.lg = []
    LS = [52, 54, 56, 58, 60, 62, 68, 70, 72, 74, 76, 78]
    def lstamp(self, grp):
        if self.cfg.stamps and self.cfg.lst == grp:
            j = self.nls; self.nls += 1
            self.a(f"s_memtime s[{self.LS[j]}:{self.LS[j]+1}]")
    def flush_stamps(self):
        a = self.a; cfg = self.cfg
        if self.nls:
            a("s_waitcnt lgkmcnt(0)")
            for j in range(self.nls): a(f"v_writelane_b32 v255, s{self.LS[j]}, {(24+j) if j < 8 else (48+j)}")
        if cfg.diag2 and self.role == cfg.diag2[0]:
            a(f"s_mul_i32 s{S_T2}, s{S_EX+1}, {cfg.diag2[3]}\ns_add_u32 s{S_T2}, s{S_T2}, 2000\ns_min_u32 s{S_T2}, s{S_T2}, 200000")
            if cfg.diag2[4] is not None: a(f"s_lshl2_add_u32 s{S_T0}, s2, s{S_WV}\ns_cmp_eq_u32 s{S_T0}, {cfg.diag2[4]}\ns_cselect_b32 s{S_T2}, s{S_T2}, 0")
            a.label("L_pad2")
            a(f"s_memrealtime s[{S_T0}:{S_T1}]\ns_waitcnt lgkmcnt(0)\ns_sub_u32 s{S_T0}, s{S_T0}, s{S_EX}\ns_cmp_lt_u32 s{S_T0}, s{S_T2}\ns_cbranch_scc1 L_pad2")
        if self.cfg.stamps:
            a(f"s_lshl_b32 s{S_T0}, s2, 3\ns_add_u32 s{S_T0}, s{S_T0}, s{S_WAVE}\ns_lshl_b32 s{S_T0}, s{S_T0}, 8\ns_add_u32 s{S_T0}, s{S_T0}, {WS_STAMP}")
            a(f"v_lshlrev_b32 v254, 2, v0\ns_mov_b64 exec, 0x802000\nbuffer_store_dword v255, v254, s[{R_WS}:{R_WS+3}], s{S_T0} offen sc1" if self.cfg.stamps == "min" and not self.cfg.lst else f"v_lshlrev_b32 v254, 2, v0\nbuffer_store_dword v255, v254, s[{R_WS}:{R_WS+3}], s{S_T0} offen")
    def vpoll(self, vaddr, vdata, R, expect):
        a = self.a; L = a.newlabel("Lpoll"); D = a.newlabel("Lpolld")
        a(f"s_mov_b32 s{S_SPIN}, 0")
        a.label(L)
        a(f"buffer_load_dword v{vdata}, v{vaddr}, s[{R}:{R+3}], 0 offen sc1\ns_waitcnt vmcnt(0)")
        a(f"v_cmp_ne_u32 vcc, {expect}, v{vdata}")
        a(f"s_add_u32 s{S_SPIN}, s{S_SPIN}, 1\ns_cmp_gt_u32 s{S_SPIN}, {SPIN_MAX}\ns_cbranch_scc1 {D}\ns_cbranch_vccnz {L}")
        a.label(D)
    def spoll(self, off_sgpr, expect):
        a = self.a; L = a.newlabel("Lsp"); D = a.newlabel("Lspd")
        a(f"s_mov_b32 s{S_SPIN}, 0")
        a.label(L)
        a(f"s_load_dword s{S_PV}, s[{P_WS}:{P_WS+1}], s{off_sgpr} glc\ns_add_u32 s{S_SPIN}, s{S_SPIN}, 1\ns_waitcnt lgkmcnt(0)")
        a(f"s_cmp_eq_u32 s{S_PV}, {expect}\ns_cbranch_scc1 {D}")
        if self.cfg.psleep: a(f"s_sleep {self.cfg.psleep}")
        a(f"s_cmp_gt_u32 s{S_SPIN}, {SPIN_MAX}\ns_cbranch_scc0 {L}")
        a.label(D); a.lg = []
    def signal(self, cnt, inc=1): self.a(f"s_movk_i32 s{S_ONE}, {inc}\ns_atomic_add s{S_ONE}, s[{P_WS}:{P_WS+1}], s{cnt}")
    def lds_arrive(self, word, vtmp, vone):
        a = self.a
        a(f"v_mov_b32 v{vtmp}, {L_SYNC}\nv_mov_b32 v{vone}, 1\ns_mov_b64 exec, 1")
        a.lds(f"ds_add_u32 v{vtmp}, v{vone} offset:{4*word}")
        a("s_mov_b64 exec, -1")
    def lds_wait(self, word, vtmp, vone, setaddr=True, sleep=0):
        a = self.a; L = a.newlabel("Lsy"); D = a.newlabel("Lsyd")
        if setaddr: a(f"v_mov_b32 v{vtmp}, {L_SYNC}")
        a(f"s_mov_b32 s{S_SPIN}, 0")
        a.label(L)
        a(f"ds_read_b32 v{vone}, v{vtmp} offset:{4*word}\ns_add_u32 s{S_SPIN}, s{S_SPIN}, 1\ns_waitcnt lgkmcnt(0)")
        a(f"v_cmp_ne_u32 vcc, 4, v{vone}\ns_cmp_gt_u32 s{S_SPIN}, {SPIN_MAX*8}\ns_cbranch_scc1 {D}")
        if sleep: a(f"s_cbranch_vccz {D}\ns_sleep {sleep}\ns_branch {L}")
        else: a(f"s_cbranch_vccnz {L}")
        a.label(D); a.lg = []
    def lds_peek(self, word, vaddr, vdst, tag): self.a.lds(f"ds_read_b32 v{vdst}, v{vaddr} offset:{4*word}", tag)
    def lds_check(self, word, vaddr, vdst, tag):
        a = self.a; L = a.newlabel("Lck"); B = a.newlabel("Lckb"); S = a.newlabel("Lcks")
        a.wait(lg=tag)
        a(f"v_cmp_ne_u32 vcc, 4, v{vdst}\ns_mov_b32 s{S_SPIN}, 0\ns_cbranch_vccnz {L}"); a.label(B)
        self.ool.append(f"{L}:\nds_read_b32 v{vdst}, v{vaddr} offset:{4*word}\ns_add_u32 s{S_SPIN}, s{S_SPIN}, 1\ns_waitcnt lgkmcnt(0)\nv_cmp_ne_u32 vcc, 4, v{vdst}\n"
                        f"s_cmp_gt_u32 s{S_SPIN}, {SPIN_MAX*8}\ns_cbranch_scc1 {B}\ns_cbranch_vccnz {L}\ns_branch {B}")
    def speek(self, off): self.a(f"s_load_dword s{S_PV}, s[{P_WS}:{P_WS+1}], s{off} glc")
    def scheck(self, off, mask, expect):
        a = self.a; L = a.newlabel("Lsc"); B = a.newlabel("Lscb")
        m = f"s_and_b32 s{S_PV}, s{S_PV}, {mask}\n" if mask else ""
        a(f"s_mov_b32 s{S_SPIN}, 0\ns_waitcnt lgkmcnt(0)\n{m}s_cmp_lg_u32 s{S_PV}, {expect}\ns_cbranch_scc1 {L}"); a.label(B); a.lg = []
        self.ool.append(f"{L}:\ns_load_dword s{S_PV}, s[{P_WS}:{P_WS+1}], s{off} glc\ns_add_u32 s{S_SPIN}, s{S_SPIN}, 1\ns_cmp_gt_u32 s{S_SPIN}, {SPIN_MAX}\ns_waitcnt lgkmcnt(0)\ns_cbranch_scc1 {B}\n"
                        f"{m}s_cmp_lg_u32 s{S_PV}, {expect}\ns_cbranch_scc1 {L}\ns_branch {B}")
    def lds_sync(self, word, vtmp, vone):
        self.a.wait(lg="all"); self.lds_arrive(word, vtmp, vone); self.lds_wait(word, vtmp, vone, setaddr=False)

def prologue(k):
    a, cfg = k.a, k.cfg
    a.label(NAME)
    if cfg.stamps: a("s_memrealtime s[86:87]")
    if cfg.lst == "head": a("s_memtime s[68:69]")
    a(f"s_load_dwordx2 s[{R_Q}:{R_Q+1}], s[0:1], 0\ns_load_dwordx2 s[{R_W1}:{R_W1+1}], s[0:1], 56")
    if cfg.stamps: a("v_mov_b32 v255, 0")
    if cfg.diag_pad or cfg.diag_amp or cfg.diag2: a(f"s_memrealtime s[{S_EX}:{S_EX+1}]")
    a("v_lshrrev_b32 v1, 6, v0\nv_and_b32 v0, 63, v0")
    a(f"v_readfirstlane_b32 s{S_WAVE}, v1")
    a("s_cmp_ge_u32 s2, 256\ns_cbranch_scc1 L_end")
    if not cfg.split0: indices(k)
    a(f"s_cmp_ge_u32 s{S_WAVE}, 4\ns_cbranch_scc1 L_X")

def indices(k):
    a, cfg = k.a, k.cfg
    a(f"s_and_b32 s{S_XCD}, s2, 7\ns_lshr_b32 s{S_J}, s2, 3")
    if cfg.xflip: a(f"s_xor_b32 s{S_XCD}, s{S_XCD}, {cfg.xflip}")
    a(f"s_lshr_b32 s{S_T0}, s{S_XCD}, 1\ns_and_b32 s{S_T1}, s{S_XCD}, 1")
    a(f"s_and_b32 s{S_T2}, s{S_J}, 3\ns_lshr_b32 s{S_CL}, s{S_J}, 2")
    a(f"s_lshl2_add_u32 s{S_R}, s{S_T0}, s{S_T2}\ns_lshl3_add_u32 s{S_C16}, s{S_T1}, s{S_CL}")
    if cfg.g1stag == "four":
        a(f"s_and_b32 s{S_T0}, s{S_T0}, 1")
        a(f"s_add_u32 s{S_KC0}, s{S_T2}, s{S_CL}\ns_and_b32 s{S_KC0}, s{S_KC0}, 3\ns_lshl1_add_u32 s{S_KC0}, s{S_KC0}, s{S_T0}")
    elif cfg.g1stag == "twox": a(f"s_add_u32 s{S_KC0}, s{S_T2}, s{S_CL}\ns_and_b32 s{S_KC0}, s{S_KC0}, 1\ns_lshl2_add_u32 s{S_KC0}, s{S_KC0}, s{S_T0}")
    elif cfg.g1stag == "two": a(f"s_add_u32 s{S_KC0}, s{S_T2}, s{S_CL}\ns_and_b32 s{S_KC0}, s{S_KC0}, 1\ns_lshl_b32 s{S_KC0}, s{S_KC0}, 2")
    elif cfg.g1stag == "xcd": a(f"s_mov_b32 s{S_KC0}, s{S_XCD}")
    elif cfg.g1stag == "x1": a(f"s_add_u32 s{S_KC0}, s{S_T2}, s{S_CL}\ns_and_b32 s{S_KC0}, s{S_KC0}, 1\ns_lshl1_add_u32 s{S_KC0}, s{S_T0}, s{S_KC0}")
    elif cfg.g1stag == "x2":
        a(f"s_add_u32 s{S_KC0}, s{S_T2}, s{S_CL}\ns_and_b32 s{S_KC0}, s{S_KC0}, 1\ns_lshl_b32 s{S_KC0}, s{S_KC0}, 1\ns_mul_i32 s{S_T3}, s{S_T0}, 3\ns_and_b32 s{S_T3}, s{S_T3}, 5\ns_cmp_eq_u32 s{S_T0}, 3\ns_cselect_b32 s{S_T3}, 5, s{S_T3}\ns_or_b32 s{S_KC0}, s{S_KC0}, s{S_T3}")
    elif cfg.g1stag == "xr": a(f"s_lshl_b32 s{S_KC0}, s{S_T0}, 1")
    else: a(f"s_mov_b32 s{S_KC0}, 0")
    a(f"s_mov_b32 s{R_Q+2}, {2<<20}\ns_mov_b32 s{R_Q+3}, 0x20000")
    a(f"s_and_b32 s{S_WV}, s{S_WAVE}, 3\nv_lshlrev_b32 v1, 4, v0")
    a(f"v_lshrrev_b32 v10, 3, v0\nv_lshrrev_b32 v11, 4, v0\nv_and_b32 v12, 7, v0")
def col_index(a): a(f"s_and_b32 s{S_T1}, s{S_XCD}, 1\ns_sub_u32 s{S_C}, s{S_C16}, s{S_T1}\ns_min_u32 s{S_C}, s{S_C}, 13")
def big_loads(a): a("s_load_dwordx16 s[4:19], s[0:1], 0\ns_load_dwordx8 s[20:27], s[0:1], 64\ns_load_dwordx4 s[28:31], s[0:1], 96")
def g2_index(k):
    a, cfg = k.a, k.cfg
    assert not cfg.wsoff
    a(f"s_and_b32 s{S_T1}, s{S_XCD}, 1\ns_and_b32 s{S_T2}, s{S_J}, 3\ns_lshl_b32 s{S_B}, s{S_WV}, 11")
    a(f"s_lshl1_add_u32 s{S_T3}, s{S_T2}, s{S_CL}")
    if cfg.g2map == 3: a(f"s_xor_b32 s{S_C2}, s{S_CL}, 4\ns_lshl1_add_u32 s{S_R2}, s{S_R}, s{S_T1}")
    elif cfg.g2map == 4:
        a(f"s_and_b32 s{S_R2}, s{S_CL}, 1\ns_lshr_b32 s{S_C2}, s{S_CL}, 1\ns_xor_b32 s{S_T3}, s{S_R2}, 1\ns_cmp_lt_u32 s{S_CL}, 6\ns_cselect_b32 s{S_T3}, s{S_T1}, s{S_T3}\ns_cselect_b32 s{S_R2}, s{S_R2}, s{S_T1}")
        a(f"s_lshl2_add_u32 s{S_C2}, s{S_T3}, s{S_C2}\ns_lshl1_add_u32 s{S_R2}, s{S_R}, s{S_R2}")
    elif cfg.g2map == 1: a(f"s_and_b32 s{S_C2}, s{S_T3}, 7\ns_lshl1_add_u32 s{S_R2}, s{S_R}, s{S_T1}")
    else: a(f"s_and_b32 s{S_R2}, s{S_CL}, 1\ns_lshl1_add_u32 s{S_R2}, s{S_R}, s{S_R2}\ns_bfe_u32 s{S_C2}, s{S_T3}, 0x20001\ns_lshl2_add_u32 s{S_C2}, s{S_T1}, s{S_C2}")

def gen_x(k):
    a, cfg, stamp = k.a, k.cfg, k.stamp
    x = S_WV
    a.cap = cfg.cap
    V16, W2A, W2B, TR, HA, TRH = 1, 2, 3, 4, 8, 138
    T0, T1, T2, T3 = 10, 11, 12, 13
    VQ, VW, VKA, VKB, VHALO, VTA, PK, PH, PV, PST, VMK, VMD = 14, 18, 22, 23, 24, 25, 26, 27, 28, 29, 30, 31
    TAPS, JUNK = 108, 112
    ACC2, AR, WB = 14, 78, 142
    if cfg.split0: indices(k)
    a(f"v_xor_b32 v{T3}, v{T2}, v{T1}\nv_lshlrev_b32 v{T3}, 4, v{T3}\nv_lshl_add_u32 v{VQ}, v{T0}, 10, v{T3}")
    a(f"s_lshl2_add_u32 s{S_T0}, s{S_R}, s{x}\ns_lshl_b32 s{S_T0}, s{S_T0}, 15\ns_movk_i32 s{S_T2}, {8192-1024}\ns_lshl_b32 s{S_T3}, s{S_T2}, 1")
    a(f"v_add_u32 v{VQ}, s{S_T0}, v{VQ}")
    a(f"v_xor_b32 v{VQ+1}, 64, v{VQ}\nv_add_u32 v{VQ+2}, s{S_T3}, v{VQ}\nv_add_u32 v{VQ+1}, s{S_T2}, v{VQ+1}\nv_add_u32 v{VQ+3}, s{S_T3}, v{VQ+1}")
    a(f"s_lshl_b32 s{S_U1}, s{x}, 12\ns_lshl_b32 s{S_U3}, s{S_KC0}, 7\ns_mov_b32 m0, s{S_U1}")
    col_index(a)
    def w_setup():
        d = 4*3584 - 1024
        a(f"v_lshlrev_b32 v{T3}, 5, v{T1}\nv_xor_b32 v{T3}, v{T3}, v{V16}\nv_and_b32 v{T3}, 0xff, v{T3}\nv_xor_b32 v{VW+2}, 0x80, v{T3}")
        a(f"s_lshl_b32 s{S_T2}, s{S_C}, 8\ns_mul_i32 s{S_T1}, s{x}, {16*3584}\ns_add_u32 s{S_T0}, s{S_T2}, s{S_T1}")
        a(f"s_movk_i32 s{S_T1}, 3584\ns_movk_i32 s{S_T2}, {d}\ns_lshl1_add_u32 s{S_T3}, s{S_T2}, s{S_T0}")
        a(f"v_mad_u32_u24 v{VW}, v{T1}, s{S_T1}, v{T3}\nv_mad_u32_u24 v{VW+2}, v{T1}, s{S_T1}, v{VW+2}")
        a(f"v_add_u32 v{VW}, s{S_T0}, v{VW}\nv_add_u32 v{VW+2}, s{S_T3}, v{VW+2}\nv_add_u32 v{VW+1}, s{S_T2}, v{VW}\nv_add_u32 v{VW+3}, s{S_T2}, v{VW+2}")
        a(f"s_mov_b32 s{R_W1+2}, {512*3584}\ns_mov_b32 s{R_W1+3}, s{R_Q+3}\ns_mul_i32 s{S_U4}, s{S_KC0}, {64*3584}")
    def chunk_ops(i):
        slot = i % 3
        def mk(kind, n):
            def f():
                if (i, kind, n) == (0, "w", 0): w_setup()
                if n == 0 and (i, kind) != (0, "q"):
                    if kind == "q":
                        a(f"s_xor_b32 s{S_T0}, s{S_KC0}, {i}" if cfg.xorord else f"s_add_u32 s{S_T0}, s{S_KC0}, {i}\ns_and_b32 s{S_T0}, s{S_T0}, 7")
                        a(f"s_lshl_b32 s{S_U3}, s{S_T0}, 7\ns_mul_i32 s{S_U4}, s{S_T0}, {64*3584}")
                    a(f"s_add_u32 m0, s{S_U1}, {(L_Q if kind=='q' else L_W) + slot*16384}\ns_nop 0")
                off = f" offset:{1024*n}" if n else ""
                if kind == "q": a.vmem(f"buffer_load_dwordx4 v{VQ+n}, s[{R_Q}:{R_Q+3}], s{S_U3} offen{off} {cfg.ntq} lds", f"c{i}")
                else: a.vmem(f"buffer_load_dwordx4 v{VW+n}, s[{R_W1}:{R_W1+3}], s{S_U4} offen{off} {cfg.ntq} lds", f"c{i}")
            return f
        return [mk("q", n) for n in range(4)] + [mk("w", n) for n in range(4)]
    def setup_rest():
        stamp(0)
        a(f"v_mov_b32 v{T1}, v{T2}")
        srd(a, R_WS, P_WS, WS_SIZE); srd(a, R_DBG, P_DBG, 256); srd(a, R_W2, P_W2, 1792*1024); srd(a, R_SSM, P_SSM, 2 << 20)
        a(f"s_lshl_b32 s{S_T0}, s{S_XCD}, 6\ns_lshl1_add_u32 s{S_T0}, s{S_J}, s{S_T0}\ns_lshr_b32 s{S_T1}, s{x}, 1\ns_add_u32 s{S_U5}, s{S_T0}, s{S_T1}")
        a(f"s_mul_i32 s{S_T1}, s{S_T1}, {CH_STRIDE}\ns_and_b32 s{S_T2}, s{x}, 1")
        a(f"s_lshl_b32 s{S_T3}, s{S_T2}, 11\ns_add_u32 s{S_H1}, s{S_T1}, s{S_T3}\ns_add_u32 s{S_H1}, s{S_H1}, {L_CT+H_STRIDE+128}")
        a(f"s_mul_i32 s{S_T3}, s{S_T2}, {H_STRIDE}\ns_add_u32 s{S_T3}, s{S_T3}, s{S_T1}\ns_add_u32 s{S_T3}, s{S_T3}, {L_CT+128-512}")
        a(f"s_mul_i32 s{S_T0}, s{S_T2}, {U_STRIDE}\ns_add_u32 s{S_T0}, s{S_T0}, s{S_T1}\ns_add_u32 s{S_T0}, s{S_T0}, {L_CT+U_OFF+4096}")
        Z = JUNK
        a(f"v_mov_b32 v{T2}, s{S_T0}\nv_mov_b32 v{T3}, s{S_T3}\nv_cmp_gt_u32 vcc, 56, v0")
        for i in range(4): a(f"v_mov_b32 v{Z+i}, 0")
        a(f"v_cndmask_b32 v{T3}, v{T3}, v{T2}, vcc\nv_lshl_add_u32 v{T3}, v0, 3, v{T3}\nv_subrev_u32 v{T2}, 4, v{T2}")
        a.lds(f"ds_write_b64 v{T3}, v[{Z}:{Z+1}]")
        a.lds(f"ds_write_b32 v{T2}, v{Z}")
        a(f"v_lshlrev_b32 v{VMK}, 2, v{T1}")
        a(f"v_and_b32 v{T2}, 6, v{T0}\nv_xor_b32 v{T2}, v{T2}, v{T1}\nv_lshlrev_b32 v{T2}, 4, v{T2}\nv_lshl_add_u32 v{W2A}, v{T0}, 10, v{T2}")
        a(f"s_mul_i32 s{S_T0}, s{x}, {448*1024}\ns_lshl_b32 s{S_T1}, s{S_C2}, 7\ns_add_u32 s{S_T0}, s{S_T0}, s{S_T1}")
        a(f"v_add_u32 v{W2A}, s{S_T0}, v{W2A}\nv_add_u32 v{W2B}, {8192-1024}, v{W2A}")
        a(f"v_lshrrev_b32 v{T3}, 2, v0\nv_lshlrev_b32 v{T3}, 7, v{T3}\nv_and_b32 v{T2}, 3, v{T0}\nv_lshl_add_u32 v{T3}, v{T2}, 5, v{T3}\nv_and_b32 v{T2}, 3, v0\nv_lshl_add_u32 v{T3}, v{T2}, 3, v{T3}")
        a(f"v_add_u32 v{TR}, s{S_B}, v{T3}\nv_xor_b32 v{TR+1}, 32, v{TR}\nv_xor_b32 v{TR+2}, 64, v{TR}\nv_xor_b32 v{TR+3}, 0x60, v{TR}")
        for dt in range(4): a(f"v_add_u32 v{TRH+dt}, 65536, v{TR+dt}")
        a(f"s_mul_i32 s{S_T0}, s{S_R2}, {224*1024}\ns_mul_i32 s{S_T1}, s{x}, {56*1024}\ns_add_u32 s{S_T0}, s{S_T0}, s{S_T1}\ns_add_u32 s{S_T0}, s{S_T0}, {WS_H}")
        a(f"v_add_u32 v{HA}, s{S_T0}, v{V16}")
        a(f"s_lshr_b32 s{S_T0}, s{S_J}, 3\ns_lshl2_add_u32 s{S_T0}, s{S_XCD}, s{S_T0}\ns_lshl2_add_u32 s{S_T0}, s{S_T0}, s{x}\ns_lshl_b32 s{S_PUB}, s{S_T0}, 8")
        a(f"s_lshl_b32 s{S_T0}, s{S_U5}, 12\ns_and_b32 s{S_T1}, s{x}, 1\ns_lshl_b32 s{S_T1}, s{S_T1}, 11\ns_add_u32 s{S_U2}, s{S_T0}, s{S_T1}")
        a(f"v_xor_b32 v{T3}, 7, v{T1}\nv_lshlrev_b32 v{T3}, 4, v{T3}\nv_lshl_add_u32 v{PST}, v{T0}, 13, v{T3}")
        a(f"s_lshl2_add_u32 s{S_T2}, s{S_XCD}, s{x}\ns_lshr_b32 s{S_T1}, s{S_J}, 3\ns_lshl2_add_u32 s{S_T0}, s{S_T2}, s{S_T1}\ns_lshl_b32 s{S_US}, s{S_T0}, 8")
        a(f"s_lshl_b32 s{S_T2}, s{S_T2}, 16\ns_lshl_b32 s{S_T3}, s{S_J}, 7\ns_sub_u32 s{S_T2}, s{S_T2}, s{S_T3}\ns_add_u32 s{S_UA}, s{S_T2}, {WS_UR + 2*1984}\ns_add_u32 s{S_UA+1}, s{S_UA}, 4096")
        srd(a, R_K, P_K, 2 << 20); srd(a, R_V, P_V, 2 << 20)
        a(f"s_lshl_b32 s{S_T0}, s{x}, 1\nv_xor_b32 v{T3}, s{S_T0}, v{T1}\nv_lshlrev_b32 v{T3}, 4, v{T3}\nv_lshl_add_u32 v{VKA}, v{T0}, 10, v{T3}")
        a(f"v_xor_b32 v{VKB}, 16, v{VKA}\nv_add_u32 v{VKB}, {8192-1024}, v{VKB}")
        a(f"s_lshl2_add_u32 s{S_KV}, s{S_J}, s{x}\ns_lshl_b32 s{S_KV}, s{S_KV}, 7\ns_add_u32 s{S_KV}, s{S_KV}, s{S_XCD}\ns_lshl_b32 s{S_KV}, s{S_KV}, 7")
        a(f"v_lshrrev_b32 v{PV}, 5, v0\nv_add_u32 v{PV}, s{S_T0}, v{PV}")
        a(f"v_bfe_u32 v{T2}, v0, 3, 2\nv_lshlrev_b32 v{T2}, 2, v{T2}\nv_lshl_add_u32 v{T2}, v{T1}, 10, v{T2}")
        a(f"v_add_u32 v{T3}, 7, v{T1}\nv_and_b32 v{T3}, 7, v{T3}\nv_xor_b32 v{T3}, v{PV}, v{T3}\nv_lshl_add_u32 v{PH}, v{T3}, 4, v{T2}\nv_add_u32 v{PH}, {L_KST}, v{PH}")
        a(f"v_xor_b32 v{T3}, v{PV}, v{T1}\nv_lshl_add_u32 v{PK}, v{T3}, 4, v{T2}")
        a(f"v_add_u32 v{PV}, {L_VST}, v{PK}\nv_add_u32 v{PK}, {L_KST+1024}, v{PK}")
        a(f"s_lshl_b32 s{S_T0}, s{x}, 7\ns_add_u32 s{S_T0}, s{S_T0}, {L_TAP}\nv_lshl_add_u32 v{VTA}, v{T0}, 4, s{S_T0}\nv_add_u32 v{VGR}, {L_GR}, v{V16}\nv_mov_b32 v{VHI}, 0xffff0000")
        a(f"s_lshl_b32 s{S_SB}, s{S_R}, 10\ns_add_u32 s{S_SB}, s{S_SB}, {WS_STATS}")
        a.wait(lg="all")
    S_US, S_UA, S_SB, S_KV = 98, 0, 99, S_U0
    VGR, VHI, GD = 116, 117, 120
    def kv_loads():
        a(f"s_add_u32 m0, s{S_B}, {L_KST+1024}\ns_nop 0")
        a.vmem(f"buffer_load_dwordx4 v{VKA}, s[{R_K}:{R_K+3}], s{S_KV} offen {cfg.kvf} lds", "kv")
        a.vmem(f"buffer_load_dwordx4 v{VKB}, s[{R_K}:{R_K+3}], s{S_KV} offen offset:1024 {cfg.kvf} lds", "kv")
        L = a.newlabel("Lhalo"); D = a.newlabel("Lsmd")
        a(f"s_cmp_eq_u32 s{x}, 3\ns_cbranch_scc1 {L}")
        a(f"s_lshl_b32 s{S_T0}, s{S_XCD}, 9\ns_lshl_b32 s{S_T1}, s{S_C}, 8\ns_cmp_eq_u32 s{x}, 0\ns_cselect_b64 s[{S_T2}:{S_T3}], s[{P_SH}:{P_SH+1}], s[{P_B1}:{P_B1+1}]\ns_cselect_b32 s{S_T0}, s{S_T0}, s{S_T1}")
        a(f"s_lshl_b32 s{S_T1}, s{S_C2}, 7\ns_cmp_eq_u32 s{x}, 2\ns_cselect_b64 s[{S_T2}:{S_T3}], s[{P_B2}:{P_B2+1}], s[{S_T2}:{S_T3}]\ns_cselect_b32 s{S_T0}, s{S_T1}, s{S_T0}")
        a(f"v_add_u32 v{VHALO}, s{S_T0}, v{V16}\ns_lshr_b32 s{S_T0}, 32, s{x}\ns_lshl_b32 s{S_T1}, s{S_T0}, 5\ns_sub_u32 m0, {L_TAP+1024}, s{S_T1}\ns_bfm_b64 exec, s{S_T0}, 0")
        a(f"global_load_lds_dwordx4 v{VHALO}, s[{S_T2}:{S_T3}]\ns_branch {D}")
        a.label(L)
        a(f"s_sub_u32 s{S_T0}, s{S_KV}, {56*1024}\ns_cselect_b32 s{S_T0}, 0, s{S_T0}\ns_cselect_b32 s{S_T1}, 0x80000010, 16")
        a(f"v_xor_b32 v{VHALO}, s{S_T1}, v{VKA}\ns_mov_b32 m0, {L_KST}\ns_lshl_b64 exec, -1, 40")
        a(f"buffer_load_dwordx4 v{VHALO}, s[{R_K}:{R_K+3}], s{S_T0} offen {cfg.kvf} lds")
        a.label(D)
        a.vm.append("kv")
        a(f"s_add_u32 m0, s{S_B}, {L_VST}\ns_mov_b64 exec, -1")
        a.vmem(f"buffer_load_dwordx4 v{VKA}, s[{R_V}:{R_V+3}], s{S_KV} offen {cfg.kvf} lds", "kv")
        a.vmem(f"buffer_load_dwordx4 v{VKB}, s[{R_V}:{R_V+3}], s{S_KV} offen offset:1024 {cfg.kvf} lds", "kv")
    KR, VR, KF, TF, VF, OUT, PA = 32, 44, 56, 80, 88, 92, 100
    prep = []; P = prep.append
    P(("lds", f"ds_read_b128 v[{TAPS}:{TAPS+3}], v{VTA}"))
    P(("lds", f"ds_read_b32 v{KR+1}, v{PH} offset:{5*128}"))
    P(("lds", f"ds_read2_b32 v[{KR+2}:{KR+3}], v{PH} offset0:{6*32} offset1:{7*32}"))
    for i in range(4): P(("lds", f"ds_read2_b32 v[{KR+4+2*i}:{KR+5+2*i}], v{PK} offset0:{64*i} offset1:{64*i+32}"))
    for i in range(4): P(("lds", f"ds_read2_b32 v[{VR+2*i}:{VR+1+2*i}], v{PV} offset0:{64*i} offset1:{64*i+32}"))
    nrd = len(prep)
    P(("waitlg",))
    for m in range(4):
        P(("v", f"v_lshlrev_b32 v{TF+2*m}, 16, v{TAPS+m}")); P(("v", f"v_and_b32 v{TF+2*m+1}, v{VHI}, v{TAPS+m}"))
    for e in range(2):
        for i in range(1, 12): P(("v", f"v_lshlrev_b32 v{KF+i}, 16, v{KR+i}" if e == 0 else f"v_and_b32 v{KF+i}, v{VHI}, v{KR+i}"))
        for t in range(8): P(("v", f"v_mul_f32 v{PA+t}, v{KF+1+t}, v{TF+4*e+3}"))
        for tau in (2, 1, 0):
            for t in range(8): P(("v", f"v_fmac_f32 v{PA+t}, v{KF+4+t-tau}, v{TF+4*e+tau}"))
        for t in range(8):
            P(("v", f"v_lshlrev_b32 v{VF+(t&1)}, 16, v{VR+t}" if e == 0 else f"v_and_b32 v{VF+(t&1)}, v{VHI}, v{VR+t}"))
            P(("v", f"v_mul_f32 v{PA+t}, v{PA+t}, v{VF+(t&1)}"))
        for m in range(4): P(("v", f"v_cvt_pk_bf16_f32 v{OUT+4*e+m}, v{PA+7-2*m}, v{PA+6-2*m}"))
        P(("st", e))
    def emit(op):
        if op[0] == "lds": a.lds(op[1], "pr")
        elif op[0] == "v": a(op[1])
        elif op[0] == "waitlg": a.wait(lg="pr")
        else: a.vmem(f"buffer_store_dwordx4 v[{OUT+4*op[1]}:{OUT+4*op[1]+3}], v{PST}, s[{R_WS}:{R_WS+3}], s{S_UA+op[1]} offen sc1", "ur")
    def g_read(): a("s_mov_b64 exec, 15"); a.lds(f"ds_read_b128 v[{GD}:{GD+3}], v{VGR}", "ud"); a("s_mov_b64 exec, -1")
    def publish():
        L = a.newlabel("Lpb")
        a.wait(lg="ud")
        a(f"s_cmp_lg_u32 s{x}, 0\ns_cbranch_scc1 {L}\ns_lshl_b32 s{S_T0}, s{S_C16}, 6\ns_add_u32 s{S_T0}, s{S_T0}, s{S_SB}\ns_mov_b64 exec, 15")
        a(f"buffer_store_dwordx4 v[{GD}:{GD+3}], v{V16}, s[{R_WS}:{R_WS+3}], s{S_T0} offen sc1\ns_mov_b64 exec, -1")
        a.label(L)
    def stats_dma():
        L = a.newlabel("Lsd")
        a(f"s_cmp_lg_u32 s{x}, 1\ns_cbranch_scc1 {L}\ns_mov_b32 m0, {L_ST}\ns_nop 0")
        a(f"buffer_load_dwordx4 v{V16}, s[{R_WS}:{R_WS+3}], s{S_SB} offen sc1 lds")
        a.label(L)
    S_H1 = 17; S_PW, S_PS = R_K, R_K + 2; S_HO = R_V
    a(f"s_cmp_eq_u32 s{S_CL}, 7\ns_cbranch_scc1 L_Xs")
    if cfg.lst == "head": a("s_memtime s[70:71]")
    a("s_waitcnt lgkmcnt(0)")
    if cfg.lst == "head": a("s_memtime s[72:73]")
    a.cap = cfg.cap0
    c1 = chunk_ops(1)
    for nf, f in enumerate(chunk_ops(0) + c1[:cfg.n1]):
        f()
        if cfg.lst == "head" and nf in (0, 7): a(f"s_memtime s[{74 + 2*(nf > 0)}:{75 + 2*(nf > 0)}]")
    if cfg.lst == "head":
        a(f"s_waitcnt vmcnt({7+cfg.n1})\ns_memtime s[78:79]\ns_waitcnt vmcnt({cfg.n1})\ns_memtime s[80:81]\ns_waitcnt lgkmcnt(0)")
        for j in range(7): a(f"v_writelane_b32 v255, s{68+2*j}, {24+j}")
    a.label("L_Xs")
    big_loads(a); g2_index(k)
    a("s_waitcnt lgkmcnt(0)")
    setup_rest()
    def ssm_loads():
        a(f"s_mov_b32 m0, s{S_H1}\ns_lshl_b32 s{S_T0}, s{S_U5}, 12")
        a.vmem(f"buffer_load_dwordx4 v{V16}, s[{R_SSM}:{R_SSM+3}], s{S_U2} offen {cfg.ssmf} lds", "h")
        a.vmem(f"buffer_load_dwordx4 v{V16}, s[{R_SSM}:{R_SSM+3}], s{S_U2} offen offset:1024 {cfg.ssmf} lds", "h")
        a(f"s_add_u32 s{S_T0}, s{S_T0}, 2044\ns_load_dword s{S_U0}, s[{P_SSM}:{P_SSM+1}], s{S_T0}")
    SG = [4*m + n for m in range(7) for n in (0, 1)] + [4*m + n for m in range(7) for n in (2, 3)]
    def w2_dma(i):
        ii = i % 14
        a(f"s_add_u32 m0, s{S_B}, {ii*8192}\ns_mov_b32 s{S_T0}, {SG[i]*16384}")
        a.vmem(f"buffer_load_dwordx4 v{W2A}, s[{R_W2}:{R_W2+3}], s{S_T0} offen {cfg.ntw2} lds", f"w{i}")
        a.vmem(f"buffer_load_dwordx4 v{W2B}, s[{R_W2}:{R_W2+3}], s{S_T0} offen offset:1024 {cfg.ntw2} lds", f"w{i}")
    def ustage(st=True):
        L = a.newlabel("Lurok")
        a(f"s_cmp_eq_u32 s{S_PV}, 8\ns_cbranch_scc1 {L}")
        keep = list(a.lg); k.spoll(S_PUB, 8); a.lg = keep
        a.label(L)
        if st: stamp(11)
        L = a.newlabel("Lhs")
        a(f"s_cmp_lg_u32 s{S_CL}, 7\ns_cbranch_scc1 {L}"); stats_dma(); a.label(L)
        a(f"s_xor_b32 s{S_T1}, s{x}, 3\ns_lshl_b32 s{S_T1}, s{S_T1}, 10\ns_and_b32 s{S_T0}, s{S_U5}, 0xfffffffe\ns_lshl_b32 s{S_T0}, s{S_T0}, 12\ns_add_u32 s{S_T0}, s{S_T0}, s{S_T1}\ns_add_u32 s{S_T0}, s{S_T0}, {WS_UR}")
        for ch in range(2):
            for cp in range(1 if cfg.ucopy else 2):
                a(f"s_add_u32 m0, s{S_T1}, {L_CT + ch*CH_STRIDE + U_OFF + cp*(U_STRIDE-4)}")
                a(f"s_add_u32 s{S_T0}, s{S_T0}, 4096" if (ch == 1 and cp == 0) else "s_nop 0")
                a.vmem(f"buffer_load_dwordx4 v{V16}, s[{R_WS}:{R_WS+3}], s{S_T0} offen sc1 lds", "u")
        if cfg.ucopy:
            a(f"s_add_u32 s{S_T1}, s{S_T1}, {L_CT + U_OFF}\nv_add_u32 v{UA}, s{S_T1}, v{V16}\nv_add_u32 v{UA+1}, {U_STRIDE-4}, v{UA}\nv_add_u32 v{UA+2}, {CH_STRIDE}, v{UA+1}")
    UA, UD = 60, 64
    def ucopy_reads():
        a.wait(vm="u")
        for ch in range(2): a.lds(f"ds_read_b128 v[{UD+4*ch}:{UD+4*ch+3}], v{UA} offset:{ch*CH_STRIDE}", "uc")
    def ucopy_writes():
        a.wait(lg="uc")
        for ch in range(2):
            for q in range(2): a.lds(f"ds_write2_b32 v{UA+1+ch}, v{UD+4*ch+2*q}, v{UD+4*ch+2*q+1} offset0:{2*q} offset1:{2*q+1}")
    MK = R_X0
    early = [12, 13, 4, 5, 10, 11]; late = [0, 1, 6, 7, 2, 3, 8, 9]
    def trs(ii, tag):
        return [(f"ds_read_b64_tr_b16 v[{WB+16*(ii>>1)+4*dt+2*(ii&1)}:{WB+16*(ii>>1)+4*dt+2*(ii&1)+1}], v{(TR, TRH)[ii>>3]+dt} offset:{(ii&7)*8192}", tag) for dt in range(4)]
    HD = 40
    def shift_reads():
        a(f"v_add_u32 v{T0}, s{S_H1}, v{V16}\nv_subrev_u32 v{T1}, 4, v{T0}\nv_subrev_u32 v{T2}, {H_STRIDE}, v{T0}")
        a(f"s_bitcmp1_b32 s{x}, 0\ns_cselect_b32 s{S_U0}, s{S_U0}, 0")
        a.wait(vm="h")
        for n in range(2):
            a.lds(f"ds_read_b128 v[{HD+8*n}:{HD+8*n+3}], v{T0} offset:{1024*n}", "sh")
            a.lds(f"ds_read_b32 v{HD+8*n+4}, v{T1} offset:{1024*n}", "sh")
    def shift_writes():
        a.wait(lg="sh")
        a(f"v_writelane_b32 v{HD+4}, s{S_U0}, 0")
        for n in range(2):
            b = HD + 8*n
            a(f"v_alignbit_b32 v{b+3}, v{b+3}, v{b+2}, 16\nv_alignbit_b32 v{b+2}, v{b+2}, v{b+1}, 16\nv_alignbit_b32 v{b+1}, v{b+1}, v{b}, 16\nv_alignbit_b32 v{b}, v{b}, v{b+4}, 16")
            a.lds(f"ds_write_b128 v{T2}, v[{b}:{b+3}] offset:{1024*n}")
    def g2_setup(): a(f"s_lshl2_add_u32 s{S_T0}, s{S_R2}, s{x}\ns_add_u32 s{S_T0}, s{S_T0}, {CNT_H}\ns_lshl_b32 s{S_US}, s{S_T0}, 8")
    def mark_load():
        L = a.newlabel("Lmk")
        a(f"s_cmp_lg_u32 s{x}, 0\ns_cbranch_scc1 {L}\ns_load_dwordx8 s[{MK}:{MK+7}], s[{P_DBG}:{P_DBG+1}], 0")
        a.label(L)
    def mark_check():
        L = a.newlabel("Lmk")
        a(f"s_cmp_lg_u32 s{x}, 0\ns_cbranch_scc1 {L}\ns_waitcnt lgkmcnt(0)")
        a(f"s_and_b64 s[{MK}:{MK+1}], s[{MK}:{MK+1}], s[{MK+2}:{MK+3}]\ns_and_b64 s[{MK+4}:{MK+5}], s[{MK+4}:{MK+5}], s[{MK+6}:{MK+7}]\ns_and_b64 s[{MK}:{MK+1}], s[{MK}:{MK+1}], s[{MK+4}:{MK+5}]\ns_and_b32 s{MK}, s{MK}, s{MK+1}")
        a(f"s_cbranch_scc1 {L}")
        k.vpoll(VMK, VMD, R_DBG, 1)
        a.label(L)
    a(f"s_cmp_eq_u32 s{S_CL}, 7\ns_cbranch_scc1 L_Xh")
    hn0 = len(a.lines); a.label("L_Xh")
    keep = list(a.vm); a.vm = []; a.cap = None
    def touches(what):
        n = 0
        for c in what:
            if c == "w":
                a(f"s_and_b32 s{S_T0}, s2, 31\ns_lshl2_add_u32 s{S_T0}, s{S_T0}, s{x}\ns_mul_i32 s{S_T0}, s{S_T0}, {112*128}\ns_add_u32 s{S_T1}, s{S_T0}, {56*128}")
                a(f"v_lshlrev_b32 v{T2}, 7, v0\ns_bfm_b64 exec, 56, 0")
                a(f"buffer_load_dword v{JUNK}, v{T2}, s[{R_W2}:{R_W2+3}], s{S_T0} offen\nbuffer_load_dword v{JUNK}, v{T2}, s[{R_W2}:{R_W2+3}], s{S_T1} offen\ns_mov_b64 exec, -1"); n += 2
            elif c == "s":
                a(f"s_and_b32 s{S_T0}, s{S_J}, 3\ns_lshl2_add_u32 s{S_T0}, s{S_XCD}, s{S_T0}\ns_lshl2_add_u32 s{S_T0}, s{S_T0}, s{x}\ns_lshl_b32 s{S_T0}, s{S_T0}, 14\ns_add_u32 s{S_T1}, s{S_T0}, 8192\nv_lshlrev_b32 v{T2}, 7, v0")
                a(f"buffer_load_dword v{JUNK}, v{T2}, s[{R_SSM}:{R_SSM+3}], s{S_T0} offen nt\nbuffer_load_dword v{JUNK}, v{T2}, s[{R_SSM}:{R_SSM+3}], s{S_T1} offen nt"); n += 2
            elif c == "k":
                a(f"s_and_b32 s{S_T0}, s{S_J}, 3\ns_lshl2_add_u32 s{S_T0}, s{S_T0}, s{x}\ns_mul_i32 s{S_T0}, s{S_T0}, {112*1024}\ns_lshl_b32 s{S_T1}, s{S_XCD}, 7\ns_add_u32 s{S_T0}, s{S_T0}, s{S_T1}\ns_add_u32 s{S_T1}, s{S_T0}, {56*1024}")
                a(f"v_lshlrev_b32 v{T2}, 10, v0\ns_bfm_b64 exec, 56, 0")
                for R in (R_K, R_V): a(f"buffer_load_dword v{JUNK}, v{T2}, s[{R}:{R+3}], s{S_T0} offen nt\nbuffer_load_dword v{JUNK}, v{T2}, s[{R}:{R+3}], s{S_T1} offen nt")
                a("s_mov_b64 exec, -1"); n += 4
        return n
    hpre, h0, h1, h2 = cfg.hwhat
    touches(hpre)
    kv_loads()
    a(f"s_waitcnt vmcnt({touches(h0)})"); a.vm = []
    a("s_barrier")
    g_read()
    for op in prep: emit(op)
    mark_load(); mark_check()
    a("s_barrier")
    publish()
    a(f"s_waitcnt vmcnt({touches(h1)})"); a.vm = []
    k.signal(S_US)
    touches(h2)
    if cfg.hfull:
        a.cap = 12
        def hu():
            k.speek(S_PUB); a("s_waitcnt lgkmcnt(0)"); a.lg = []
            shift_reads(); shift_writes(); ustage(False)
        ssm_loads()
        for q in range(14): w2_dma(q)
        for q in range(15):
            if q < 14:
                a.wait(vm=f"w{q}")
                for ins, tag in trs(q, f"f{q}"): a.lds(ins, tag)
            if q: a.wait(lg=f"f{q-1}"); w2_dma(13 + q)
            if q == cfg.hfull: hu()
            if q == min(cfg.hfull + 3, 14): ucopy_reads(); ucopy_writes(); k.lds_arrive(0, T0, T1)
        g2_setup()
        k.speek(S_US)
        a("s_branch L_Xk")
        a.vm = []; a.lg = []; a.cap = None; hn1 = len(a.lines)
    if cfg.e0seg <= cfg.ssmseg:
        for q in early[:2]: w2_dma(q)
        ssm_loads()
        for q in early[2:cfg.nearly]: w2_dma(q)
    else:
        ssm_loads()
        for q in early[:cfg.nearly]: w2_dma(q)
    if cfg.upos < cfg.upk: k.speek(S_PUB)
    hv = list(a.vm)
    a("s_branch L_Xj")
    if cfg.hfull: del a.lines[hn1:]
    k.ool.append("\n".join(a.lines[hn0:])); del a.lines[hn0:]; a.lg = []
    a.vm = keep; a.cap = cfg.cap0
    if cfg.kvpos == 1:
        assert cfg.n1 in (0, 4); kv_loads()
    for f in c1[cfg.n1:8-cfg.hold0]: f()
    stamp(1)
    if cfg.g1prio: a(f"s_setprio {cfg.g1prio}")
    a.wait(vm="c0"); stamp(16); a("s_barrier")
    a.cap = cfg.cap
    sig = [False]; stored = [False]
    def trysig():
        if stored[0] and not sig[0] and "ur" not in a.vm: k.signal(S_US); sig[0] = True
    body = prep[nrd:]; per_seg = -(-len(body) // cfg.nps)
    p0 = cfg.kvpos + cfg.pdelay; carry = c1[8-cfg.hold0:]
    for i in range(7):
        if cfg.segstamps or i == 0: stamp(2 + i)
        if i == 0: g_read()
        if i == cfg.mseg + 1: publish()
        dm = carry
        if i == cfg.stseg:
            if i == 6: assert not carry and a.vm[-1] is not None; lastbefore = len(a.vm); a.vm[-1] = "c7"
            dm.append(stats_dma)
        if i + 2 == cfg.kvpos: dm.append(kv_loads)
        if i + 2 <= 7: dm += chunk_ops(i + 2)
        if i == cfg.e0seg: dm += [(lambda q=q: w2_dma(q)) for q in early[:2]]
        if i == cfg.ssmseg: dm.append(ssm_loads)
        if i == 6: dm += [(lambda q=q: w2_dma(q)) for q in early[2 if cfg.e0seg < 6 else 0:cfg.nearly]]
        hold = cfg.hold[i] if i < len(cfg.hold) else 0
        dm, carry = dm[:len(dm)-hold], dm[len(dm)-hold:]
        fl = []
        if i == cfg.kvpos: fl += prep[:nrd]
        if p0 <= i < p0 + cfg.nps: fl += body[(i-p0)*per_seg:(i-p0+1)*per_seg]
        per = -(-len(fl) // len(dm))
        for nf, f in enumerate(dm):
            if (i, nf) == cfg.mload: a.wait(lg="all"); mark_load()
            if (i, nf) == cfg.usig: a.wait(vm="ur"); trysig()
            f(); trysig()
            for op in fl[:per]: emit(op)
            fl = fl[per:]
        if i == p0 + cfg.nps - 1: stored[0] = True
        if i == cfg.kvpos: a.wait(lg="pr")
        if i == cfg.mseg: mark_check()
        if i == 6 and cfg.upos < cfg.upk: k.speek(S_PUB)
        a.wait(vm=f"c{i+1}"); trysig()
        a("s_barrier")
    if cfg.g1prio: a("s_setprio 0")
    if not sig[0]: a.wait(vm="ur"); trysig()
    assert cfg.stseg <= 6 and cfg.stseg > cfg.mseg and p0 + cfg.nps - 1 > cfg.mseg and cfg.e0seg > cfg.kvpos and cfg.ssmseg >= cfg.kvpos - 1
    assert a.vm == hv[len(hv)-len(a.vm):], (a.vm, hv)
    a.vm = hv
    a.label("L_Xj")
    if cfg.segstamps: stamp(9)
    a.cap = cfg.cap2
    pos = [0]
    def upoint():
        if pos[0] == cfg.upos - cfg.upk: k.speek(S_PUB)
        if pos[0] == cfg.upos: a("s_waitcnt lgkmcnt(0)"); a.lg = []; ustage()
        pos[0] += 1
    for q in early[cfg.nearly:] + late[:4]: upoint(); w2_dma(q)
    k.lds_wait(4, T0, T1)
    if cfg.xprio: a(f"s_setprio {cfg.xprio}")
    stamp(10)
    order = early + late
    seq = late[4:] + [14 + q for q in order]
    filled = 0
    def fill(force=None):
        nonlocal filled
        n = 0
        while filled < 14 and ((n < 2 and f"w{order[filled]}" not in a.vm and order[filled] in issued) or (force is not None and filled <= force)):
            a.wait(vm=f"w{order[filled]}")
            for ins, tag in trs(order[filled], f"f{order[filled]}"): a.lds(ins, tag)
            filled += 1; n += 1
    issued = set(early + late[:4])
    g2_setup()
    arr = [False]; ucr = [False]
    for n, q in enumerate(seq):
        if n == len(seq) - cfg.apeek: k.speek(S_US)
        upoint()
        if q >= 14:
            fill(force=order.index(q - 14)); a.wait(lg=f"f{q-14}")
        if not (cfg.x_nop2 and q >= 14): w2_dma(q)
        issued.add(q)
        if n == 0: shift_reads()
        elif n == 1: shift_writes()
        else: fill()
        if n >= (0 if cfg.ucopy else 1) and not arr[0] and pos[0] > cfg.upos + cfg.uwait:
            if cfg.ucopy and not ucr[0]: ucopy_reads(); ucr[0] = True
            else:
                if cfg.ucopy: ucopy_writes()
                a.wait(vm="u"); k.lds_arrive(0, T0, T1); arr[0] = True
    assert arr[0]
    a.label("L_Xk")
    stamp(12)
    if cfg.xprio and not cfg.g2p: a("s_setprio 0")
    k.scheck(S_US, 0xff, 7)
    stamp(13)
    NP = cfg.np; RING = 15
    units = [(p, tau) for p in range(7 - NP) for tau in range(4)] + [(p, tau) for tau in range(4) for p in range(7 - NP, 7)]
    hs = [(2*p + e, tau) for p, tau in units for e in range(2)]
    nb = min(n for n, (i, tau) in enumerate(hs) if i >= 7)
    cur = [None, None]
    def hload(n):
        i, tau = hs[n]; d = AR + 4*(n % RING); blk = 2*(i % 7) + i // 7
        if n == nb - cfg.bpeek: k.speek(S_US)
        if n == nb: k.scheck(S_US, None, 0x707)
        if cur[i & 1] != blk: a(f"s_mov_b32 s{R_V+(i&1)}, {4096*blk}"); cur[i & 1] = blk
        off = f" offset:{1024*tau}" if tau else ""
        a.vmem(f"buffer_load_dwordx4 v[{d}:{d+3}], v{HA}, s[{R_WS}:{R_WS+3}], s{R_V+(i&1)} offen{off} sc1", f"a{n}")
    def pwrites(hf):
        q = [("m0", 7*8192*hf)]
        for tl in range(2):
            for dt in range(4):
                base = 1024*tl if dt == 0 else (1 + 3*tl + dt - 1)*8192 + (0, 16, 128, 144)[dt]
                q += [f"ds_write_addtid_b32 v{ACC2+16*(2*hf+tl)+4*dt+r} offset:{base+256*r}" for r in range(4)]
        return q
    def pw(q):
        o = q.pop(0)
        if isinstance(o, tuple):
            a(f"s_add_u32 m0, s{S_B}, {o[1]}\ns_nop 0"); o = q.pop(0)
        a.lds(o)
    a.cap = None
    LA = cfg.lah
    assert LA <= RING - 2
    for n in range(LA): hload(n)
    pend = []; wq = pwrites(0) + pwrites(1); nw = [0]; hold = [0]
    assert NP == 3
    for u, (p, tau) in enumerate(units):
        for dt in range(4):
            for e in range(2):
                n = 2*u + e; i = 2*p + e; wb = WB + 16*(i % 7) + 4*dt
                assert not any(t == f"g{i}" for _, t in pend)
                a.wait(vm=f"a{n}", lg=f"g{i}")
                d = ACC2 + 16*tau + 4*dt
                a(f"v_mfma_f32_16x16x32_bf16 v[{d}:{d+3}], v[{AR+4*(n%RING)}:{AR+4*(n%RING)+3}], v[{wb}:{wb+3}], {'0' if i == 0 else v(d,4)}")
                if pend: a.lds(*pend.pop(0))
                elif u >= 28 - 4*NP and nw[0] < 16*tau and (p, dt) > (7 - NP, 0):
                    pw(wq); nw[0] += 1
                    if nw[0] == 32: k.lds_arrive(6, T0, T1)
                if cfg.g2p and (u, dt, e) == (cfg.g2p, 0, 0): a("s_setprio 0")
                if cfg.tprio and (u, dt, e) == (28 - 4*NP, 0, 0): a(f"s_setprio {cfg.tprio}")
                if e == 1 and dt in cfg.ldt and 2*u + cfg.ldt.index(dt) + LA < 56: hload(2*u + cfg.ldt.index(dt) + LA)
        if tau == 3:
            for i in (2*p, 2*p+1):
                if i < 7: pend += trs(2*i, f"g{i+7}") + trs(2*i+1, f"g{i+7}")
    stamp(14)
    assert nw[0] == 48
    a("s_nop 1")
    while wq: pw(wq)
    a("s_mov_b64 exec, 1"); a.lds(f"ds_add_u32 v{T0}, v{T1} offset:28"); a("s_mov_b64 exec, -1")
    stamp(15)
    k.flush_stamps()
    a("s_endpgm")
    for o in k.ool: a(o)

def gen_m(k):
    a, cfg, stamp = k.a, k.cfg, k.stamp
    w = S_WV
    S_TH, S_FH = 98, 99
    V16, QA, WA, VST = 1, 2, 4, 8
    T0, T1, T2, T3 = 10, 11, 12, 13
    VCW, VCR = 14, 15
    ACC, CS, QF, WF, ONES, B1F, STT, CSP, WA2, GR = 16, 80, 96, 128, 160, 164, 180, 188, 204, 248
    CA, CB, AD, EXW, EXR, YST, VXO, VSA, VB2, YS0, YS1, YA0, YA1, PA0, PA1, DV, JUNK = 208, 209, 210, 214, 215, 216, 217, 218, 219, 220, 221, 222, 223, 224, 225, 226, 227
    XR, XF, B1R = 96, 104, CSP
    LAM = -(2*1.4426950408889634*0.7978845608028654*0.044715) ** (1/3)
    MU = 2*1.4426950408889634*0.7978845608028654 / -LAM
    VKA, VKB, VHALO, VTA, PK, PH, PV, PST, TAPS = 236, 237, 238, 239, 240, 241, 242, 243, 244
    a(f"s_load_dwordx2 s[{R_WS}:{R_WS+1}], s[0:1], 104")
    if cfg.code_pf:
        a(f"s_getpc_b64 s[{S_T0}:{S_T1}]")
        a.label("L_pc")
        a(f"s_lshr_b32 s{S_T2}, s2, 3\ns_lshl2_add_u32 s{S_T2}, s{S_T2}, s{S_WAVE}\ns_lshl_b32 s{S_T2}, s{S_T2}, 8\nv_lshl_add_u32 v2, v0, 7, s{S_T2}\nv_min_u32 v2, L_code_end-L_pc-4, v2")
        a(f"v_mov_b32 v3, s{S_T1}\nv_add_co_u32 v2, vcc, s{S_T0}, v2\ns_mov_b64 exec, 3\ns_nop 0\nv_addc_co_u32 v3, vcc, 0, v3, vcc")
        a(f"global_load_dword v254, v[2:3], off\ns_mov_b64 exec, -1")
    if cfg.split0: indices(k)
    a(f"s_lshl_b32 s{S_U0}, s{S_R}, 7\ns_lshl3_add_u32 s{S_U0}, s{S_C16}, s{S_U0}\ns_lshl1_add_u32 s{S_U0}, s{w}, s{S_U0}")
    a(f"s_lshl_b32 s{S_U1}, s{S_U0}, 10\ns_or_b32 s{S_U2}, s{S_J}, s{w}")
    a(f"s_mov_b32 s{R_WS+2}, {WS_SIZE}\ns_mov_b32 s{R_WS+3}, s{R_Q+3}")
    for i in range(4): a(f"v_mov_b32 v{GR+i}, 0")
    a("s_waitcnt lgkmcnt(0)")
    LN = a.newlabel("Lnolead")
    a(f"s_cmp_lg_u32 s{S_U2}, 0\ns_cbranch_scc1 {LN}")
    a(f"v_min_u32 v{T3}, 47, v0\nv_lshlrev_b32 v{T3}, 8, v{T3}\ns_mul_i32 s{S_T0}, s2, {48*256}\ns_lshl_b32 s{S_T1}, s2, 11\ns_add_u32 s{S_T1}, s{S_T1}, {WS_STATS}")
    a(f"buffer_store_dwordx4 v[{GR}:{GR+3}], v{V16}, s[{R_WS}:{R_WS+3}], s{S_T1} offen sc1")
    a(f"buffer_store_dwordx4 v[{GR}:{GR+3}], v{V16}, s[{R_WS}:{R_WS+3}], s{S_T1} offen offset:1024 sc1")
    a(f"buffer_store_dword v{GR}, v{T3}, s[{R_WS}:{R_WS+3}], s{S_T0} offen sc1")
    a.label(LN)
    a.vmem(f"buffer_load_dwordx4 v[{XR}:{XR+3}], v{V16}, s[{R_Q}:{R_Q+3}], s{S_U1} offen {cfg.ntq}", "x")
    a.vmem(f"buffer_load_dwordx4 v[{XR+4}:{XR+7}], v{V16}, s[{R_Q}:{R_Q+3}], s{S_U1} offen offset:1024 {cfg.ntq}", "x")
    a(f"s_and_b32 s{S_TH}, s{w}, 1\ns_lshr_b32 s{S_FH}, s{w}, 1")
    big_loads(a)
    a(f"v_and_b32 v{T3}, 16, v{V16}\nv_add_u32 v{T3}, {L_SYNC}, v{T3}\nds_write_b128 v{T3}, v[{GR}:{GR+3}]")
    a(f"v_and_b32 v{T2}, 15, v0\nv_lshrrev_b32 v{T3}, 1, v{T2}\nv_xor_b32 v{T3}, v{T3}, v{T1}\nv_lshlrev_b32 v{T3}, 4, v{T3}\nv_lshl_add_u32 v{T3}, v{T2}, 7, v{T3}")
    a(f"s_lshl_b32 s{S_T0}, s{S_TH}, 6\nv_xor_b32 v{T3}, s{S_T0}, v{T3}")
    a(f"s_lshl_b32 s{S_T0}, s{S_TH}, 13\nv_add_u32 v{QA}, s{S_T0}, v{T3}\nv_xor_b32 v{QA+1}, 64, v{QA}\nv_lshlrev_b32 v{VST}, 3, v{T2}")
    a(f"v_bfe_u32 v{T2}, v0, 2, 3")
    a(f"v_bfe_u32 v{T3}, v0, 2, 2\nv_lshl_add_u32 v{T3}, v{T1}, 3, v{T3}\nv_lshlrev_b32 v{T3}, 8, v{T3}\nv_and_b32 v{T0}, 3, v0\nv_lshl_add_u32 v{T3}, v{T0}, 3, v{T3}")
    a(f"v_add_u32 v{T3}, {L_W}, v{T3}")
    a(f"s_lshl_b32 s{S_T1}, s{S_FH}, 2")
    for i in range(4):
        a(f"v_xor_b32 v{T0}, s{S_T1}, v{T2}\ns_add_u32 s{S_T1}, s{S_T1}, 1")
        a(f"v_lshl_add_u32 v{WA+i}, v{T0}, 5, v{T3}")
    a(f"s_lshl_b32 s{S_T0}, s{S_TH}, 13\ns_xor_b32 s{S_T1}, s{S_T0}, 8192")
    for i in range(4): a(f"v_add_u32 v{WA2+i}, s{S_T1}, v{WA+i}\nv_add_u32 v{WA+i}, s{S_T0}, v{WA+i}")
    LN = a.newlabel("Lnolead")
    a(f"s_cmp_lg_u32 s{S_U2}, 0\ns_cbranch_scc1 {LN}")
    a(f"s_waitcnt vmcnt({len(a.vm)}) lgkmcnt(0)\ns_lshl_b32 s{S_T0}, s2, 2\ns_mov_b32 s{S_ONE}, 1\ns_atomic_add s{S_ONE}, s[{P_DBG}:{P_DBG+1}], s{S_T0}")
    if cfg.amp2: a(f"s_not_b32 s{S_EX+1}, s{S_EX}\ns_atomic_umax s{S_EX+1}, s[{P_DBG}:{P_DBG+1}], 128")
    a.label(LN)
    a("s_branch L_M2")
    k.split = len(a.lines)
    a(f".p2align {12 if cfg.mpage is not None else 6}")
    if cfg.mpage: a(f".fill {cfg.mpage//4}, 4, 0xbf800000")
    a.label("L_M2")
    stamp(0)
    col_index(a); g2_index(k)
    a("s_waitcnt lgkmcnt(0)")
    a(f"s_lshl_b32 s{S_T0}, s{S_XCD}, 5\ns_add_u32 s{S_T0}, s{S_T0}, s{S_J}\ns_lshl_b32 s{S_T0}, s{S_T0}, 2\ns_load_dword s{S_PV}, s[{P_D}:{P_D+1}], s{S_T0}")
    a(f"v_bfe_u32 v{T0}, v0, 2, 2\nv_mov_b32 v{T3}, 0x3f803f80")
    for i in range(4):
        a(f"v_cmp_eq_u32 vcc, {i}, v{T0}\ns_nop 1")
        for r in range(4): a(f"v_cndmask_b32 v{CS+4*i+r}, 0, v{T3}, vcc")
    S_H0, S_H1, S_INC, S_YP, S_YC = R_X0, R_X0+1, R_X0+2, R_X0+3, 17
    KC = T2
    def late_setup():
        srd(a, R_OUT, P_OUT, 2 << 20)
        a(f"v_lshrrev_b32 v{T1}, 4, v0\nv_bfe_u32 v{T0}, v0, 2, 2")
        a(f"s_lshl_b32 s{S_T0}, s{w}, 8\ns_add_u32 s{S_T0}, s{S_T0}, {L_CS}\nv_and_b32 v{VCR}, 48, v0\nv_lshl_add_u32 v{VCW}, v{T0}, 6, v{VCR}\nv_add_u32 v{VCW}, s{S_T0}, v{VCW}")
        a(f"s_lshl_b32 s{S_T0}, s{S_FH}, 9\ns_add_u32 s{S_T0}, s{S_T0}, {L_CS}\nv_add_u32 v{VCR}, s{S_T0}, v{VCR}")
        a(f"s_lshl_b32 s{S_U3}, s{S_R}, 10\ns_lshl_b32 s{S_T0}, s{S_TH}, 9\ns_add_u32 s{S_U3}, s{S_U3}, s{S_T0}\ns_add_u32 s{S_U3}, s{S_U3}, {WS_STATS}")
        a(f"s_mul_i32 s{S_T0}, s{S_FH}, {CH_STRIDE}\ns_lshl_b32 s{S_T1}, s{S_TH}, 8\ns_add_u32 s{S_T0}, s{S_T0}, s{S_T1}")
        a(f"s_add_u32 s{S_T1}, s{S_T0}, {L_CT+U_OFF+448}\ns_add_u32 s{S_T0}, s{S_T0}, {L_CT+128-56}")
        a(f"v_and_b32 v{T0}, 1, v0\nv_bfe_u32 v{T2}, v0, 1, 3")
        a(f"v_mul_u32_u24 v{CA}, {H_STRIDE}, v{T0}\nv_lshl_add_u32 v{CA}, v{T2}, 3, v{CA}\nv_lshl_add_u32 v{CA}, v{T1}, 4, v{CA}\nv_add_u32 v{CA}, s{S_T0}, v{CA}")
        a(f"v_mul_u32_u24 v{CB}, {U_STRIDE}, v{T0}\nv_lshl_add_u32 v{CB}, v{T1}, 4, v{CB}\nv_add_u32 v{CB}, s{S_T1}, v{CB}\nv_lshlrev_b32 v{T3}, 6, v{T2}\nv_sub_u32 v{CB}, v{CB}, v{T3}")
        a(f"v_xor_b32 v{AD+1}, 1, v{T0}\nv_lshlrev_b32 v{AD+1}, 4, v{AD+1}")
        a(f"v_lshlrev_b32 v{AD+3}, 1, v{T2}\nv_lshl_add_u32 v{AD+3}, v{T1}, 2, v{AD+3}")
        a(f"s_lshl_b32 s{S_T0}, s{w}, 13\ns_add_u32 s{S_T0}, s{S_T0}, {L_CT}\nv_add_u32 v{EXW}, s{S_T0}, v{V16}")
        a(f"s_add_u32 s{S_T0}, s{S_B}, {L_CT}\nv_add_u32 v{EXR}, s{S_T0}, v{V16}")
        a(f"v_bfe_u32 v{T0}, v0, 2, 2\nv_and_b32 v{T3}, 3, v0\nv_lshlrev_b32 v{T0}, 8, v{T0}\nv_lshl_add_u32 v{T0}, v{T1}, 6, v{T0}\nv_lshl_add_u32 v{YST}, v{T3}, 4, v{T0}")
        a(f"s_lshl_b32 s{S_T0}, s{S_XCD}, 5\ns_add_u32 s{S_T0}, s{S_T0}, s{S_J}\ns_lshl_b32 s{S_T0}, s{S_T0}, 13\ns_add_u32 s{S_T0}, s{S_T0}, s{S_B}\ns_add_u32 s{S_T0}, s{S_T0}, {WS_Y}\nv_add_u32 v{YST}, s{S_T0}, v{YST}")
        a(f"s_lshl_b32 s{S_T1}, s{w}, 1\nv_and_b32 v{T0}, 15, v0\nv_xor_b32 v{T0}, s{S_T1}, v{T0}\nv_lshlrev_b32 v{T0}, 4, v{T0}\nv_lshl_add_u32 v{YS0}, v{T1}, 13, v{T0}\nv_xor_b32 v{YS1}, 16, v{YS0}")
        a(f"s_lshl_b32 s{S_T1}, s{S_C2}, 18\ns_lshl_b32 s{S_T2}, s{S_R2}, 8\ns_add_u32 s{S_T1}, s{S_T1}, s{S_T2}\ns_lshl_b32 s{S_T2}, s{w}, 16\ns_add_u32 s{S_T1}, s{S_T1}, s{S_T2}\ns_add_u32 s{S_T1}, s{S_T1}, {WS_Y}")
        a(f"s_add_u32 s{S_T2}, s{S_T1}, {4*8192-1024}\nv_add_u32 v{YS0}, s{S_T1}, v{YS0}\nv_add_u32 v{YS1}, s{S_T2}, v{YS1}")
        RHO, OCT, TOFF = 236, 237, 238
        a(f"v_lshrrev_b32 v{RHO}, 3, v0\nv_and_b32 v{OCT}, 7, v0")
        a(f"v_and_b32 v{TOFF}, 1, v{RHO}\nv_bfe_u32 v{T0}, v{RHO}, 1, 1\nv_lshl_add_u32 v{TOFF}, v{T0}, 2, v{TOFF}\nv_lshrrev_b32 v{T2}, 2, v{RHO}\nv_lshl_add_u32 v{TOFF}, v{T2}, 1, v{TOFF}")
        a(f"s_lshl_b32 s{S_T1}, s{S_R2}, 6\ns_lshl3_add_u32 s{S_T1}, s{w}, s{S_T1}\nv_add_u32 v{T3}, s{S_T1}, v{TOFF}")
        a(f"s_lshl_b32 s{S_T2}, s{S_C2}, 7\nv_lshl_add_u32 v{VB2}, v{OCT}, 4, s{S_T2}\nv_lshl_add_u32 v{VXO}, v{T3}, 10, v{VB2}\nv_lshlrev_b32 v{VB2}, 4, v{OCT}\nv_add_u32 v{VB2}, {L_B2}, v{VB2}\nv_lshlrev_b32 v{VSA}, 3, v{T3}\nv_add_u32 v{VSA}, {WS_STATS}, v{VSA}")
        a(f"s_lshl_b32 s{S_T0}, s{w}, 2\ns_or_b32 s{S_T0}, s{S_T0}, 1\nv_xor_b32 v{T0}, s{S_T0}, v{T2}\nv_xor_b32 v{T0}, v{T0}, v{OCT}\nv_lshlrev_b32 v{T0}, 4, v{T0}")
        a(f"v_lshl_add_u32 v{T0}, v{OCT}, 10, v{T0}\nv_and_b32 v{T2}, 3, v{RHO}\nv_lshl_add_u32 v{T0}, v{T2}, 2, v{T0}")
        a(f"v_xor_b32 v{YA1}, 32, v{T0}\nv_add_u32 v{YA0}, {L_YST}, v{T0}\nv_add_u32 v{YA1}, {L_YST}, v{YA1}")
        a(f"v_and_b32 v{T0}, 3, v{TOFF}\nv_lshlrev_b32 v{T0}, 8, v{T0}\nv_lshrrev_b32 v{T2}, 2, v{TOFF}\nv_lshl_add_u32 v{T0}, v{T2}, 6, v{T0}\nv_and_b32 v{T2}, 1, v{OCT}\nv_lshl_add_u32 v{T0}, v{T2}, 5, v{T0}")
        a(f"s_lshl_b32 s{S_T0}, s{S_TH}, 7\nv_add_u32 v{T0}, s{S_T0}, v{T0}\nv_bfe_u32 v{T2}, v{OCT}, 1, 1\nv_lshl_add_u32 v{T0}, v{T2}, 4, v{T0}\nv_lshrrev_b32 v{T2}, 2, v{OCT}\nv_lshl_add_u32 v{T0}, v{T2}, 7, v{T0}")
        a(f"v_lshrrev_b32 v{T2}, 1, v{OCT}\nv_lshl_add_u32 v{T0}, v{T2}, 13, v{T0}\ns_lshl_b32 s{S_T0}, s{S_FH}, 10\ns_mul_i32 s{S_T1}, s{S_FH}, {3*8192}")
        a(f"v_mov_b32 v{PA0}, s{S_T0}\nv_mov_b32 v{T3}, s{S_T1}\nv_cmp_lt_u32 vcc, 1, v{OCT}\ns_nop 0\ns_nop 0\nv_cndmask_b32 v{PA0}, v{PA0}, v{T3}, vcc\nv_add_u32 v{PA0}, v{T0}, v{PA0}\nv_add_u32 v{PA1}, {7*8192}, v{PA0}")
        a(f"s_lshl_b32 s{S_T0}, s{S_FH}, 7\ns_add_u32 s{S_T0}, s{S_T0}, {L_B1}\nv_lshl_add_u32 v{DV}, v{T1}, 3, s{S_T0}")
        a(f"s_lshl1_add_u32 s{S_T0}, s{S_R}, s{S_TH}\ns_lshl1_add_u32 s{S_T2}, s{S_C}, s{S_FH}")
        a(f"s_mul_i32 s{S_T1}, s{S_T0}, {224*1024}\ns_lshl_b32 s{S_T3}, s{S_T2}, 13\ns_add_u32 s{S_T1}, s{S_T1}, s{S_T3}\ns_add_u32 s{S_H0}, s{S_T1}, {WS_H}\ns_add_u32 s{S_H1}, s{S_H0}, 4096")
        a(f"s_mul_i32 s{S_T1}, s{S_T2}, 37\ns_lshr_b32 s{S_T1}, s{S_T1}, 8\ns_lshl2_add_u32 s{S_T0}, s{S_T0}, s{S_T1}\ns_add_u32 s{S_T0}, s{S_T0}, {CNT_H}\ns_lshl_b32 s{S_PUB}, s{S_T0}, 8")
        a(f"s_cmp_lg_u32 s{S_CL}, 7\ns_cselect_b32 s{S_INC}, 1, 0")
        a(f"s_lshl2_add_u32 s{S_T0}, s{S_XCD}, s{w}\ns_lshr_b32 s{S_T1}, s{S_J}, 3\ns_lshl2_add_u32 s{S_T0}, s{S_T0}, s{S_T1}\ns_add_u32 s{S_T0}, s{S_T0}, {CNT_Y}\ns_lshl_b32 s{S_YP}, s{S_T0}, 8")
        a(f"s_lshr_b32 s{S_T0}, s{S_R2}, 3\ns_lshl2_add_u32 s{S_T0}, s{S_C2}, s{S_T0}\ns_lshl2_add_u32 s{S_T0}, s{S_T0}, s{w}\ns_add_u32 s{S_T0}, s{S_T0}, {CNT_Y}\ns_lshl_b32 s{S_YC}, s{S_T0}, 8")
        a(f"v_mov_b32 v{KC}, {f32(MU)}\nv_mov_b32 v{KC+1}, {f32(LAM)}\ns_mov_b32 s{S_U1}, 32768")
        a(f"s_lshl_b32 s{S_T0}, s{S_TH}, 9\ns_add_u32 s{S_T0}, s{S_T0}, {L_ST}\nv_add_u32 v{VST+1}, s{S_T0}, v{VST}")
        a(f"s_lshl_b32 s{S_T0}, s{S_FH}, 4\ns_lshr_b32 s{S_PV}, s{S_PV}, s{S_T0}\ns_and_b32 s{S_PV}, s{S_PV}, 0xffff\nv_mov_b32 v{T0}, s{S_PV}")
        a(f"v_lshlrev_b32 v{T0}, v{AD+1}, v{T0}\ns_sub_u32 s{S_T2}, s{S_TH}, 1\nv_and_b32 v{T0}, s{S_T2}, v{T0}")
        a(f"v_cmp_eq_u32 vcc, 14, v{AD+3}\nv_mov_b32 v{AD+1}, 0\ns_nop 0\nv_cndmask_b32 v{AD}, 0, v{T0}, vcc")
        a(f"v_cmp_eq_u32 vcc, 12, v{AD+3}\nv_mov_b32 v{AD+3}, 0\ns_nop 0\nv_cndmask_b32 v{AD+2}, 0, v{T0}, vcc")
    XR2, VXL, S_XI = 240, 9+243, S_U4
    if cfg.xlds:
        a(f"v_lshrrev_b32 v{T0}, 3, v0\nv_and_b32 v{T1}, 1, v{T0}\nv_bfe_u32 v{T2}, v{T0}, 1, 1\nv_lshl_add_u32 v{T1}, v{T2}, 2, v{T1}\nv_lshrrev_b32 v{T2}, 2, v{T0}\nv_lshl_add_u32 v{T1}, v{T2}, 1, v{T1}")
        a(f"s_and_b32 s{S_T0}, s{S_R2}, 1\ns_lshl_b32 s{S_T0}, s{S_T0}, 6\ns_lshl3_add_u32 s{S_T0}, s{w}, s{S_T0}\nv_add_u32 v{T1}, s{S_T0}, v{T1}")
        a(f"v_lshrrev_b32 v{T2}, 1, v{T1}\nv_xor_b32 v{T2}, v{T2}, v0\nv_and_b32 v{T2}, 7, v{T2}\nv_lshlrev_b32 v{T2}, 4, v{T2}\nv_lshl_add_u32 v{VXL}, v{T1}, 7, v{T2}")
        a(f"s_xor_b32 s{S_XI}, s{S_C2}, s{S_KC0}" if cfg.xorord else f"s_sub_u32 s{S_XI}, s{S_C2}, s{S_KC0}\ns_and_b32 s{S_XI}, s{S_XI}, 7")
    a.wait(vm="x")
    for n in range(2):
        for m in range(4):
            a(f"v_lshlrev_b32 v{XF+8*n+2*m}, 16, v{XR+4*n+m}\nv_and_b32 v{XF+8*n+2*m+1}, 0xffff0000, v{XR+4*n+m}")
    SM = XR
    def reduce2():
        for dpp in ("row_shr:1 row_mask:0xf bank_mask:0xf bound_ctrl:0", "row_shr:2 row_mask:0xf bank_mask:0xf bound_ctrl:0", "row_shr:4 row_mask:0xf bank_mask:0xf bound_ctrl:0",
                    "row_shr:8 row_mask:0xf bank_mask:0xf bound_ctrl:0", "row_bcast:15 row_mask:0xa bank_mask:0xf", "row_bcast:31 row_mask:0xc bank_mask:0xf"):
            a("s_nop 0")
            for n in range(2): a(f"v_add_f32_dpp v{SM+n}, v{SM+n}, v{SM+n} {dpp}")
    for n in range(2): a(f"v_add_f32 v{SM+n}, v{XF+8*n}, v{XF+8*n+1}")
    for m in range(2, 8):
        for n in range(2): a(f"v_add_f32 v{SM+n}, v{SM+n}, v{XF+8*n+m}")
    reduce2()
    for n in range(2): a(f"v_mul_f32 v{SM+2+n}, {f32(1/512)}, v{SM+n}")
    a(f"v_readlane_b32 s{S_T0}, v{SM+2}, 63\nv_readlane_b32 s{S_T1}, v{SM+3}, 63\ns_nop 0")
    for n in range(2):
        for m in range(8): a(f"v_subrev_f32 v{XF+8*n+m}, s{S_T0+n}, v{XF+8*n+m}")
    for n in range(2): a(f"v_mul_f32 v{SM+n}, v{XF+8*n}, v{XF+8*n}")
    for m in range(1, 8):
        for n in range(2): a(f"v_fmac_f32 v{SM+n}, v{XF+8*n+m}, v{XF+8*n+m}")
    reduce2()
    a(f"v_mov_b32 v{T1}, {f32(1e-5)}")
    for n in range(2): a(f"v_fmamk_f32 v{SM+n}, v{SM+n}, {f32(1/512)}, v{T1}")
    for n in range(2): a(f"v_rsq_f32 v{SM+n}, v{SM+n}")
    for n in range(2): a(f"v_or_b32 v{GR+2*n}, 1, v{SM+2+n}")
    for n in range(2): a(f"v_or_b32 v{GR+2*n+1}, 1, v{SM+n}")
    stamp(14)
    a(f"s_lshl_b32 s{S_T0}, s{w}, 4\ns_add_u32 s{S_T0}, s{S_T0}, {L_GR}\nv_mov_b32 v{T0}, s{S_T0}\ns_lshl_b64 exec, -1, 63")
    a.lds(f"ds_write_b128 v{T0}, v[{GR}:{GR+3}]"); a("s_mov_b64 exec, -1")
    def stats_loads():
        for tau in range(4):
            a(f"buffer_load_dwordx2 v[{STT+2*tau}:{STT+2*tau+1}], v{VST}, s[{R_WS}:{R_WS+3}], s{S_U3} offen offset:{128*tau} sc1")
    a.wait(lg="all")
    stamp(1)
    def rd(i, ks):
        slot = (i % 3) * 16384; b = 16*ks; wa = (WA, WA2)[ks]
        def W(n): return [(f"ds_read_b64_tr_b16 v[{WF+b+4*n+2*h}:{WF+b+4*n+2*h+1}], v{wa+n} offset:{slot+1024*h}", f"W{i}{ks}{n}") for h in range(2)]
        def Q(t): return [(f"ds_read_b128 v[{QF+b+4*t}:{QF+b+4*t+3}], v{QA+ks} offset:{slot+2048*t}", f"Q{i}{ks}{t}")]
        if cfg.x_nolds: return []
        return W(0) + Q(0) + Q(1) + Q(2) + Q(3) + W(1) + W(2) + W(3)
    def mm(i, ks, n, t):
        b = 16*ks
        if t == "cs":
            d = ONES; B = CS + 4*n; first = (i == 0 and n == 0); tags = [f"W{i}{ks}{n}"]
        else:
            d = ACC + 4*(4*n+t); B = QF+b+4*t; first = (i == 0 and ks == 0); tags = [f"W{i}{ks}{n}", f"Q{i}{ks}{t}"]
            if cfg.coarse and n == 0 and t == 0 and (i, ks) != (0, 0): tags.append(f"Q{i}{ks}3")
        a.wait(lg=tags)
        if not cfg.x_nomfma: a(f"v_mfma_f32_16x16x32_bf16 v[{d}:{d+3}], v[{WF+b+4*n}:{WF+b+4*n+3}], v[{B}:{B+3}], {'0' if first else v(d,4)}")
        for _ in range(cfg.bgn + (1 if len(bg) > 1 and bg[0].startswith("s_") and bg[1].startswith("s_") else 0)):
            if bg: a(bg.pop(0))
    bg = []
    if cfg.dseg < 0:
        n0 = len(a.lines); late_setup(); bg = a.lines[n0:]; del a.lines[n0:]
        for q in range(len(bg) - 1, 0, -1):
            if bg[q].startswith("s_cselect"): bg[q-1:q+1] = [bg[q-1] + "\n" + bg[q]]
    base = [(n, (t if n % 2 == 0 or not cfg.snake else 3 - t)) for n in range(4) for t in range(4)]
    withcs = sum([base[4*n:4*n+4] + [(n, "cs")] for n in range(4)], [])
    VSY = JUNK
    a(f"v_mov_b32 v{VSY}, {L_SYNC}")
    a("s_barrier")
    stamp(2)
    a(f"s_cmp_eq_u32 s{S_CL}, 7\ns_cbranch_scc1 L_Mh")
    if not cfg.chain:
        for ins, tag in rd(0, 0): a.lds(ins, tag)
    def stats_check():
        L = a.newlabel("Lst"); B = a.newlabel("Lstb")
        chk = (f"v_min3_u32 v{T0}, v{STT}, v{STT+1}, v{STT+2}\nv_min3_u32 v{T1}, v{STT+3}, v{STT+4}, v{STT+5}", f"v_min3_u32 v{T0}, v{T0}, v{STT+6}, v{STT+7}\nv_min_u32 v{T0}, v{T0}, v{T1}", f"v_cmp_eq_u32 vcc, 0, v{T0}")
        n0 = len(a.lines); stats_loads(); ld = "\n".join(a.lines[n0:]); del a.lines[n0:]
        k.ool.append(f"{L}:\n{ld}\ns_add_u32 s{S_SPIN}, s{S_SPIN}, 1\ns_waitcnt vmcnt(0)\n" + "\n".join(chk) + f"\ns_cmp_gt_u32 s{S_SPIN}, {SPIN_MAX}\ns_cbranch_scc1 {B}\ns_cbranch_vccnz {L}\ns_branch {B}")
        return ([chk[0], chk[1], chk[2] + f"\ns_mov_b32 s{S_SPIN}, 0\ns_cbranch_vccnz {L}\n{B}:"] +
                [f"v_mul_f32 v{STT+4*q+1}, v{KC+1}, v{STT+4*q+1}\nv_mul_f32 v{STT+4*q+3}, v{KC+1}, v{STT+4*q+3}" for q in range(2)] +
                [f"v_mul_f32 v{STT+4*q}, v{STT+4*q}, v{STT+4*q+1}\nv_mul_f32 v{STT+4*q+2}, v{STT+4*q+2}, v{STT+4*q+3}" for q in range(2)])
    if cfg.chain:
        pick = lambda i, kind, n: [x for ks in range(2) for x in rd(i, ks) if x[1] == f"{kind}{i}{ks}{n}"]
        for x in pick(0, "W", 0) + sum([pick(0, "Q", t) for t in range(4)], []): a.lds(*x)
        P = lambda n: [(ks, n, t) for t in range(4) for ks in range(2)]
        C = lambda n: [(1, n, "cs")]
        for i in range(8):
            seq = P(0)+C(0)+P(1)+C(1)+P(2)+C(2)+P(3)+C(3) if i < 7 else P(0)+C(0)+C(1)+P(1)[:4]+C(2)+C(3)+P(1)[4:]+P(2)+P(3)
            pend = pick(i, "W", 1) + pick(i, "W", 2) + pick(i, "W", 3)
            if i == 7: side = stats_check()
            for q, (ks, n, t) in enumerate(seq):
                mm(i, ks, n, t)
                if q == 12 and cfg.xlds:
                    sl = (i % 3) * 16384
                    a(f"s_cmp_eq_u32 s{S_XI}, {i}\ns_cselect_b64 exec, -1, 0\nds_read_b128 v[{XR2}:{XR2+3}], v{VXL} offset:{sl}\nds_read_b128 v[{XR2+4}:{XR2+7}], v{VXL} offset:{sl+4096}\ns_mov_b64 exec, -1")
                if i == 4 and q in (14, 15):
                    assert not bg
                    a.lds(f"ds_read2_b64 v[{B1R+4*(q-14)}:{B1R+4*(q-14)+3}], v{DV} offset0:{8*(q-14)} offset1:{8*(q-14)+4}", "b1")
                if i == 5 and q < 16: a(f"v_lshlrev_b32 v{B1F+q}, 16, v{B1R+q//2}" if q % 2 == 0 else f"v_and_b32 v{B1F+q}, 0xffff0000, v{B1R+q//2}")
                if i == 6 and q < 16: a(f"v_mul_f32 v{B1F+q}, v{KC+1}, v{B1F+q}")
                if i < 7:
                    if q == cfg.bq2:
                        a.wait(lg="all"); a("s_barrier")
                        if i == 6: a(f"s_mov_b32 s{S_T2}, 0x11111111\ns_mov_b32 s{S_T3}, s{S_T2}")
                        pend = pick(i+1, "W", 0)
                    elif n == 3 and t != "cs":
                        assert not pend
                        a.lds(*pick(i+1, "Q", t)[ks])
                    elif pend: a.lds(*pend.pop(0))
                else:
                    if q in (13, 14): a.lds(f"ds_read2_b64 v[{STT+4*(q-13)}:{STT+4*(q-13)+3}], v{VST+1} offset0:{32*(q-13)} offset1:{32*(q-13)+16}", "stt")
                    if q == 17: a.wait(lg="stt")
                    if side and q >= 17 and q not in (21, 22): a(side.pop(0))
                    if q == 21:
                        a(f"s_mov_b64 exec, s[{S_T2}:{S_T3}]"); a.lds(f"ds_write_b128 v{VCW}, v[{ONES}:{ONES+3}]"); a("s_mov_b64 exec, -1")
                    if q == 22:
                        a(f"v_mov_b32 v{T1}, 1\ns_mov_b64 exec, 1"); a.lds(f"ds_add_u32 v{VSY}, v{T1} offset:16"); a("s_mov_b64 exec, -1")
                    if q == 24: k.lds_peek(4, VSY, GR, "pk4")
                    if q == 28:
                        k.lds_check(4, VSY, GR, "pk4")
                        pend = [(f"ds_read_b128 v[{(CS, CSP)[h]+4*n2}:{(CS, CSP)[h]+4*n2+3}], v{VCR} offset:{64*n2+256*h}", f"csp{n2}") for n2 in range(4) for h in range(2)]
                    if pend: a.lds(*pend.pop(0))
            assert not pend
    for i in range(0 if cfg.chain else 8):
        pend = rd(i, 1)
        lastA = base[:4] + [(n, "cs") for n in range(4)] + base[4:]
        for q, (n, t) in enumerate(base if i < 7 else lastA):
            if i == 7 and q % 4 == 0: k.lstamp("g1end")
            mm(i, 0, n, t)
            if cfg.xlds and q == (14 if i < 7 else 12):
                sl = (i % 3) * 16384
                a(f"s_cmp_eq_u32 s{S_XI}, {i}\ns_cselect_b64 exec, -1, 0\nds_read_b128 v[{XR2}:{XR2+3}], v{VXL} offset:{sl}\nds_read_b128 v[{XR2+4}:{XR2+7}], v{VXL} offset:{sl+4096}\ns_mov_b64 exec, -1")
            if i == 4 and q == 12: assert not bg
            if i == 4 and q in (12, 13): a.lds(f"ds_read2_b64 v[{B1R+4*(q-12)}:{B1R+4*(q-12)+3}], v{DV} offset0:{8*(q-12)} offset1:{8*(q-12)+4}", "b1")
            if i == 5: a(f"v_lshlrev_b32 v{B1F+q}, 16, v{B1R+q//2}" if q % 2 == 0 else f"v_and_b32 v{B1F+q}, 0xffff0000, v{B1R+q//2}")
            if i == 6: a(f"v_mul_f32 v{B1F+q}, v{KC+1}, v{B1F+q}")
            if pend: a.lds(*pend.pop(0))
            elif i == 7 and q == 13:
                a(f"s_mov_b64 exec, s[{S_T2}:{S_T3}]")
                a.lds(f"ds_write_b128 v{VCW}, v[{ONES}:{ONES+3}]")
                a("s_mov_b64 exec, -1")
            elif i == 7 and q in (15, 16):
                a.lds(f"ds_read2_b64 v[{STT+4*(q-15)}:{STT+4*(q-15)+3}], v{VST+1} offset0:{32*(q-15)} offset1:{32*(q-15)+16}", "stt")
            elif i == 7 and q == 14:
                a(f"v_mov_b32 v{T1}, 1\ns_mov_b64 exec, 1"); a.lds(f"ds_add_u32 v{VSY}, v{T1} offset:16"); a("s_mov_b64 exec, -1")
        if i < 7:
            pend = rd(i+1, 0)
            for q, (n, t) in enumerate(withcs):
                mm(i, 1, n, t)
                bq = cfg.bq if i < 6 else cfg.bql
                if q == bq:
                    if i == cfg.dseg: late_setup()
                    a.wait(lg="all")
                    a("s_barrier")
                    if i == 6: k.lstamp("g1end")
                    if i == 6: a(f"s_mov_b32 s{S_T2}, 0x11111111\ns_mov_b32 s{S_T3}, s{S_T2}")
                    while len(pend) > 19 - q: a.lds(*pend.pop(0))
                if q > bq and pend: a.lds(*pend.pop(0))
        else:
            side = stats_check()
            pend = [(f"ds_read_b128 v[{(CS, CSP)[h]+4*n2}:{(CS, CSP)[h]+4*n2+3}], v{VCR} offset:{64*n2+256*h}", f"csp{n2}") for n2 in range(4) for h in range(2)]
            for q, (n, t) in enumerate(base):
                if q % 3 == 0: k.lstamp("g1end")
                mm(i, 1, n, t)
                if q == 0: k.lds_peek(4, VSY, GR, "pk4")
                if q == 5: k.lds_check(4, VSY, GR, "pk4")
                if q >= 5 and pend: a.lds(*pend.pop(0))
                if q == 1: a.wait(lg="stt")
                if side and q >= 1 and q != 5: a(side.pop(0))
        assert not pend
    a.vm = []
    if cfg.xprio: a("s_setprio 2")
    stamp(3)
    for m in range(0, 16, 2):
        if m % 8 == 0: a.wait(lg=f"csp{m//4+1}"); a(".p2align 3")
        a(f"v_pk_add_f32 v[{CS+m}:{CS+m+1}], v[{CS+m}:{CS+m+1}], v[{CSP+m}:{CSP+m+1}]")
    CACC, FAB = 16, ((96, 128), (48, 160))
    def reads(cc):
        FA, FB = FAB[cc & 1]; r = []
        for n in range(8):
            r.append((f"ds_read_b128 v[{FB+4*n}:{FB+4*n+3}], v{CB} offset:{3584-512*n+64*cc}", f"B{cc}_{n}"))
            for hf in range(2): r.append((f"ds_read_b64 v[{FA+4*n+2*hf}:{FA+4*n+2*hf+1}], v{CA} offset:{512*n+64*cc+8*hf}", f"A{cc}_{n}"))
        return r
    pend = reads(0)
    hq = []
    units = [(pp, tau) for pp in range(2) for tau in range(4)]
    for u, (pp, tau_) in enumerate(units):
        k.lstamp("gelu")
        if u == 7: k.lds_peek(0, VSY, GR, "pk0")
        E = CSP + 8*(u & 1); O = 228 + 4*(u & 1)
        prs = [(ACC + 4*(4*(2*pp+tl)+tau_) + 2*hh, tau_, 4*(2*pp+tl) + 2*hh, E + 4*tl + 2*hh) for tl in range(2) for hh in range(2)]
        for z, tau, hh, e in prs: a(f"v_pk_fma_f32 v[{e}:{e+1}], v[{CS+hh}:{CS+hh+1}], v[{STT+2*tau}:{STT+2*tau+1}], v[{B1F+hh}:{B1F+hh+1}] op_sel_hi:[1,0,1] neg_lo:[0,1,0] neg_hi:[0,1,0]")
        for z, tau, hh, e in prs: a(f"v_pk_fma_f32 v[{z}:{z+1}], v[{STT+2*tau}:{STT+2*tau+1}], v[{z}:{z+1}], v[{e}:{e+1}] op_sel:[1,0,0]")
        for z, tau, hh, e in prs: a(f"v_pk_fma_f32 v[{e}:{e+1}], v[{z}:{z+1}], v[{z}:{z+1}], v[{KC}:{KC+1}] op_sel_hi:[1,1,0]")
        for z, tau, hh, e in prs: a(f"v_pk_mul_f32 v[{e}:{e+1}], v[{e}:{e+1}], v[{z}:{z+1}]")
        for m in range(0 if cfg.x_nogelu else 8): a(f"v_exp_f32 v{E+m}, v{E+m}")
        for z, tau, hh, e in prs: a(f"v_pk_fma_f32 v[{e}:{e+1}], v[{KC}:{KC+1}], v[{e}:{e+1}], v[{KC}:{KC+1}] op_sel:[1,0,1]")
        if u == 7 and cfg.earlyrd: k.lds_check(0, VSY, GR, "pk0")
        for m in range(8):
            if not cfg.x_nogelu: a(f"v_rcp_f32 v{E+m}, v{E+m}")
            if u == 7 and m < cfg.earlyrd: a.lds(*pend.pop(0))
        for z, tau, hh, e in prs: a(f"v_pk_mul_f32 v[{z}:{z+1}], v[{z}:{z+1}], v[{e}:{e+1}]")
        for q in range(4): a(f"v_cvt_pk_bf16_f32 v{O+q}, v{prs[q][0]}, v{prs[q][0]+1}")
        flush = u in cfg.hgroups
        so = (S_H0, S_H1)[pp]
        hq.append((f"buffer_store_dwordx4 v[{O}:{O+3}], v{V16}, s[{R_WS}:{R_WS+3}], s{so} offen offset:{1024*tau_} sc1", "h" if u > 3 else "ha"))
        if flush:
            while hq: a.vmem(*hq.pop(0))
    k.lstamp("gelu")
    stamp(5)
    if cfg.xprio: a("s_setprio 0")
    assert cfg.earlyrd
    n0 = len(a.lines); sv = (list(a.vm), list(a.lg)); a.vm = []; a.lg = []
    a.label("L_Mh")
    late_setup()
    def xloads():
        a.vmem(f"buffer_load_dwordx4 v[{XR2}:{XR2+3}], v{VXO}, s[{R_Q}:{R_Q+3}], 0 offen", "x")
        a.vmem(f"buffer_load_dwordx4 v[{XR2+4}:{XR2+7}], v{VXO}, s[{R_Q}:{R_Q+3}], s{S_U1} offen", "x")
    if cfg.xlds: xloads()
    a("s_barrier")
    a(f"v_mov_b32 v{T1}, 1\ns_mov_b64 exec, 1\nds_add_u32 v{VSY}, v{T1} offset:16\ns_mov_b64 exec, -1")
    k.lds_wait(0, VSY, GR, setaddr=False, sleep=2)
    for ins, tag in reads(0)[:cfg.earlyrd]: a(ins)
    a("s_branch L_Mj")
    k.ool.append("\n".join(a.lines[n0:])); del a.lines[n0:]
    a.vm, a.lg = sv
    a.label("L_Mj")
    stamp(6)
    while len(pend) > 15: a.lds(*pend.pop(0))
    cnt = [0]
    def tick():
        if cnt[0] == cfg.asigpos: a.wait(vm="ha"); a(f"s_atomic_add s{S_INC}, s[{P_WS}:{P_WS+1}], s{S_PUB}")
        if cnt[0] == cfg.hsigpos: a.wait(vm="h"); a(f"s_lshl_b32 s{S_ONE}, s{S_INC}, 8\ns_atomic_add s{S_ONE}, s[{P_WS}:{P_WS+1}], s{S_PUB}")
        if cnt[0] % 14 == 0 or cnt[0] == 152: k.lstamp("conv")
        cnt[0] += 1
    tick()
    wq = []
    for cc in range(4):
        FA, FB = FAB[cc & 1]
        nxt = reads(cc+1) if cc < 3 else []
        for T in range(8):
            for an in ([-1] if cc == 0 else []) + list(range(T+1)):
                d = CACC + 4*T
                if an < 0:
                    a.wait(lg=f"B0_{T}")
                    a(f"v_mfma_f32_16x16x32_bf16 v[{d}:{d+3}], v[{AD}:{AD+3}], v[{FB+4*T}:{FB+4*T+3}], 0")
                else:
                    e = T - an
                    a.wait(lg=[f"A{cc}_{an}", f"B{cc}_{e}"])
                    if not cfg.x_noconv or cc == 3: a(f"v_mfma_f32_16x16x32_bf16 v[{d}:{d+3}], v[{FA+4*an}:{FA+4*an+3}], v[{FB+4*e}:{FB+4*e+3}], v[{d}:{d+3}]")
                if pend: a.lds(*pend.pop(0))
                elif nxt:
                    a.lds(*nxt.pop(0))
                    if cc == 2 and not nxt:
                        a(f"v_mov_b32 v{T1}, 1\ns_mov_b64 exec, 1"); a.lds(f"ds_add_u32 v{VSY}, v{T1} offset:4"); a("s_mov_b64 exec, -1")
                tick()
                if cc == 3:
                    if (T, an) == (1, 0): k.lds_peek(1, VSY, T0, "pk1")
                    if (T, an) == (3, 2): k.lds_check(1, VSY, T0, "pk1")
                    if an == T: wq.append((cnt[0] + 8, T))
                    if wq and wq[0][0] <= cnt[0] and (T, an) > (3, 2):
                        T2_ = wq.pop(0)[1]
                        a.lds(f"ds_write_b128 v{EXW}, v[{CACC+4*T2_}:{CACC+4*T2_+3}] offset:{1024*T2_}")
        assert not pend and not nxt
    stamp(7)
    assert [t for _, t in wq] == [7]
    a("s_nop 6")
    a.lds(f"ds_write_b128 v{EXW}, v[{CACC+28}:{CACC+31}] offset:{1024*7}")
    a(f"s_mov_b64 exec, 1"); a.lds(f"ds_add_u32 v{VSY}, v{T1} offset:8"); a("s_mov_b64 exec, -1")
    k.lds_wait(2, VSY, T0, setaddr=False)
    FA = 48
    for tt in range(2):
        for src in range(4):
            a.lds(f"ds_read_b128 v[{FA+16*tt+4*src}:{FA+16*tt+4*src+3}], v{EXR} offset:{8192*src+1024*tt}", f"e{tt}")
    for tt in range(2):
        a.wait(lg=f"e{tt}")
        b = FA + 16*tt
        for r in range(4): a(f"v_add_f32 v{b+r}, v{b+r}, v{b+4+r}\nv_add_f32 v{b+8+r}, v{b+8+r}, v{b+12+r}")
        for r in range(4): a(f"v_cvt_pk_bf16_f32 v{b+4+r}, v{b+r}, v{b+8+r}")
        a.vmem(f"buffer_store_dwordx4 v[{b+4}:{b+7}], v{YST}, s[{R_WS}:{R_WS+3}], 0 offen{' offset:1024' if tt else ''} sc1", "y")
    stamp(8)
    ST2, B2R = 24, 28
    if not cfg.xlds: xloads()
    a(f"v_and_b32 v{T0}, 1023, v{VSA}\nv_add_u32 v{T0}, {L_ST}, v{T0}")
    a.lds(f"ds_read2_b64 v[{ST2}:{ST2+3}], v{T0} offset0:0 offset1:32", "b2")
    a.lds(f"ds_read_b128 v[{B2R}:{B2R+3}], v{VB2}", "b2")
    a(f"s_add_u32 m0, s{S_B}, {L_YST}")
    if not cfg.xlds: a.wait(vm="y"); k.signal(S_YP)
    a.wait(vm="x", lg="b2")
    L = a.newlabel("Ls2"); B = a.newlabel("Ls2b")
    chk = f"v_min3_u32 v{T0}, v{ST2}, v{ST2+1}, v{ST2+2}\nv_min_u32 v{T0}, v{T0}, v{ST2+3}\nv_cmp_eq_u32 vcc, 0, v{T0}"
    a(f"{chk}\ns_mov_b32 s{S_SPIN}, 0\ns_cbranch_vccnz {L}"); a.label(B)
    k.ool.append(f"{L}:\nbuffer_load_dwordx2 v[{ST2}:{ST2+1}], v{VSA}, s[{R_WS}:{R_WS+3}], 0 offen sc1\nbuffer_load_dwordx2 v[{ST2+2}:{ST2+3}], v{VSA}, s[{R_WS}:{R_WS+3}], 0 offen offset:256 sc1\n"
                 f"s_add_u32 s{S_SPIN}, s{S_SPIN}, 1\ns_waitcnt vmcnt(0)\n{chk}\ns_cmp_gt_u32 s{S_SPIN}, {SPIN_MAX}\ns_cbranch_scc1 {B}\ns_cbranch_vccnz {L}\ns_branch {B}")
    XF2, PP, B2F, YR = 80, 96, 32, 40
    for n in range(2):
        for m in range(4): a(f"v_lshlrev_b32 v{XF2+8*n+2*m}, 16, v{XR2+4*n+m}\nv_and_b32 v{XF2+8*n+2*m+1}, 0xffff0000, v{XR2+4*n+m}")
        for m in range(8): a(f"v_sub_f32 v{PP+8*n+m}, v{XF2+8*n+m}, v{ST2+2*n}")
        for m in range(8): a(f"v_mul_f32 v{PP+8*n+m}, v{PP+8*n+m}, v{ST2+2*n+1}")
    for m in range(4): a(f"v_lshlrev_b32 v{B2F+2*m}, 16, v{B2R+m}\nv_and_b32 v{B2F+2*m+1}, 0xffff0000, v{B2R+m}")
    if cfg.xlds: a.wait(vm="y"); k.signal(S_YP)
    stamp(9)
    if not cfg.x_noy: k.spoll(S_YC, 8)
    stamp(10)
    a.vmem(f"buffer_load_dwordx4 v{YS0}, s[{R_WS}:{R_WS+3}], 0 offen sc1 lds", "ys")
    a.vmem(f"buffer_load_dwordx4 v{YS1}, s[{R_WS}:{R_WS+3}], 0 offen offset:1024 sc1 lds", "ys")
    a(f"v_mov_b32 v{T2}, {f32(-1.4426950408889634)}")
    RD, EE = 112, 176
    S_ARR, S_YRD = S_U2, S_U3
    def pk(op, d, x0, x1, x2=None, mod=""): a(f"{op} v[{d}:{d+1}], {x0}, {x1}" + (f", {x2}" if x2 else "") + mod)
    def preads(n):
        for kq in range(4):
            for e in range(2):
                a.lds(f"ds_read_b128 v[{RD+32*n+8*kq+4*e}:{RD+32*n+8*kq+4*e+3}], v{(PA0, PA1)[n]} offset:{2048*kq+16*e}", f"p{n}_{kq}")
    yrd = "\n".join(f"ds_read2st64_b32 v[{YR+4*n+2*q}:{YR+4*n+2*q+1}], v{ya} offset0:{2*q} offset1:{2*q+1}" for n, ya in enumerate((YA0, YA1)) for q in range(2))
    arr3 = f"s_waitcnt vmcnt(0)\ns_mov_b64 exec, 1\nds_add_u32 v{VSY}, v{T1} offset:12\ns_mov_b64 exec, -1\ns_mov_b32 s{S_ARR}, 1"
    yfold = yrd + "\ns_waitcnt lgkmcnt(0)\n" + "\n".join(
        f"v_lshlrev_b32 v{EE}, 16, v{YR+q}\nv_and_b32 v{EE+1}, 0xffff0000, v{YR+q}\nv_mul_f32 v{PP+2*q}, v{PP+2*q}, v{EE}\nv_mul_f32 v{PP+2*q+1}, v{PP+2*q+1}, v{EE+1}" for q in range(8))
    L = a.newlabel("Lf"); N = a.newlabel("Lfn"); N2 = a.newlabel("Lfm"); D = a.newlabel("Lfd"); L2 = a.newlabel("Lfw")
    a(f"s_mov_b32 s{S_ARR}, 0\ns_mov_b32 s{S_YRD}, 0\ns_mov_b32 s{S_SPIN}, 0")
    a.label(L)
    a(f"s_getreg_b32 s{S_T0}, hwreg(HW_REG_IB_STS, 0, 4)\ns_or_b32 s{S_T0}, s{S_T0}, s{S_ARR}\ns_cbranch_scc1 {N}\n{arr3}")
    a.label(N)
    a(f"ds_read2_b32 v[{EE+2}:{EE+3}], v{VSY} offset0:3 offset1:6\ns_add_u32 s{S_SPIN}, s{S_SPIN}, 1\ns_waitcnt lgkmcnt(0)")
    a(f"v_cmp_eq_u32 vcc, 4, v{EE+2}\ns_cmp_gt_u32 s{S_SPIN}, {SPIN_MAX*8}\ns_cbranch_vccnz {N2}\ns_cbranch_scc1 {D}")
    a(f"v_cmp_ne_u32 vcc, 4, v{EE+3}\ns_nop 0\ns_cbranch_vccz {D}\ns_sleep 1\ns_branch {L}")
    a.label(N2)
    a(f"{yfold}\ns_mov_b32 s{S_YRD}, 1")
    k.lds_wait(6, VSY, T0, setaddr=False, sleep=cfg.fsleep)
    a.label(D); a.lg = []
    stamp(12)
    k.lstamp("fin")
    def op(name, d, x0, x1, x2=None, c=None):
        for m in range(0, 8, 2):
            if c is None: pk(f"v_pk_{name}_f32", d+m, v(x0+m, 2), v(x1+m, 2), v(x2+m, 2) if x2 is not None else None)
            else: pk(f"v_pk_{name}_f32", d+m, v(x0+m, 2), c if c == "1.0" else v(c, 2), mod=" op_sel_hi:[1,0]")
    def gate_a(n):
        b = RD + 32*n
        a.wait(lg=f"p{n}_0"); a(".p2align 3")
        op("add", b, b, B2F)
        a.wait(lg=f"p{n}_2"); a(".p2align 3")
        op("add", b+8, b+8, b+16)
        a.wait(lg=f"p{n}_3"); a(".p2align 3")
        op("add", b, b, b+24)
        op("add", b, b, b+8)
        op("mul", EE, b, None, c=T2)
    def gate_b(n):
        for m in range(8): a(f"v_exp_f32 v{EE+m}, v{EE+m}")
        op("add", EE, EE, None, c="1.0")
    def gate_c(n):
        b = RD + 32*n
        for m in range(8): a(f"v_rcp_f32 v{EE+m}, v{EE+m}")
        op("mul", b, b, EE)
    def finish(n):
        b = RD + 32*n
        op("fma", b, b, PP+8*n, XF2+8*n)
        for m in range(4): a(f"v_cvt_pk_bf16_f32 v{b+8+m}, v{b+2*m}, v{b+2*m+1}")
        a(f"buffer_store_dwordx4 v[{b+8}:{b+11}], v{VXO}, s[{R_OUT}:{R_OUT+3}], {'s%d' % S_U1 if n else '0'} offen {cfg.out_flags}")
    PKV = EE + 10
    def try_arrive():
        N = a.newlabel("Lta")
        a(f"s_getreg_b32 s{S_T0}, hwreg(HW_REG_IB_STS, 0, 4)\ns_or_b32 s{S_T0}, s{S_T0}, s{S_ARR}\ns_cbranch_scc1 {N}\n{arr3}"); a.label(N)
    fold = lambda n: "\n".join(f"v_lshlrev_b32 v{EE+12+2*(q&1)}, 16, v{YR+q}\nv_and_b32 v{EE+13+2*(q&1)}, 0xffff0000, v{YR+q}\nv_pk_mul_f32 v[{PP+2*q}:{PP+2*q+1}], v[{PP+2*q}:{PP+2*q+1}], v[{EE+12+2*(q&1)}:{EE+13+2*(q&1)}]" for q in range(4*n, 4*n+4))
    preads(0)
    gate_a(0); gate_b(0); gate_c(0)
    S1 = a.newlabel("Ly1"); S2 = a.newlabel("Ly2"); N = a.newlabel("Lyn"); N3 = a.newlabel("Lym")
    a(f"s_cmp_eq_u32 s{S_YRD}, 0\ns_cbranch_scc1 {S1}")
    finish(0)
    a(f"s_branch {N3}")
    a.label(S1)
    try_arrive()
    a.label(N3)
    k.lstamp("fin"); stamp(11)
    k.lds_wait(7, VSY, T0, setaddr=False)
    k.lstamp("fin")
    preads(1)
    a(f"ds_read_b32 v{PKV}, v{VSY} offset:12")
    gate_a(1)
    Y = a.newlabel("Lyq")
    a(f"s_cmp_lg_u32 s{S_YRD}, 0\ns_cbranch_scc1 {Y}\ns_waitcnt lgkmcnt(0)\nv_cmp_ne_u32 vcc, 4, v{PKV}\ns_nop 0\ns_cbranch_vccnz {Y}\n{yrd}\ns_mov_b32 s{S_YRD}, 2")
    a.label(Y)
    gate_b(1); gate_c(1)
    k.lstamp("fin")
    F = a.newlabel("Lyf")
    a(f"s_cmp_eq_u32 s{S_YRD}, 1\ns_cbranch_scc1 {S2}\ns_cmp_eq_u32 s{S_YRD}, 2\ns_cbranch_scc1 {F}")
    a(f"s_cmp_lg_u32 s{S_ARR}, 0\ns_cbranch_scc1 {N}\n{arr3}")
    a.label(N)
    k.lds_wait(3, VSY, T0, setaddr=False)
    a(yrd)
    a.label(F)
    a(f"s_waitcnt lgkmcnt(0)\n{fold(0)}")
    finish(0)
    a(fold(1))
    a.label(S2)
    finish(1)
    k.lstamp("fin")
    stamp(13)
    if cfg.diag_pad or cfg.diag_amp:
        if cfg.amp2: a(f"s_load_dword s{S_EX}, s[{P_DBG}:{P_DBG+1}], 128\ns_waitcnt lgkmcnt(0)\ns_not_b32 s{S_EX}, s{S_EX}")
        if cfg.diag_amp: a(f"s_sub_u32 s{S_T2}, s{S_ST}, s{S_EX}\ns_mul_i32 s{S_T2}, s{S_T2}, {cfg.diag_amp[1]}\ns_min_u32 s{S_T2}, s{S_T2}, 200000")
        elif cfg.diag_pad < 0:
            a(f"s_getreg_b32 s{S_T2}, hwreg(HW_REG_XCC_ID, 0, 4)\ns_add_u32 s{S_T2}, s{S_T2}, 1\ns_mul_i32 s{S_T2}, s{S_T2}, 2000\ns_cmp_eq_u32 s2, {-cfg.diag_pad - 1}\ns_cselect_b32 s{S_T2}, s{S_T2}, 0")
        else: a(f"s_mov_b32 s{S_T2}, {cfg.diag_pad}")
        a.label("L_pad")
        a(f"s_memrealtime s[{S_T0}:{S_T1}]\ns_waitcnt lgkmcnt(0)\ns_sub_u32 s{S_T0}, s{S_T0}, s{S_EX}\ns_cmp_lt_u32 s{S_T0}, s{S_T2}\ns_cbranch_scc1 L_pad")
    k.flush_stamps()
    a("s_endpgm")
    for o in k.ool: a(o)

Cfg.g2_nomfma = False; Cfg.g2_hot = False; Cfg.g2_noload = False; Cfg.hflag = 'sc1'; Cfg.seg7 = 4; Cfg.nearly = 6; Cfg.binit = 0; Cfg.cap = 16; Cfg.la = 5; Cfg.x_nohst = False; Cfg.spf = None; Cfg.spfw = True; Cfg.n0 = 8; Cfg.n1 = 3; Cfg.cap0 = 16; Cfg.capseg = 0; Cfg.ssmf = ''; Cfg.cap2 = 9; Cfg.nl = 13; Cfg.pk0 = True; Cfg.fsleep = 1; Cfg.dynsig = None; Cfg.urst = 0; Cfg.x_nop2 = False; Cfg.psleep = 0; Cfg.hsplit = True; Cfg.asigpos = 16; Cfg.apeek = 3; Cfg.bpeek = 8; Cfg.earlyrd = 8; Cfg.diag2 = None; Cfg.wsoff = 0; Cfg.lst = None; Cfg.hgroups = tuple(range(8)); Cfg.htouch = 1; Cfg.urfirst = False; Cfg.e0seg = 5; Cfg.mseg = 1; Cfg.nps = 2; Cfg.pdelay = 0; Cfg.upos = 2; Cfg.hold = (2,); Cfg.uwait = 3; Cfg.dseg = -1; Cfg.bgn = 1; Cfg.g1prio = 1; Cfg.n2 = 4; Cfg.x_noy = False; Cfg.x_noconv = False; Cfg.x_nogelu = False; Cfg.x_nog2 = False; Cfg.x_trim = False; Cfg.kvf = 'nt'; Cfg.hwhat = ('', 'ws', '', ''); Cfg.hfull = False; Cfg.hold0 = 0; Cfg.np = 3; Cfg.lah = 12; Cfg.ldt = (0, 2); Cfg.snake = True; Cfg.ucopy = True; Cfg.xlds = True; Cfg.tprio = 0; Cfg.jitter = None; Cfg.usig = (5,0); Cfg.upk = 2; Cfg.g2p = 0; Cfg.mload = (1, 5); Cfg.chain = False; Cfg.bql = 13; Cfg.bq2 = 21; Cfg.page = True; Cfg.mpage = 0; Cfg.tolog = False; Cfg.xorord = False; Cfg.split0 = True; Cfg.xflip = 0; Cfg.amp2 = False; Cfg.uarr = 8; Cfg.uarr_d = 5; Cfg.w2x = False; Cfg.bq = 10; Cfg.rdnow = False; Cfg.coarse = False
HEADER = open("recurrent_scan__ssm_conv_h3__dense_activation_gelu__prompt.s.ref").read().split("; @launch")[0]
def full(cfg):
    kp = K(cfg); prologue(kp)
    km = K(cfg); km.role = 'm'; km.a.nlabel = 1000; gen_m(km)
    kx = K(cfg); kx.role = 'x'; gen_x(kx)
    errs = check(kp.a.lines + km.a.lines) + check(kp.a.lines + kx.a.lines)
    if cfg.tolog:
        import re as _re
        site = [0]
        for kk in (km, kx):
            out = []; L = kk.a.lines; i = 0; shift = 0
            while i < len(L):
                out.append(L[i])
                if _re.match(rf"s_cmp_gt_u32 s{S_SPIN}, \d+", L[i]):
                    lab = f"Lto_{site[0]}"
                    add = [f"s_cbranch_scc0 {lab}", f"s_lshl_b32 s{S_ST}, s2, 16", f"s_lshl_b32 s{S_ST+1}, s{S_WAVE}, 8", f"s_or_b32 s{S_ST}, s{S_ST}, s{S_ST+1}", f"s_or_b32 s{S_ST}, s{S_ST}, 0x80",
                           f"s_atomic_swap s{S_ST}, s[{P_DBG}:{P_DBG+1}], {64 + 4*site[0]}", f"s_mov_b32 s{S_ST+1}, s{S_PV}", f"s_atomic_swap s{S_ST+1}, s[{P_DBG}:{P_DBG+1}], 60", L[i], f"{lab}:"]
                    print("site", site[0], kk.role, L[max(i-4,0):i], file=sys.stderr)
                    out += add; site[0] += 1
                i += 1
            kk.a.lines = out
    a = Asm()
    a.lines = kp.a.lines + km.a.lines[:km.split] + ["L_X:"] + kx.a.lines + km.a.lines[km.split:] + ["L_end:", "s_endpgm", "L_code_end:"]
    for e in errs: print(e, file=sys.stderr)
    assert not errs
    t = HEADER + f"; @launch grid=(256,1,1) block=(512,1,1) lds={LDS_BYTES}\n"
    t += """; One persistent launch, 256 workgroups (one per CU) of 8 waves; generated by gen/gen.py.
;   waves 0-3 (M): row statistics, GEMM1, GELU, long convolution, final gate/output
; Hand-offs between workgroups (row statistics, u = kv transposed, h, y) go through d_ws with write-through stores;
; workgroups 0-7 zero the counters and statistics words and announce that in d_debug before anyone uses them.
"""
    t += f'.amdgcn_target "amdgcn-amd-amdhsa--gfx950"\n.text\n.globl {NAME}\n{".p2align 12" if cfg.page else ""}\n.p2align 8\n.type {NAME},@function\n'
    t += a.text()
    t += f'''.section .rodata,"a"
.p2align 6
.amdhsa_kernel {NAME}
  .amdhsa_next_free_vgpr 256
  .amdhsa_next_free_sgpr 102
  .amdhsa_accum_offset 256
  .amdhsa_group_segment_fixed_size 0
  .amdhsa_kernarg_size 112
  .amdhsa_user_sgpr_count 2
  .amdhsa_user_sgpr_kernarg_segment_ptr 1
  .amdhsa_system_sgpr_workgroup_id_x 1
  .amdhsa_float_denorm_mode_32 3
.end_amdhsa_kernel
'''
    return t
if __name__ == "__main__":
    cfg = Cfg()
    for kv in sys.argv[2:]:
        kk, val = kv.split("=", 1); assert hasattr(cfg, kk), kk; setattr(cfg, kk, eval(val))
    open(sys.argv[1], "w").write(full(cfg))
```
